```python
import torch

def _softmax(x, axis=-1):
    return torch.softmax(x, dim=axis)
def _gelu(x):
    return torch.nn.functional.gelu(x, approximate="tanh")
def _silu(x):
    return torch.nn.functional.silu(x)
def _sigmoid(x):
    return torch.sigmoid(x)
def _layernorm(x, axis=-1, eps=1e-5):
    m = x.mean(dim=axis, keepdim=True)
    v = x.var(dim=axis, keepdim=True, unbiased=False)
    return (x - m) / torch.sqrt(v + eps)
def _scatter_add(tgt, idx, src, axis=0):
    return tgt.clone().index_add_(axis, idx, src)
def _segment_sum(src, seg, n):
    out = torch.zeros((n,) + src.shape[1:], dtype=src.dtype)
    return out.index_add_(0, seg, src)
def _pad(x, pw):
    flat = tuple(v for pair in reversed(pw) for v in pair)
    return torch.nn.functional.pad(x, flat)

kernel_name = 'standalone__edge_featured_mpnn_gatedgcn__graph'

def setup_inputs():

    _w = (lambda a: (lambda t: t.to(torch.bfloat16) if t.is_floating_point() else t)(torch.as_tensor(a)))
    N, deg, D, De = 12500, 32, 128, max(16, 1)
    E = N * deg
    return {
        "x": _w((lambda *s: torch.randn(*s, dtype=torch.bfloat16) * 0.4)(N, D)),
        "e_attr": _w((lambda *s: torch.randn(*s, dtype=torch.bfloat16) * 0.8)(E, De)),
        "src": _w((lambda lo, hi, *s: torch.randint(lo, hi, s))(0, N, E).to(torch.int64)),
        "dst": _w((lambda lo, hi, *s: torch.randint(lo, hi, s))(0, N, E).to(torch.int64)),
        "w_a": _w((lambda *s: torch.randn(*s, dtype=torch.bfloat16) * 0.4)(D, D)),
        "w_b": _w((lambda *s: torch.randn(*s, dtype=torch.bfloat16) * 0.4)(D, D)),
        "w_c": _w((lambda *s: torch.randn(*s, dtype=torch.bfloat16) * 0.8)(De, D)),
        "w_u": _w((lambda *s: torch.randn(*s, dtype=torch.bfloat16) * 0.05)(D, D)),
        "w_v": _w((lambda *s: torch.randn(*s, dtype=torch.bfloat16) * 0.05)(D, D)),
    }

def reference(x, e_attr, src, dst, w_a, w_b, w_c, w_u, w_v):
    N, D = x.shape
    hv = x @ w_v
    g = x[dst] @ w_a + x[src] @ w_b + e_attr @ w_c
    eta = _sigmoid(g)
    denom = _segment_sum(eta, dst, N) + 1e-6
    eta_n = eta / denom[dst]
    agg = _segment_sum(eta_n * hv[src], dst, N)
    z = x @ w_u + agg
    relu_z = torch.where(z > 0, z, 0 * z)
    return x + relu_z
```

```python
import sys

N = 12500
E = 400000
NS = 125
CH = 3200
NGEMM = 196
WS_TAB = 0
WS_REC = 0x620000
WS_OFF = 0x7B0000
WS_WOP = 0x830000
WS_END = 0x840000
LOG2E = 0x3fb8aa3b

class A:
    def __init__(self):
        self.l = []
    def __call__(self, s):
        for line in s.strip("\n").split("\n"):
            line = line.strip()
            if not line:
                continue
            if line.endswith(":"):
                self.l.append(line)
            else:
                self.l.append("    " + line)
    def text(self):
        return "\n".join(self.l) + "\n"

def vr(a, n):
    return f"v[{a}:{a+n-1}]"

def srd(a, d, base, nbytes, w3=0x00020000, add=0, stride=0):
    if add:
        a(f"s_add_u32 s{d}, s{base}, {add:#x}")
        a(f"s_addc_u32 s{d+1}, s{base+1}, 0")
    else:
        a(f"s_mov_b32 s{d}, s{base}")
        a(f"s_mov_b32 s{d+1}, s{base+1}")
    if stride:
        a(f"s_or_b32 s{d+1}, s{d+1}, {stride << 16:#x}")
    a(f"s_mov_b32 s{d+2}, {nbytes:#x}")
    a(f"s_mov_b32 s{d+3}, {w3:#x}")

MF = "v_mfma_f32_32x32x16_bf16"

def gen_k1(a):
    a("k1_kernel:")
    a(f"s_cmp_ge_u32 s2, {NS + NGEMM + 1}")
    a("s_cbranch_scc1 K1_END")
    a("s_load_dwordx8 s[4:11], s[0:1], 0")
    a("s_load_dwordx4 s[12:15], s[0:1], 32")
    a("s_load_dwordx4 s[16:19], s[0:1], 56")
    a("s_load_dwordx2 s[20:21], s[0:1], 88")
    a("v_lshrrev_b32 v1, 6, v0")
    a("v_and_b32 v2, 63, v0")
    a("v_readfirstlane_b32 s3, v1")
    a(f"s_cmp_lt_u32 s2, {NS}")
    a("s_cbranch_scc1 K1_SORT")
    a("s_waitcnt lgkmcnt(0)")
    a(f"s_cmp_eq_u32 s2, {NS + NGEMM}")
    a("s_cselect_b32 s24, s12, s14")
    a("s_cselect_b32 s25, s13, s15")
    a("s_cselect_b32 s28, s16, s18")
    a("s_cselect_b32 s29, s17, s19")
    a("s_mov_b32 s26, 32768")
    a("s_mov_b32 s27, 0x00020000")
    a("s_mov_b32 s30, 32768")
    a("s_mov_b32 s31, 0x00020000")
    srd(a, 32, 4, N * 256)
    srd(a, 36, 20, N * 512, add=WS_TAB)
    srd(a, 40, 20, 65536, add=WS_WOP)
    a("v_lshrrev_b32 v3, 4, v2")
    a("v_lshlrev_b32 v4, 2, v3")
    a("v_and_b32 v5, 15, v2")
    a("v_xor_b32 v5, v5, v4")
    a("v_lshlrev_b32 v5, 4, v5")
    a("v_lshl_add_u32 v5, v3, 8, v5")
    a("s_lshl_b32 s22, s3, 12")
    a("s_mov_b32 m0, s22")
    a("s_add_u32 s23, s22, 32768")
    for i in range(4):
        a(f"buffer_load_dwordx4 v5, s[24:27], s22 offen offset:{i*1024} lds")
    a("s_mov_b32 m0, s23")
    a("s_nop 0")
    for i in range(4):
        a(f"buffer_load_dwordx4 v5, s[28:31], s22 offen offset:{i*1024} lds")
    a(f"s_sub_u32 s44, s2, {NS}")
    a("s_lshl_b32 s44, s44, 1")
    a("s_lshr_b32 s45, s3, 2")
    a("s_add_u32 s44, s44, s45")
    a("s_lshl_b32 s45, s44, 13")
    a("v_and_b32 v6, 31, v2")
    a("v_lshrrev_b32 v7, 5, v2")
    a("v_lshlrev_b32 v8, 8, v6")
    a("v_lshl_add_u32 v8, v7, 4, v8")
    XA = 32
    for kk in range(8):
        a(f"buffer_load_dwordx4 {vr(XA+4*kk,4)}, v8, s[32:35], s45 offen offset:{kk*32}")
    a("s_and_b32 s46, s3, 3")
    a("v_bfe_u32 v9, v2, 2, 2")
    a("v_lshl_add_u32 v10, v7, 3, v9")
    a("v_lshlrev_b32 v10, 8, v10")
    a("v_xor_b32 v11, s46, v9")
    a("v_lshl_add_u32 v10, v11, 6, v10")
    a("v_bfe_u32 v11, v2, 4, 1")
    a("v_lshl_add_u32 v10, v11, 5, v10")
    a("v_and_b32 v11, 3, v2")
    a("v_lshl_add_u32 v10, v11, 3, v10")
    a("s_waitcnt vmcnt(8)")
    a("s_barrier")
    W0, W1 = 64, 96
    for kk in range(8):
        for u in range(2):
            a(f"ds_read_b64_tr_b16 {vr(W0+4*kk+2*u,2)}, v10 offset:{kk*4096+u*1024}")
        for u in range(2):
            a(f"ds_read_b64_tr_b16 {vr(W1+4*kk+2*u,2)}, v10 offset:{32768+kk*4096+u*1024}")
        if kk % 2 == 1:
            pass
    a(f"s_cmp_eq_u32 s2, {NS + NGEMM}")
    a("s_cbranch_scc1 K1_PREP")
    AB, AV = 128, 144
    a("s_waitcnt vmcnt(0)")
    for kk in range(8):
        if kk == 0:
            a("s_waitcnt lgkmcnt(15)")
        rem = 32 - 4 * (kk + 1)
        a(f"s_waitcnt lgkmcnt({min(rem,15)})")
        cb = "0" if kk == 0 else vr(AB, 16)
        cv = "0" if kk == 0 else vr(AV, 16)
        a(f"{MF} {vr(AB,16)}, {vr(XA+4*kk,4)}, {vr(W0+4*kk,4)}, {cb}")
        a(f"{MF} {vr(AV,16)}, {vr(XA+4*kk,4)}, {vr(W1+4*kk,4)}, {cv}")
    a("s_lshl_b32 s47, s44, 14")
    a("s_lshl_b32 s48, s46, 7")
    a("s_add_u32 s47, s47, s48")
    a("s_add_u32 s48, s47, 4096")
    a("s_add_u32 s49, s47, 8192")
    a("s_add_u32 s50, s47, 12288")
    a("v_lshlrev_b32 v12, 2, v6")
    a("v_lshl_add_u32 v12, v7, 11, v12")
    a(f"s_mov_b32 s51, {LOG2E:#x}")
    a("s_mov_b32 s52, 0x7f7fffff")
    a("s_mov_b32 s53, 0x7fffffff")
    a("s_nop 7")
    VP, VN, M = 64, 72, 80
    for i in range(8):
        a(f"v_cvt_pk_bf16_f32 v{VP+i}, v{AV+2*i}, v{AV+2*i+1}")
        a(f"v_cvt_pk_bf16_f32 v{VN+i}, -v{AV+2*i}, -v{AV+2*i+1}")
    for r in range(16):
        a(f"v_mul_f32_e64 v{M+r}, |v{AB+r}|, s51")
    for r in range(16):
        a(f"v_sub_u32_sdwa v{M+r}, v{M+r}, sext(v{VN+r//2}) dst_sel:DWORD dst_unused:UNUSED_PAD src0_sel:DWORD src1_sel:WORD_{r&1}")
    for r in range(16):
        a(f"v_med3_i32 v{M+r}, v{M+r}, 0, s52")
    for r in range(16):
        a(f"v_bfi_b32 v{M+r}, s53, v{M+r}, v{AB+r}")
    for r in range(16):
        a(f"v_mov_b32_sdwa v{M+r}, v{VP+r//2} dst_sel:WORD_0 dst_unused:UNUSED_PRESERVE src0_sel:WORD_{r&1}")
    a("s_nop 0")
    for r in range(16):
        a(f"buffer_store_dword v{M+r}, v12, s[36:39], s{47+(r>>2)} offen offset:{(r&3)*512}")
    a("s_endpgm")
    a("K1_PREP:")
    a("s_lshl_b32 s47, s3, 13")
    a("s_add_u32 s48, s47, 4096")
    a("v_lshlrev_b32 v12, 4, v2")
    a("s_waitcnt lgkmcnt(0)")
    a("s_cmp_ge_u32 s3, 4")
    a("s_cbranch_scc1 K1_PREP_U")
    for kk in range(8):
        a(f"buffer_store_dwordx4 {vr(W0+4*kk,4)}, v12, s[40:43], s{47+(kk>>2)} offen offset:{(kk&3)*1024}")
    a("s_endpgm")
    a("K1_PREP_U:")
    for kk in range(8):
        a(f"buffer_store_dwordx4 {vr(W1+4*kk,4)}, v12, s[40:43], s{47+(kk>>2)} offen offset:{(kk&3)*1024}")
    a("s_endpgm")
    a("K1_SORT:")
    a("v_lshlrev_b32 v3, 3, v0")
    a("v_mov_b32 v4, 0")
    a("v_mov_b32 v5, 0")
    a("ds_write_b64 v3, v[4:5]")
    a("v_lshlrev_b32 v6, 4, v0")
    a(f"s_mul_i32 s22, s2, {CH*4}")
    a("s_add_u32 s23, s22, 8192")
    a("s_waitcnt lgkmcnt(0)")
    srd(a, 24, 8, E * 4)
    srd(a, 28, 10, E * 4)
    srd(a, 32, 20, E * 4, add=WS_REC)
    srd(a, 36, 20, NS * 4096, add=WS_OFF)
    D, S, RK, RC, KA = 16, 24, 32, 40, 48
    a(f"buffer_load_dwordx4 {vr(D,4)}, v6, s[28:31], s22 offen")
    a(f"buffer_load_dwordx4 {vr(S,4)}, v6, s[24:27], s22 offen")
    a(f"buffer_load_dwordx4 {vr(D+4,4)}, v6, s[28:31], s23 offen")
    a(f"buffer_load_dwordx4 {vr(S+4,4)}, v6, s[24:27], s23 offen")
    a("v_lshlrev_b32 v7, 2, v0")
    a("v_mov_b32 v8, 1")
    a(f"v_cmp_gt_u32 vcc, {(CH-2048)//4}, v0")
    a("s_mov_b64 s[40:41], vcc")
    a("s_barrier")
    def keys(lo, wait):
        a(f"s_waitcnt vmcnt({wait})")
        for i in range(lo, lo + 4):
            a(f"v_and_b32 v9, 255, v{D+i}")
            a(f"v_lshrrev_b32 v10, 6, v{D+i}")
            a("v_and_b32 v10, 12, v10")
            a(f"v_lshl_or_b32 v{KA+i}, v9, 4, v10")
            a(f"ds_add_rtn_u32 v{RK+i}, v{KA+i}, v8")
        a(f"s_waitcnt vmcnt({wait-1})")
        for i in range(lo, lo + 4):
            a(f"v_lshrrev_b32 v9, 10, v{D+i}")
            a(f"v_add_u32 v10, {(i&3) + (2048 if i >= 4 else 0)}, v7")
            a("v_lshl_or_b32 v10, v9, 12, v10")
            a(f"v_lshl_or_b32 v{RC+i}, v{S+i}, 16, v10")
    keys(0, 3)
    a("s_mov_b64 exec, s[40:41]")
    a("s_cbranch_execz K1_S1")
    keys(4, 1)
    a("K1_S1:")
    a("s_mov_b64 exec, -1")
    a("s_waitcnt lgkmcnt(0)")
    a("s_barrier")
    C, P = 64, 80
    a("v_lshlrev_b32 v11, 6, v2")
    for q in range(4):
        a(f"ds_read_b128 {vr(C+4*q,4)}, v11 offset:{16*q}")
    a("s_waitcnt lgkmcnt(3)")
    a(f"v_mov_b32 v{P}, 0")
    a(f"v_mov_b32 v{P+1}, v{C}")
    for i in range(2, 16):
        if i in (5, 9, 13):
            a(f"s_waitcnt lgkmcnt({3 - (i-1)//4})")
        a(f"v_add_u32 v{P+i}, v{P+i-1}, v{C+i-1}")
    a(f"v_add_u32 v12, v{P+15}, v{C+15}")
    a("v_mov_b32 v13, v12")
    for sh in (1, 2, 4, 8):
        a("s_nop 1")
        a(f"v_add_u32_dpp v13, v13, v13 row_shr:{sh} row_mask:0xf bank_mask:0xf")
    a("s_nop 1")
    a("v_add_u32_dpp v13, v13, v13 row_bcast:15 row_mask:0xa bank_mask:0xf")
    a("s_nop 1")
    a("v_add_u32_dpp v13, v13, v13 row_bcast:31 row_mask:0xc bank_mask:0xf")
    a("v_sub_u32 v13, v13, v12")
    for i in range(16):
        a(f"v_add_u32 v{P+i}, v{P+i}, v13")
    for q in range(4):
        a(f"ds_write_b128 v11, {vr(P+4*q,4)} offset:{4096+16*q}")
    a("s_cmp_lg_u32 s3, 7")
    a("s_cbranch_scc1 K1_S2")
    for i in range(16):
        a(f"v_lshl_or_b32 v{C+i}, v{C+i}, 16, v{P+i}")
    a("s_lshl_b32 s42, s2, 12")
    for q in range(4):
        a(f"buffer_store_dwordx4 {vr(C+4*q,4)}, v11, s[36:39], s42 offen offset:{16*q}")
    a("K1_S2:")
    a("s_waitcnt lgkmcnt(0)")
    def place(lo):
        for i in range(lo, lo + 4):
            a(f"ds_read_b32 v{KA+i}, v{KA+i} offset:4096")
        for i in range(lo, lo + 4):
            a(f"s_waitcnt lgkmcnt({3-(i-lo)+(i-lo)})" if False else f"s_waitcnt lgkmcnt(3)")
            a(f"v_add_lshl_u32 v{KA+i}, v{KA+i}, v{RK+i}, 2")
            a(f"ds_write_b32 v{KA+i}, v{RC+i} offset:8192")
    place(0)
    a("s_mov_b64 exec, s[40:41]")
    a("s_cbranch_execz K1_S3")
    a("s_waitcnt lgkmcnt(0)")
    place(4)
    a("K1_S3:")
    a("s_mov_b64 exec, -1")
    a("s_waitcnt lgkmcnt(0)")
    a("s_barrier")
    a(f"ds_read_b128 {vr(16,4)}, v6 offset:8192")
    a(f"ds_read_b128 {vr(20,4)}, v6 offset:16384")
    a("s_waitcnt lgkmcnt(1)")
    a(f"buffer_store_dwordx4 {vr(16,4)}, v6, s[32:35], s22 offen")
    a("s_mov_b64 exec, s[40:41]")
    a("s_cbranch_execz K1_END")
    a("s_waitcnt lgkmcnt(0)")
    a(f"buffer_store_dwordx4 {vr(20,4)}, v6, s[32:35], s23 offen")
    a("K1_END:")
    a("s_endpgm")

NT = 66
L_ZERO = 0
L_REC = 6144
L_CH = L_REC + NT * 128
L_O = 23552
L_EA = L_O + NT * 1024
L_CNT = L_EA + (NT + 1) * 1024
L_TOTAL = L_CNT + 64
MID0, MID1, BND = 18 * 32, 50 * 32, 34 * 32
PK = 4

vIDX, vEA, vOT, vS, vSa, vT0, vT1 = 1, 2, 3, 4, 5, 6, 7
PAIR = 8
SA = 24
WC, AC, AL, UP = 32, 36, 40, 44
DEN, NUM = 52, 68
G = [84, 100]
RAW = [116, 132, 148]
RECQ = [24, 28, 164]
sW, sCG, sBETA, sMODE, sROUND, sFIRST, sSWAP = 3, 56, 57, 58, 59, 60, 61
sT, sTEND, sSW, sRDY, sF0, sF1 = 62, 63, 64, 65, 66, 67
sC = 68
sMASK = 72
sTMP = 74
sRET = 84

def idx_reads(a, tile_rel, half):
    for k in range(8):
        r = half * 8 + k
        off = tile_rel * 128 + (8 * (r >> 2) + (r & 3)) * 4 + 2
        a(f"ds_read_u16 v{PAIR+2*k}, v{vIDX} offset:{off}")

def gather(k, dst):
    return f"buffer_load_dword v{dst}, {vr(PAIR+2*k,2)}, s[32:35], 0 idxen offen"

def ms_list(gx):
    return [f"{MF} {vr(DEN,16)}, {vr(SA,4)}, {vr(gx,4)}, {vr(DEN,16)}",
            f"{MF} {vr(NUM,16)}, {vr(SA,4)}, {vr(gx+8,4)}, {vr(NUM,16)}",
            f"{MF} {vr(DEN,16)}, {vr(SA+4,4)}, {vr(gx+4,4)}, {vr(DEN,16)}",
            f"{MF} {vr(NUM,16)}, {vr(SA+4,4)}, {vr(gx+12,4)}, {vr(NUM,16)}"]

def gen_k2(a, name):
    stubs = A()
    a(f"{name}:")
    a("s_cmp_ge_u32 s2, 256")
    a("s_cbranch_scc1 K2_END")
    a("s_load_dwordx8 s[4:11], s[0:1], 0")
    a("s_load_dwordx2 s[12:13], s[0:1], 48")
    a("s_load_dwordx2 s[14:15], s[0:1], 72")
    a("s_load_dwordx2 s[16:17], s[0:1], 88")
    a("v_lshrrev_b32 v1, 6, v0")
    a(f"s_mov_b32 s{sMODE}, 0")
    a(f"v_readfirstlane_b32 s{sW}, v1")
    a(f"s_mov_b32 s{sROUND}, 0")
    a(f"s_mov_b32 s{sFIRST}, 1")
    a(f"s_mov_b32 s{sSWAP}, 0")
    a(f"s_and_b32 s{sCG}, s{sW}, 3")
    a(f"s_bfe_u32 s{sBETA}, s{sW}, 0x10002")
    a("s_waitcnt lgkmcnt(0)")
    srd(a, 44, 16, NS * 4096, add=WS_OFF)
    srd(a, 20, 4, N * 256)
    srd(a, 28, 16, WS_END)
    srd(a, 40, 12, 4096)
    srd(a, 24, 6, E * 32)
    srd(a, 32, 16, N, add=WS_TAB, stride=512)
    srd(a, 36, 14, N * 256)
    srd(a, 48, 8, E * 4)
    srd(a, 52, 10, E * 4)
    a(f"s_cmp_eq_u32 s{sW}, 8")
    a("s_cbranch_scc1 K2_ROUND")
    a("v_lshrrev_b32 v2, 2, v0")
    a("v_and_b32 v3, 3, v0")
    a("v_lshlrev_b32 v4, 12, v2")
    a("v_lshl_add_u32 v4, v3, 2, v4")
    a(f"s_lshl_b32 s{sTMP}, s2, 4")
    a(f"buffer_load_dword v1, v4, s[44:47], s{sTMP} offen")
    a("v_and_b32 v5, 3, v0")
    a("v_bfe_u32 v6, v0, 2, 1")
    a("v_lshl_or_b32 v5, v6, 3, v5")
    a("v_bfe_u32 v6, v0, 3, 1")
    a("v_lshl_or_b32 v5, v6, 2, v5")
    a("v_bfe_u32 v6, v0, 4, 1")
    a("v_lshl_or_b32 v5, v5, 2, v6")
    a("v_lshlrev_b32 v5, 16, v5")
    a("v_bfe_u32 v6, v0, 5, 1")
    a("v_lshl_or_b32 v5, v6, 4, v5")
    a(f"s_lshl_b32 s{sTMP+1}, s{sBETA}, 17")
    a(f"s_lshl_b32 s{sTMP+2}, s2, 8")
    a(f"s_add_u32 s{sTMP+1}, s{sTMP+1}, s{sTMP+2}")
    XA, WA, WU, ACCA, ACCU, WCR = RAW[0], DEN, G[0], RAW[2], PAIR, UP
    for kk in range(8):
        a(f"buffer_load_dwordx4 {vr(XA+4*kk,4)}, v5, s[20:23], s{sTMP+1} offen offset:{kk*32}")
    a("v_and_b32 v7, 63, v0")
    a("v_lshlrev_b32 v7, 4, v7")
    a(f"s_lshl_b32 s{sTMP+2}, s{sCG}, 13")
    a(f"s_add_u32 s{sTMP+2}, s{sTMP+2}, {WS_WOP:#x}")
    a(f"s_add_u32 s{sTMP+3}, s{sTMP+2}, 4096")
    a(f"s_add_u32 s{sTMP+4}, s{sTMP+2}, 32768")
    a(f"s_add_u32 s{sTMP+5}, s{sTMP+2}, 36864")
    for kk in range(8):
        a(f"buffer_load_dwordx4 {vr(WA+4*kk,4)}, v7, s[28:31], s{sTMP+2+(kk>>2)} offen offset:{(kk&3)*1024}")
    for kk in range(8):
        a(f"buffer_load_dwordx4 {vr(WU+4*kk,4)}, v7, s[28:31], s{sTMP+4+(kk>>2)} offen offset:{(kk&3)*1024}")
    a("v_and_b32 v7, 31, v0")
    a("v_lshlrev_b32 v7, 1, v7")
    a("v_lshl_or_b32 v7, v6, 11, v7")
    a(f"s_lshl_b32 s{sTMP+2}, s{sCG}, 6")
    for j in range(8):
        a(f"buffer_load_ushort v{WCR+j}, v7, s[40:43], s{sTMP+2} offen offset:{j*256}")
    a("K2_ROUND:")
    Z = RECQ[0]
    for i in range(4):
        a(f"v_mov_b32 v{Z+i}, 0")
    a("v_lshlrev_b32 v6, 4, v0")
    a(f"v_add_u32 v7, {5*9216}, v6")
    for k in range(5):
        a(f"ds_write_b128 v6, {vr(Z,4)} offset:{k*9216}")
    for k in range(5):
        a(f"ds_write_b128 v7, {vr(Z,4)} offset:{k*9216}")
    a(f"s_cmp_eq_u32 s{sW}, 8")
    a("s_cbranch_scc0 K2_CONS1")
    a(f"v_mov_b32 v8, {MID0-1}")
    a(f"v_mov_b32 v9, {MID0}")
    a(f"v_mov_b32 v10, {MID1-1}")
    a(f"v_mov_b32 v11, {MID1}")
    a(f"v_mov_b32 v12, {L_CNT}")
    a("ds_write_b128 v12, v[8:11]")
    a(f"ds_write_b32 v12, v{Z} offset:16")
    a("s_waitcnt lgkmcnt(0)")
    a("s_barrier")
    a("s_branch K2_BAR2")
    a("K2_CONS1:")
    a("s_waitcnt lgkmcnt(0)")
    a("s_barrier")
    a(f"s_cmp_lg_u32 s{sMODE}, 0")
    a("s_cbranch_scc1 K2_SLOWSRC")
    a("v_lshrrev_b32 v2, 2, v0")
    a("v_and_b32 v3, 3, v0")
    a(f"v_mul_u32_u24 v4, {CH*4}, v2")
    a("v_lshlrev_b32 v2, 3, v4")
    a("s_waitcnt vmcnt(32)")
    a("v_and_b32 v5, 0xffff, v1")
    a("v_lshl_add_u32 v4, v5, 2, v4")
    a("v_lshrrev_b32 v1, 16, v1")
    a(f"s_mov_b32 s{sTMP}, {WS_REC:#x}")
    for q in range(3):
        a(f"buffer_load_dwordx4 {vr(RECQ[q],4)}, v4, s[28:31], s{sTMP} offen offset:{16*q}")
    a("K2_ALLOC:")
    a("v_and_b32 v5, 1, v3")
    a("v_lshl_add_u32 v5, v5, 1, -1")
    a("v_mul_i32_i24 v6, v5, v1")
    a(f"v_lshlrev_b32 v7, 2, v3")
    a(f"v_add_u32 v7, {L_CNT}, v7")
    a("ds_add_rtn_u32 v7, v7, v6")
    a(f"s_cmp_eq_u32 s{sFIRST}, 0")
    a("s_cbranch_scc1 K2_NOGEMM")
    a("s_waitcnt vmcnt(19)")
    for kk in range(8):
        c = "0" if kk == 0 else vr(ACCA, 16)
        a(f"{MF} {vr(ACCA,16)}, {vr(XA+4*kk,4)}, {vr(WA+4*kk,4)}, {c}")
    a("s_waitcnt vmcnt(11)")
    for kk in range(8):
        c = "0" if kk == 0 else vr(ACCU, 16)
        a(f"{MF} {vr(ACCU,16)}, {vr(XA+4*kk,4)}, {vr(WU+4*kk,4)}, {c}")
    a("s_waitcnt vmcnt(3)")
    a(f"s_mov_b32 s{sTMP}, {LOG2E:#x}")
    for j in range(8):
        a(f"v_lshlrev_b32 v{WCR+j}, 16, v{WCR+j}")
    for j in range(8):
        a(f"v_mul_f32 v{WCR+j}, s{sTMP}, v{WCR+j}")
    for j in range(4):
        a(f"v_cvt_pk_bf16_f32 v{WC+j}, v{WCR+2*j}, v{WCR+2*j+1}")
    for r in range(16):
        a(f"v_mul_f32 v{ACCA+r}, s{sTMP}, v{ACCA+r}")
    for j in range(8):
        a(f"v_cvt_pk_bf16_f32 v{AC+j}, v{ACCA+2*j}, v{ACCA+2*j+1}")
    for r in range(32):
        a(f"v_mov_b32 v{DEN+r}, 0")
    for j in range(8):
        a(f"v_cvt_pk_bf16_f32 v{UP+j}, v{ACCU+2*j}, v{ACCU+2*j+1}")
    a(f"s_mov_b32 s{sFIRST}, 0")
    a("K2_NOGEMM:")
    a("s_waitcnt lgkmcnt(0)")
    a("v_add_u32 v6, v7, v6")
    a("v_add_u32 v6, 1, v6")
    a(f"v_cmp_gt_u32 vcc, {NT*32+2}, v6")
    a("v_lshlrev_b32 v6, 2, v7")
    a("v_lshlrev_b32 v7, 5, v7")
    a("v_cndmask_b32 v1, 0, v1, vcc")
    a("v_lshlrev_b32 v3, 5, v5")
    a("v_lshlrev_b32 v5, 2, v5")
    T1, T2 = PAIR, PAIR + 2
    a(f"v_mov_b32 v{T2}, 0x3f80")
    a("K2_PLACE:")
    a("s_waitcnt vmcnt(0)")
    for s in range(12):
        rec = RECQ[s >> 2] + (s & 3)
        a(f"v_cmpx_lt_u32 vcc, {s}, v1")
        a("s_cbranch_execz K2_PLACED")
        a(f"v_bfe_u32 v{T1}, v{rec}, 12, 4")
        a(f"ds_write2st64_b32 v6, v{rec}, v2 offset0:{L_REC//256} offset1:{L_CH//256}")
        a(f"v_lshl_add_u32 v{T1}, v{T1}, 1, v7")
        a("v_add_u32 v6, v6, v5")
        a(f"ds_write_b16 v{T1}, v{T2} offset:{L_O}")
        a("v_add_u32 v7, v7, v3")
    a("v_cmpx_lt_u32 vcc, 12, v1")
    a("s_cbranch_execz K2_PLACED")
    a("v_subrev_u32 v1, 12, v1")
    a("v_add_u32 v4, 48, v4")
    a(f"s_mov_b32 s{sTMP}, {WS_REC:#x}")
    a("s_waitcnt lgkmcnt(0)")
    for q in range(3):
        a(f"buffer_load_dwordx4 {vr(RECQ[q],4)}, v4, s[28:31], s{sTMP} offen offset:{16*q}")
    a("s_branch K2_PLACE")
    a("K2_PLACED:")
    a("s_mov_b64 exec, -1")
    a("s_waitcnt lgkmcnt(0)")
    a("K2_BAR2:")
    a("s_barrier")
    a(f"v_mov_b32 v{vT0}, {L_CNT}")
    a(f"ds_read_b128 {vr(SA,4)}, v{vT0}")
    a("s_waitcnt lgkmcnt(0)")
    for i in range(4):
        a(f"v_readfirstlane_b32 s{sC+i}, v{SA+i}")
    a(f"s_add_i32 s{sC}, s{sC}, 1")
    a(f"s_add_i32 s{sC+2}, s{sC+2}, 1")
    a(f"s_cmp_lt_i32 s{sC}, 0")
    a("s_cbranch_scc1 K2_OVF")
    a(f"s_cmp_gt_i32 s{sC+1}, {BND}")
    a("s_cbranch_scc1 K2_OVF")
    a(f"s_cmp_lt_i32 s{sC+2}, {BND}")
    a("s_cbranch_scc1 K2_OVF")
    a(f"s_cmp_gt_i32 s{sC+3}, {NT*32}")
    a("s_cbranch_scc1 K2_OVF")
    a(f"s_lshr_b32 s{sC}, s{sC}, 5")
    a(f"s_lshr_b32 s{sC+2}, s{sC+2}, 5")
    a(f"s_add_u32 s{sC+1}, s{sC+1}, 31")
    a(f"s_lshr_b32 s{sC+1}, s{sC+1}, 5")
    a(f"s_add_u32 s{sC+3}, s{sC+3}, 31")
    a(f"s_lshr_b32 s{sC+3}, s{sC+3}, 5")
    a(f"s_cmp_eq_u32 s{sW}, 8")
    a("s_cbranch_scc1 K2_PROD")
    a(f"s_cmp_eq_u32 s{sBETA}, 0")
    a(f"s_cselect_b32 s{sF0}, s{sC}, s{sC+2}")
    a(f"s_cselect_b32 s{sTEND}, s{sC+1}, s{sC+3}")
    a(f"s_cselect_b32 s{sSW}, {MID0//32}, {MID1//32}")
    a(f"s_sub_u32 s{sTEND}, s{sTEND}, s{sF0}")
    a(f"s_sub_u32 s{sSW}, s{sSW}, s{sF0}")
    a(f"s_cmp_eq_u32 s{sTEND}, 0")
    a("s_cbranch_scc1 K2_RDONE")
    a(f"s_lshl_b32 s{sTMP}, s{sF0}, 7")
    a(f"s_add_u32 s{sTMP}, s{sTMP}, {L_REC}")
    a(f"v_bfe_u32 v{vT0}, v0, 5, 1")
    a(f"v_lshl_add_u32 v{vIDX}, v{vT0}, 4, s{sTMP}")
    idx_reads(a, 0, 0)
    a(f"s_lshl_b32 s{sTMP}, s{sF0}, 10")
    a(f"s_add_u32 s{sTMP+1}, s{sTMP}, {L_O}")
    a(f"v_and_b32 v{vT1}, 31, v0")
    a(f"v_lshlrev_b32 v{vOT}, 5, v{vT1}")
    a(f"v_lshl_add_u32 v{vOT}, v{vT0}, 4, v{vOT}")
    a(f"v_add_u32 v{vOT}, s{sTMP+1}, v{vOT}")
    a(f"v_add_u32 v{vEA}, {L_EA-L_O}, v{vOT}")
    a(f"v_bfe_u32 v{vSa}, v0, 2, 2")
    a(f"v_lshl_add_u32 v{vSa}, v{vT0}, 2, v{vSa}")
    a(f"v_lshlrev_b32 v{vSa}, 5, v{vSa}")
    a(f"v_and_b32 v{vT1}, 1, v0")
    a(f"v_lshl_add_u32 v{vSa}, v{vT1}, 4, v{vSa}")
    a(f"v_bfe_u32 v{vT1}, v0, 1, 1")
    a(f"v_lshl_add_u32 v{vSa}, v{vT1}, 3, v{vSa}")
    a(f"v_add_u32 v{vSa}, s{sTMP+1}, v{vSa}")
    a(f"v_and_b32 v{PAIR+1}, 31, v0")
    a(f"s_lshl_b32 s{sTMP}, s{sCG}, 7")
    a(f"v_lshl_add_u32 v{PAIR+1}, v{PAIR+1}, 2, s{sTMP}")
    for k in range(1, 8):
        a(f"v_mov_b32 v{PAIR+2*k+1}, v{PAIR+1}")
    a("s_waitcnt lgkmcnt(0)")
    for k in range(8):
        a(gather(k, RAW[0] + k))
    idx_reads(a, 0, 1)
    a(f"s_cmp_eq_u32 s{sSW}, 0")
    a(f"s_cselect_b32 s{sTMP}, 1, 0")
    a(f"s_mov_b32 s{sMASK}, 0x0000ffff")
    a(f"s_cselect_b32 s{sMASK}, 0xffff0000, s{sMASK}")
    a(f"s_mov_b32 s{sMASK+1}, s{sMASK}")
    a(f"s_cmp_eq_u32 s{sTMP}, s{sSWAP}")
    a("s_cbranch_scc1 K2_NOSWAP")
    for j in range(4):
        a(f"v_swap_b32 v{AC+j}, v{AL+j}")
    a(f"s_mov_b32 s{sSWAP}, s{sTMP}")
    a("K2_NOSWAP:")
    a(f"v_cndmask_b32_e64 v{vS}, 0, v{vSa}, s[{sMASK}:{sMASK+1}]")
    a("s_waitcnt lgkmcnt(0)")
    for k in range(8):
        a(gather(k, RAW[0] + 8 + k))
    idx_reads(a, 1, 0)
    for r in range(16):
        a(f"v_mov_b32 v{G[1]+r}, 0")
    a("s_waitcnt lgkmcnt(0)")
    for k in range(8):
        a(gather(k, RAW[1] + k))
    idx_reads(a, 1, 1)
    a(f"s_mov_b32 s{sT}, 0")
    a(f"v_mov_b32 v{vT0}, {L_CNT+16}")
    a("s_waitcnt lgkmcnt(0)")
    for k in range(8):
        a(gather(k, RAW[1] + 8 + k))
    a("K2_POLL0:")
    a(f"ds_read_b32 v{vT1}, v{vT0}")
    a("s_waitcnt lgkmcnt(0)")
    a(f"v_readfirstlane_b32 s{sRDY}, v{vT1}")
    a(f"s_cmp_eq_u32 s{sRDY}, 0")
    a("s_cbranch_scc1 K2_POLL0")
    a(f"ds_read_b128 {vr(SA,4)}, v{vEA}")
    a(f"ds_read_b128 {vr(SA+4,4)}, v{vOT}")
    a("s_waitcnt vmcnt(16) lgkmcnt(0)")
    a(f"{MF} {vr(G[0],16)}, {vr(SA,4)}, {vr(WC,4)}, {vr(RAW[0],16)}")
    a(f"{MF} {vr(G[0],16)}, {vr(SA+4,4)}, {vr(AC,4)}, {vr(G[0],16)}")
    idx_reads(a, 2, 0)
    for j in range(8):
        a(f"v_mov_b32 v{SA+j}, 0")
    a("s_nop 3")
    a(".p2align 6")
    a("K2_LOOP:")
    for ph in range(6):
        R0, R1, R2 = RAW[ph % 3], RAW[(ph + 1) % 3], RAW[(ph + 2) % 3]
        Gc, Gn = G[ph % 2], G[(ph + 1) % 2]
        ms = ms_list(Gn)
        a("s_waitcnt lgkmcnt(0)")
        for i in range(16):
            if i % 4 == 0:
                a(ms[i // 4])
            a(f"v_exp_f32_e64 v{Gc+i}, -v{Gc+i}")
            if i < 8:
                a(gather(i, R2 + i))
            if i == 8:
                idx_reads(a, ph + 2, 1)
            if i == 12:
                a(f"s_add_u32 s{sT}, s{sT}, 1")
                a(f"s_cmp_le_u32 s{sRDY}, s{sT}")
                a(f"s_cbranch_scc1 K2_POLL_{ph}")
                a(f"K2_POLLED_{ph}:")
                a(f"ds_read_b128 {vr(SA,4)}, v{vEA} offset:{(ph+1)*1024}")
                a(f"ds_read_b128 {vr(SA+4,4)}, v{vOT} offset:{(ph+1)*1024}")
                stubs(f"K2_POLL_{ph}:")
                stubs(f"ds_read_b32 v{vT1}, v{vT0}")
                stubs("s_waitcnt lgkmcnt(0)")
                stubs(f"v_readfirstlane_b32 s{sRDY}, v{vT1}")
                stubs(f"s_cmp_le_u32 s{sRDY}, s{sT}")
                stubs(f"s_cbranch_scc1 K2_POLL_{ph}")
                stubs(f"s_branch K2_POLLED_{ph}")
        a("s_waitcnt lgkmcnt(2)")
        for i in range(16):
            a(f"v_lshlrev_b32 v{R0+i}, 16, v{R0+i}")
            if i % 2 == 0:
                a(gather(i // 2, R2 + 8 + i // 2))
        for i in range(0, 16, 2):
            a(f"v_pk_add_f32 {vr(Gc+i,2)}, {vr(Gc+i,2)}, 1.0 op_sel_hi:[1,0]")
        for i in range(16):
            if i == 2:
                a(f"s_cmp_eq_u32 s{sT}, s{sSW}")
                a(f"s_cbranch_scc1 K2_SWA_{ph}")
                a(f"K2_SWAD_{ph}:")
                stubs(f"K2_SWA_{ph}:")
                for j in range(4):
                    stubs(f"v_swap_b32 v{AC+j}, v{AL+j}")
                stubs(f"s_mov_b32 s{sSWAP}, 1")
                stubs(f"s_branch K2_SWAD_{ph}")
            if i == 4:
                a("s_waitcnt vmcnt(16) lgkmcnt(0)")
                a(f"{MF} {vr(Gn,16)}, {vr(SA,4)}, {vr(WC,4)}, {vr(R1,16)}")
            if i == 8:
                a(f"{MF} {vr(Gn,16)}, {vr(SA+4,4)}, {vr(AC,4)}, {vr(Gn,16)}")
            a(f"v_rcp_f32 v{Gc+i}, v{Gc+i}")
            if i == 8:
                for u in range(4):
                    a(f"ds_read_b64_tr_b16 {vr(SA+2*u,2)}, v{vS} offset:{ph*1024+u*256}")
            if i == 9:
                idx_reads(a, ph + 3, 0)
            if i == 10:
                a(f"s_cmp_eq_u32 s{sT}, s{sSW}")
                a(f"s_cbranch_scc1 K2_SWS_{ph}")
                a(f"K2_SWSD_{ph}:")
                stubs(f"K2_SWS_{ph}:")
                stubs(f"s_mov_b32 s{sMASK}, 0xffff0000")
                stubs(f"s_mov_b32 s{sMASK+1}, 0xffff0000")
                stubs(f"v_cndmask_b32_e64 v{vS}, 0, v{vSa}, s[{sMASK}:{sMASK+1}]")
                stubs(f"s_branch K2_SWSD_{ph}")
        for i in range(0, 16, 2):
            a(f"v_pk_mul_f32 {vr(R0+i,2)}, {vr(R0+i,2)}, {vr(Gc+i,2)}")
        for i in range(8):
            a(f"v_cvt_pk_bf16_f32 v{Gc+i}, v{Gc+2*i}, v{Gc+2*i+1}")
        for i in range(8):
            a(f"v_cvt_pk_bf16_f32 v{Gc+8+i}, v{R0+2*i}, v{R0+2*i+1}")
        a(f"s_cmp_ge_u32 s{sT}, s{sTEND}")
        a(f"s_cbranch_scc1 K2_DRAIN_{ph%2}")
    a(f"v_add_u32 v{vIDX}, {6*128}, v{vIDX}")
    a(f"v_add_u32 v{vEA}, {6*1024}, v{vEA}")
    a(f"v_add_u32 v{vOT}, {6*1024}, v{vOT}")
    a(f"v_add_u32 v{vSa}, {6*1024}, v{vSa}")
    a(f"v_cndmask_b32_e64 v{vS}, 0, v{vSa}, s[{sMASK}:{sMASK+1}]")
    a("s_branch K2_LOOP")
    a.l += stubs.l
    for p in range(2):
        a(f"K2_DRAIN_{p}:")
        a("s_waitcnt lgkmcnt(0)")
        for m in ms_list(G[p]):
            a(m)
        if p == 0:
            a("s_branch K2_RDONE")
    a("K2_RDONE:")
    a(f"s_cmp_eq_u32 s{sMODE}, 0")
    a("s_cbranch_scc1 K2_EPI")
    a(f"s_cmp_eq_u32 s{sROUND}, 999")
    a("s_cbranch_scc1 K2_EPI")
    a("K2_NEXT:")
    a(f"s_add_u32 s{sROUND}, s{sROUND}, 1")
    a("s_waitcnt vmcnt(0) lgkmcnt(0)")
    a("s_barrier")
    a("s_branch K2_ROUND")
    a("K2_OVF:")
    a(f"s_mov_b32 s{sMODE}, 1")
    a(f"s_mov_b32 s{sROUND}, 0")
    a("s_barrier")
    a("s_branch K2_ROUND")
    a("K2_SLOWSRC:")
    a(f"s_mul_i32 s{sTMP}, s{sROUND}, 1600")
    a("v_lshlrev_b32 v4, 2, v0")
    a(f"buffer_load_dword v3, v4, s[52:55], s{sTMP} offen")
    a(f"buffer_load_dword v2, v4, s[48:51], s{sTMP} offen")
    a(f"s_and_b32 s{sTMP+1}, s{sROUND}, 7")
    a(f"s_mul_i32 s{sTMP+1}, s{sTMP+1}, 400")
    a(f"s_lshr_b32 s{sTMP+2}, s{sROUND}, 3")
    a(f"s_mul_i32 s{sTMP+2}, s{sTMP+2}, {CH*32}")
    a(f"v_add_u32 v5, s{sTMP+1}, v0")
    a("s_waitcnt vmcnt(0)")
    a("v_lshl_or_b32 v5, v2, 16, v5")
    a("v_lshrrev_b32 v6, 10, v3")
    a(f"v_lshl_or_b32 v{RECQ[0]}, v6, 12, v5")
    a("v_and_b32 v6, 255, v3")
    a("v_cmp_eq_u32 vcc, s2, v6")
    a("s_nop 0")
    a(f"v_mov_b32 v2, s{sTMP+2}")
    a("v_cndmask_b32_e64 v1, 0, 1, vcc")
    a("v_cmp_gt_u32 vcc, 400, v0")
    a("v_bfe_u32 v3, v3, 8, 2")
    a("s_nop 0")
    a("v_cndmask_b32 v1, 0, v1, vcc")
    a("s_branch K2_ALLOC")
    a("K2_PROD:")
    a(f"s_sub_u32 s{sTMP}, s{sC+1}, s{sC}")
    a(f"s_sub_u32 s{sTMP+1}, s{sC+3}, s{sC+2}")
    a(f"s_max_u32 s{sTEND}, s{sTMP}, s{sTMP+1}")
    a("v_and_b32 v1, 63, v0")
    a("v_lshrrev_b32 v2, 1, v1")
    a("v_lshlrev_b32 v2, 2, v2")
    a("v_and_b32 v3, 1, v1")
    a("v_lshlrev_b32 v3, 4, v3")
    a(f"v_mov_b32 v4, {L_CNT+16}")
    a(f"s_mov_b32 s{sT}, 0")
    a(f"s_mov_b32 s{sTMP+6}, 0xfff")
    a("K2_PLOOP:")
    a(f"s_cmp_ge_u32 s{sT}, s{sTEND}")
    a("s_cbranch_scc1 K2_PDRAIN")
    for hb in range(2):
        a(f"s_add_u32 s{sTMP+hb}, s{sC+2*hb}, s{sT}")
        a(f"s_min_u32 s{sTMP+hb}, s{sTMP+hb}, {NT-1}")
        a(f"s_lshl_b32 s{sTMP+2+hb}, s{sTMP+hb}, 7")
        a(f"v_add_u32 v{8+hb}, s{sTMP+2+hb}, v2")
        a(f"ds_read2st64_b32 {vr(10+2*hb,2)}, v{8+hb} offset0:{L_REC//256} offset1:{L_CH//256}")
        a(f"s_lshl_b32 s{sTMP+hb}, s{sTMP+hb}, 10")
        a(f"s_add_u32 s{sTMP+hb}, s{sTMP+hb}, {L_EA}")
    for hb in range(2):
        a(f"s_waitcnt lgkmcnt({1-hb})")
        a(f"v_and_b32 v{10+2*hb}, s{sTMP+6}, v{10+2*hb}")
        a(f"v_lshl_add_u32 v{10+2*hb}, v{10+2*hb}, 5, v{11+2*hb}")
        a(f"s_mov_b32 m0, s{sTMP+hb}")
        a(f"v_add_u32 v{10+2*hb}, v{10+2*hb}, v3")
        a(f"buffer_load_dwordx4 v{10+2*hb}, s[24:27], 0 offen lds")
    a(f"s_add_u32 s{sT}, s{sT}, 1")
    a(f"s_cmp_le_u32 s{sT}, {PK}")
    a("s_cbranch_scc1 K2_PLOOP")
    a(f"s_sub_u32 s{sTMP+4}, s{sT}, {PK}")
    a(f"v_mov_b32 v5, s{sTMP+4}")
    a(f"s_waitcnt vmcnt({2*PK})")
    a("ds_write_b32 v4, v5")
    a("s_branch K2_PLOOP")
    a("K2_PDRAIN:")
    for k in range(PK - 1, 0, -1):
        a(f"s_sub_i32 s{sTMP+4}, s{sT}, {k}")
        a(f"s_max_i32 s{sTMP+4}, s{sTMP+4}, 0")
        a(f"v_mov_b32 v5, s{sTMP+4}")
        a(f"s_waitcnt vmcnt({2*k})")
        a("ds_write_b32 v4, v5")
    a("v_mov_b32 v5, 0x7fffffff")
    a("s_waitcnt vmcnt(0)")
    a("ds_write_b32 v4, v5")
    a(f"s_cmp_eq_u32 s{sMODE}, 0")
    a("s_cbranch_scc1 K2_END")
    a(f"s_cmp_eq_u32 s{sROUND}, 999")
    a("s_cbranch_scc1 K2_END")
    a("s_branch K2_NEXT")
    a("K2_EPI:")
    a("v_and_b32 v1, 31, v0")
    a("v_lshlrev_b32 v1, 1, v1")
    a("v_bfe_u32 v2, v0, 5, 1")
    a("v_lshl_or_b32 v1, v2, 21, v1")
    a(f"s_lshl_b32 s{sTMP}, s{sBETA}, 17")
    a(f"s_lshl_b32 s{sTMP+1}, s2, 8")
    a(f"s_add_u32 s{sTMP}, s{sTMP}, s{sTMP+1}")
    a(f"s_lshl_b32 s{sTMP+1}, s{sCG}, 6")
    a(f"s_add_u32 s{sTMP}, s{sTMP}, s{sTMP+1}")
    SO = 84
    for r in range(16):
        a(f"s_add_u32 s{SO+r}, s{sTMP}, {(r&7)*262144 + (r>>3)*65536:#x}")
    XD = PAIR
    for r in range(16):
        a(f"buffer_load_ushort v{XD+r}, v1, s[20:23], s{SO+r} offen")
    a(f"s_mov_b32 s{sTMP+2}, 0x358637bd")
    for r in range(16):
        a(f"v_add_f32 v{DEN+r}, s{sTMP+2}, v{DEN+r}")
    for r in range(16):
        a(f"v_rcp_f32 v{DEN+r}, v{DEN+r}")
    UD = G[0]
    for r in range(16):
        if r & 1:
            a(f"v_and_b32 v{UD+r}, 0xffff0000, v{UP+r//2}")
        else:
            a(f"v_lshlrev_b32 v{UD+r}, 16, v{UP+r//2}")
    for r in range(16):
        a(f"v_fma_f32 v{UD+r}, v{NUM+r}, v{DEN+r}, v{UD+r}")
    for r in range(16):
        a(f"v_max_f32 v{UD+r}, 0, v{UD+r}")
    a("s_waitcnt vmcnt(0)")
    for r in range(16):
        a(f"v_lshlrev_b32 v{XD+r}, 16, v{XD+r}")
    for r in range(16):
        a(f"v_add_f32 v{UD+r}, v{UD+r}, v{XD+r}")
    for j in range(8):
        a(f"v_cvt_pk_bf16_f32 v{XD+j}, v{UD+2*j}, v{UD+2*j+1}")
    for r in range(16):
        op = "buffer_store_short_d16_hi" if r & 1 else "buffer_store_short"
        a(f"{op} v{XD+r//2}, v1, s[36:39], s{SO+r} offen")
    a("K2_END:")
    a("s_endpgm")

def kd(name, vgpr, sgpr):
    return f""".amdhsa_kernel {name}
  .amdhsa_next_free_vgpr {vgpr}
  .amdhsa_next_free_sgpr {sgpr}
  .amdhsa_accum_offset {(vgpr+3)//4*4}
  .amdhsa_group_segment_fixed_size 0
  .amdhsa_kernarg_size 96
  .amdhsa_user_sgpr_count 2
  .amdhsa_user_sgpr_kernarg_segment_ptr 1
  .amdhsa_system_sgpr_workgroup_id_x 1
.end_amdhsa_kernel
"""

def main(out):
    K2 = "standalone__edge_featured_mpnn_gatedgcn__graph_kernel"
    ref = open("standalone__edge_featured_mpnn_gatedgcn__graph.s.ref").read().split("\n")
    head = []
    for line in ref:
        if not line.startswith(";"):
            break
        if "@launch" in line or "Override launch" in line or "grid=ceil" in line:
            continue
        head.append(line)
    t = "\n".join(head) + "\n"
    t += f"; @launch kernel=k1_kernel grid=({NS+NGEMM+1},1,1) block=(512,1,1) lds=65536\n"
    t += f"; @launch kernel={K2} grid=(256,1,1) block=(576,1,1) lds={L_TOTAL}\n"
    t += '.amdgcn_target "amdgcn-amd-amdhsa--gfx950"\n.text\n'
    a = A()
    gen_k1(a)
    t += ".globl k1_kernel\n.p2align 8\n.type k1_kernel,@function\n" + a.text()
    a = A()
    gen_k2(a, K2)
    t += f".globl {K2}\n.p2align 8\n.type {K2},@function\n" + a.text()
    t += '.section .rodata,"a"\n.p2align 6\n' + kd("k1_kernel", 160, 64) + ".p2align 6\n" + kd(K2, 168, 102)
    open(out, "w").write(t)

if __name__ == "__main__":
    main(sys.argv[1] if len(sys.argv) > 1 else "standalone__edge_featured_mpnn_gatedgcn__graph.s")
```

```python
import sys, os

N = 12500
E = 400000
NS = 125
CH = 3200
NGEMM = 196
WS_TAB = 0
WS_REC = 0x620000
WS_OFF = 0x7B0000
WS_WOP = 0x8B0000
WS_END = 0x8C0000
LOG2E = 0x3fb8aa3b
env = lambda k, d: type(d)(os.environ.get(k, d))
STAMP = env("STAMP", 0)
STAMPS = env("STAMPS", "all").split(",")
PK = env("PK", 4)
SHL64 = env("SHL64", 0)
NOEA = env("NOEA", 0)
EAPOL = env("EAPOL", "")
PPRIO = env("PPRIO", 0)
ITS = env("ITS", 0)
PACE = env("PACE", 1)
LEADX = env("LEADX", 2)
PRIO = env("PRIO", "----")
ROT = env("ROT", 1)
PFS = env("PFS", 0)
PFPOS = env("PFPOS", 1)
PF = env("PF", 0)
PHMASK = env("PHMASK", 1)

class A:
    def __init__(self):
        self.l = []
    def __call__(self, s):
        for line in s.strip("\n").split("\n"):
            line = line.strip()
            if not line:
                continue
            self.l.append(line if line.endswith(":") else "    " + line)
    def text(self):
        return "\n".join(self.l) + "\n"

def vr(a, n):
    return f"v[{a}:{a+n-1}]"

def srd(a, d, base, nbytes, add=0):
    if add:
        a(f"s_add_u32 s{d}, s{base}, {add:#x}")
        a(f"s_addc_u32 s{d+1}, s{base+1}, 0")
    else:
        a(f"s_mov_b32 s{d}, s{base}")
        a(f"s_mov_b32 s{d+1}, s{base+1}")
    a(f"s_mov_b32 s{d+2}, {nbytes:#x}")
    a(f"s_mov_b32 s{d+3}, 0x20000")

MF = "v_mfma_f32_32x32x16_bf16"

def dpp_scan(a, v):
    for sh in (1, 2, 4, 8):
        a("s_nop 1")
        a(f"v_add_u32_dpp v{v}, v{v}, v{v} row_shr:{sh} row_mask:0xf bank_mask:0xf")
    a("s_nop 1")
    a(f"v_add_u32_dpp v{v}, v{v}, v{v} row_bcast:15 row_mask:0xa bank_mask:0xf")
    a("s_nop 1")
    a(f"v_add_u32_dpp v{v}, v{v}, v{v} row_bcast:31 row_mask:0xc bank_mask:0xf")

K1_LDS = 81920
def gen_k1(a):
    a("k1_kernel:")
    a(f"s_cmp_ge_u32 s2, {NS + NGEMM + 1}")
    a("s_cbranch_scc1 K1_END")
    a("s_load_dwordx8 s[4:11], s[0:1], 0")
    a("s_load_dwordx4 s[12:15], s[0:1], 32")
    a("s_load_dwordx4 s[16:19], s[0:1], 56")
    a("s_load_dwordx2 s[20:21], s[0:1], 88")
    a("v_lshrrev_b32 v1, 6, v0")
    a("v_and_b32 v2, 63, v0")
    a("v_readfirstlane_b32 s3, v1")
    a(f"s_cmp_gt_u32 s2, {NGEMM}")
    a("s_cbranch_scc1 K1_SORT")
    a("v_lshrrev_b32 v3, 4, v2")
    a("v_lshlrev_b32 v4, 2, v3")
    a("v_and_b32 v6, 15, v2")
    a("v_xor_b32 v5, v6, v4")
    a("v_lshlrev_b32 v5, 4, v5")
    a("v_lshl_add_u32 v5, v3, 8, v5")
    a("s_and_b32 s46, s3, 1")
    a("s_lshl_b32 s46, s46, 3")
    a("v_xor_b32 v6, v6, v3")
    a("v_xor_b32 v6, s46, v6")
    a("v_lshlrev_b32 v6, 4, v6")
    a("v_lshl_add_u32 v6, v3, 8, v6")
    a("v_xor_b32 v7, 64, v6")
    a("s_lshl_b32 s22, s3, 12")
    a("s_add_u32 s23, s22, 32768")
    a("s_lshl_b32 s44, s2, 14")
    a("s_lshl_b32 s45, s3, 11")
    a("s_add_u32 s44, s44, s45")
    a("s_add_u32 s45, s45, 65536")
    a("s_waitcnt lgkmcnt(0)")
    srd(a, 32, 4, N * 256)
    a("s_mov_b32 m0, s45")
    a(f"s_cmp_eq_u32 s2, {NGEMM}")
    a("buffer_load_dwordx4 v6, s[32:35], s44 offen lds")
    a("buffer_load_dwordx4 v7, s[32:35], s44 offen offset:1024 lds")
    a("s_cselect_b32 s24, s12, s14")
    a("s_cselect_b32 s25, s13, s15")
    a("s_cselect_b32 s28, s16, s18")
    a("s_cselect_b32 s29, s17, s19")
    a("s_mov_b32 s26, 32768")
    a("s_mov_b32 s27, 0x20000")
    a("s_mov_b32 s30, 32768")
    a("s_mov_b32 s31, 0x20000")
    a("s_mov_b32 m0, s22")
    a("s_nop 0")
    for i in range(4):
        a(f"buffer_load_dwordx4 v5, s[24:27], s22 offen offset:{i*1024} lds")
    a("s_mov_b32 m0, s23")
    a("s_nop 0")
    for i in range(4):
        a(f"buffer_load_dwordx4 v5, s[28:31], s22 offen offset:{i*1024} lds")
    srd(a, 36, 20, N * 512, add=WS_TAB)
    srd(a, 40, 20, 65536, add=WS_WOP)
    a("v_and_b32 v6, 31, v2")
    a("v_lshrrev_b32 v7, 5, v2")
    a("s_and_b32 s46, s3, 3")
    a("s_lshr_b32 s47, s3, 2")
    a("v_bfe_u32 v9, v2, 2, 2")
    a("v_lshl_add_u32 v10, v7, 3, v9")
    a("v_lshlrev_b32 v10, 8, v10")
    a("v_xor_b32 v11, s46, v9")
    a("v_lshl_add_u32 v10, v11, 6, v10")
    a("v_bfe_u32 v11, v2, 4, 1")
    a("v_lshl_add_u32 v10, v11, 5, v10")
    a("v_and_b32 v11, 3, v2")
    a("v_lshl_add_u32 v10, v11, 3, v10")
    XAD = 16
    a("v_and_b32 v11, 15, v2")
    a("v_xor_b32 v11, v11, v7")
    a("v_lshlrev_b32 v11, 4, v11")
    a("v_lshl_add_u32 v11, v6, 8, v11")
    a("s_lshl_b32 s48, s47, 13")
    a("s_add_u32 s48, s48, 65536")
    a(f"v_add_u32 v{XAD}, s48, v11")
    for kk in range(1, 8):
        a(f"v_xor_b32 v{XAD+kk}, {kk*32}, v{XAD}")
    a("s_lshl_b32 s48, s2, 15")
    a("s_lshl_b32 s49, s47, 14")
    a("s_add_u32 s48, s48, s49")
    a("s_lshl_b32 s49, s46, 7")
    a("s_add_u32 s48, s48, s49")
    a("v_lshlrev_b32 v12, 2, v6")
    a("v_lshl_add_u32 v12, v7, 11, v12")
    a("v_add_u32 v12, s48, v12")
    a("v_add_u32 v13, 4096, v12")
    a("v_add_u32 v14, 8192, v12")
    a("v_add_u32 v15, 12288, v12")
    a(f"s_mov_b32 s50, {LOG2E:#x}")
    a(f"s_mov_b32 s51, {LOG2E:#x}")
    a("s_mov_b32 s52, 0x7f7e0000")
    a("v_mov_b32 v8, 0x21800000")
    a("v_mov_b32 v9, 0x21800000")
    a(f"s_cmp_eq_u32 s2, {NGEMM}")
    a("s_waitcnt vmcnt(0)")
    a("s_barrier")
    a("s_cbranch_scc1 K1_PREP")
    SET = [24, 36, 48]
    AB, AV = 64, 80
    def reads(kk):
        b = SET[kk % 3]
        a(f"ds_read_b128 {vr(b,4)}, v{XAD+kk}")
        for u in range(2):
            a(f"ds_read_b64_tr_b16 {vr(b+4+2*u,2)}, v10 offset:{kk*4096+u*1024}")
        for u in range(2):
            a(f"ds_read_b64_tr_b16 {vr(b+8+2*u,2)}, v10 offset:{32768+kk*4096+u*1024}")
    for kk in range(3):
        reads(kk)
    for kk in range(8):
        b = SET[kk % 3]
        later = min(7 - kk, 2)
        a(f"s_waitcnt lgkmcnt({5*later})")
        cb = "0" if kk == 0 else vr(AB, 16)
        cv = "0" if kk == 0 else vr(AV, 16)
        a(f"{MF} {vr(AV,16)}, {vr(b,4)}, {vr(b+8,4)}, {cv}")
        a(f"{MF} {vr(AB,16)}, {vr(b,4)}, {vr(b+4,4)}, {cb}")
        if kk + 3 < 8:
            reads(kk + 3)
    a("s_nop 10")
    VP, VN = 24, 32
    for i in range(8):
        a(f"v_cvt_pk_bf16_f32 v{VP+i}, v{AV+2*i}, v{AV+2*i+1}")
        a(f"v_cvt_pk_bf16_f32 v{VN+i}, -v{AV+2*i}, -v{AV+2*i+1}")
    for q in range(4):
        for r in range(4*q, 4*q+4, 2):
            a(f"v_pk_fma_f32 {vr(AB+r,2)}, {vr(AB+r,2)}, s[50:51], v[8:9]")
        for r in range(4*q, 4*q+4):
            a(f"v_med3_f32 v{AB+r}, v{AB+r}, -s52, s52")
        for r in range(4*q, 4*q+4):
            a(f"v_sub_u32_sdwa v{AB+r}, v{AB+r}, sext(v{VN+r//2}) dst_sel:DWORD dst_unused:UNUSED_PAD src0_sel:DWORD src1_sel:WORD_{r&1}")
        for r in range(4*q, 4*q+4):
            a(f"v_mov_b32_sdwa v{AB+r}, v{VP+r//2} dst_sel:WORD_0 dst_unused:UNUSED_PRESERVE src0_sel:WORD_{r&1}")
        a("s_nop 0")
        for r in range(4*q, 4*q+4):
            a(f"buffer_store_dword v{AB+r}, v{12+q}, s[36:39], 0 offen offset:{(r&3)*512}")
    a("s_endpgm")
    a("K1_PREP:")
    a("s_lshl_b32 s47, s47, 15")
    a("v_add_u32 v10, s47, v10")
    for kk in range(8):
        for u in range(2):
            a(f"ds_read_b64_tr_b16 {vr(24+4*kk+2*u,2)}, v10 offset:{kk*4096+u*1024}")
    a("s_lshl_b32 s47, s3, 13")
    a("s_add_u32 s48, s47, 4096")
    a("v_lshlrev_b32 v12, 4, v2")
    a("s_waitcnt lgkmcnt(0)")
    for kk in range(8):
        a(f"buffer_store_dwordx4 {vr(24+4*kk,4)}, v12, s[40:43], s{47+(kk>>2)} offen offset:{(kk&3)*1024}")
    a("s_endpgm")
    a("K1_SORT:")
    a("v_lshlrev_b32 v3, 3, v0")
    a("v_mov_b32 v4, 0")
    a("v_mov_b32 v5, 0")
    a("ds_write_b64 v3, v[4:5]")
    a("ds_write_b32 v4, v4 offset:4128")
    a("v_lshlrev_b32 v6, 4, v0")
    a(f"s_sub_u32 s43, s2, {NGEMM+1}")
    a(f"s_mul_i32 s22, s43, {CH*4}")
    a("s_add_u32 s23, s22, 8192")
    a("s_waitcnt lgkmcnt(0)")
    srd(a, 24, 8, E * 4)
    srd(a, 28, 10, E * 4)
    D, S, RK, RC, KA, SH = 16, 24, 32, 40, 48, 56
    a(f"buffer_load_dwordx4 {vr(D,4)}, v6, s[28:31], s22 offen")
    a(f"buffer_load_dwordx4 {vr(S,4)}, v6, s[24:27], s22 offen")
    a(f"buffer_load_dwordx4 {vr(D+4,4)}, v6, s[28:31], s23 offen")
    a(f"buffer_load_dwordx4 {vr(S+4,4)}, v6, s[24:27], s23 offen")
    srd(a, 32, 20, E * 4, add=WS_REC)
    srd(a, 36, 20, NS * 8192, add=WS_OFF)
    a("v_lshlrev_b32 v7, 22, v0")
    a("v_mov_b32 v8, 0")
    a(f"v_cmp_gt_u32 vcc, {(CH-2048)//4}, v0")
    a("s_mov_b64 s[40:41], vcc")
    a("s_barrier")
    def keys(lo, wait):
        a(f"s_waitcnt vmcnt({wait})")
        for i in range(lo, lo + 4):
            a(f"v_and_b32 v9, 255, v{D+i}")
            a(f"v_lshrrev_b32 v10, 6, v{D+i}")
            a(f"v_lshrrev_b32 v{SH+i}, 7, v{S+i}")
            a("v_and_b32 v10, 12, v10")
            a(f"v_and_b32 v{SH+i}, {24 if PHMASK else 0}, v{SH+i}")
            a(f"v_lshl_or_b32 v{KA+i}, v9, 4, v10")
            a(f"v_lshlrev_b32_e64 v9, v{SH+i}, 1")
            a(f"ds_add_rtn_u32 v{RK+i}, v{KA+i}, v9")
        for i in range(lo, lo + 4):
            a(f"v_lshrrev_b32 v9, 9, v{D+i}")
            a(f"v_add_u32 v10, {((i&3) + (2048 if i >= 4 else 0)) << 20:#x}, v7")
            a("v_and_or_b32 v10, v9, 30, v10")
            a(f"v_lshl_or_b32 v{RC+i}, v{S+i}, 5, v10")
        for i in range(lo, lo + 4):
            a(f"s_waitcnt lgkmcnt({3-(i-lo)})")
            a(f"v_bfe_u32 v{RK+i}, v{RK+i}, v{SH+i}, 8")
        a(f"v_max3_u32 v8, v8, v{RK+lo}, v{RK+lo+1}")
        a(f"v_max3_u32 v8, v8, v{RK+lo+2}, v{RK+lo+3}")
    keys(0, 2)
    a("s_mov_b64 exec, s[40:41]")
    a("s_cbranch_execz K1_S1")
    keys(4, 0)
    a("K1_S1:")
    a("s_mov_b64 exec, -1")
    a("v_cmp_lt_u32 vcc, 62, v8")
    a("s_cbranch_vccz K1_S1B")
    a("v_mov_b32 v9, -1")
    a("ds_write_b32 v4, v9 offset:4128")
    a("s_waitcnt lgkmcnt(0)")
    a("K1_S1B:")
    a("s_barrier")
    a("ds_read_b64 v[12:13], v3")
    a("ds_read_b32 v15, v4 offset:4128")
    a("s_waitcnt lgkmcnt(1)")
    a("v_sad_u8 v10, v12, 0, 0")
    a("v_sad_u8 v11, v13, 0, v10")
    a("v_mov_b32 v14, v11")
    dpp_scan(a, 14)
    a("s_lshl_b32 s42, s3, 2")
    a("v_mov_b32 v9, s42")
    a("s_mov_b32 exec_lo, 0")
    a("s_mov_b32 exec_hi, 0x80000000")
    a("ds_write_b32 v9, v14 offset:4096")
    a("s_mov_b64 exec, -1")
    a("v_sub_u32 v14, v14, v11")
    a("s_waitcnt lgkmcnt(0)")
    a("s_barrier")
    a("ds_read_b128 v[64:67], v4 offset:4096")
    a("ds_read_b128 v[68:71], v4 offset:4112")
    a("v_or_b32 v73, v12, v15")
    a("v_or_b32 v75, v13, v15")
    a("s_waitcnt lgkmcnt(0)")
    for w in range(7):
        a(f"s_cmp_gt_u32 s3, {w}")
        a(f"s_cselect_b32 s42, 1, 0")
        a(f"v_mad_u32_u24 v14, v{64+w}, s42, v14")
    a("v_mov_b32 v72, v14")
    a("v_add_u32 v74, v14, v10")
    a("v_mov_b32 v64, v14")
    a("v_mov_b32 v65, v12")
    a("v_mov_b32 v66, v74")
    a("v_mov_b32 v67, v13")
    a("ds_write_b128 v6, v[64:67] offset:8192")
    a("s_lshl_b32 s42, s43, 13")
    a("buffer_store_dwordx4 v[72:75], v6, s[36:39], s42 offen")
    a("s_waitcnt lgkmcnt(0)")
    a("s_barrier")
    LK = 64
    def place(lo):
        for i in range(lo, lo + 4):
            a(f"v_lshlrev_b32 v{KA+i}, 1, v{KA+i}")
            a(f"ds_read_b64 {vr(LK+2*(i-lo),2)}, v{KA+i} offset:8192")
        for i in range(lo, lo + 4):
            a("s_waitcnt lgkmcnt(3)")
            a(f"v_bfe_u32 v9, v{LK+2*(i-lo)+1}, 0, v{SH+i}")
            a(f"v_sad_u8 v9, v9, 0, v{LK+2*(i-lo)}")
            a(f"v_add_lshl_u32 v9, v9, v{RK+i}, 2")
            a(f"ds_write_b32 v9, v{RC+i} offset:16384")
    place(0)
    a("s_mov_b64 exec, s[40:41]")
    a("s_cbranch_execz K1_S3")
    a("s_waitcnt lgkmcnt(0)")
    place(4)
    a("K1_S3:")
    a("s_mov_b64 exec, -1")
    a("s_waitcnt lgkmcnt(0)")
    a("s_barrier")
    a(f"ds_read_b128 {vr(64,4)}, v6 offset:16384")
    a(f"ds_read_b128 {vr(68,4)}, v6 offset:24576")
    a("s_waitcnt lgkmcnt(1)")
    a(f"buffer_store_dwordx4 {vr(64,4)}, v6, s[32:35], s22 offen")
    a("s_mov_b64 exec, s[40:41]")
    a("s_cbranch_execz K1_END")
    a("s_waitcnt lgkmcnt(0)")
    a(f"buffer_store_dwordx4 {vr(68,4)}, v6, s[32:35], s23 offen")
    a("K1_END:")
    a("s_endpgm")

NT = 60
L_CNT = 64
L_RDY = 96
L_IDX = 6144
L_EOF = L_IDX + NT * 128
L_O = L_EOF + NT * 128
L_EA = L_O + NT * 1024
L_X = L_EA + (NT + 1) * 1024
L_TOTAL = L_X + 16384
assert L_EA == 9 * 9216

vIDX, vEA, vOT, vSa, vS0, vS1, vT0 = 1, 2, 3, 4, 5, 6, 7
IX = 8
SA = 24
WC, AP, UP = 32, 36, 44
DEN, NUM = 52, 68
G = [84, 100]
RAW = [116, 132, 148]
LO = 164
vT1 = 166
RECQ = [116, 120, 124]
sW, sCG, sBETA, sMODE, sROUND, sFIRST = 3, 56, 57, 58, 59, 60
sT, sTEND, sRDY, sF0, sL0, sL1 = 62, 63, 64, 65, 66, 67
sC = 68
sTMP = 76
sM0, sM1 = 84, 86
sWO, sROT = 88, 61
sU, sNB = 96, 97
sPO, sPH = 88, 89

STAMP_NAMES = []
def stamp(a, nm):
    if STAMP and (STAMPS == ["all"] or nm in STAMPS):
        if nm not in STAMP_NAMES:
            STAMP_NAMES.append(nm)
        i = STAMP_NAMES.index(nm)
        a("s_memtime s[4:5]")
        a("s_waitcnt lgkmcnt(0)")
        a(f"v_writelane_b32 v167, s4, {i}")
def stamp_out(a, tiles):
    if STAMP:
        a("s_memrealtime s[4:5]")
        a("s_waitcnt lgkmcnt(0)")
        a("s_mov_b64 exec, -1")
        a("v_writelane_b32 v167, s4, 62")
        a(f"v_writelane_b32 v167, {tiles}, 63")
        a("v_and_b32 v3, 63, v0")
        a("v_lshlrev_b32 v3, 2, v3")
        a(f"s_mul_i32 s{sTMP}, s2, 9")
        a(f"s_add_u32 s{sTMP}, s{sTMP}, s{sW}")
        a(f"s_lshl_b32 s{sTMP}, s{sTMP}, 8")
        a(f"s_add_u32 s{sTMP}, s{sTMP}, 0x900000")
        a("s_mov_b32 s30, 0x1000000")
        a(f"buffer_store_dword v167, v3, s[28:31], s{sTMP} offen")

def idx_reads(a, tile_rel):
    for q in range(4):
        a(f"ds_read_b128 {vr(IX+4*q,4)}, v{vIDX} offset:{tile_rel*128+32*q}")
def gathers(a, dst):
    for k in range(0, 16, 2):
        a(f"v_lshl_add_u64 {vr(IX+k,2)}, {vr(IX+k,2)}, 4, {vr(LO,2)}")
    for k in range(16):
        a(f"buffer_load_dword v{dst+k}, v{IX+k}, s[32:35], 0 offen")
def ms_list(gx):
    return [f"{MF} {vr(DEN,16)}, {vr(SA,4)}, {vr(gx,4)}, {vr(DEN,16)}",
            f"{MF} {vr(NUM,16)}, {vr(SA,4)}, {vr(gx+8,4)}, {vr(NUM,16)}",
            f"{MF} {vr(DEN,16)}, {vr(SA+4,4)}, {vr(gx+4,4)}, {vr(DEN,16)}",
            f"{MF} {vr(NUM,16)}, {vr(SA+4,4)}, {vr(gx+12,4)}, {vr(NUM,16)}"]
def poll(a, stubs, tag):
    a(f"s_cmp_le_u32 s{sRDY}, s{sT}")
    a(f"s_cbranch_scc1 K2_POLL_{tag}")
    a(f"K2_POLLED_{tag}:")
    stubs(f"K2_POLL_{tag}:")
    stubs(f"ds_read_b32 v{vT1}, v{vT0} offset:{L_RDY}")
    stubs("s_waitcnt lgkmcnt(0)")
    stubs(f"v_readfirstlane_b32 s{sRDY}, v{vT1}")
    stubs(f"s_cmp_gt_u32 s{sRDY}, s{sT}")
    stubs(f"s_cbranch_scc1 K2_POLLED_{tag}")
    stubs("s_sleep 1")
    stubs(f"s_branch K2_POLL_{tag}")

def prio(a, pos):
    c = PRIO[pos]
    if c != "-":
        a(f"s_setprio {c}")
def pf_one(a):
    a(f"buffer_load_dword v17, v16, s[32:35], s{sPO} offen")
    a(f"s_bitcmp1_b32 s{sPO}, 18")
    a(f"s_mov_b32 s{sPO+2}, {262144:#x}")
    a(f"s_cselect_b32 s{sPO+2}, {2097152-262144:#x}, s{sPO+2}")
    a(f"s_add_u32 s{sPO}, s{sPO}, s{sPO+2}")
    a(f"s_add_u32 s{sPO+2}, s{sPH}, {524288:#x}")
    a(f"s_cmp_ge_u32 s{sPO}, {N*512:#x}")
    a(f"s_cselect_b32 s{sPH}, s{sPO+2}, s{sPH}")
    a(f"s_cselect_b32 s{sPO}, s{sPO+2}, s{sPO}")
    a(f"s_cmp_ge_u32 s{sPH}, {2097152:#x}")
    a(f"s_cselect_b32 s{sPO}, {0x1000000:#x}, s{sPO}")
    a(f"s_min_u32 s{sPH}, s{sPH}, {2097152:#x}")
def pf_first(a):
    for i in range(PF):
        pf_one(a)

def gen_k2(a, name):
    stubs = A()
    a(f"{name}:")
    a("s_cmp_ge_u32 s2, 256")
    a("s_cbranch_scc1 K2_END")
    a("s_load_dwordx2 s[16:17], s[0:1], 88")
    a("s_load_dwordx8 s[4:11], s[0:1], 0")
    a("s_load_dwordx2 s[12:13], s[0:1], 48")
    a("s_load_dwordx2 s[14:15], s[0:1], 72")
    a(f"s_lshr_b32 s{sU}, s2, 3")
    a("s_and_b32 s2, s2, 7")
    a("s_lshl_b32 s2, s2, 5")
    a(f"s_or_b32 s2, s2, s{sU}")
    a("v_and_b32 v16, 63, v0")
    a("v_lshrrev_b32 v1, 6, v0")
    a(f"s_mov_b32 s{sMODE}, 0")
    a(f"v_readfirstlane_b32 s{sW}, v1")
    a(f"s_mov_b32 s{sROUND}, 0")
    a(f"s_mov_b32 s{sFIRST}, 1")
    a("v_lshrrev_b32 v4, 2, v0")
    a("v_and_b32 v5, 3, v0")
    a("v_lshlrev_b32 v6, 13, v4")
    a("v_lshl_add_u32 v6, v5, 3, v6")
    a(f"s_lshl_b32 s{sTMP}, s2, 5")
    a(f"s_and_b32 s{sCG}, s{sW}, 3")
    a(f"s_bfe_u32 s{sBETA}, s{sW}, 0x10002")
    a(f"s_mov_b32 s{sM0}, 0x0000ffff")
    a(f"s_mov_b32 s{sM0+1}, 0x0000ffff")
    a(f"s_mov_b32 s{sM1}, 0xffff0000")
    a(f"s_mov_b32 s{sM1+1}, 0xffff0000")
    a("s_waitcnt lgkmcnt(0)")
    srd(a, 44, 16, NS * 8192, add=WS_OFF)
    a(f"s_cmp_eq_u32 s{sW}, 8")
    a("s_cbranch_scc1 K2_NOOFF")
    a(f"buffer_load_dwordx2 v[2:3], v6, s[44:47], s{sTMP} offen")
    a("K2_NOOFF:")
    srd(a, 20, 4, N * 256)
    srd(a, 28, 16, WS_END)
    srd(a, 40, 12, 4096)
    srd(a, 24, 6, E * 32)
    srd(a, 32, 16, N * 512, add=WS_TAB)
    srd(a, 36, 14, N * 256)
    srd(a, 48, 8, E * 4)
    srd(a, 52, 10, E * 4)
    if STAMP:
        a("v_mov_b32 v167, 0")
        a("s_memrealtime s[6:7]")
        a("s_waitcnt lgkmcnt(0)")
        a("v_writelane_b32 v167, s6, 61")
    stamp(a, "start")
    WA, WU, WCR, ACC = DEN, G[0], UP, RAW[2]
    a(f"s_cmp_eq_u32 s{sW}, 8")
    a("s_cbranch_scc1 K2_XSTAGE")
    a("v_and_b32 v7, 63, v0")
    a("v_lshlrev_b32 v7, 4, v7")
    a(f"s_lshl_b32 s{sTMP+2}, s{sCG}, 13")
    a(f"s_add_u32 s{sTMP+2}, s{sTMP+2}, {WS_WOP:#x}")
    a(f"s_and_b32 s{sROT}, s{sU}, 7")
    if not ROT:
        a(f"s_mov_b32 s{sROT}, 0")
    a(f"s_lshl_b32 s{sTMP+3}, s{sROT}, 10")
    a(f"s_add_u32 s{sTMP+2}, s{sTMP+2}, s{sTMP+3}")
    for kk in range(8):
        a(f"s_xor_b32 s{sWO+kk}, s{sTMP+2}, {kk*1024}")
        a(f"buffer_load_dwordx4 {vr(WA+4*kk,4)}, v7, s[28:31], s{sWO+kk} offen")
    stamp(a, "wa")
    a("s_branch K2_ROUND")
    a("K2_XSTAGE:")
    if PPRIO:
        a(f"s_setprio {PPRIO}")
    a("v_bfe_u32 v8, v0, 4, 2")
    a("v_and_b32 v9, 15, v0")
    a("v_xor_b32 v9, v9, v8")
    a("v_lshlrev_b32 v9, 4, v9")
    a("v_lshl_add_u32 v10, v8, 18, v9")
    for j in range(1, 4):
        a(f"v_xor_b32 v{10+j}, {64*j}, v10")
    a(f"s_lshl_b32 s{sTMP}, s2, 8")
    for j in range(16):
        c16 = 8 * (j & 1) + 4 * ((j >> 1) & 1)
        off = (c16 * 4 + 2 * (j >> 3) + ((j >> 2) & 1)) * 65536
        a(f"s_mov_b32 m0, {L_X + j*1024}")
        a(f"s_add_u32 s{sTMP+1}, s{sTMP}, {off:#x}")
        a(f"buffer_load_dwordx4 v{10+(j&3)}, s[20:23], s{sTMP+1} offen lds")
    a("v_lshlrev_b32 v16, 7, v16")
    a(f"s_lshl_b32 s{sTMP}, s{sU}, 13")
    a(f"v_add_u32 v16, s{sTMP}, v16")
    a(f"s_mov_b32 s{sPO}, 0")
    a(f"s_mov_b32 s{sPH}, 0")
    if PFPOS == 0:
        pf_first(a)
    a("K2_ROUND:")
    Z = SA
    for i in range(4):
        a(f"v_mov_b32 v{Z+i}, 0")
    a("v_lshlrev_b32 v6, 4, v0")
    a(f"v_add_u32 v7, {5*9216}, v6")
    for k in range(5):
        a(f"ds_write_b128 v6, {vr(Z,4)} offset:{k*9216}")
    for k in range(4):
        a(f"ds_write_b128 v7, {vr(Z,4)} offset:{k*9216}")
    a(f"s_cmp_eq_u32 s{sW}, 8")
    a("s_cbranch_scc0 K2_CONS1")
    a("s_waitcnt lgkmcnt(0)")
    a("s_barrier")
    if PFPOS == 1:
        pf_first(a)
    a("s_barrier")
    a("s_branch K2_TOTALS")
    a("K2_CONS1:")
    a(f"s_cmp_lg_u32 s{sMODE}, 0")
    a("s_cbranch_scc1 K2_SLOWSRC")
    a(f"v_mul_u32_u24 v6, {CH*4}, v4")
    a("v_lshlrev_b32 v4, 3, v6")
    a(f"v_add_u32 v6, {WS_REC:#x}, v6")
    stamp(a, "zero")
    a("s_waitcnt vmcnt(8)")
    stamp(a, "off")
    a("v_lshl_add_u32 v6, v2, 2, v6")
    for q in range(3):
        a(f"buffer_load_dwordx4 {vr(RECQ[q],4)}, v6, s[28:31], 0 offen offset:{16*q}")
    a("s_waitcnt lgkmcnt(0)")
    a("s_barrier")
    stamp(a, "bar1")
    a("K2_ALLOC:")
    a(f"s_mov_b32 s{sTMP}, 0x0c010c00")
    a(f"s_mov_b32 s{sTMP+1}, 0x0c030c02")
    a(f"v_perm_b32 v8, v3, v3, s{sTMP}")
    a(f"v_perm_b32 v9, v3, v3, s{sTMP+1}")
    a("v_lshlrev_b32 v7, 3, v5")
    a(f"ds_add_rtn_u64 v[10:11], v7, v[8:9] offset:{L_CNT}")
    a("v_sad_u8 v1, v3, 0, 0")
    a("s_waitcnt lgkmcnt(0)")
    a("s_barrier")
    stamp(a, "barA")
    a(f"ds_read_b64 v[12:13], v7 offset:{L_CNT}")
    a("K2_TOTALS:")
    a(f"v_mov_b32 v{vT1}, 0")
    a(f"ds_read_b128 {vr(SA,4)}, v{vT1} offset:{L_CNT}")
    a(f"ds_read_b128 {vr(SA+4,4)}, v{vT1} offset:{L_CNT+16}")
    a("s_waitcnt lgkmcnt(0)")
    for k in range(4):
        a(f"v_add_u32 v{SA+2*k}, v{SA+2*k}, v{SA+2*k+1}")
    a("s_nop 0")
    for k in range(4):
        a(f"v_readfirstlane_b32 s{sC+k}, v{SA+2*k}")
    for k in range(4):
        a(f"s_lshr_b32 s{sC+4}, s{sC+k}, 16")
        a(f"s_and_b32 s{sC+k}, s{sC+k}, 0xffff")
        a(f"s_add_u32 s{sC+k}, s{sC+k}, s{sC+4}")
        a(f"s_add_u32 s{sC+k}, s{sC+k}, 31")
        a(f"s_lshr_b32 s{sC+k}, s{sC+k}, 5")
        a(f"s_lshl_b32 s{sC+k}, s{sC+k}, 1")
    a(f"s_sub_i32 s{sC+4}, s{sC}, 1")
    a(f"s_sub_i32 s{sC+5}, s{sC+2}, 1")
    a(f"s_max_i32 s{sC+4}, s{sC+4}, s{sC+1}")
    a(f"s_max_i32 s{sC+5}, s{sC+5}, s{sC+3}")
    a(f"s_min_u32 s{sNB}, s{sC+4}, s{sC+5}")
    a(f"s_add_u32 s{sC+6}, s{sC+4}, s{sC+5}")
    a(f"s_cmp_gt_u32 s{sC+6}, {NT}")
    a("s_cbranch_scc1 K2_OVF")
    a(f"s_cmp_eq_u32 s{sW}, 8")
    a("s_cbranch_scc1 K2_PROD")
    a("v_sub_u32 v12, v12, v8")
    a("v_sub_u32 v13, v13, v9")
    a("v_lshl_add_u32 v10, v12, 16, v10")
    a("v_lshl_add_u32 v11, v13, 16, v11")
    a("v_add_u32_sdwa v12, v12, v12 dst_sel:DWORD dst_unused:UNUSED_PAD src0_sel:WORD_0 src1_sel:WORD_1")
    a(f"s_mov_b32 s{sTMP}, 0x10001")
    a(f"v_mad_u32_u24 v11, v12, s{sTMP}, v11")
    a("v_lshlrev_b32 v10, 2, v10")
    a("v_lshlrev_b32 v11, 2, v11")
    a("v_lshrrev_b32 v8, 1, v5")
    a("v_and_b32 v9, 1, v5")
    a(f"v_mad_u32_u24 v8, v8, s{sC+4}, v9")
    a("v_lshlrev_b32 v8, 7, v8")
    a("v_mov_b32 v9, 0x3f80")
    a(f"s_mov_b32 s{sTMP}, 0x7ffe0")
    a(f"s_mov_b32 s{sTMP+1}, 0xff80")
    a("v_and_b32 v12, 63, v0")
    a("v_lshlrev_b32 v12, 4, v12")
    a("v_add_u32 v12, 0x8000, v12")
    a("v_and_b32 v13, 31, v0")
    a("v_lshlrev_b32 v13, 1, v13")
    a("v_bfe_u32 v14, v0, 5, 1")
    a("v_lshl_or_b32 v13, v14, 11, v13")
    a(f"s_lshl_b32 s{sTMP+6}, s{sCG}, 6")
    a(f"v_add_u32 v13, s{sTMP+6}, v13")
    stamp(a, "adj")
    a("s_waitcnt vmcnt(0)")
    stamp(a, "rec")
    a(f"s_cmp_eq_u32 s{sFIRST}, 0")
    a("s_cbranch_scc1 K2_PLACE")
    for j in range(8):
        a(f"buffer_load_ushort v{WCR+j}, v13, s[40:43], 0 offen offset:{j*256}")
    for kk in range(8):
        a(f"buffer_load_dwordx4 {vr(WU+4*kk,4)}, v12, s[28:31], s{sWO+kk} offen")
    stamp(a, "wu")
    a("K2_PLACE:")
    for s in range(12):
        rec = RECQ[s >> 2] + (s & 3)
        b = 12 + 6 * (s & 1)
        a(f"v_cmpx_lt_u32 vcc, {s}, v1")
        a("s_cbranch_execz K2_PLACED")
        a(f"v_lshrrev_b32 v{b+2}, 11, v{rec}")
        a(f"v_and_b32 v{b+3}, s{sTMP}, v{rec}")
        a(f"v_and_b32 v{b+2}, {48 if PHMASK else 0}, v{b+2}")
        a(f"v_lshrrev_b32 v{b+4}, 20, v{rec}")
        a(f"v_lshl_add_u32 v{b+4}, v{b+4}, 5, v4")
        a(f"v_lshrrev_b64 {vr(b,2)}, v{b+2}, v[10:11]")
        a(f"v_add_u16 v{b}, {4*s}, v{b}")
        a(f"v_and_b32 v{b+1}, s{sTMP+1}, v{b}")
        a(f"v_add3_u32 v{b}, v{b}, v{b+1}, v8")
        a(f"v_and_b32 v{b+5}, 30, v{rec}")
        a(f"ds_write2st64_b32 v{b}, v{b+3}, v{b+4} offset0:{L_IDX//256} offset1:{L_EOF//256}")
        a(f"v_lshl_or_b32 v{b+5}, v{b}, 3, v{b+5}")
        a(f"ds_write_b16 v{b+5}, v9 offset:{L_O}")
    a("v_cmpx_lt_u32 vcc, 12, v1")
    a("s_cbranch_execz K2_PLACED")
    a("v_subrev_u32 v1, 12, v1")
    a("v_add_u32 v6, 48, v6")
    a("v_add_u32 v10, 0x00300030, v10")
    a("v_add_u32 v11, 0x00300030, v11")
    for q in range(3):
        a(f"buffer_load_dwordx4 {vr(RECQ[q],4)}, v6, s[28:31], 0 offen offset:{16*q}")
    a("s_waitcnt vmcnt(0)")
    a("s_branch K2_PLACE")
    a("K2_PLACED:")
    a("s_mov_b64 exec, -1")
    stamp(a, "placed")
    a(f"s_cmp_eq_u32 s{sBETA}, 0")
    a(f"s_cselect_b32 s{sF0}, 0, s{sC+4}")
    a(f"s_cselect_b32 s{sL0}, s{sC}, s{sC+2}")
    a(f"s_cselect_b32 s{sL1}, s{sC+1}, s{sC+3}")
    a(f"s_cselect_b32 s{sTEND}, s{sC+4}, s{sC+5}")
    a(f"s_lshl_b32 s{sTMP}, s{sF0}, 7")
    a(f"s_add_u32 s{sTMP}, s{sTMP}, {L_IDX}")
    a(f"v_bfe_u32 v{vT0}, v0, 5, 1")
    a(f"v_lshl_add_u32 v{vIDX}, v{vT0}, 4, s{sTMP}")
    a(f"s_lshl_b32 s{sTMP}, s{sF0}, 10")
    a(f"s_add_u32 s{sTMP+1}, s{sTMP}, {L_O}")
    a(f"v_and_b32 v{vT1}, 31, v0")
    a(f"v_lshlrev_b32 v{vOT}, 5, v{vT1}")
    a(f"v_lshl_add_u32 v{vOT}, v{vT0}, 4, v{vOT}")
    a(f"v_add_u32 v{vOT}, s{sTMP+1}, v{vOT}")
    a(f"v_add_u32 v{vEA}, {L_EA-L_O}, v{vOT}")
    a(f"s_lshl_b32 s{sTMP+2}, s{sCG}, 7")
    a(f"v_lshl_add_u32 v{LO}, v{vT1}, 2, s{sTMP+2}")
    a(f"v_mov_b32 v{LO+1}, v{LO}")
    a(f"v_bfe_u32 v{vSa}, v0, 2, 2")
    a(f"v_lshl_add_u32 v{vSa}, v{vT0}, 2, v{vSa}")
    a(f"v_lshlrev_b32 v{vSa}, 5, v{vSa}")
    a(f"v_and_b32 v{vS0}, 1, v0")
    a(f"v_lshl_add_u32 v{vSa}, v{vS0}, 4, v{vSa}")
    a(f"v_bfe_u32 v{vS0}, v0, 1, 1")
    a(f"v_lshl_add_u32 v{vSa}, v{vS0}, 3, v{vSa}")
    a(f"v_add_u32 v{vSa}, s{sTMP+1}, v{vSa}")
    a(f"v_cndmask_b32_e64 v{vS0}, 0, v{vSa}, s[{sM0}:{sM0+1}]")
    a(f"v_cndmask_b32_e64 v{vS1}, 0, v{vSa}, s[{sM1}:{sM1+1}]")
    a(f"v_and_b32 v{SA}, 15, v0")
    a(f"v_xor_b32 v{SA}, v{SA}, v{vT0}")
    a(f"v_lshlrev_b32 v{SA}, 4, v{SA}")
    a(f"v_lshl_add_u32 v{vT1}, v{vT1}, 8, v{SA}")
    a(f"s_lshl_b32 s{sTMP+2}, s{sBETA}, 13")
    a(f"s_add_u32 s{sTMP+2}, s{sTMP+2}, {L_X}")
    a(f"v_add_u32 v{vT1}, s{sTMP+2}, v{vT1}")
    a(f"s_lshl_b32 s{sTMP+2}, s{sROT}, 5")
    a(f"v_xor_b32 v{vT1}, s{sTMP+2}, v{vT1}")
    a(f"v_mov_b32 v{vT0}, 0")
    a(f"s_mov_b32 s{sT}, 0")
    a(f"s_mov_b32 s{sRDY}, 0")
    a("s_waitcnt lgkmcnt(0)")
    a("s_barrier")
    stamp(a, "bar2")
    idx_reads(a, 0)
    a("s_waitcnt lgkmcnt(0)")
    gathers(a, RAW[0])
    idx_reads(a, 1)
    a("s_waitcnt lgkmcnt(0)")
    gathers(a, RAW[1])
    stamp(a, "g01")
    a(f"s_cmp_eq_u32 s{sFIRST}, 0")
    a("s_cbranch_scc1 K2_NOGEMM")
    for kk in range(8):
        if kk:
            a(f"v_xor_b32 v{SA+kk}, {kk*32}, v{vT1}")
        else:
            a(f"v_mov_b32 v{SA}, v{vT1}")
    a(f"s_mov_b32 s{sTMP}, {LOG2E:#x}")
    for which, W in ((0, WA), (1, WU)):
        for kk in range(4):
            a(f"ds_read_b128 {vr(IX+4*kk,4)}, v{SA+kk}")
        if which == 1:
            a("s_waitcnt vmcnt(32)")
            for j in range(8):
                a(f"v_lshlrev_b32 v{WCR+j}, 16, v{WCR+j}")
            for j in range(8):
                a(f"v_mul_f32 v{WCR+j}, s{sTMP}, v{WCR+j}")
            for j in range(4):
                a(f"v_cvt_pk_bf16_f32 v{WC+j}, v{WCR+2*j}, v{WCR+2*j+1}")
            for r in range(16):
                a(f"v_mul_f32 v{ACC+r}, s{sTMP}, v{ACC+r}")
            for j in range(8):
                a(f"v_cvt_pk_bf16_f32 v{AP+j}, v{ACC+2*j}, v{ACC+2*j+1}")
        for kk in range(8):
            a(f"s_waitcnt lgkmcnt({min(3, 7-kk)})")
            c = "0" if kk == 0 else vr(ACC, 16)
            a(f"{MF} {vr(ACC,16)}, {vr(IX+4*(kk&3),4)}, {vr(W+4*kk,4)}, {c}")
            if kk < 4:
                a(f"ds_read_b128 {vr(IX+4*kk,4)}, v{SA+4+kk}")
    for r in range(0, 32, 2):
        a(f"v_mov_b64 {vr(DEN+r,2)}, 0")
    for j in range(8):
        a(f"v_cvt_pk_bf16_f32 v{UP+j}, v{ACC+2*j}, v{ACC+2*j+1}")
    a(f"s_mov_b32 s{sFIRST}, 0")
    a("K2_NOGEMM:")
    stamp(a, "gemm")
    a(f"s_cmp_lt_i32 s{sTEND}, 1")
    a("s_cbranch_scc1 K2_RDONE")
    for r in range(0, 16, 2):
        a(f"v_mov_b64 {vr(G[1]+r,2)}, 0")
    for j in range(0, 8, 2):
        a(f"v_mov_b64 {vr(SA+j,2)}, 0")
    poll(a, stubs, "P")
    stamp(a, "polled")
    a(f"ds_read_b128 {vr(IX,4)}, v{vEA}")
    a(f"ds_read_b128 {vr(IX+4,4)}, v{vOT}")
    a("s_waitcnt vmcnt(16) lgkmcnt(0)")
    a(f"{MF} {vr(G[0],16)}, {vr(IX,4)}, {vr(WC,4)}, {vr(RAW[0],16)}")
    a(f"{MF} {vr(G[0],16)}, {vr(IX+4,4)}, {vr(AP,4)}, {vr(G[0],16)}")
    a("s_nop 3")
    idx_reads(a, 2)
    stamp(a, "loop0")
    a(".p2align 6")
    a("K2_LOOP:")
    for ph in range(6):
        R0, R1, R2 = RAW[ph % 3], RAW[(ph + 1) % 3], RAW[(ph + 2) % 3]
        Gc, Gn = G[ph % 2], G[(ph + 1) % 2]
        APn = AP + 4 * ((ph + 1) % 2)
        vS = (vS0, vS1)[ph % 2]
        sL = (sL0, sL1)[ph % 2]
        ms = ms_list(Gn)
        a(f"s_cmp_ge_u32 s{sT}, s{sL}")
        a(f"s_cbranch_scc1 K2_SKIP_{ph}")
        a(f"s_add_u32 s{sT}, s{sT}, 1")
        prio(a, 0)
        if ITS:
            a("s_memtime s[4:5]")
            a(f"s_add_u32 m0, s{sT}, 19")
        a("s_waitcnt lgkmcnt(0)")
        if ITS:
            a("v_writelane_b32 v167, s4, m0")
        gathers(a, R2)
        poll(a, stubs, ph)
        a(f"ds_read_b128 {vr(IX,4)}, v{vEA} offset:{(ph+1)*1024}")
        a(f"ds_read_b128 {vr(IX+4,4)}, v{vOT} offset:{(ph+1)*1024}")
        for i in range(16):
            if i % 4 == 0:
                a(ms[i // 4])
            a(f"v_exp_f32_e64 v{Gc+i}, -v{Gc+i}")
        prio(a, 1)
        if SHL64:
            for i in range(0, 16, 2):
                a(f"v_lshlrev_b64 {vr(R0+i,2)}, 16, {vr(R0+i,2)}")
        else:
            for i in range(16):
                a(f"v_lshlrev_b32 v{R0+i}, 16, v{R0+i}")
        for i in range(0, 16, 2):
            a(f"v_pk_add_f32 {vr(Gc+i,2)}, {vr(Gc+i,2)}, 1.0 op_sel_hi:[1,0]")
        prio(a, 2)
        for i in range(16):
            if i == 4:
                a("s_waitcnt vmcnt(16) lgkmcnt(0)")
                a(f"{MF} {vr(Gn,16)}, {vr(IX,4)}, {vr(WC,4)}, {vr(R1,16)}")
            if i == 8:
                a(f"{MF} {vr(Gn,16)}, {vr(IX+4,4)}, {vr(APn,4)}, {vr(Gn,16)}")
            a(f"v_rcp_f32 v{Gc+i}, v{Gc+i}")
            if i == 9:
                for u in range(4):
                    a(f"ds_read_b64_tr_b16 {vr(SA+2*u,2)}, v{vS} offset:{ph*1024+u*256}")
                idx_reads(a, ph + 3)
        prio(a, 3)
        for i in range(0, 16, 2):
            a(f"v_pk_mul_f32 {vr(R0+i,2)}, {vr(R0+i,2)}, {vr(Gc+i,2)}")
        for i in range(8):
            a(f"v_cvt_pk_bf16_f32 v{Gc+i}, v{Gc+2*i}, v{Gc+2*i+1}")
        for i in range(8):
            a(f"v_cvt_pk_bf16_f32 v{Gc+8+i}, v{R0+2*i}, v{R0+2*i+1}")
        a(f"s_cmp_ge_u32 s{sT}, s{sTEND}")
        a(f"s_cbranch_scc1 K2_DRAIN_{ph%2}")
        a(f"K2_NEXT_{ph}:")
        stubs(f"K2_SKIP_{ph}:")
        stubs(f"s_add_u32 s{sT}, s{sT}, 1")
        stubs("s_waitcnt lgkmcnt(0)")
        st2 = A()
        poll(stubs, st2, f"S{ph}")
        stubs(f"ds_read_b128 {vr(IX,4)}, v{vEA} offset:{(ph+1)*1024}")
        stubs(f"ds_read_b128 {vr(IX+4,4)}, v{vOT} offset:{(ph+1)*1024}")
        for m in ms:
            stubs(m)
        for r in range(0, 16, 2):
            stubs(f"v_mov_b64 {vr(Gc+r,2)}, 0")
        for j in range(0, 8, 2):
            stubs(f"v_mov_b64 {vr(SA+j,2)}, 0")
        stubs("s_waitcnt vmcnt(0) lgkmcnt(0)")
        stubs(f"{MF} {vr(Gn,16)}, {vr(IX,4)}, {vr(WC,4)}, {vr(R1,16)}")
        stubs(f"{MF} {vr(Gn,16)}, {vr(IX+4,4)}, {vr(APn,4)}, {vr(Gn,16)}")
        stubs("s_nop 3")
        idx_reads(stubs, ph + 3)
        stubs(f"s_branch K2_NEXT_{ph}")
        stubs.l += st2.l
    a(f"v_add_u32 v{vIDX}, {6*128}, v{vIDX}")
    a(f"v_add_u32 v{vEA}, {6*1024}, v{vEA}")
    a(f"v_add_u32 v{vOT}, {6*1024}, v{vOT}")
    a(f"v_add_u32 v{vSa}, {6*1024}, v{vSa}")
    a(f"v_cndmask_b32_e64 v{vS0}, 0, v{vSa}, s[{sM0}:{sM0+1}]")
    a(f"v_cndmask_b32_e64 v{vS1}, 0, v{vSa}, s[{sM1}:{sM1+1}]")
    if PACE:
        a(f"s_cmp_ge_u32 s{sT}, s{sNB}")
        a("s_cbranch_scc1 K2_LOOP")
        a("s_barrier")
    a("s_branch K2_LOOP")
    for p in range(2):
        a(f"K2_DRAIN_{p}:")
        a("s_waitcnt lgkmcnt(0)")
        for m in ms_list(G[p]):
            a(m)
        if p == 0:
            a("s_branch K2_RDONE")
    a("K2_RDONE:")
    a(f"s_cmp_lg_u32 s{sMODE}, 0")
    a("s_cbranch_scc1 K2_SLOWNEXT")
    a("K2_EPI:")
    stamp(a, "loopend")
    a("v_bfe_u32 v2, v0, 5, 1")
    a("v_bfe_u32 v3, v0, 3, 2")
    a(f"s_lshl_b32 s{sTMP}, s{sCG}, 2")
    a(f"v_or_b32 v3, s{sTMP}, v3")
    a("v_lshlrev_b32 v4, 2, v2")
    a("v_xor_b32 v3, v3, v4")
    a("v_lshlrev_b32 v3, 4, v3")
    a("v_and_b32 v4, 7, v0")
    a("v_lshl_or_b32 v3, v4, 1, v3")
    a("v_lshl_or_b32 v3, v2, 10, v3")
    a(f"s_lshl_b32 s{sTMP}, s{sBETA}, 13")
    a(f"s_add_u32 s{sTMP}, s{sTMP}, {L_X}")
    a(f"v_add_u32 v3, s{sTMP}, v3")
    XD = IX
    for r in range(8):
        k = 8 * (r >> 2) + (r & 3)
        if k:
            a(f"v_xor_b32 v{SA+r}, {k*16}, v3")
        else:
            a(f"v_mov_b32 v{SA}, v3")
    for r in range(16):
        k = 8 * (r >> 2) + (r & 3)
        a(f"ds_read_u16 v{XD+r}, v{SA+(r&7)} offset:{k*256}")
    a("v_and_b32 v1, 31, v0")
    a("v_lshlrev_b32 v1, 1, v1")
    a("v_lshl_or_b32 v1, v2, 21, v1")
    a(f"s_lshl_b32 s{sTMP}, s{sBETA}, 17")
    a(f"s_lshl_b32 s{sTMP+1}, s2, 8")
    a(f"s_add_u32 s{sTMP}, s{sTMP}, s{sTMP+1}")
    a(f"s_lshl_b32 s{sTMP+1}, s{sCG}, 6")
    a(f"s_add_u32 s{sTMP}, s{sTMP}, s{sTMP+1}")
    SO = 84
    for r in range(16):
        a(f"s_add_u32 s{SO+r}, s{sTMP}, {(r&7)*262144 + (r>>3)*65536:#x}")
    a(f"s_mov_b32 s{sTMP+2}, 0x358637bd")
    for r in range(16):
        a(f"v_add_f32 v{DEN+r}, s{sTMP+2}, v{DEN+r}")
    for r in range(16):
        a(f"v_rcp_f32 v{DEN+r}, v{DEN+r}")
    UD = G[0]
    for r in range(16):
        if r & 1:
            a(f"v_and_b32 v{UD+r}, 0xffff0000, v{UP+r//2}")
        else:
            a(f"v_lshlrev_b32 v{UD+r}, 16, v{UP+r//2}")
    for r in range(0, 16, 2):
        a(f"v_pk_fma_f32 {vr(UD+r,2)}, {vr(NUM+r,2)}, {vr(DEN+r,2)}, {vr(UD+r,2)}")
    for r in range(16):
        a(f"v_max_f32 v{UD+r}, 0, v{UD+r}")
    a("s_waitcnt lgkmcnt(0)")
    for r in range(16):
        a(f"v_lshlrev_b32 v{XD+r}, 16, v{XD+r}")
    for r in range(0, 16, 2):
        a(f"v_pk_add_f32 {vr(UD+r,2)}, {vr(UD+r,2)}, {vr(XD+r,2)}")
    for j in range(8):
        a(f"v_cvt_pk_bf16_f32 v{XD+j}, v{UD+2*j}, v{UD+2*j+1}")
    for r in range(16):
        op = "buffer_store_short_d16_hi" if r & 1 else "buffer_store_short"
        a(f"{op} v{XD+r//2}, v1, s[36:39], s{SO+r} offen")
    if STAMP:
        a("s_waitcnt vmcnt(0)")
        a(f"s_add_u32 s6, s{sL0}, s{sL1}")
        a("s_lshr_b32 s6, s6, 1")
    stamp(a, "end")
    stamp_out(a, "s6")
    a("K2_END:")
    a("s_endpgm")
    a.l += stubs.l
    a("K2_SLOWNEXT:")
    a(f"s_cmp_eq_u32 s{sROUND}, 999")
    a("s_cbranch_scc1 K2_EPI")
    a("K2_NEXT:")
    a(f"s_add_u32 s{sROUND}, s{sROUND}, 1")
    a("s_waitcnt vmcnt(0) lgkmcnt(0)")
    a("s_barrier")
    a("s_branch K2_ROUND")
    a("K2_OVF:")
    a(f"s_mov_b32 s{sMODE}, 1")
    a(f"s_mov_b32 s{sROUND}, 0")
    a("s_waitcnt vmcnt(0)")
    a("s_barrier")
    a("s_branch K2_ROUND")
    a("K2_SLOWSRC:")
    a(f"s_mul_i32 s{sTMP}, s{sROUND}, 1600")
    a("v_lshlrev_b32 v6, 2, v0")
    a(f"buffer_load_dword v5, v6, s[52:55], s{sTMP} offen")
    a(f"buffer_load_dword v2, v6, s[48:51], s{sTMP} offen")
    a(f"s_and_b32 s{sTMP+1}, s{sROUND}, 7")
    a(f"s_mul_i32 s{sTMP+1}, s{sTMP+1}, 400")
    a(f"s_lshr_b32 s{sTMP+2}, s{sROUND}, 3")
    a(f"s_mul_i32 s{sTMP+2}, s{sTMP+2}, {CH*32}")
    a(f"v_add_u32 v8, s{sTMP+1}, v0")
    a("v_lshlrev_b32 v8, 20, v8")
    a(f"v_mov_b32 v4, s{sTMP+2}")
    a("s_waitcnt vmcnt(0) lgkmcnt(0)")
    a("s_barrier")
    a("v_lshl_or_b32 v8, v2, 5, v8")
    a("v_lshrrev_b32 v9, 9, v5")
    a(f"v_and_or_b32 v{RECQ[0]}, v9, 30, v8")
    a("v_and_b32 v9, 255, v5")
    a("v_cmp_eq_u32 vcc, s2, v9")
    a("v_lshrrev_b32 v2, 7, v2")
    a(f"v_and_b32 v2, {24 if PHMASK else 0}, v2")
    a("v_cndmask_b32_e64 v3, 0, 1, vcc")
    a("v_cmp_gt_u32 vcc, 400, v0")
    a("v_bfe_u32 v5, v5, 8, 2")
    a("v_lshlrev_b32 v3, v2, v3")
    a("v_cndmask_b32 v3, 0, v3, vcc")
    a("s_branch K2_ALLOC")
    a("K2_PROD:")
    a(f"s_max_u32 s{sTEND}, s{sC+4}, s{sC+5}")
    a("v_and_b32 v1, 63, v0")
    a("v_lshrrev_b32 v2, 1, v1")
    a("v_lshlrev_b32 v2, 2, v2")
    a(f"s_lshl_b32 s{sTMP+2}, s{sC+4}, 7")
    a(f"v_add_u32 v6, s{sTMP+2}, v2")
    a("v_and_b32 v3, 1, v1")
    a("v_lshlrev_b32 v3, 4, v3")
    a("v_mov_b32 v4, 0")
    a("v_mov_b32 v5, 1")
    a(f"s_mov_b32 s{sT}, 0")
    a(f"s_mov_b32 s{sTMP}, {L_EA}")
    a(f"s_mov_b32 s{sTMP+3}, 6")
    a(f"s_lshl_b32 s{sTMP+1}, s{sC+4}, 10")
    a(f"s_add_u32 s{sTMP+1}, s{sTMP+1}, {L_EA}")
    a(f"s_waitcnt vmcnt({PF})")
    a("s_barrier")
    stamp(a, "bar2")
    PB = 6
    LEAD = PK + LEADX
    EB = 32
    a("K2_PBATCH:")
    for i in range(PB):
        a(f"ds_read_b32 v{EB+2*i}, v2 offset:{L_EOF+128*i}")
        a(f"ds_read_b32 v{EB+2*i+1}, v6 offset:{L_EOF+128*i}")
    a("s_setprio 3")
    a(f"v_add_u32 v2, {128*PB}, v2")
    a(f"v_add_u32 v6, {128*PB}, v6")
    a("s_waitcnt lgkmcnt(0)")
    for i in range(2 * PB):
        if NOEA:
            a(f"v_mov_b32 v{EB+i}, v3")
        else:
            a(f"v_or_b32 v{EB+i}, v{EB+i}, v3")
    a(f"s_setprio {PPRIO}")
    for i in range(PB):
        a(f"s_cmp_ge_u32 s{sT}, s{sTEND}")
        a("s_cbranch_scc1 K2_PDRAIN")
        if PACE and i == LEAD % 6:
            a(f"s_cmp_lt_u32 s{sT}, {6+LEAD}")
            a("s_cbranch_scc1 K2_PNB")
            a(f"s_cmp_ge_u32 s{sTMP+3}, s{sNB}")
            a("s_cbranch_scc1 K2_PNB")
            a("s_waitcnt lgkmcnt(0)")
            a("s_barrier")
            a(f"s_add_u32 s{sTMP+3}, s{sTMP+3}, 6")
            a("K2_PNB:")
        for hb in range(2):
            a(f"s_min_u32 m0, s{sTMP+hb}, {L_EA + NT*1024}")
            a(f"s_add_u32 s{sTMP+hb}, s{sTMP+hb}, 1024")
            a(f"buffer_load_dwordx4 v{EB+2*i+hb}, s[24:27], 0 offen {EAPOL} lds")
        for j in range(PFS):
            pf_one(a)
        a(f"s_add_u32 s{sT}, s{sT}, 1")
        a(f"s_cmp_le_u32 s{sT}, {PK}")
        a(f"s_cbranch_scc1 K2_PN_{i}")
        a("s_mov_b64 exec, 1")
        a(f"s_waitcnt vmcnt({(2+PFS)*PK+PFS})")
        a(f"ds_add_u32 v4, v5 offset:{L_RDY}")
        a("s_mov_b64 exec, -1")
        a(f"K2_PN_{i}:")
    a("s_branch K2_PBATCH")
    a("K2_PDRAIN:")
    a("s_mov_b64 exec, 1")
    for k in range(PK - 1, 0, -1):
        a(f"s_cmp_le_u32 s{sT}, {k}")
        a(f"s_cbranch_scc1 K2_PD_{k}")
        a(f"s_waitcnt vmcnt({(2+PFS)*k+PFS})")
        a(f"ds_add_u32 v4, v5 offset:{L_RDY}")
        a(f"K2_PD_{k}:")
    a("v_mov_b32 v5, 0x7fffffff")
    a("s_waitcnt vmcnt(0)")
    a(f"ds_write_b32 v4, v5 offset:{L_RDY}")
    a("s_mov_b64 exec, -1")
    if PACE:
        a("s_waitcnt lgkmcnt(0)")
        a("K2_PREST:")
        a(f"s_cmp_ge_u32 s{sTMP+3}, s{sNB}")
        a("s_cbranch_scc1 K2_PRESTD")
        a("s_barrier")
        a(f"s_add_u32 s{sTMP+3}, s{sTMP+3}, 6")
        a("s_branch K2_PREST")
        a("K2_PRESTD:")
    stamp(a, "loopend")
    stamp_out(a, "0")
    a(f"s_cmp_eq_u32 s{sMODE}, 0")
    a("s_cbranch_scc1 K2_PEND")
    a(f"s_cmp_eq_u32 s{sROUND}, 999")
    a("s_cbranch_scc0 K2_NEXT")
    a("K2_PEND:")
    a("s_endpgm")

def kd(name, vgpr, sgpr):
    return f""".amdhsa_kernel {name}
  .amdhsa_next_free_vgpr {vgpr}
  .amdhsa_next_free_sgpr {sgpr}
  .amdhsa_accum_offset {(vgpr+3)//4*4}
  .amdhsa_group_segment_fixed_size 0
  .amdhsa_kernarg_size 96
  .amdhsa_user_sgpr_count 2
  .amdhsa_user_sgpr_kernarg_segment_ptr 1
  .amdhsa_system_sgpr_workgroup_id_x 1
.end_amdhsa_kernel
"""

def main(out):
    K2 = "standalone__edge_featured_mpnn_gatedgcn__graph_kernel"
    ref = open("standalone__edge_featured_mpnn_gatedgcn__graph.s.ref").read().split("\n")
    head = []
    for line in ref:
        if not line.startswith(";"):
            break
        if "@launch" in line or "Override launch" in line or "grid=ceil" in line:
            continue
        head.append(line)
    t = "\n".join(head) + "\n"
    t += f"; @launch kernel=k1_kernel grid=({NS+NGEMM+1},1,1) block=(512,1,1) lds={K1_LDS}\n"
    t += f"; @launch kernel={K2} grid=(256,1,1) block=(576,1,1) lds={L_TOTAL}\n"
    t += '.amdgcn_target "amdgcn-amd-amdhsa--gfx950"\n.text\n'
    a = A()
    gen_k1(a)
    t += ".globl k1_kernel\n.p2align 8\n.type k1_kernel,@function\n" + a.text()
    a = A()
    gen_k2(a, K2)
    t += f".globl {K2}\n.p2align 8\n.type {K2},@function\n" + a.text()
    t += '.section .rodata,"a"\n.p2align 6\n' + kd("k1_kernel", 96, 64) + ".p2align 6\n" + kd(K2, 168, 102)
    if STAMP:
        t = "; stamps " + ",".join(STAMP_NAMES) + "\n" + t
    open(out, "w").write(t)

if __name__ == "__main__":
    main(sys.argv[1] if len(sys.argv) > 1 else "standalone__edge_featured_mpnn_gatedgcn__graph.s")
```

```python
import sys, os

N = 12500
E = 400000
NS = 125
CH = 3200
NGEMM = 196
WS_TAB = 0
WS_REC = 0x620000
WS_OFF = 0x7B0000
WS_WOP = 0x8B0000
WS_END = 0x8C0000
LOG2E = 0x3fb8aa3b
env = lambda k, d: type(d)(os.environ.get(k, d))
STAMP = env("STAMP", 0)
STAMPS = env("STAMPS", "all").split(",")
PK = env("PK", 1)
SHL64 = env("SHL64", 0)
NOEA = env("NOEA", 0)
EAPOL = env("EAPOL", "")
PPRIO = env("PPRIO", 0)
CODEPF = env("CODEPF", 0)
K1PF = env("K1PF", 2)
STAMP1 = env("STAMP1", 0)
STPOL = env("STPOL", "")
ITS = env("ITS", 0)
PACE = env("PACE", 1)
LEADX = env("LEADX", 3)
PRIO = env("PRIO", "3210")
ROT = env("ROT", 1)
PFS = env("PFS", 0)
PFPOS = env("PFPOS", 1)
PF = env("PF", 0)
PHMASK = env("PHMASK", 1)

class A:
    def __init__(self):
        self.l = []
    def __call__(self, s):
        for line in s.strip("\n").split("\n"):
            line = line.strip()
            if not line:
                continue
            self.l.append(line if line.endswith(":") else "    " + line)
    def text(self):
        return "\n".join(self.l) + "\n"

def vr(a, n):
    return f"v[{a}:{a+n-1}]"

def srd(a, d, base, nbytes, add=0):
    if add:
        a(f"s_add_u32 s{d}, s{base}, {add:#x}")
        a(f"s_addc_u32 s{d+1}, s{base+1}, 0")
    else:
        a(f"s_mov_b32 s{d}, s{base}")
        a(f"s_mov_b32 s{d+1}, s{base+1}")
    a(f"s_mov_b32 s{d+2}, {nbytes:#x}")
    a(f"s_mov_b32 s{d+3}, 0x20000")

MF = "v_mfma_f32_32x32x16_bf16"

def dpp_scan(a, v):
    for sh in (1, 2, 4, 8):
        a("s_nop 1")
        a(f"v_add_u32_dpp v{v}, v{v}, v{v} row_shr:{sh} row_mask:0xf bank_mask:0xf")
    a("s_nop 1")
    a(f"v_add_u32_dpp v{v}, v{v}, v{v} row_bcast:15 row_mask:0xa bank_mask:0xf")
    a("s_nop 1")
    a(f"v_add_u32_dpp v{v}, v{v}, v{v} row_bcast:31 row_mask:0xc bank_mask:0xf")

K1_LDS = 81920
K1_NAMES = []
def st1(a, nm):
    if STAMP1:
        if nm not in K1_NAMES:
            K1_NAMES.append(nm)
        if nm == "start":
            a("v_mov_b32 v100, 0")
            a("s_memrealtime s[64:65]")
            a("s_waitcnt lgkmcnt(0)")
            a("v_writelane_b32 v100, s64, 61")
        a("s_memtime s[64:65]")
        a("s_waitcnt lgkmcnt(0)")
        a(f"v_writelane_b32 v100, s64, {K1_NAMES.index(nm)}")
def st1_out(a):
    if STAMP1:
        a("s_mov_b64 exec, -1")
        a("s_waitcnt vmcnt(0)")
        st1(a, "end")
        a("s_memrealtime s[64:65]")
        a("s_waitcnt lgkmcnt(0)")
        a("v_writelane_b32 v100, s64, 62")
        srd(a, 60, 20, 0x200000, add=0xA00000)
        a("v_lshlrev_b32 v101, 2, v0")
        a("s_lshl_b32 s66, s2, 11")
        a("buffer_store_dword v100, v101, s[60:63], s66 offen")
def k1pf(a):
    if not K1PF:
        return
    srd(a, 56, 6, E * 32)
    a("s_lshl_b32 s54, s2, 3")
    a("s_add_u32 s54, s54, s3")
    a("s_mul_i32 s54, s54, 5120")
    a("v_lshlrev_b32 v96, 7, v2")
    a("s_mov_b32 exec_hi, 0xff")
    a("buffer_load_dword v97, v96, s[56:59], s54 offen")
    a("s_mov_b32 exec_hi, -1")
    if K1PF > 1:
        a("s_cmp_lt_u32 s3, 4")
        a("s_cselect_b32 s56, s12, s14")
        a("s_cselect_b32 s57, s13, s15")
        a("s_mov_b32 s58, 32768")
        a("s_and_b32 s54, s3, 3")
        a("s_lshl_b32 s54, s54, 13")
        a("s_lshl_b32 s55, s2, 15")
        a("s_add_u32 s54, s54, s55")
        a("buffer_load_dword v97, v96, s[56:59], s54 offen")
def gen_k1(a):
    a("k1_kernel:")
    a(f"s_cmp_ge_u32 s2, {NS + NGEMM}")
    a("s_cbranch_scc1 K1_END")
    a("s_load_dwordx8 s[4:11], s[0:1], 0")
    a("s_load_dwordx2 s[24:25], s[0:1], 40")
    a("s_load_dwordx2 s[28:29], s[0:1], 64")
    a("s_load_dwordx2 s[20:21], s[0:1], 88")
    a("s_load_dwordx2 s[12:13], s[0:1], 32")
    a("s_load_dwordx2 s[14:15], s[0:1], 56")
    a("v_lshrrev_b32 v1, 6, v0")
    a("v_and_b32 v2, 63, v0")
    a("v_readfirstlane_b32 s3, v1")
    st1(a, "start")
    a(f"s_cmp_lt_u32 s2, {NS}")
    a("s_cbranch_scc1 K1_SORT")
    a(f"s_sub_u32 s43, s2, {NS}")
    a("v_lshrrev_b32 v3, 4, v2")
    a("v_lshlrev_b32 v4, 2, v3")
    a("v_and_b32 v6, 15, v2")
    a("v_xor_b32 v5, v6, v4")
    a("v_lshlrev_b32 v5, 4, v5")
    a("v_lshl_add_u32 v5, v3, 8, v5")
    a("s_and_b32 s46, s3, 1")
    a("s_lshl_b32 s46, s46, 3")
    a("v_xor_b32 v6, v6, v3")
    a("v_xor_b32 v6, s46, v6")
    a("v_lshlrev_b32 v6, 4, v6")
    a("v_lshl_add_u32 v6, v3, 8, v6")
    a("v_xor_b32 v7, 64, v6")
    a("s_lshl_b32 s22, s3, 12")
    a("s_add_u32 s23, s22, 32768")
    a("s_lshl_b32 s44, s43, 14")
    a("s_lshl_b32 s45, s3, 11")
    a("s_add_u32 s44, s44, s45")
    a("s_add_u32 s45, s45, 65536")
    a("s_waitcnt lgkmcnt(0)")
    srd(a, 32, 4, N * 256)
    a("s_mov_b32 m0, s45")
    a("s_mov_b32 s26, 32768")
    a("buffer_load_dwordx4 v6, s[32:35], s44 offen lds")
    a("buffer_load_dwordx4 v7, s[32:35], s44 offen offset:1024 lds")
    a("s_mov_b32 s27, 0x20000")
    a("s_mov_b32 s30, 32768")
    a("s_mov_b32 s31, 0x20000")
    a("s_mov_b32 m0, s22")
    a("s_nop 0")
    for i in range(4):
        a(f"buffer_load_dwordx4 v5, s[24:27], s22 offen offset:{i*1024} lds")
    a("s_mov_b32 m0, s23")
    a("s_nop 0")
    for i in range(4):
        a(f"buffer_load_dwordx4 v5, s[28:31], s22 offen offset:{i*1024} lds")
    st1(a, "issued")
    srd(a, 36, 20, N * 512, add=WS_TAB)
    a("v_and_b32 v6, 31, v2")
    a("v_lshrrev_b32 v7, 5, v2")
    a("s_and_b32 s46, s3, 3")
    a("s_lshr_b32 s47, s3, 2")
    a("v_bfe_u32 v9, v2, 2, 2")
    a("v_lshl_add_u32 v10, v7, 3, v9")
    a("v_lshlrev_b32 v10, 8, v10")
    a("v_xor_b32 v11, s46, v9")
    a("v_lshl_add_u32 v10, v11, 6, v10")
    a("v_bfe_u32 v11, v2, 4, 1")
    a("v_lshl_add_u32 v10, v11, 5, v10")
    a("v_and_b32 v11, 3, v2")
    a("v_lshl_add_u32 v10, v11, 3, v10")
    XAD = 16
    a("v_and_b32 v11, 15, v2")
    a("v_xor_b32 v11, v11, v7")
    a("v_lshlrev_b32 v11, 4, v11")
    a("v_lshl_add_u32 v11, v6, 8, v11")
    a("s_lshl_b32 s48, s47, 13")
    a("s_add_u32 s48, s48, 65536")
    a(f"v_add_u32 v{XAD}, s48, v11")
    for kk in range(1, 8):
        a(f"v_xor_b32 v{XAD+kk}, {kk*32}, v{XAD}")
    a("s_lshl_b32 s48, s43, 15")
    a("s_lshl_b32 s49, s47, 14")
    a("s_add_u32 s48, s48, s49")
    a("s_lshl_b32 s49, s46, 7")
    a("s_add_u32 s48, s48, s49")
    a("v_lshlrev_b32 v12, 2, v6")
    a("v_lshl_add_u32 v12, v7, 11, v12")
    a("v_add_u32 v12, s48, v12")
    a("v_add_u32 v13, 4096, v12")
    a("v_add_u32 v14, 8192, v12")
    a("v_add_u32 v15, 12288, v12")
    a(f"s_mov_b32 s50, {LOG2E:#x}")
    a(f"s_mov_b32 s51, {LOG2E:#x}")
    a("s_mov_b32 s52, 0x7f7e0000")
    a("v_mov_b32 v8, 0x21800000")
    a("v_mov_b32 v9, 0x21800000")
    a("s_waitcnt vmcnt(0)")
    st1(a, "landed")
    a("s_barrier")
    k1pf(a)
    st1(a, "bar")
    SET = [24, 36, 48]
    AB, AV = 64, 80
    def reads(kk):
        b = SET[kk % 3]
        a(f"ds_read_b128 {vr(b,4)}, v{XAD+kk}")
        for u in range(2):
            a(f"ds_read_b64_tr_b16 {vr(b+4+2*u,2)}, v10 offset:{kk*4096+u*1024}")
        for u in range(2):
            a(f"ds_read_b64_tr_b16 {vr(b+8+2*u,2)}, v10 offset:{32768+kk*4096+u*1024}")
    for kk in range(3):
        reads(kk)
    for kk in range(8):
        b = SET[kk % 3]
        later = min(7 - kk, 2)
        a(f"s_waitcnt lgkmcnt({5*later})")
        cb = "0" if kk == 0 else vr(AB, 16)
        cv = "0" if kk == 0 else vr(AV, 16)
        a(f"{MF} {vr(AV,16)}, {vr(b,4)}, {vr(b+8,4)}, {cv}")
        a(f"{MF} {vr(AB,16)}, {vr(b,4)}, {vr(b+4,4)}, {cb}")
        if kk + 3 < 8:
            reads(kk + 3)
    a("s_nop 10")
    st1(a, "mfma")
    VP, VN = 24, 32
    for i in range(8):
        a(f"v_cvt_pk_bf16_f32 v{VP+i}, v{AV+2*i}, v{AV+2*i+1}")
        a(f"v_cvt_pk_bf16_f32 v{VN+i}, -v{AV+2*i}, -v{AV+2*i+1}")
    for q in range(4):
        for r in range(4*q, 4*q+4, 2):
            a(f"v_pk_fma_f32 {vr(AB+r,2)}, {vr(AB+r,2)}, s[50:51], v[8:9]")
        for r in range(4*q, 4*q+4):
            a(f"v_med3_f32 v{AB+r}, v{AB+r}, -s52, s52")
        for r in range(4*q, 4*q+4):
            a(f"v_sub_u32_sdwa v{AB+r}, v{AB+r}, sext(v{VN+r//2}) dst_sel:DWORD dst_unused:UNUSED_PAD src0_sel:DWORD src1_sel:WORD_{r&1}")
        for r in range(4*q, 4*q+4):
            a(f"v_mov_b32_sdwa v{AB+r}, v{VP+r//2} dst_sel:WORD_0 dst_unused:UNUSED_PRESERVE src0_sel:WORD_{r&1}")
        a("s_nop 0")
        for r in range(4*q, 4*q+4):
            a(f"buffer_store_dword v{AB+r}, v{12+q}, s[36:39], 0 offen offset:{(r&3)*512} {STPOL}")
    st1(a, "stored")
    st1_out(a)
    a("s_endpgm")
    a("K1_SORT:")
    a("v_lshlrev_b32 v3, 3, v0")
    a("v_mov_b32 v4, 0")
    a("v_mov_b32 v5, 0")
    a("ds_write_b64 v3, v[4:5]")
    a("ds_write_b32 v4, v4 offset:4128")
    a("v_lshlrev_b32 v6, 4, v0")
    a("s_mov_b32 s43, s2")
    a(f"s_mul_i32 s22, s43, {CH*4}")
    a("s_add_u32 s23, s22, 8192")
    a("s_waitcnt lgkmcnt(0)")
    srd(a, 24, 8, E * 4)
    srd(a, 28, 10, E * 4)
    D, S, RK, RC, KA, SH = 16, 24, 32, 40, 48, 56
    a(f"buffer_load_dwordx4 {vr(D,4)}, v6, s[28:31], s22 offen")
    a(f"buffer_load_dwordx4 {vr(S,4)}, v6, s[24:27], s22 offen")
    a(f"buffer_load_dwordx4 {vr(D+4,4)}, v6, s[28:31], s23 offen")
    a(f"buffer_load_dwordx4 {vr(S+4,4)}, v6, s[24:27], s23 offen")
    srd(a, 32, 20, E * 4, add=WS_REC)
    srd(a, 36, 20, NS * 8192, add=WS_OFF)
    a("v_lshlrev_b32 v7, 22, v0")
    a("v_mov_b32 v8, 0")
    a(f"v_cmp_gt_u32 vcc, {(CH-2048)//4}, v0")
    a("s_mov_b64 s[40:41], vcc")
    a("s_barrier")
    def keys(lo, wait):
        a(f"s_waitcnt vmcnt({wait})")
        for i in range(lo, lo + 4):
            a(f"v_and_b32 v9, 255, v{D+i}")
            a(f"v_lshrrev_b32 v10, 6, v{D+i}")
            a(f"v_lshrrev_b32 v{SH+i}, 7, v{S+i}")
            a("v_and_b32 v10, 12, v10")
            a(f"v_and_b32 v{SH+i}, {24 if PHMASK else 0}, v{SH+i}")
            a(f"v_lshl_or_b32 v{KA+i}, v9, 4, v10")
            a(f"v_lshlrev_b32_e64 v9, v{SH+i}, 1")
            a(f"ds_add_rtn_u32 v{RK+i}, v{KA+i}, v9")
        for i in range(lo, lo + 4):
            a(f"v_lshrrev_b32 v9, 9, v{D+i}")
            a(f"v_add_u32 v10, {((i&3) + (2048 if i >= 4 else 0)) << 20:#x}, v7")
            a("v_and_or_b32 v10, v9, 30, v10")
            a(f"v_lshl_or_b32 v{RC+i}, v{S+i}, 5, v10")
        for i in range(lo, lo + 4):
            a(f"s_waitcnt lgkmcnt({3-(i-lo)})")
            a(f"v_bfe_u32 v{RK+i}, v{RK+i}, v{SH+i}, 8")
        a(f"v_max3_u32 v8, v8, v{RK+lo}, v{RK+lo+1}")
        a(f"v_max3_u32 v8, v8, v{RK+lo+2}, v{RK+lo+3}")
    st1(a, "s_bar0")
    if STAMP1:
        a(f"s_waitcnt vmcnt({2})")
    st1(a, "s_land")
    keys(0, 2)
    a("s_mov_b64 exec, s[40:41]")
    a("s_cbranch_execz K1_S1")
    keys(4, 0)
    a("K1_S1:")
    a("s_mov_b64 exec, -1")
    a("v_cmp_lt_u32 vcc, 62, v8")
    a("s_cbranch_vccz K1_S1B")
    a("v_mov_b32 v9, -1")
    a("ds_write_b32 v4, v9 offset:4128")
    a("s_waitcnt lgkmcnt(0)")
    a("K1_S1B:")
    st1(a, "s_keys")
    a("s_barrier")
    k1pf(a)
    st1(a, "s_bar1")
    a("ds_read_b64 v[12:13], v3")
    a("ds_read_b32 v15, v4 offset:4128")
    a("s_waitcnt lgkmcnt(1)")
    a("v_sad_u8 v10, v12, 0, 0")
    a("v_sad_u8 v11, v13, 0, v10")
    a("v_mov_b32 v14, v11")
    dpp_scan(a, 14)
    a("s_lshl_b32 s42, s3, 2")
    a("v_mov_b32 v9, s42")
    a("s_mov_b32 exec_lo, 0")
    a("s_mov_b32 exec_hi, 0x80000000")
    a("ds_write_b32 v9, v14 offset:4096")
    a("s_mov_b64 exec, -1")
    a("v_sub_u32 v14, v14, v11")
    a("s_waitcnt lgkmcnt(0)")
    a("s_barrier")
    a("ds_read_b128 v[64:67], v4 offset:4096")
    a("ds_read_b128 v[68:71], v4 offset:4112")
    a("v_or_b32 v73, v12, v15")
    a("v_or_b32 v75, v13, v15")
    a("s_waitcnt lgkmcnt(0)")
    for w in range(7):
        a(f"s_cmp_gt_u32 s3, {w}")
        a(f"s_cselect_b32 s42, 1, 0")
        a(f"v_mad_u32_u24 v14, v{64+w}, s42, v14")
    a("v_mov_b32 v72, v14")
    a("v_add_u32 v74, v14, v10")
    a("v_mov_b32 v64, v14")
    a("v_mov_b32 v65, v12")
    a("v_mov_b32 v66, v74")
    a("v_mov_b32 v67, v13")
    a("ds_write_b128 v6, v[64:67] offset:8192")
    a("s_lshl_b32 s42, s43, 13")
    a(f"buffer_store_dwordx4 v[72:75], v6, s[36:39], s42 offen {STPOL}")
    a("s_waitcnt lgkmcnt(0)")
    a("s_barrier")
    st1(a, "s_bar3")
    LK = 64
    def place(lo):
        for i in range(lo, lo + 4):
            a(f"v_lshlrev_b32 v{KA+i}, 1, v{KA+i}")
            a(f"ds_read_b64 {vr(LK+2*(i-lo),2)}, v{KA+i} offset:8192")
        for i in range(lo, lo + 4):
            a("s_waitcnt lgkmcnt(3)")
            a(f"v_bfe_u32 v9, v{LK+2*(i-lo)+1}, 0, v{SH+i}")
            a(f"v_sad_u8 v9, v9, 0, v{LK+2*(i-lo)}")
            a(f"v_add_lshl_u32 v9, v9, v{RK+i}, 2")
            a(f"ds_write_b32 v9, v{RC+i} offset:16384")
    place(0)
    a("s_mov_b64 exec, s[40:41]")
    a("s_cbranch_execz K1_S3")
    a("s_waitcnt lgkmcnt(0)")
    place(4)
    a("K1_S3:")
    a("s_mov_b64 exec, -1")
    a("s_waitcnt lgkmcnt(0)")
    a("s_barrier")
    st1(a, "s_bar4")
    a(f"ds_read_b128 {vr(64,4)}, v6 offset:16384")
    a(f"ds_read_b128 {vr(68,4)}, v6 offset:24576")
    a("s_waitcnt lgkmcnt(1)")
    a(f"buffer_store_dwordx4 {vr(64,4)}, v6, s[32:35], s22 offen {STPOL}")
    a("s_mov_b64 exec, s[40:41]")
    a("s_cbranch_execz K1_S9")
    a("s_waitcnt lgkmcnt(0)")
    a(f"buffer_store_dwordx4 {vr(68,4)}, v6, s[32:35], s23 offen {STPOL}")
    a("K1_S9:")
    st1_out(a)
    a("K1_END:")
    a("s_endpgm")

NT = 60
L_CNT = 64
L_RDY = 96
L_IDX = 6144
L_EOF = L_IDX + NT * 128
L_O = L_EOF + NT * 128
L_EA = L_O + NT * 1024
L_X = L_EA + 65536
L_TOTAL = L_X + 15360
L_PROG = 100
L_WUD = 104
assert L_EA == 9 * 9216

vIDX, vEA, vOT, vSa, vS0, vS1, vT0 = 1, 2, 3, 4, 5, 6, 7
IX = 8
SA = 24
WC, AP, UP = 32, 36, 44
DEN, NUM = 52, 68
G = [84, 100]
RAW = [116, 132, 148]
LO = 164
vT1 = 166
vW = 167 if not STAMP else 131
RECQ = [116, 120, 124]
sW, sCG, sBETA, sMODE, sROUND, sFIRST = 3, 56, 57, 58, 59, 60
sT, sTEND, sRDY, sF0, sL0, sL1 = 62, 63, 64, 65, 66, 67
sC = 68
sTMP = 76
sM0, sM1 = 84, 86
sWAD, sWUD = 88, 92
sU = 96
sPO, sPH = 97, 98

STAMP_NAMES = []
def stamp(a, nm):
    if STAMP and (STAMPS == ["all"] or nm in STAMPS):
        if nm not in STAMP_NAMES:
            STAMP_NAMES.append(nm)
        i = STAMP_NAMES.index(nm)
        a("s_memtime s[4:5]")
        a("s_waitcnt lgkmcnt(0)")
        a(f"v_writelane_b32 v167, s4, {i}")
def stamp_out(a, tiles):
    if STAMP:
        a("s_memrealtime s[4:5]")
        a("s_waitcnt lgkmcnt(0)")
        a("s_mov_b64 exec, -1")
        a("v_writelane_b32 v167, s4, 62")
        a(f"v_writelane_b32 v167, {tiles}, 63")
        a("v_and_b32 v3, 63, v0")
        a("v_lshlrev_b32 v3, 2, v3")
        a(f"s_mul_i32 s{sTMP}, s2, 9")
        a(f"s_add_u32 s{sTMP}, s{sTMP}, s{sW}")
        a(f"s_lshl_b32 s{sTMP}, s{sTMP}, 8")
        a(f"s_add_u32 s{sTMP}, s{sTMP}, 0x900000")
        a("s_mov_b32 s30, 0x1000000")
        a(f"buffer_store_dword v167, v3, s[28:31], s{sTMP} offen")

def idx_reads(a, tile_rel):
    for q in range(4):
        a(f"ds_read_b128 {vr(IX+4*q,4)}, v{vIDX} offset:{tile_rel*128+32*q}")
def gathers(a, dst):
    for k in range(0, 16, 2):
        a(f"v_lshl_add_u64 {vr(IX+k,2)}, {vr(IX+k,2)}, 4, {vr(LO,2)}")
    for k in range(16):
        a(f"buffer_load_dword v{dst+k}, v{IX+k}, s[32:35], 0 offen")
def ms_list(gx):
    return [f"{MF} {vr(DEN,16)}, {vr(SA,4)}, {vr(gx,4)}, {vr(DEN,16)}",
            f"{MF} {vr(NUM,16)}, {vr(SA,4)}, {vr(gx+8,4)}, {vr(NUM,16)}",
            f"{MF} {vr(DEN,16)}, {vr(SA+4,4)}, {vr(gx+4,4)}, {vr(DEN,16)}",
            f"{MF} {vr(NUM,16)}, {vr(SA+4,4)}, {vr(gx+12,4)}, {vr(NUM,16)}"]
def poll(a, stubs, tag):
    a(f"s_cmp_le_u32 s{sRDY}, s{sT}")
    a(f"s_cbranch_scc1 K2_POLL_{tag}")
    a(f"K2_POLLED_{tag}:")
    stubs(f"K2_POLL_{tag}:")
    stubs(f"ds_read_b32 v{vT1}, v{vT0} offset:{L_RDY}")
    stubs("s_waitcnt lgkmcnt(0)")
    stubs(f"v_readfirstlane_b32 s{sRDY}, v{vT1}")
    stubs(f"s_cmp_gt_u32 s{sRDY}, s{sT}")
    stubs(f"s_cbranch_scc1 K2_POLLED_{tag}")
    stubs("s_sleep 1")
    stubs(f"s_branch K2_POLL_{tag}")

def publish(a):
    if PACE:
        a("s_mov_b64 exec, 1")
        a(f"ds_inc_u32 v{vT0}, v{vEA} offset:{L_PROG}")
        a("s_mov_b64 exec, -1")
def prio(a, pos):
    c = PRIO[pos]
    if c != "-":
        a(f"s_setprio {c}")
def wstage(a, d, lds):
    a(f"s_lshl_b32 s{sTMP+1}, s{sW}, 12")
    a(f"s_add_u32 m0, s{sTMP+1}, {lds}")
    a("s_nop 0")
    for i in range(4):
        a(f"buffer_load_dwordx4 v14, s[{d}:{d+3}], s{sTMP+1} offen offset:{i*1024} lds")
def wreads(a, dst, off):
    for kk in range(8):
        for u in range(2):
            a(f"ds_read_b64_tr_b16 {vr(dst+4*kk+2*u,2)}, v{vW} offset:{off+kk*4096+u*1024}")
def pf_one(a):
    a(f"buffer_load_dword v17, v16, s[32:35], s{sPO} offen")
    a(f"s_bitcmp1_b32 s{sPO}, 18")
    a(f"s_mov_b32 s{sPO+2}, {262144:#x}")
    a(f"s_cselect_b32 s{sPO+2}, {2097152-262144:#x}, s{sPO+2}")
    a(f"s_add_u32 s{sPO}, s{sPO}, s{sPO+2}")
    a(f"s_add_u32 s{sPO+2}, s{sPH}, {524288:#x}")
    a(f"s_cmp_ge_u32 s{sPO}, {N*512:#x}")
    a(f"s_cselect_b32 s{sPH}, s{sPO+2}, s{sPH}")
    a(f"s_cselect_b32 s{sPO}, s{sPO+2}, s{sPO}")
    a(f"s_cmp_ge_u32 s{sPH}, {2097152:#x}")
    a(f"s_cselect_b32 s{sPO}, {0x1000000:#x}, s{sPO}")
    a(f"s_min_u32 s{sPH}, s{sPH}, {2097152:#x}")
def pf_first(a):
    for i in range(PF):
        pf_one(a)

def gen_k2(a, name):
    stubs = A()
    a(f"{name}:")
    a("s_cmp_ge_u32 s2, 256")
    a("s_cbranch_scc1 K2_END")
    a("s_load_dwordx2 s[16:17], s[0:1], 88")
    a("s_load_dwordx8 s[4:11], s[0:1], 0")
    a("s_load_dwordx2 s[12:13], s[0:1], 48")
    a("s_load_dwordx2 s[14:15], s[0:1], 72")
    a(f"s_load_dwordx2 s[{sWAD}:{sWAD+1}], s[0:1], 32")
    a(f"s_load_dwordx2 s[{sWUD}:{sWUD+1}], s[0:1], 56")
    a(f"s_lshr_b32 s{sU}, s2, 3")
    a("s_and_b32 s2, s2, 7")
    a("s_lshl_b32 s2, s2, 5")
    a(f"s_or_b32 s2, s2, s{sU}")
    a("v_and_b32 v16, 63, v0")
    a("v_bfe_u32 v8, v0, 4, 2")
    a("v_lshlrev_b32 v14, 2, v8")
    a("v_and_b32 v15, 15, v0")
    a("v_xor_b32 v14, v14, v15")
    a("v_lshlrev_b32 v14, 4, v14")
    a("v_lshl_add_u32 v14, v8, 8, v14")
    a("v_lshrrev_b32 v1, 6, v0")
    a(f"s_mov_b32 s{sMODE}, 0")
    a(f"v_readfirstlane_b32 s{sW}, v1")
    a(f"s_mov_b32 s{sROUND}, 0")
    a(f"s_mov_b32 s{sFIRST}, 1")
    a("v_lshrrev_b32 v4, 2, v0")
    a("v_and_b32 v5, 3, v0")
    a("v_lshlrev_b32 v6, 13, v4")
    a("v_lshl_add_u32 v6, v5, 3, v6")
    a(f"s_lshl_b32 s{sTMP}, s2, 5")
    a(f"s_and_b32 s{sCG}, s{sW}, 3")
    a(f"s_bfe_u32 s{sBETA}, s{sW}, 0x10002")
    a(f"s_mov_b32 s{sM0}, 0x0000ffff")
    a(f"s_mov_b32 s{sM0+1}, 0x0000ffff")
    a(f"s_mov_b32 s{sM1}, 0xffff0000")
    a(f"s_mov_b32 s{sM1+1}, 0xffff0000")
    a("s_waitcnt lgkmcnt(0)")
    srd(a, 44, 16, NS * 8192, add=WS_OFF)
    a(f"s_cmp_eq_u32 s{sW}, 8")
    a("s_cbranch_scc1 K2_NOOFF")
    a(f"buffer_load_dwordx2 v[2:3], v6, s[44:47], s{sTMP} offen")
    a("K2_NOOFF:")
    srd(a, 20, 4, N * 256)
    srd(a, 28, 16, WS_END)
    srd(a, 40, 12, 4096)
    srd(a, 24, 6, E * 32)
    srd(a, 32, 16, N * 512, add=WS_TAB)
    srd(a, 36, 14, N * 256)
    srd(a, 48, 8, E * 4)
    srd(a, 52, 10, E * 4)
    for d in (sWAD, sWUD):
        a(f"s_mov_b32 s{d+2}, 32768")
        a(f"s_mov_b32 s{d+3}, 0x20000")
    if STAMP:
        a("v_mov_b32 v167, 0")
        a("s_memrealtime s[6:7]")
        a("s_waitcnt lgkmcnt(0)")
        a("v_writelane_b32 v167, s6, 61")
    stamp(a, "start")
    WA, WU, WCR, ACC = DEN, G[0], UP, RAW[2]
    a(f"s_cmp_eq_u32 s{sW}, 8")
    a("s_cbranch_scc1 K2_XSTAGE")
    a("v_and_b32 v7, 31, v0")
    a("v_lshlrev_b32 v7, 1, v7")
    a("v_bfe_u32 v8, v0, 5, 1")
    a("v_lshl_or_b32 v7, v8, 11, v7")
    a(f"s_lshl_b32 s{sTMP+6}, s{sCG}, 6")
    a(f"v_add_u32 v7, s{sTMP+6}, v7")
    for j in range(8):
        a(f"buffer_load_ushort v{WCR+j}, v7, s[40:43], 0 offen offset:{j*256}")
    wstage(a, sWAD, L_EA)
    stamp(a, "wa")
    a("s_branch K2_ROUND")
    a("K2_XSTAGE:")
    if PPRIO:
        a(f"s_setprio {PPRIO}")
    a("v_bfe_u32 v8, v0, 4, 2")
    a("v_and_b32 v9, 15, v0")
    a("v_xor_b32 v9, v9, v8")
    a("v_lshlrev_b32 v9, 4, v9")
    a("v_lshl_add_u32 v10, v8, 18, v9")
    for j in range(1, 4):
        a(f"v_xor_b32 v{10+j}, {64*j}, v10")
    a(f"s_lshl_b32 s{sTMP}, s2, 8")
    if CODEPF:
        a(f"s_getpc_b64 s[{sTMP+4}:{sTMP+5}]")
        a("K2_PC:")
        a("v_lshlrev_b32 v18, 7, v16")
        for i in range(CODEPF):
            a("v_min_u32 v19, K2_CODE_END-K2_PC-4, v18")
            a(f"global_load_dword v17, v19, s[{sTMP+4}:{sTMP+5}]")
            a("v_add_u32 v18, 8192, v18")
    for j in range(15):
        c16 = 8 * (j & 1) + 4 * ((j >> 1) & 1)
        off = (c16 * 4 + 2 * (j >> 3) + ((j >> 2) & 1)) * 65536
        a(f"s_mov_b32 m0, {L_X + j*1024}")
        a(f"s_add_u32 s{sTMP+1}, s{sTMP}, {off:#x}")
        a(f"buffer_load_dwordx4 v{10+(j&3)}, s[20:23], s{sTMP+1} offen lds")
    a("v_lshlrev_b32 v16, 7, v16")
    a(f"s_lshl_b32 s{sTMP}, s{sU}, 13")
    a(f"v_add_u32 v16, s{sTMP}, v16")
    a(f"s_mov_b32 s{sPO}, 0")
    a(f"s_mov_b32 s{sPH}, 0")
    a("K2_ROUND:")
    Z = SA
    for i in range(4):
        a(f"v_mov_b32 v{Z+i}, 0")
    a("v_lshlrev_b32 v6, 4, v0")
    a(f"v_add_u32 v7, {5*9216}, v6")
    for k in range(5):
        a(f"ds_write_b128 v6, {vr(Z,4)} offset:{k*9216}")
    for k in range(4):
        a(f"ds_write_b128 v7, {vr(Z,4)} offset:{k*9216}")
    a(f"s_cmp_eq_u32 s{sW}, 8")
    a("s_cbranch_scc0 K2_CONS1")
    a("s_waitcnt lgkmcnt(0)")
    a("s_barrier")
    a("s_barrier")
    a(f"s_cmp_lg_u32 s{sMODE}, 0")
    a("s_cbranch_scc1 K2_TOTALS")
    pf_first(a)
    a("s_branch K2_TOTALS")
    a("K2_CONS1:")
    a(f"s_cmp_lg_u32 s{sMODE}, 0")
    a("s_cbranch_scc1 K2_SLOWSRC")
    a(f"v_mul_u32_u24 v6, {CH*4}, v4")
    a("v_lshlrev_b32 v4, 3, v6")
    a(f"v_add_u32 v6, {WS_REC:#x}, v6")
    stamp(a, "zero")
    a("s_waitcnt vmcnt(12)")
    stamp(a, "off")
    a("v_lshl_add_u32 v6, v2, 2, v6")
    for q in range(3):
        a(f"buffer_load_dwordx4 {vr(RECQ[q],4)}, v6, s[28:31], 0 offen offset:{16*q}")
    wstage(a, sWUD, L_EA + 32768)
    a("s_waitcnt lgkmcnt(0)")
    a("s_barrier")
    stamp(a, "bar1")
    a("K2_ALLOC:")
    a(f"s_mov_b32 s{sTMP}, 0x0c010c00")
    a(f"s_mov_b32 s{sTMP+1}, 0x0c030c02")
    a(f"v_perm_b32 v8, v3, v3, s{sTMP}")
    a(f"v_perm_b32 v9, v3, v3, s{sTMP+1}")
    a("v_lshlrev_b32 v7, 3, v5")
    a(f"ds_add_rtn_u64 v[10:11], v7, v[8:9] offset:{L_CNT}")
    a("v_sad_u8 v1, v3, 0, 0")
    a("v_bfe_u32 v12, v0, 2, 2")
    a("v_bfe_u32 v13, v0, 5, 1")
    a(f"v_lshl_add_u32 v{vW}, v13, 3, v12")
    a(f"v_lshlrev_b32 v{vW}, 8, v{vW}")
    a(f"v_xor_b32 v12, s{sCG}, v12")
    a(f"v_lshl_add_u32 v{vW}, v12, 6, v{vW}")
    a("v_bfe_u32 v12, v0, 4, 1")
    a(f"v_lshl_add_u32 v{vW}, v12, 5, v{vW}")
    a("v_and_b32 v12, 3, v0")
    a(f"v_lshl_add_u32 v{vW}, v12, 3, v{vW}")
    a(f"v_add_u32 v{vW}, {L_EA}, v{vW}")
    a("s_waitcnt vmcnt(7) lgkmcnt(0)")
    a("s_barrier")
    stamp(a, "barA")
    a(f"ds_read_b64 v[12:13], v7 offset:{L_CNT}")
    a("K2_TOTALS:")
    a(f"v_mov_b32 v{vT1}, 0")
    a(f"ds_read_b128 {vr(SA,4)}, v{vT1} offset:{L_CNT}")
    a(f"ds_read_b128 {vr(SA+4,4)}, v{vT1} offset:{L_CNT+16}")
    a("s_waitcnt lgkmcnt(0)")
    for k in range(4):
        a(f"v_add_u32 v{SA+2*k}, v{SA+2*k}, v{SA+2*k+1}")
    a("s_nop 0")
    for k in range(4):
        a(f"v_readfirstlane_b32 s{sC+k}, v{SA+2*k}")
    for k in range(4):
        a(f"s_lshr_b32 s{sC+4}, s{sC+k}, 16")
        a(f"s_and_b32 s{sC+k}, s{sC+k}, 0xffff")
        a(f"s_add_u32 s{sC+k}, s{sC+k}, s{sC+4}")
        a(f"s_add_u32 s{sC+k}, s{sC+k}, 31")
        a(f"s_lshr_b32 s{sC+k}, s{sC+k}, 5")
        a(f"s_lshl_b32 s{sC+k}, s{sC+k}, 1")
    a(f"s_sub_i32 s{sC+4}, s{sC}, 1")
    a(f"s_sub_i32 s{sC+5}, s{sC+2}, 1")
    a(f"s_max_i32 s{sC+4}, s{sC+4}, s{sC+1}")
    a(f"s_max_i32 s{sC+5}, s{sC+5}, s{sC+3}")
    a(f"s_add_u32 s{sC+6}, s{sC+4}, s{sC+5}")
    a(f"s_cmp_gt_u32 s{sC+6}, {NT}")
    a("s_cbranch_scc1 K2_OVF")
    a(f"s_cmp_eq_u32 s{sW}, 8")
    a("s_cbranch_scc1 K2_PROD")
    a(f"s_cmp_eq_u32 s{sFIRST}, 0")
    a("s_cbranch_scc1 K2_NOWA")
    wreads(a, WA, 0)
    a("K2_NOWA:")
    a("v_sub_u32 v12, v12, v8")
    a("v_sub_u32 v13, v13, v9")
    a("v_lshl_add_u32 v10, v12, 16, v10")
    a("v_lshl_add_u32 v11, v13, 16, v11")
    a("v_add_u32_sdwa v12, v12, v12 dst_sel:DWORD dst_unused:UNUSED_PAD src0_sel:WORD_0 src1_sel:WORD_1")
    a(f"s_mov_b32 s{sTMP}, 0x10001")
    a(f"v_mad_u32_u24 v11, v12, s{sTMP}, v11")
    a("v_lshlrev_b32 v10, 2, v10")
    a("v_lshlrev_b32 v11, 2, v11")
    a("v_lshrrev_b32 v8, 1, v5")
    a("v_and_b32 v9, 1, v5")
    a(f"v_mad_u32_u24 v8, v8, s{sC+4}, v9")
    a("v_lshlrev_b32 v8, 7, v8")
    a("v_mov_b32 v9, 0x3f80")
    a(f"s_mov_b32 s{sTMP}, 0x7ffe0")
    a(f"s_mov_b32 s{sTMP+1}, 0xff80")
    stamp(a, "adj")
    a("s_waitcnt vmcnt(4)")
    stamp(a, "rec")
    a("K2_PLACE:")
    for s in range(12):
        rec = RECQ[s >> 2] + (s & 3)
        b = 12 + 6 * (s & 1)
        a(f"v_cmpx_lt_u32 vcc, {s}, v1")
        a("s_cbranch_execz K2_PLACED")
        a(f"v_lshrrev_b32 v{b+2}, 11, v{rec}")
        a(f"v_and_b32 v{b+3}, s{sTMP}, v{rec}")
        a(f"v_and_b32 v{b+2}, {48 if PHMASK else 0}, v{b+2}")
        a(f"v_lshrrev_b32 v{b+4}, 20, v{rec}")
        a(f"v_lshl_add_u32 v{b+4}, v{b+4}, 5, v4")
        a(f"v_lshrrev_b64 {vr(b,2)}, v{b+2}, v[10:11]")
        a(f"v_add_u16 v{b}, {4*s}, v{b}")
        a(f"v_and_b32 v{b+1}, s{sTMP+1}, v{b}")
        a(f"v_add3_u32 v{b}, v{b}, v{b+1}, v8")
        a(f"v_and_b32 v{b+5}, 30, v{rec}")
        a(f"ds_write2st64_b32 v{b}, v{b+3}, v{b+4} offset0:{L_IDX//256} offset1:{L_EOF//256}")
        a(f"v_lshl_or_b32 v{b+5}, v{b}, 3, v{b+5}")
        a(f"ds_write_b16 v{b+5}, v9 offset:{L_O}")
    a("v_cmpx_lt_u32 vcc, 12, v1")
    a("s_cbranch_execz K2_PLACED")
    a("v_subrev_u32 v1, 12, v1")
    a("v_add_u32 v6, 48, v6")
    a("v_add_u32 v10, 0x00300030, v10")
    a("v_add_u32 v11, 0x00300030, v11")
    for q in range(3):
        a(f"buffer_load_dwordx4 {vr(RECQ[q],4)}, v6, s[28:31], 0 offen offset:{16*q}")
    a("s_waitcnt vmcnt(0)")
    a("s_branch K2_PLACE")
    a("K2_PLACED:")
    a("s_mov_b64 exec, -1")
    stamp(a, "placed")
    a(f"s_cmp_eq_u32 s{sBETA}, 0")
    a(f"s_cselect_b32 s{sF0}, 0, s{sC+4}")
    a(f"s_cselect_b32 s{sL0}, s{sC}, s{sC+2}")
    a(f"s_cselect_b32 s{sL1}, s{sC+1}, s{sC+3}")
    a(f"s_cselect_b32 s{sTEND}, s{sC+4}, s{sC+5}")
    a(f"s_lshl_b32 s{sTMP}, s{sF0}, 7")
    a(f"s_add_u32 s{sTMP}, s{sTMP}, {L_IDX}")
    a(f"v_bfe_u32 v{vT0}, v0, 5, 1")
    a(f"v_lshl_add_u32 v{vIDX}, v{vT0}, 4, s{sTMP}")
    a(f"s_lshl_b32 s{sTMP}, s{sF0}, 10")
    a(f"s_add_u32 s{sTMP+1}, s{sTMP}, {L_O}")
    a(f"v_and_b32 v{vT1}, 31, v0")
    a(f"v_lshlrev_b32 v{vOT}, 5, v{vT1}")
    a(f"v_lshl_add_u32 v{vOT}, v{vT0}, 4, v{vOT}")
    a(f"v_add_u32 v{vOT}, s{sTMP+1}, v{vOT}")
    a(f"v_add_u32 v{vEA}, {L_EA-L_O}, v{vOT}")
    a(f"s_lshl_b32 s{sTMP+2}, s{sCG}, 7")
    a(f"v_lshl_add_u32 v{LO}, v{vT1}, 2, s{sTMP+2}")
    a(f"v_mov_b32 v{LO+1}, v{LO}")
    a(f"v_bfe_u32 v{vSa}, v0, 2, 2")
    a(f"v_lshl_add_u32 v{vSa}, v{vT0}, 2, v{vSa}")
    a(f"v_lshlrev_b32 v{vSa}, 5, v{vSa}")
    a(f"v_and_b32 v{vS0}, 1, v0")
    a(f"v_lshl_add_u32 v{vSa}, v{vS0}, 4, v{vSa}")
    a(f"v_bfe_u32 v{vS0}, v0, 1, 1")
    a(f"v_lshl_add_u32 v{vSa}, v{vS0}, 3, v{vSa}")
    a(f"v_add_u32 v{vSa}, s{sTMP+1}, v{vSa}")
    a(f"v_cndmask_b32_e64 v{vS0}, 0, v{vSa}, s[{sM0}:{sM0+1}]")
    a(f"v_cndmask_b32_e64 v{vS1}, 0, v{vSa}, s[{sM1}:{sM1+1}]")
    a(f"v_and_b32 v{SA}, 15, v0")
    a(f"v_xor_b32 v{SA}, v{SA}, v{vT0}")
    a(f"v_lshlrev_b32 v{SA}, 4, v{SA}")
    a(f"v_lshl_add_u32 v{vT1}, v{vT1}, 8, v{SA}")
    a(f"s_lshl_b32 s{sTMP+2}, s{sBETA}, 13")
    a(f"s_add_u32 s{sTMP+2}, s{sTMP+2}, {L_X}")
    a(f"v_add_u32 v{vT1}, s{sTMP+2}, v{vT1}")
    a(f"v_mov_b32 v{vT0}, 0")
    a(f"s_mov_b32 s{sT}, 0")
    a(f"s_mov_b32 s{sRDY}, 0")
    a("s_waitcnt vmcnt(0) lgkmcnt(0)")
    a("s_barrier")
    stamp(a, "bar2")
    idx_reads(a, 0)
    a(f"s_cmp_eq_u32 s{sFIRST}, 0")
    a("s_cbranch_scc1 K2_NOWU")
    wreads(a, WU, 32768)
    a("K2_NOWU:")
    a("s_waitcnt lgkmcnt(0)")
    a("s_mov_b64 exec, 1")
    a(f"ds_inc_u32 v{vT0}, v{vEA} offset:{L_WUD}")
    a("s_mov_b64 exec, -1")
    gathers(a, RAW[0])
    idx_reads(a, 1)
    a("s_waitcnt lgkmcnt(0)")
    gathers(a, RAW[1])
    stamp(a, "g01")
    a(f"s_cmp_eq_u32 s{sFIRST}, 0")
    a("s_cbranch_scc1 K2_NOGEMM")
    for kk in range(8):
        if kk:
            a(f"v_xor_b32 v{SA+kk}, {kk*32}, v{vT1}")
        else:
            a(f"v_mov_b32 v{SA}, v{vT1}")
    a(f"s_mov_b32 s{sTMP}, {LOG2E:#x}")
    for which, W in ((0, WA), (1, WU)):
        for kk in range(4):
            a(f"ds_read_b128 {vr(IX+4*kk,4)}, v{SA+kk}")
        if which == 1:
            for j in range(8):
                a(f"v_lshlrev_b32 v{WCR+j}, 16, v{WCR+j}")
            for j in range(8):
                a(f"v_mul_f32 v{WCR+j}, s{sTMP}, v{WCR+j}")
            for j in range(4):
                a(f"v_cvt_pk_bf16_f32 v{WC+j}, v{WCR+2*j}, v{WCR+2*j+1}")
            for r in range(16):
                a(f"v_mul_f32 v{ACC+r}, s{sTMP}, v{ACC+r}")
            for j in range(8):
                a(f"v_cvt_pk_bf16_f32 v{AP+j}, v{ACC+2*j}, v{ACC+2*j+1}")
        for kk in range(8):
            a(f"s_waitcnt lgkmcnt({min(3, 7-kk)})")
            c = "0" if kk == 0 else vr(ACC, 16)
            a(f"{MF} {vr(ACC,16)}, {vr(IX+4*(kk&3),4)}, {vr(W+4*kk,4)}, {c}")
            if kk < 4:
                a(f"ds_read_b128 {vr(IX+4*kk,4)}, v{SA+4+kk}")
    for r in range(0, 32, 2):
        a(f"v_mov_b64 {vr(DEN+r,2)}, 0")
    for j in range(8):
        a(f"v_cvt_pk_bf16_f32 v{UP+j}, v{ACC+2*j}, v{ACC+2*j+1}")
    a(f"s_mov_b32 s{sFIRST}, 0")
    a("K2_NOGEMM:")
    stamp(a, "gemm")
    a(f"s_cmp_lt_i32 s{sTEND}, 1")
    a("s_cbranch_scc1 K2_RDONE")
    for r in range(0, 16, 2):
        a(f"v_mov_b64 {vr(G[1]+r,2)}, 0")
    for j in range(0, 8, 2):
        a(f"v_mov_b64 {vr(SA+j,2)}, 0")
    poll(a, stubs, "P")
    stamp(a, "polled")
    a(f"ds_read_b128 {vr(IX,4)}, v{vEA}")
    a(f"ds_read_b128 {vr(IX+4,4)}, v{vOT}")
    a("s_waitcnt vmcnt(16) lgkmcnt(0)")
    a(f"{MF} {vr(G[0],16)}, {vr(IX,4)}, {vr(WC,4)}, {vr(RAW[0],16)}")
    a(f"{MF} {vr(G[0],16)}, {vr(IX+4,4)}, {vr(AP,4)}, {vr(G[0],16)}")
    a("s_nop 3")
    idx_reads(a, 2)
    stamp(a, "loop0")
    a(".p2align 6")
    a("K2_LOOP:")
    for ph in range(6):
        R0, R1, R2 = RAW[ph % 3], RAW[(ph + 1) % 3], RAW[(ph + 2) % 3]
        Gc, Gn = G[ph % 2], G[(ph + 1) % 2]
        APn = AP + 4 * ((ph + 1) % 2)
        vS = (vS0, vS1)[ph % 2]
        sL = (sL0, sL1)[ph % 2]
        ms = ms_list(Gn)
        a(f"s_cmp_ge_u32 s{sT}, s{sL}")
        a(f"s_cbranch_scc1 K2_SKIP_{ph}")
        a(f"s_add_u32 s{sT}, s{sT}, 1")
        prio(a, 0)
        if ITS:
            a("s_memtime s[4:5]")
            a(f"s_add_u32 m0, s{sT}, 19")
        a("s_waitcnt lgkmcnt(0)")
        if ITS:
            a("v_writelane_b32 v167, s4, m0")
        if PACE and ph % 2 == 1:
            a(f"v_readfirstlane_b32 s{sRDY}, v{vT1}")
        gathers(a, R2)
        publish(a)
        poll(a, stubs, ph)
        a(f"ds_read_b128 {vr(IX,4)}, v{vEA} offset:{(ph+1)*1024}")
        a(f"ds_read_b128 {vr(IX+4,4)}, v{vOT} offset:{(ph+1)*1024}")
        for i in range(16):
            if i % 4 == 0:
                a(ms[i // 4])
            a(f"v_exp_f32_e64 v{Gc+i}, -v{Gc+i}")
        prio(a, 1)
        if SHL64:
            for i in range(0, 16, 2):
                a(f"v_lshlrev_b64 {vr(R0+i,2)}, 16, {vr(R0+i,2)}")
        else:
            for i in range(16):
                a(f"v_lshlrev_b32 v{R0+i}, 16, v{R0+i}")
        for i in range(0, 16, 2):
            a(f"v_pk_add_f32 {vr(Gc+i,2)}, {vr(Gc+i,2)}, 1.0 op_sel_hi:[1,0]")
        prio(a, 2)
        for i in range(16):
            if i == 4:
                a("s_waitcnt vmcnt(16) lgkmcnt(0)")
                a(f"{MF} {vr(Gn,16)}, {vr(IX,4)}, {vr(WC,4)}, {vr(R1,16)}")
            if i == 8:
                a(f"{MF} {vr(Gn,16)}, {vr(IX+4,4)}, {vr(APn,4)}, {vr(Gn,16)}")
            a(f"v_rcp_f32 v{Gc+i}, v{Gc+i}")
            if i == 9:
                for u in range(4):
                    a(f"ds_read_b64_tr_b16 {vr(SA+2*u,2)}, v{vS} offset:{ph*1024+u*256}")
                idx_reads(a, ph + 3)
                if PACE and ph % 2 == 0:
                    a(f"ds_read_b32 v{vT1}, v{vT0} offset:{L_RDY}")
        prio(a, 3)
        for i in range(0, 16, 2):
            a(f"v_pk_mul_f32 {vr(R0+i,2)}, {vr(R0+i,2)}, {vr(Gc+i,2)}")
        for i in range(8):
            a(f"v_cvt_pk_bf16_f32 v{Gc+i}, v{Gc+2*i}, v{Gc+2*i+1}")
        for i in range(8):
            a(f"v_cvt_pk_bf16_f32 v{Gc+8+i}, v{R0+2*i}, v{R0+2*i+1}")
        a(f"s_cmp_ge_u32 s{sT}, s{sTEND}")
        a(f"s_cbranch_scc1 K2_DRAIN_{ph%2}")
        a(f"K2_NEXT_{ph}:")
        stubs(f"K2_SKIP_{ph}:")
        stubs(f"s_add_u32 s{sT}, s{sT}, 1")
        stubs("s_waitcnt lgkmcnt(0)")
        st2 = A()
        publish(stubs)
        poll(stubs, st2, f"S{ph}")
        stubs(f"ds_read_b128 {vr(IX,4)}, v{vEA} offset:{(ph+1)*1024}")
        stubs(f"ds_read_b128 {vr(IX+4,4)}, v{vOT} offset:{(ph+1)*1024}")
        for m in ms:
            stubs(m)
        for r in range(0, 16, 2):
            stubs(f"v_mov_b64 {vr(Gc+r,2)}, 0")
        for j in range(0, 8, 2):
            stubs(f"v_mov_b64 {vr(SA+j,2)}, 0")
        stubs("s_waitcnt vmcnt(0) lgkmcnt(0)")
        stubs(f"{MF} {vr(Gn,16)}, {vr(IX,4)}, {vr(WC,4)}, {vr(R1,16)}")
        stubs(f"{MF} {vr(Gn,16)}, {vr(IX+4,4)}, {vr(APn,4)}, {vr(Gn,16)}")
        stubs("s_nop 3")
        idx_reads(stubs, ph + 3)
        stubs(f"s_branch K2_NEXT_{ph}")
        stubs.l += st2.l
    a(f"v_add_u32 v{vIDX}, {6*128}, v{vIDX}")
    a(f"v_add_u32 v{vEA}, {6*1024}, v{vEA}")
    a(f"v_add_u32 v{vOT}, {6*1024}, v{vOT}")
    a(f"v_add_u32 v{vSa}, {6*1024}, v{vSa}")
    a(f"v_cndmask_b32_e64 v{vS0}, 0, v{vSa}, s[{sM0}:{sM0+1}]")
    a(f"v_cndmask_b32_e64 v{vS1}, 0, v{vSa}, s[{sM1}:{sM1+1}]")
    a("s_branch K2_LOOP")
    for p in range(2):
        a(f"K2_DRAIN_{p}:")
        a("s_waitcnt lgkmcnt(0)")
        for m in ms_list(G[p]):
            a(m)
        if p == 0:
            a("s_branch K2_RDONE")
    a("K2_RDONE:")
    if PACE:
        a(f"v_mov_b32 v{vT1}, 16")
        a(f"ds_add_u32 v{vT0}, v{vT1} offset:{L_PROG}")
    a(f"s_cmp_lg_u32 s{sMODE}, 0")
    a("s_cbranch_scc1 K2_SLOWNEXT")
    a("K2_EPI:")
    stamp(a, "loopend")
    a("v_bfe_u32 v2, v0, 5, 1")
    a("v_bfe_u32 v3, v0, 3, 2")
    a(f"s_lshl_b32 s{sTMP}, s{sCG}, 2")
    a(f"v_or_b32 v3, s{sTMP}, v3")
    a("v_lshlrev_b32 v4, 2, v2")
    a("v_xor_b32 v3, v3, v4")
    a("v_lshlrev_b32 v3, 4, v3")
    a("v_and_b32 v4, 7, v0")
    a("v_lshl_or_b32 v3, v4, 1, v3")
    a("v_lshl_or_b32 v3, v2, 10, v3")
    a(f"s_lshl_b32 s{sTMP}, s{sBETA}, 13")
    a(f"s_add_u32 s{sTMP}, s{sTMP}, {L_X}")
    a(f"v_add_u32 v3, s{sTMP}, v3")
    XD = IX
    for r in range(8):
        k = 8 * (r >> 2) + (r & 3)
        if k:
            a(f"v_xor_b32 v{SA+r}, {k*16}, v3")
        else:
            a(f"v_mov_b32 v{SA}, v3")
    for r in range(16):
        k = 8 * (r >> 2) + (r & 3)
        a(f"ds_read_u16 v{XD+r}, v{SA+(r&7)} offset:{k*256}")
    a("v_and_b32 v1, 31, v0")
    a("v_lshlrev_b32 v1, 1, v1")
    a("v_lshl_or_b32 v1, v2, 21, v1")
    a(f"s_lshl_b32 s{sTMP}, s{sBETA}, 17")
    a(f"s_lshl_b32 s{sTMP+1}, s2, 8")
    a(f"s_add_u32 s{sTMP}, s{sTMP}, s{sTMP+1}")
    a(f"s_lshl_b32 s{sTMP+1}, s{sCG}, 6")
    a(f"s_add_u32 s{sTMP}, s{sTMP}, s{sTMP+1}")
    SO = 84
    for r in range(16):
        a(f"s_add_u32 s{SO+r}, s{sTMP}, {(r&7)*262144 + (r>>3)*65536:#x}")
    a(f"s_mov_b32 s{sTMP+2}, 0x358637bd")
    for r in range(16):
        a(f"v_add_f32 v{DEN+r}, s{sTMP+2}, v{DEN+r}")
    for r in range(16):
        a(f"v_rcp_f32 v{DEN+r}, v{DEN+r}")
    UD = G[0]
    for r in range(16):
        if r & 1:
            a(f"v_and_b32 v{UD+r}, 0xffff0000, v{UP+r//2}")
        else:
            a(f"v_lshlrev_b32 v{UD+r}, 16, v{UP+r//2}")
    for r in range(0, 16, 2):
        a(f"v_pk_fma_f32 {vr(UD+r,2)}, {vr(NUM+r,2)}, {vr(DEN+r,2)}, {vr(UD+r,2)}")
    for r in range(16):
        a(f"v_max_f32 v{UD+r}, 0, v{UD+r}")
    a("s_waitcnt lgkmcnt(0)")
    for r in range(16):
        a(f"v_lshlrev_b32 v{XD+r}, 16, v{XD+r}")
    for r in range(0, 16, 2):
        a(f"v_pk_add_f32 {vr(UD+r,2)}, {vr(UD+r,2)}, {vr(XD+r,2)}")
    for j in range(8):
        a(f"v_cvt_pk_bf16_f32 v{XD+j}, v{UD+2*j}, v{UD+2*j+1}")
    for r in range(16):
        op = "buffer_store_short_d16_hi" if r & 1 else "buffer_store_short"
        a(f"{op} v{XD+r//2}, v1, s[36:39], s{SO+r} offen")
    if STAMP:
        a("s_waitcnt vmcnt(0)")
        a(f"s_add_u32 s6, s{sL0}, s{sL1}")
        a("s_lshr_b32 s6, s6, 1")
    stamp(a, "end")
    stamp_out(a, "s6")
    a("K2_END:")
    a("s_endpgm")
    a.l += stubs.l
    a("K2_SLOWNEXT:")
    a(f"s_cmp_eq_u32 s{sROUND}, 999")
    a("s_cbranch_scc1 K2_EPI")
    a("K2_NEXT:")
    a(f"s_add_u32 s{sROUND}, s{sROUND}, 1")
    a("s_waitcnt vmcnt(0) lgkmcnt(0)")
    a("s_barrier")
    a("s_branch K2_ROUND")
    a("K2_OVF:")
    a(f"s_mov_b32 s{sMODE}, 1")
    a(f"s_mov_b32 s{sROUND}, 0")
    a("s_waitcnt vmcnt(0)")
    a("s_barrier")
    a("s_branch K2_ROUND")
    a("K2_SLOWSRC:")
    a(f"s_mul_i32 s{sTMP}, s{sROUND}, 1600")
    a("v_lshlrev_b32 v6, 2, v0")
    a(f"buffer_load_dword v5, v6, s[52:55], s{sTMP} offen")
    a(f"buffer_load_dword v2, v6, s[48:51], s{sTMP} offen")
    a(f"s_and_b32 s{sTMP+1}, s{sROUND}, 7")
    a(f"s_mul_i32 s{sTMP+1}, s{sTMP+1}, 400")
    a(f"s_lshr_b32 s{sTMP+2}, s{sROUND}, 3")
    a(f"s_mul_i32 s{sTMP+2}, s{sTMP+2}, {CH*32}")
    a(f"v_add_u32 v8, s{sTMP+1}, v0")
    a("v_lshlrev_b32 v8, 20, v8")
    a(f"v_mov_b32 v4, s{sTMP+2}")
    a("s_waitcnt vmcnt(0) lgkmcnt(0)")
    a("s_barrier")
    a("v_lshl_or_b32 v8, v2, 5, v8")
    a("v_lshrrev_b32 v9, 9, v5")
    a(f"v_and_or_b32 v{RECQ[0]}, v9, 30, v8")
    a("v_and_b32 v9, 255, v5")
    a("v_cmp_eq_u32 vcc, s2, v9")
    a("v_lshrrev_b32 v2, 7, v2")
    a(f"v_and_b32 v2, {24 if PHMASK else 0}, v2")
    a("v_cndmask_b32_e64 v3, 0, 1, vcc")
    a("v_cmp_gt_u32 vcc, 400, v0")
    a("v_bfe_u32 v5, v5, 8, 2")
    a("v_lshlrev_b32 v3, v2, v3")
    a("v_cndmask_b32 v3, 0, v3, vcc")
    a("s_branch K2_ALLOC")
    a("K2_PROD:")
    a(f"s_max_u32 s{sTEND}, s{sC+4}, s{sC+5}")
    a("v_and_b32 v1, 63, v0")
    a("v_lshrrev_b32 v2, 1, v1")
    a("v_lshlrev_b32 v2, 2, v2")
    a(f"s_lshl_b32 s{sTMP+2}, s{sC+4}, 7")
    a(f"v_add_u32 v6, s{sTMP+2}, v2")
    a("v_and_b32 v3, 1, v1")
    a("v_lshlrev_b32 v3, 4, v3")
    a("v_mov_b32 v4, 0")
    a("v_mov_b32 v5, 1")
    a(f"s_mov_b32 s{sT}, 0")
    a(f"s_mov_b32 s{sTMP}, {L_EA}")
    a(f"s_mov_b32 s{sTMP+3}, {-8*(PK+LEADX)}")
    a(f"s_mov_b32 s{sTMP+4}, {L_EA+32768}")
    a(f"s_mov_b32 s{sRDY}, 0")
    pst = A()
    a(f"s_lshl_b32 s{sTMP+1}, s{sC+4}, 10")
    a(f"s_add_u32 s{sTMP+1}, s{sTMP+1}, {L_EA}")
    a(f"s_waitcnt vmcnt({PF})")
    a("s_barrier")
    stamp(a, "bar2")
    PB = 6
    LEAD = PK + LEADX
    EB = 32
    a("K2_PBATCH:")
    for i in range(PB):
        a(f"ds_read_b32 v{EB+2*i}, v2 offset:{L_EOF+128*i}")
        a(f"ds_read_b32 v{EB+2*i+1}, v6 offset:{L_EOF+128*i}")
    a("s_setprio 3")
    a(f"v_add_u32 v2, {128*PB}, v2")
    a(f"v_add_u32 v6, {128*PB}, v6")
    a("s_waitcnt lgkmcnt(0)")
    for i in range(2 * PB):
        if NOEA:
            a(f"v_mov_b32 v{EB+i}, v3")
        else:
            a(f"v_or_b32 v{EB+i}, v{EB+i}, v3")
    a(f"s_setprio {PPRIO}")
    for i in range(PB):
        a(f"s_cmp_ge_u32 s{sT}, s{sTEND}")
        a("s_cbranch_scc1 K2_PDRAIN")
        if PACE:
            a(f"s_cmp_lt_i32 s{sRDY}, s{sTMP+3}")
            a(f"s_cbranch_scc1 K2_PW_{i}")
            a(f"K2_PWD_{i}:")
            a(f"s_add_i32 s{sTMP+3}, s{sTMP+3}, 8")
            pst(f"K2_PW_{i}:")
            pst(f"ds_read_b32 v8, v4 offset:{L_PROG}")
            pst("s_waitcnt lgkmcnt(0)")
            pst(f"v_readfirstlane_b32 s{sRDY}, v8")
            pst(f"s_cmp_ge_i32 s{sRDY}, s{sTMP+3}")
            pst(f"s_cbranch_scc1 K2_PWD_{i}")
            pst("s_sleep 2")
            pst(f"s_branch K2_PW_{i}")
        a(f"s_cmp_ge_u32 s{sTMP+1}, s{sTMP+4}")
        a(f"s_cbranch_scc1 K2_PU_{i}")
        a(f"K2_PUD_{i}:")
        pst(f"K2_PU_{i}:")
        pst(f"ds_read_b32 v8, v4 offset:{L_WUD}")
        pst("s_waitcnt lgkmcnt(0)")
        pst(f"v_readfirstlane_b32 s{sTMP+5}, v8")
        pst(f"s_cmp_lt_u32 s{sTMP+5}, 8")
        pst(f"s_cbranch_scc1 K2_PU_{i}")
        pst(f"s_mov_b32 s{sTMP+4}, -1")
        pst(f"s_branch K2_PUD_{i}")
        for hb in range(2):
            a(f"s_min_u32 m0, s{sTMP+hb}, {L_EA + NT*1024}")
            a(f"s_add_u32 s{sTMP+hb}, s{sTMP+hb}, 1024")
            a(f"buffer_load_dwordx4 v{EB+2*i+hb}, s[24:27], 0 offen {EAPOL} lds")
        for j in range(PFS):
            pf_one(a)
        a(f"s_add_u32 s{sT}, s{sT}, 1")
        if STAMP and ITS:
            a("s_memtime s[4:5]")
            a(f"s_add_u32 m0, s{sT}, 19")
            a("s_waitcnt lgkmcnt(0)")
            a("v_writelane_b32 v167, s4, m0")
        a(f"s_cmp_le_u32 s{sT}, {PK}")
        a(f"s_cbranch_scc1 K2_PN_{i}")
        a("s_mov_b64 exec, 1")
        a(f"s_waitcnt vmcnt({(2+PFS)*PK+PFS})")
        a(f"ds_add_u32 v4, v5 offset:{L_RDY}")
        a("s_mov_b64 exec, -1")
        a(f"K2_PN_{i}:")
    a("s_branch K2_PBATCH")
    a("K2_PDRAIN:")
    a("s_mov_b64 exec, 1")
    for k in range(PK - 1, 0, -1):
        a(f"s_cmp_le_u32 s{sT}, {k}")
        a(f"s_cbranch_scc1 K2_PD_{k}")
        a(f"s_waitcnt vmcnt({(2+PFS)*k+PFS})")
        a(f"ds_add_u32 v4, v5 offset:{L_RDY}")
        a(f"K2_PD_{k}:")
    a("v_mov_b32 v5, 0x7fffffff")
    a("s_waitcnt vmcnt(0)")
    a(f"ds_write_b32 v4, v5 offset:{L_RDY}")
    a("s_mov_b64 exec, -1")
    stamp(a, "loopend")
    stamp_out(a, "0")
    a(f"s_cmp_eq_u32 s{sMODE}, 0")
    a("s_cbranch_scc1 K2_PEND")
    a(f"s_cmp_eq_u32 s{sROUND}, 999")
    a("s_cbranch_scc0 K2_NEXT")
    a("K2_PEND:")
    a("s_endpgm")
    a.l += pst.l
    a("K2_CODE_END:")

def kd(name, vgpr, sgpr):
    return f""".amdhsa_kernel {name}
  .amdhsa_next_free_vgpr {vgpr}
  .amdhsa_next_free_sgpr {sgpr}
  .amdhsa_accum_offset {(vgpr+3)//4*4}
  .amdhsa_group_segment_fixed_size 0
  .amdhsa_kernarg_size 96
  .amdhsa_user_sgpr_count 2
  .amdhsa_user_sgpr_kernarg_segment_ptr 1
  .amdhsa_system_sgpr_workgroup_id_x 1
.end_amdhsa_kernel
"""

def main(out):
    K2 = "standalone__edge_featured_mpnn_gatedgcn__graph_kernel"
    ref = open("standalone__edge_featured_mpnn_gatedgcn__graph.s.ref").read().split("\n")
    head = []
    for line in ref:
        if not line.startswith(";"):
            break
        if "@launch" in line or "Override launch" in line or "grid=ceil" in line:
            continue
        head.append(line)
    t = "\n".join(head) + "\n"
    t += f"; @launch kernel=k1_kernel grid=({NS+NGEMM},1,1) block=(512,1,1) lds={K1_LDS}\n"
    t += f"; @launch kernel={K2} grid=(256,1,1) block=(576,1,1) lds={L_TOTAL}\n"
    t += '.amdgcn_target "amdgcn-amd-amdhsa--gfx950"\n.text\n'
    a = A()
    gen_k1(a)
    t += ".globl k1_kernel\n.p2align 8\n.type k1_kernel,@function\n" + a.text()
    a = A()
    gen_k2(a, K2)
    t += f".globl {K2}\n.p2align 8\n.type {K2},@function\n" + a.text()
    t += '.section .rodata,"a"\n.p2align 6\n' + kd("k1_kernel", 104, 72) + ".p2align 6\n" + kd(K2, 168, 102)
    if STAMP:
        t = "; stamps " + ",".join(STAMP_NAMES) + "\n" + t
    if STAMP1:
        t = t + "; k1stamps " + ",".join(K1_NAMES) + "\n"
    open(out, "w").write(t)

if __name__ == "__main__":
    main(sys.argv[1] if len(sys.argv) > 1 else "standalone__edge_featured_mpnn_gatedgcn__graph.s")
```

```python
import sys, os

N = 12500
E = 400000
NS = 125
CH = 3200
NGEMM = 196
WS_TAB = 0
WS_REC = 0x620000
WS_WOP = 0x7B0000
WS_OFF = 0x7C0000
WS_U = 0x1000000
LOG2E = 0x3fb8aa3b
env = lambda k, d: type(d)(os.environ.get(k, d))
STAMP = env("STAMP", 0)
STAMPS = env("STAMPS", "all").split(",")
PK = env("PK", 1)
SHL64 = env("SHL64", 0)
NOEA = env("NOEA", 0)
EAPOL = env("EAPOL", "")
NOWC = env("NOWC", 0)
HPRIO = env("HPRIO", 3)
COOP = env("COOP", 1)
DBG = env("DBG", "")
EPF = env("EPF", 0)
XPOL = env("XPOL", "")
X2POL = env("X2POL", "")
SDPOL = env("SDPOL", "nt")
WPOL = env("WPOL", "")
OPOL = env("OPOL", "")
EAPOL2 = env("EAPOL2", EAPOL)
HSPLIT = env("HSPLIT", 3)
UPOL = env("UPOL", "")
PPRIO = env("PPRIO", 0)
CODEPF = env("CODEPF", 0)
K1PF = env("K1PF", 1)
STAMP1 = env("STAMP1", 0)
STPOL = env("STPOL", "")
ITS = env("ITS", 0)
PACE = env("PACE", 1)
LEADX = env("LEADX", 4)
PRIO = env("PRIO", "3210")
ROT = env("ROT", 1)
PFS = env("PFS", 0)
PFPOS = env("PFPOS", 1)
PF = env("PF", 1)
PHMASK = env("PHMASK", 1)

class A:
    def __init__(self):
        self.l = []
    def __call__(self, s):
        for line in s.strip("\n").split("\n"):
            line = line.strip()
            if not line:
                continue
            self.l.append(line if line.endswith(":") else "    " + line)
    def text(self):
        return "\n".join(self.l) + "\n"

def vr(a, n):
    return f"v[{a}:{a+n-1}]"

def srd(a, d, base, nbytes, add=0):
    if add:
        a(f"s_add_u32 s{d}, s{base}, {add:#x}")
        a(f"s_addc_u32 s{d+1}, s{base+1}, 0")
    else:
        a(f"s_mov_b32 s{d}, s{base}")
        a(f"s_mov_b32 s{d+1}, s{base+1}")
    a(f"s_mov_b32 s{d+2}, {nbytes:#x}")
    a(f"s_mov_b32 s{d+3}, 0x20000")

MF = "v_mfma_f32_32x32x16_bf16"

def dpp_scan(a, v):
    for sh in (1, 2, 4, 8):
        a("s_nop 1")
        a(f"v_add_u32_dpp v{v}, v{v}, v{v} row_shr:{sh} row_mask:0xf bank_mask:0xf")
    a("s_nop 1")
    a(f"v_add_u32_dpp v{v}, v{v}, v{v} row_bcast:15 row_mask:0xa bank_mask:0xf")
    a("s_nop 1")
    a(f"v_add_u32_dpp v{v}, v{v}, v{v} row_bcast:31 row_mask:0xc bank_mask:0xf")

K1_LDS = 81920
K1_NAMES = []
def st1(a, nm):
    if STAMP1:
        if nm not in K1_NAMES:
            K1_NAMES.append(nm)
        if nm == "start":
            a("v_mov_b32 v100, 0")
            a("s_memrealtime s[64:65]")
            a("s_waitcnt lgkmcnt(0)")
            a("v_writelane_b32 v100, s64, 61")
        a("s_memtime s[64:65]")
        a("s_waitcnt lgkmcnt(0)")
        a(f"v_writelane_b32 v100, s64, {K1_NAMES.index(nm)}")
def st1_out(a):
    if STAMP1:
        a("s_mov_b64 exec, -1")
        a("s_waitcnt vmcnt(0)")
        st1(a, "end")
        a("s_memrealtime s[64:65]")
        a("s_waitcnt lgkmcnt(0)")
        a("v_writelane_b32 v100, s64, 62")
        srd(a, 60, 20, 0x200000, add=0xA00000)
        a("v_lshlrev_b32 v101, 2, v0")
        a("s_lshl_b32 s66, s2, 11")
        a("buffer_store_dword v100, v101, s[60:63], s66 offen")
def k1pf(a):
    if not K1PF:
        return
    a("v_lshlrev_b32 v96, 7, v0")
    a("s_mov_b32 s18, 4096")
    a("s_mov_b32 s19, 0x20000")
    a("buffer_load_dword v97, v96, s[16:19], 0 offen")
    if K1PF > 1:
        a("s_getpc_b64 s[54:55]")
        a("K1_PC:")
        a("v_min_u32 v96, K2_CODE_END-K1_PC-4, v96")
        a("global_load_dword v97, v96, s[54:55]")
def gen_k1(a):
    a("k1_kernel:")
    a(f"s_cmp_ge_u32 s2, {NS + NGEMM + 1}")
    a("s_cbranch_scc1 K1_END")
    a("s_load_dwordx8 s[4:11], s[0:1], 0")
    a("s_load_dwordx2 s[24:25], s[0:1], 40")
    a("s_load_dwordx2 s[28:29], s[0:1], 64")
    a("s_load_dwordx2 s[20:21], s[0:1], 88")
    a("s_load_dwordx2 s[12:13], s[0:1], 32")
    a("s_load_dwordx2 s[14:15], s[0:1], 56")
    a("s_load_dwordx2 s[16:17], s[0:1], 48")
    a("v_lshrrev_b32 v1, 6, v0")
    a("v_and_b32 v2, 63, v0")
    a("v_readfirstlane_b32 s3, v1")
    st1(a, "start")
    a(f"s_cmp_lt_u32 s2, {NS}")
    a("s_cbranch_scc1 K1_SORT")
    a(f"s_sub_u32 s43, s2, {NS+1}")
    a(f"s_min_u32 s43, s43, {NGEMM}")
    a("v_lshrrev_b32 v3, 4, v2")
    a("v_lshlrev_b32 v4, 2, v3")
    a("v_and_b32 v6, 15, v2")
    a("v_xor_b32 v5, v6, v4")
    a("v_lshlrev_b32 v5, 4, v5")
    a("v_lshl_add_u32 v5, v3, 8, v5")
    a("s_and_b32 s46, s3, 1")
    a("s_lshl_b32 s46, s46, 3")
    a("v_xor_b32 v6, v6, v3")
    a("v_xor_b32 v6, s46, v6")
    a("v_lshlrev_b32 v6, 4, v6")
    a("v_lshl_add_u32 v6, v3, 8, v6")
    a("v_xor_b32 v7, 64, v6")
    a("s_lshl_b32 s22, s3, 12")
    a("s_add_u32 s23, s22, 32768")
    a("s_lshl_b32 s44, s43, 14")
    a("s_lshl_b32 s45, s3, 11")
    a("s_add_u32 s44, s44, s45")
    a("s_add_u32 s45, s45, 65536")
    a("s_waitcnt lgkmcnt(0)")
    srd(a, 32, 4, N * 256)
    a("s_mov_b32 m0, s45")
    a(f"s_cmp_eq_u32 s2, {NS}")
    a("s_cselect_b32 s24, s12, s24")
    a("s_cselect_b32 s25, s13, s25")
    a("s_cselect_b32 s28, s14, s28")
    a("s_cselect_b32 s29, s15, s29")
    a("s_mov_b32 s26, 32768")
    a(f"buffer_load_dwordx4 v6, s[32:35], s44 offen {XPOL} lds")
    a(f"buffer_load_dwordx4 v7, s[32:35], s44 offen offset:1024 {XPOL} lds")
    a("s_mov_b32 s27, 0x20000")
    a("s_mov_b32 s30, 32768")
    a("s_mov_b32 s31, 0x20000")
    a("s_mov_b32 m0, s22")
    a("s_nop 0")
    for i in range(4):
        a(f"buffer_load_dwordx4 v5, s[24:27], s22 offen offset:{i*1024} {WPOL} lds")
    a("s_mov_b32 m0, s23")
    a("s_nop 0")
    for i in range(4):
        a(f"buffer_load_dwordx4 v5, s[28:31], s22 offen offset:{i*1024} {WPOL} lds")
    st1(a, "issued")
    srd(a, 36, 20, N * 512, add=WS_TAB)
    a("v_and_b32 v6, 31, v2")
    a("v_lshrrev_b32 v7, 5, v2")
    a("s_and_b32 s46, s3, 3")
    a("s_lshr_b32 s47, s3, 2")
    a("v_bfe_u32 v9, v2, 2, 2")
    a("v_lshl_add_u32 v10, v7, 3, v9")
    a("v_lshlrev_b32 v10, 8, v10")
    a("v_xor_b32 v11, s46, v9")
    a("v_lshl_add_u32 v10, v11, 6, v10")
    a("v_bfe_u32 v11, v2, 4, 1")
    a("v_lshl_add_u32 v10, v11, 5, v10")
    a("v_and_b32 v11, 3, v2")
    a("v_lshl_add_u32 v10, v11, 3, v10")
    XAD = 16
    a("v_and_b32 v11, 15, v2")
    a("v_xor_b32 v11, v11, v7")
    a("v_lshlrev_b32 v11, 4, v11")
    a("v_lshl_add_u32 v11, v6, 8, v11")
    a("s_lshl_b32 s48, s47, 13")
    a("s_add_u32 s48, s48, 65536")
    a(f"v_add_u32 v{XAD}, s48, v11")
    for kk in range(1, 8):
        a(f"v_xor_b32 v{XAD+kk}, {kk*32}, v{XAD}")
    a("s_lshl_b32 s48, s43, 15")
    a("s_lshl_b32 s49, s47, 14")
    a("s_add_u32 s48, s48, s49")
    a("s_lshl_b32 s49, s46, 7")
    a("s_add_u32 s48, s48, s49")
    a("v_lshlrev_b32 v12, 2, v6")
    a("v_lshl_add_u32 v12, v7, 11, v12")
    a("v_add_u32 v12, s48, v12")
    a("v_add_u32 v13, 4096, v12")
    a("v_add_u32 v14, 8192, v12")
    a("v_add_u32 v15, 12288, v12")
    a(f"s_mov_b32 s50, {LOG2E:#x}")
    a(f"s_mov_b32 s51, {LOG2E:#x}")
    a("s_mov_b32 s52, 0x7f7e0000")
    a("v_mov_b32 v8, 0x21800000")
    a("v_mov_b32 v9, 0x21800000")
    a("s_waitcnt vmcnt(0)")
    st1(a, "landed")
    a("s_barrier")
    st1(a, "bar")
    a(f"s_cmp_eq_u32 s2, {NS}")
    a("s_cbranch_scc1 K1_PREP")
    SET = [24, 36, 48]
    AB, AV = 64, 80
    def reads(kk):
        b = SET[kk % 3]
        a(f"ds_read_b128 {vr(b,4)}, v{XAD+kk}")
        for u in range(2):
            a(f"ds_read_b64_tr_b16 {vr(b+4+2*u,2)}, v10 offset:{kk*4096+u*1024}")
        for u in range(2):
            a(f"ds_read_b64_tr_b16 {vr(b+8+2*u,2)}, v10 offset:{32768+kk*4096+u*1024}")
    for kk in range(3):
        reads(kk)
    for kk in range(8):
        b = SET[kk % 3]
        later = min(7 - kk, 2)
        a(f"s_waitcnt lgkmcnt({5*later})")
        cb = "0" if kk == 0 else vr(AB, 16)
        cv = "0" if kk == 0 else vr(AV, 16)
        a(f"{MF} {vr(AV,16)}, {vr(b,4)}, {vr(b+8,4)}, {cv}")
        a(f"{MF} {vr(AB,16)}, {vr(b,4)}, {vr(b+4,4)}, {cb}")
        if kk + 3 < 8:
            reads(kk + 3)
    a("s_nop 10")
    st1(a, "mfma")
    VP, VN = 24, 32
    for i in range(8):
        a(f"v_cvt_pk_bf16_f32 v{VP+i}, v{AV+2*i}, v{AV+2*i+1}")
        a(f"v_cvt_pk_bf16_f32 v{VN+i}, -v{AV+2*i}, -v{AV+2*i+1}")
    for q in range(4):
        for r in range(4*q, 4*q+4, 2):
            a(f"v_pk_fma_f32 {vr(AB+r,2)}, {vr(AB+r,2)}, s[50:51], v[8:9]")
        for r in range(4*q, 4*q+4):
            a(f"v_med3_f32 v{AB+r}, v{AB+r}, -s52, s52")
        for r in range(4*q, 4*q+4):
            a(f"v_sub_u32_sdwa v{AB+r}, v{AB+r}, sext(v{VN+r//2}) dst_sel:DWORD dst_unused:UNUSED_PAD src0_sel:DWORD src1_sel:WORD_{r&1}")
        for r in range(4*q, 4*q+4):
            a(f"v_mov_b32_sdwa v{AB+r}, v{VP+r//2} dst_sel:WORD_0 dst_unused:UNUSED_PRESERVE src0_sel:WORD_{r&1}")
        a("s_nop 0")
        for r in range(4*q, 4*q+4):
            a(f"buffer_store_dword v{AB+r}, v{12+q}, s[36:39], 0 offen offset:{(r&3)*512} {STPOL}")
    st1(a, "stored")
    st1_out(a)
    a("s_endpgm")
    a("K1_PREP:")
    srd(a, 40, 20, 65536, add=WS_WOP)
    a("s_lshl_b32 s47, s47, 15")
    a("v_add_u32 v10, s47, v10")
    for kk in range(8):
        for u in range(2):
            a(f"ds_read_b64_tr_b16 {vr(24+4*kk+2*u,2)}, v10 offset:{kk*4096+u*1024}")
    a("s_lshl_b32 s47, s3, 13")
    a("s_add_u32 s48, s47, 4096")
    a("v_lshlrev_b32 v12, 4, v2")
    a("s_waitcnt lgkmcnt(0)")
    for kk in range(8):
        a(f"buffer_store_dwordx4 {vr(24+4*kk,4)}, v12, s[40:43], s{47+(kk>>2)} offen offset:{(kk&3)*1024} {STPOL}")
    k1pf(a)
    a("s_endpgm")
    a("K1_SORT:")
    a("v_lshlrev_b32 v3, 3, v0")
    a("v_mov_b32 v4, 0")
    a("v_mov_b32 v5, 0")
    a("ds_write_b64 v3, v[4:5]")
    a("ds_write_b32 v4, v4 offset:4128")
    a("v_lshlrev_b32 v6, 4, v0")
    a("s_mov_b32 s43, s2")
    a(f"s_mul_i32 s22, s43, {CH*4}")
    a("s_add_u32 s23, s22, 8192")
    a("s_waitcnt lgkmcnt(0)")
    srd(a, 24, 8, E * 4)
    srd(a, 28, 10, E * 4)
    D, S, RK, RC, KA, SH = 16, 24, 32, 40, 48, 56
    a(f"buffer_load_dwordx4 {vr(D,4)}, v6, s[28:31], s22 offen {SDPOL}")
    a(f"buffer_load_dwordx4 {vr(S,4)}, v6, s[24:27], s22 offen {SDPOL}")
    a(f"buffer_load_dwordx4 {vr(D+4,4)}, v6, s[28:31], s23 offen {SDPOL}")
    a(f"buffer_load_dwordx4 {vr(S+4,4)}, v6, s[24:27], s23 offen {SDPOL}")
    srd(a, 32, 20, E * 4, add=WS_REC)
    srd(a, 36, 20, NS * 8192, add=WS_OFF)
    a("v_lshlrev_b32 v7, 7, v0")
    a("v_mov_b32 v8, 0")
    a(f"v_cmp_gt_u32 vcc, {(CH-2048)//4}, v0")
    a("s_mov_b64 s[40:41], vcc")
    a("s_barrier")
    def keys(lo, wait):
        a(f"s_waitcnt vmcnt({wait})")
        for i in range(lo, lo + 4):
            a(f"v_and_b32 v9, 255, v{D+i}")
            a(f"v_lshrrev_b32 v10, 6, v{D+i}")
            a(f"v_lshrrev_b32 v{SH+i}, 7, v{S+i}")
            a("v_and_b32 v10, 12, v10")
            a(f"v_and_b32 v{SH+i}, {24 if PHMASK else 0}, v{SH+i}")
            a(f"v_lshl_or_b32 v{KA+i}, v9, 4, v10")
            a(f"v_lshlrev_b32_e64 v9, v{SH+i}, 1")
            a(f"ds_add_rtn_u32 v{RK+i}, v{KA+i}, v9")
        for i in range(lo, lo + 4):
            a(f"v_lshrrev_b32 v9, 10, v{D+i}")
            a(f"v_add_u32 v10, {(((i&3) + (2048 if i >= 4 else 0)) << 5) + 1:#x}, v7")
            a(f"v_lshl_or_b32 v10, v{S+i}, 18, v10")
            a(f"v_add_u32 v{RC+i}, v9, v10")
        for i in range(lo, lo + 4):
            a(f"s_waitcnt lgkmcnt({3-(i-lo)})")
            a(f"v_bfe_u32 v{RK+i}, v{RK+i}, v{SH+i}, 8")
        a(f"v_max3_u32 v8, v8, v{RK+lo}, v{RK+lo+1}")
        a(f"v_max3_u32 v8, v8, v{RK+lo+2}, v{RK+lo+3}")
    st1(a, "s_bar0")
    if STAMP1:
        a(f"s_waitcnt vmcnt({2})")
    st1(a, "s_land")
    keys(0, 2)
    a("s_mov_b64 exec, s[40:41]")
    a("s_cbranch_execz K1_S1")
    keys(4, 0)
    a("K1_S1:")
    a("s_mov_b64 exec, -1")
    a("v_cmp_lt_u32 vcc, 62, v8")
    a("s_cbranch_vccz K1_S1B")
    a("v_mov_b32 v9, -1")
    a("ds_write_b32 v4, v9 offset:4128")
    a("s_waitcnt lgkmcnt(0)")
    a("K1_S1B:")
    st1(a, "s_keys")
    a("s_barrier")
    st1(a, "s_bar1")
    a("ds_read_b64 v[12:13], v3")
    a("ds_read_b32 v15, v4 offset:4128")
    a("s_waitcnt lgkmcnt(1)")
    a("v_sad_u8 v10, v12, 0, 0")
    a("v_sad_u8 v11, v13, 0, v10")
    a("v_mov_b32 v14, v11")
    dpp_scan(a, 14)
    a("s_lshl_b32 s42, s3, 2")
    a("v_mov_b32 v9, s42")
    a("s_mov_b32 exec_lo, 0")
    a("s_mov_b32 exec_hi, 0x80000000")
    a("ds_write_b32 v9, v14 offset:4096")
    a("s_mov_b64 exec, -1")
    a("v_sub_u32 v14, v14, v11")
    a("s_waitcnt lgkmcnt(0)")
    a("s_barrier")
    a("ds_read_b128 v[64:67], v4 offset:4096")
    a("ds_read_b128 v[68:71], v4 offset:4112")
    a("v_or_b32 v73, v12, v15")
    a("v_or_b32 v75, v13, v15")
    a("s_waitcnt lgkmcnt(0)")
    for w in range(7):
        a(f"s_cmp_gt_u32 s3, {w}")
        a(f"s_cselect_b32 s42, 1, 0")
        a(f"v_mad_u32_u24 v14, v{64+w}, s42, v14")
    a("v_mov_b32 v72, v14")
    a("v_add_u32 v74, v14, v10")
    a("v_mov_b32 v64, v14")
    a("v_mov_b32 v65, v12")
    a("v_mov_b32 v66, v74")
    a("v_mov_b32 v67, v13")
    a("ds_write_b128 v6, v[64:67] offset:8192")
    a("s_lshl_b32 s42, s43, 13")
    a(f"buffer_store_dwordx4 v[72:75], v6, s[36:39], s42 offen {STPOL}")
    a("s_waitcnt lgkmcnt(0)")
    a("s_barrier")
    st1(a, "s_bar3")
    LK = 64
    def place(lo):
        for i in range(lo, lo + 4):
            a(f"v_lshlrev_b32 v{KA+i}, 1, v{KA+i}")
            a(f"ds_read_b64 {vr(LK+2*(i-lo),2)}, v{KA+i} offset:8192")
        for i in range(lo, lo + 4):
            a("s_waitcnt lgkmcnt(3)")
            a(f"v_bfe_u32 v9, v{LK+2*(i-lo)+1}, 0, v{SH+i}")
            a(f"v_sad_u8 v9, v9, 0, v{LK+2*(i-lo)}")
            a(f"v_add_lshl_u32 v9, v9, v{RK+i}, 2")
            a(f"ds_write_b32 v9, v{RC+i} offset:16384")
    place(0)
    a("s_mov_b64 exec, s[40:41]")
    a("s_cbranch_execz K1_S3")
    a("s_waitcnt lgkmcnt(0)")
    place(4)
    a("K1_S3:")
    a("s_mov_b64 exec, -1")
    a("s_waitcnt lgkmcnt(0)")
    a("s_barrier")
    st1(a, "s_bar4")
    a(f"ds_read_b128 {vr(64,4)}, v6 offset:16384")
    a(f"ds_read_b128 {vr(68,4)}, v6 offset:24576")
    a("s_waitcnt lgkmcnt(1)")
    a(f"buffer_store_dwordx4 {vr(64,4)}, v6, s[32:35], s22 offen {STPOL}")
    a("s_mov_b64 exec, s[40:41]")
    a("s_cbranch_execz K1_S9")
    a("s_waitcnt lgkmcnt(0)")
    a(f"buffer_store_dwordx4 {vr(68,4)}, v6, s[32:35], s23 offen {STPOL}")
    a("K1_S9:")
    st1_out(a)
    a("K1_END:")
    a("s_endpgm")

NT = 60
L_CNT = 64
L_RDY = 96
L_IDX = 6144
L_EOF = L_IDX + NT * 128
L_O = L_EOF + NT * 128
L_EA = L_O + NT * 1024
L_X = L_EA + 65536
L_TOTAL = L_X + 15360
L_PROG = 100
L_WUD = 104
L_OD = 108
L_XD = 112
L_UD = 116
L_LUT = 272
assert L_O <= 1024 + 3 * 8192 and NT % 4 == 0

vIDX, vEA, vOT, vSa, vS0, vS1, vT0 = 1, 2, 3, 4, 5, 6, 7
IX = 8
SA = 24
WC, AP, UP = 32, 36, 44
DEN, NUM = 52, 68
G = [84, 100]
RAW = [116, 132, 148]
LO = 164
vT1 = 166
vW = 167 if not STAMP else 131
RECQ = [116, 120, 124]
sW, sCG, sBETA, sMODE, sROUND, sFIRST = 3, 56, 57, 58, 59, 60
sT, sTEND, sRDY, sF0, sL0, sL1 = 62, 63, 64, 65, 66, 67
sC = 68
sTMP = 76
sM0, sM1 = 84, 86
sUD = 44
sG0, sG1, sULD, sUO = 88, 89, 90, 91
sU = 96
sPO, sPH = 97, 98

STAMP_NAMES = []
def stamp(a, nm):
    if STAMP and (STAMPS == ["all"] or nm in STAMPS):
        if nm not in STAMP_NAMES:
            STAMP_NAMES.append(nm)
        i = STAMP_NAMES.index(nm)
        a("s_memtime s[4:5]")
        a("s_waitcnt lgkmcnt(0)")
        a(f"v_writelane_b32 v167, s4, {i}")
        if nm in ("loop0", "loopend"):
            a("s_memrealtime s[4:5]")
            a("s_waitcnt lgkmcnt(0)")
            a(f"v_writelane_b32 v167, s4, {59 if nm == 'loop0' else 60}")
def stamp_out(a, tiles):
    if STAMP:
        a("s_memrealtime s[4:5]")
        a("s_waitcnt lgkmcnt(0)")
        a("s_mov_b64 exec, -1")
        a("v_writelane_b32 v167, s4, 62")
        a(f"v_writelane_b32 v167, {tiles}, 63")
        a("v_and_b32 v3, 63, v0")
        a("v_lshlrev_b32 v3, 2, v3")
        a(f"s_mul_i32 s{sTMP}, s2, 9")
        a(f"s_add_u32 s{sTMP}, s{sTMP}, s{sW}")
        a(f"s_lshl_b32 s{sTMP}, s{sTMP}, 8")
        a(f"s_add_u32 s{sTMP}, s{sTMP}, 0x900000")
        a("s_mov_b32 s30, 0x1000000")
        a(f"buffer_store_dword v167, v3, s[28:31], s{sTMP} offen")

def idx_reads(a, tile_rel):
    for q in range(4):
        a(f"ds_read_b128 {vr(IX+4*q,4)}, v{vIDX} offset:{tile_rel*128+32*q}")
def gathers(a, dst):
    for k in range(0, 16, 2):
        a(f"v_lshl_add_u64 {vr(IX+k,2)}, {vr(IX+k,2)}, 4, {vr(LO,2)}")
    for k in range(16):
        if "nogather" in DBG: continue
        a(f"buffer_load_dword v{dst+k}, v{LO if 'l1hit' in DBG else IX+k}, s[32:35], 0 offen")
def ms_list(gx):
    return [f"{MF} {vr(DEN,16)}, {vr(SA,4)}, {vr(gx,4)}, {vr(DEN,16)}",
            f"{MF} {vr(NUM,16)}, {vr(SA,4)}, {vr(gx+8,4)}, {vr(NUM,16)}",
            f"{MF} {vr(DEN,16)}, {vr(SA+4,4)}, {vr(gx+4,4)}, {vr(DEN,16)}",
            f"{MF} {vr(NUM,16)}, {vr(SA+4,4)}, {vr(gx+12,4)}, {vr(NUM,16)}"]
def poll(a, stubs, tag):
    a(f"s_cmp_le_u32 s{sRDY}, s{sT}")
    a(f"s_cbranch_scc1 K2_POLL_{tag}")
    a(f"K2_POLLED_{tag}:")
    stubs(f"K2_POLL_{tag}:")
    stubs(f"ds_read_b32 v{vT1}, v{vT0} offset:{L_RDY}")
    stubs("s_waitcnt lgkmcnt(0)")
    stubs(f"v_readfirstlane_b32 s{sRDY}, v{vT1}")
    stubs(f"s_cmp_gt_u32 s{sRDY}, s{sT}")
    stubs(f"s_cbranch_scc1 K2_POLLED_{tag}")
    stubs("s_sleep 1")
    stubs(f"s_branch K2_POLL_{tag}")

def publish(a):
    if PACE:
        a("s_mov_b64 exec, 1")
        a(f"ds_inc_u32 v{vT0}, v{vEA} offset:{L_PROG}")
        a("s_mov_b64 exec, -1")
def prio(a, pos):
    c = PRIO[pos]
    if c != "-":
        a(f"s_setprio {c}")
def wstage(a, d, lds):
    a(f"s_lshl_b32 s{sTMP+1}, s{sW}, 12")
    a(f"s_add_u32 m0, s{sTMP+1}, {lds}")
    a("s_nop 0")
    for i in range(4):
        a(f"buffer_load_dwordx4 v14, s[{d}:{d+3}], s{sTMP+1} offen offset:{i*1024} lds")
def wreads(a, dst, off):
    for kk in range(8):
        for u in range(2):
            a(f"ds_read_b64_tr_b16 {vr(dst+4*kk+2*u,2)}, v{vW} offset:{off+kk*4096+u*1024}")
def pf_one(a):
    a(f"buffer_load_dword v17, v16, s[32:35], s{sPO} offen")
    a(f"s_bitcmp1_b32 s{sPO}, 18")
    a(f"s_mov_b32 s{sPO+2}, {262144:#x}")
    a(f"s_cselect_b32 s{sPO+2}, {2097152-262144:#x}, s{sPO+2}")
    a(f"s_add_u32 s{sPO}, s{sPO}, s{sPO+2}")
    a(f"s_add_u32 s{sPO+2}, s{sPH}, {524288:#x}")
    a(f"s_cmp_ge_u32 s{sPO}, {N*512:#x}")
    a(f"s_cselect_b32 s{sPH}, s{sPO+2}, s{sPH}")
    a(f"s_cselect_b32 s{sPO}, s{sPO+2}, s{sPO}")
    a(f"s_cmp_ge_u32 s{sPH}, {2097152:#x}")
    a(f"s_cselect_b32 s{sPO}, {0x1000000:#x}, s{sPO}")
    a(f"s_min_u32 s{sPH}, s{sPH}, {2097152:#x}")
def pf_first(a):
    for i in range(PF):
        pf_one(a)

def totals(a, t, tmp):
    a(f"v_add_u32 v{tmp}, v{t}, v{t+1}")
    a(f"v_add_u32_sdwa v{tmp}, v{tmp}, v{tmp} dst_sel:DWORD dst_unused:UNUSED_PAD src0_sel:WORD_0 src1_sel:WORD_1")
    a(f"v_add_u32 v{tmp}, 31, v{tmp}")
    a(f"v_lshrrev_b32 v{tmp}, 4, v{tmp}")
    a(f"v_and_b32 v{tmp}, -2, v{tmp}")
    a("s_nop 0")
    for k in range(4):
        a(f"v_readlane_b32 s{sC+k}, v{tmp}, {k}")
    a(f"s_sub_i32 s{sC+4}, s{sC}, 1")
    a(f"s_sub_i32 s{sC+5}, s{sC+2}, 1")
    a(f"s_max_i32 s{sC+4}, s{sC+4}, s{sC+1}")
    a(f"s_max_i32 s{sC+5}, s{sC+5}, s{sC+3}")
    a(f"s_add_u32 s{sC+6}, s{sC+4}, s{sC+5}")
    a(f"s_cmp_gt_u32 s{sC+6}, {NT}")

LOFF, LCHV, LKEY, LRO, LLEN, LC, LADJ, LTOT, LCB, LONE, LQ4, LTMP = 132, 134, 135, 136, 137, 138, 140, 142, 144, 145, 146, 148
L_RES = L_EA + 49152

def uload(a, tag, tmp):
    a(f"s_cmp_lg_u32 s{sMODE}, 0")
    a(f"s_cbranch_scc1 K2_UOK{tag}")
    a(f"K2_UW{tag}:")
    a(f"ds_read_b32 v{tmp}, v{vT0} offset:{L_UD}")
    a("s_waitcnt lgkmcnt(0)")
    a(f"v_readfirstlane_b32 s{sULD}, v{tmp}")
    a(f"s_cmp_lt_u32 s{sULD}, 4")
    a(f"s_cbranch_scc1 K2_UW{tag}")
    a(f"K2_UOK{tag}:")
    a(f"v_and_b32 v{tmp}, 63, v0")
    a(f"v_lshl_add_u32 v{tmp}, v{tmp}, 4, s{sUO}")
    for q in range(2):
        a(f"buffer_load_dwordx4 {vr(UP+4*q,4)}, v{tmp}, s[{sUD}:{sUD+3}], 0 offen offset:{q*1024} sc1")

def gen_k2(a, name):
    stubs = A()
    WCR = UP
    a(f"{name}:")
    a("s_cmp_ge_u32 s2, 256")
    a("s_cbranch_scc1 K2_END")
    a("s_load_dwordx2 s[28:29], s[0:1], 88")
    a("s_load_dwordx2 s[20:21], s[0:1], 0")
    a("s_load_dwordx2 s[40:41], s[0:1], 48")
    a("s_load_dwordx2 s[32:33], s[0:1], 88")
    a("s_load_dwordx2 s[24:25], s[0:1], 8")
    a("v_lshrrev_b32 v1, 6, v0")
    a(f"v_mov_b64 {vr(SA,2)}, 0")
    a(f"v_readfirstlane_b32 s{sW}, v1")
    a(f"v_mov_b64 {vr(SA+2,2)}, 0")
    a(f"s_lshr_b32 s{sU}, s2, 3")
    a("s_and_b32 s2, s2, 7")
    a("s_lshl_b32 s2, s2, 5")
    a(f"s_or_b32 s2, s2, s{sU}")
    for d, nb in ((28, WS_OFF + NS * 8192), (20, N * 256), (40, 4096), (32, N * 512), (24, E * 32)):
        a(f"s_mov_b32 s{d+2}, {nb:#x}")
        a(f"s_mov_b32 s{d+3}, 0x20000")
    a(f"s_mov_b32 s{sMODE}, 0")
    a(f"s_mov_b32 s{sROUND}, 0")
    a(f"s_and_b32 s{sCG}, s{sW}, 3")
    a(f"v_mov_b32 v{vT0}, 0")
    if STAMP:
        a("v_mov_b32 v167, 0")
        a("s_memrealtime s[6:7]")
        a("s_waitcnt lgkmcnt(0)")
        a("v_writelane_b32 v167, s6, 61")
    stamp(a, "start")
    if CODEPF:
        a(f"s_cmp_lg_u32 s{sW}, 0")
        a("s_cbranch_scc1 K2_NOCPF")
        a(f"s_getpc_b64 s[{sTMP}:{sTMP+1}]")
        a("K2_PC:")
        a(f"s_lshl_b32 s{sTMP+2}, s{sU}, 7")
        a(f"v_lshl_add_u32 v2, v0, 12, s{sTMP+2}")
        a("v_min_u32 v2, K2_CODE_END-K2_PC-4, v2")
        a("s_mov_b64 exec, 15")
        a(f"global_load_dword v163, v2, s[{sTMP}:{sTMP+1}]")
        a("s_mov_b64 exec, -1")
        a("K2_NOCPF:")
    a(f"s_cmp_ge_u32 s{sW}, 8")
    a("s_cbranch_scc1 K2_HELP")
    a(f"v_lshrrev_b32 v{LCHV}, 2, v0")
    a(f"v_and_b32 v{LKEY}, 3, v0")
    a(f"v_lshlrev_b32 v{LKEY}, 3, v{LKEY}")
    a(f"v_lshl_add_u32 v{LTMP}, v{LCHV}, 13, v{LKEY}")
    a(f"s_lshl_b32 s{sTMP}, s2, 5")
    a(f"s_add_u32 s{sTMP}, s{sTMP}, {WS_OFF:#x}")
    a(f"v_and_b32 v{LO}, 31, v0")
    a(f"v_bfe_u32 v{vT1}, v0, 5, 1")
    a(f"s_lshl_b32 s{sTMP+6}, s{sCG}, 6")
    a(f"v_lshl_add_u32 v{LTMP+1}, v{LO}, 1, s{sTMP+6}")
    a(f"v_lshl_add_u32 v{LTMP+1}, v{vT1}, 11, v{LTMP+1}")
    a("s_waitcnt lgkmcnt(0)")
    a(f"buffer_load_dwordx2 {vr(LOFF,2)}, v{LTMP}, s[28:31], s{sTMP} offen")
    a("K2_ROUND:")
    a(f"v_lshlrev_b32 v{LTMP+2}, 4, v0")
    a(f"s_cmp_lg_u32 s{sW}, 0")
    a("s_cbranch_scc1 K2_Z1")
    a(f"ds_write_b128 v{LTMP+2}, {vr(SA,4)}")
    a("K2_Z1:")
    for k in range(3):
        a(f"ds_write_b128 v{LTMP+2}, {vr(SA,4)} offset:{1024+k*8192}")
    a(f"v_bfe_u32 v{vT1}, v0, 5, 1")
    a(f"v_lshlrev_b32 v{vIDX}, 4, v{vT1}")
    a(f"v_and_b32 v{vOT}, 31, v0")
    a(f"v_lshl_add_u32 v{vOT}, v{vOT}, 5, v{vIDX}")
    a(f"v_bfe_u32 v{vSa}, v0, 2, 2")
    a(f"v_lshl_add_u32 v{vSa}, v{vT1}, 2, v{vSa}")
    a(f"v_lshlrev_b32 v{vSa}, 5, v{vSa}")
    a(f"v_and_b32 v{vS0}, 1, v0")
    a(f"v_lshl_add_u32 v{vSa}, v{vS0}, 4, v{vSa}")
    a(f"v_bfe_u32 v{vS0}, v0, 1, 1")
    a(f"v_lshl_add_u32 v{vSa}, v{vS0}, 3, v{vSa}")
    a(f"v_and_b32 v{LQ4}, 3, v0")
    a(f"v_lshlrev_b32 v{LQ4}, 3, v{LQ4}")
    a(f"v_mov_b32 v{LONE}, {48 if PHMASK else 0}")
    a(f"s_mov_b32 s{sT}, 0")
    a(f"s_mov_b32 s{sRDY}, 0")
    a(f"s_cmp_lg_u32 s{sMODE}, 0")
    a("s_cbranch_scc1 K2_SLOWSRC")
    for j in range(8):
        a(f"buffer_load_ushort v{WCR+j}, v{LTMP+1}, s[40:43], 0 offen offset:{j*256}")
    a("s_load_dwordx2 s[36:37], s[0:1], 72")
    a(f"s_add_u32 s{sUD}, s32, {WS_U:#x}")
    a(f"s_addc_u32 s{sUD+1}, s33, 0")
    a(f"s_mov_b32 s{sUD+2}, {256*16384:#x}")
    a(f"s_mov_b32 s{sUD+3}, 0x20000")
    a(f"s_lshl_b32 s{sUO}, s2, 14")
    a(f"s_lshl_b32 s{sTMP+1}, s{sCG}, 12")
    a(f"s_add_u32 s{sUO}, s{sUO}, s{sTMP+1}")
    a(f"s_and_b32 s{sTMP+1}, s{sW}, 4")
    a(f"s_lshl_b32 s{sTMP+1}, s{sTMP+1}, 9")
    a(f"s_add_u32 s{sUO}, s{sUO}, s{sTMP+1}")
    a(f"s_mov_b32 s{sULD}, 12")
    a(f"s_mov_b32 s38, {N*256:#x}")
    a("s_mov_b32 s39, 0x20000")
    a(f"s_mov_b32 s{sFIRST}, 1")
    a(f"s_bfe_u32 s{sBETA}, s{sW}, 0x10002")
    a(f"s_mov_b32 s{sM0}, 0x0000ffff")
    a(f"s_mov_b32 s{sM0+1}, 0x0000ffff")
    a(f"s_mov_b32 s{sM1}, 0xffff0000")
    a(f"s_mov_b32 s{sM1+1}, 0xffff0000")
    a(f"s_lshl_b32 s{sTMP+2}, s{sCG}, 7")
    a(f"v_lshl_add_u32 v{LO}, v{LO}, 2, s{sTMP+2}")
    a(f"v_mov_b32 v{LO+1}, v{LO}")
    a(f"v_mul_u32_u24 v{LRO}, {CH*4}, v{LCHV}")
    a(f"v_lshlrev_b32 v{LCHV}, 3, v{LRO}")
    a(f"v_add_u32 v{LRO}, {WS_REC:#x}, v{LRO}")
    stamp(a, "zero")
    a("s_waitcnt vmcnt(8)")
    stamp(a, "off")
    a(f"v_lshl_add_u32 v{LRO}, v{LOFF}, 2, v{LRO}")
    for q in range(3):
        a(f"buffer_load_dwordx4 {vr(RECQ[q],4)}, v{LRO}, s[28:31], 0 offen offset:{16*q}")
    a("K2_ALLOC:")
    a(f"s_mov_b32 s{sTMP}, 0x0c010c00")
    a(f"s_mov_b32 s{sTMP+1}, 0x0c030c02")
    a(f"v_perm_b32 v{LC}, v{LOFF+1}, v{LOFF+1}, s{sTMP}")
    a(f"v_perm_b32 v{LC+1}, v{LOFF+1}, v{LOFF+1}, s{sTMP+1}")
    a("s_waitcnt lgkmcnt(0)")
    a("s_barrier")
    stamp(a, "bar1")
    a(f"ds_add_rtn_u64 {vr(LADJ,2)}, v{LKEY}, {vr(LC,2)} offset:{L_CNT}")
    a(f"v_sad_u8 v{LLEN}, v{LOFF+1}, 0, 0")
    a(f"s_cmp_lg_u32 s{sMODE}, 0")
    a("s_cbranch_scc1 K2_NOWCL")
    for r in range(0, 32, 2):
        a(f"v_mov_b64 {vr(DEN+r,2)}, 0")
    a("K2_NOWCL:")
    for r in range(0, 16, 2):
        a(f"v_mov_b64 {vr(G[1]+r,2)}, 0")
    a(f"v_mov_b64 {vr(SA+4,2)}, 0")
    a(f"v_mov_b64 {vr(SA+6,2)}, 0")
    a("s_waitcnt lgkmcnt(0)")
    a("s_barrier")
    stamp(a, "barA")
    a(f"ds_read_b64 {vr(LTMP,2)}, v{LQ4} offset:{L_CNT}")
    a(f"ds_read_b64 {vr(LTOT,2)}, v{LKEY} offset:{L_CNT}")
    a(f"v_lshrrev_b32 v{LCB}, 4, v{LKEY}")
    a(f"v_bfe_u32 v{LKEY}, v{LKEY}, 3, 1")
    a(f"s_mov_b32 s{sTMP+3}, 0x10001")
    a("s_waitcnt lgkmcnt(1)")
    totals(a, LTMP, LTMP)
    a("s_cbranch_scc1 K2_OVF")
    a("s_waitcnt lgkmcnt(0)")
    a(f"v_sub_u32 v{LTOT}, v{LTOT}, v{LC}")
    a(f"v_sub_u32 v{LTOT+1}, v{LTOT+1}, v{LC+1}")
    a(f"v_lshl_add_u32 v{LADJ}, v{LTOT}, 16, v{LADJ}")
    a(f"v_lshl_add_u32 v{LADJ+1}, v{LTOT+1}, 16, v{LADJ+1}")
    a(f"v_add_u32_sdwa v{LTOT}, v{LTOT}, v{LTOT} dst_sel:DWORD dst_unused:UNUSED_PAD src0_sel:WORD_0 src1_sel:WORD_1")
    a(f"v_mad_u32_u24 v{LCB}, v{LCB}, s{sC+4}, v{LKEY}")
    a(f"v_mad_u32_u24 v{LADJ+1}, v{LTOT}, s{sTMP+3}, v{LADJ+1}")
    a(f"v_lshlrev_b32 v{LCB}, 7, v{LCB}")
    a(f"v_lshlrev_b64 {vr(LADJ,2)}, 2, {vr(LADJ,2)}")
    a(f"s_cmp_eq_u32 s{sBETA}, 0")
    a(f"s_cselect_b32 s{sF0}, 0, s{sC+4}")
    a(f"s_cselect_b32 s{sL0}, s{sC}, s{sC+2}")
    a(f"s_cselect_b32 s{sL1}, s{sC+1}, s{sC+3}")
    a(f"s_cselect_b32 s{sTEND}, s{sC+4}, s{sC+5}")
    a(f"s_sub_u32 s{sG0}, s{sL0}, 1")
    a(f"s_sub_u32 s{sG1}, s{sL1}, 1")
    a(f"s_lshl_b32 s{sTMP}, s{sF0}, 7")
    a(f"s_add_u32 s{sTMP}, s{sTMP}, {L_IDX}")
    a(f"v_add_u32 v{vIDX}, s{sTMP}, v{vIDX}")
    a(f"s_lshl_b32 s{sTMP}, s{sF0}, 10")
    a(f"s_add_u32 s{sTMP+1}, s{sTMP}, {L_O}")
    a(f"v_add_u32 v{vOT}, s{sTMP+1}, v{vOT}")
    a(f"v_add_u32 v{vSa}, s{sTMP+1}, v{vSa}")
    a(f"v_add_u32 v{vEA}, {L_EA-L_O}, v{vOT}")
    a(f"v_cndmask_b32_e64 v{vS0}, 0, v{vSa}, s[{sM0}:{sM0+1}]")
    a(f"v_cndmask_b32_e64 v{vS1}, 0, v{vSa}, s[{sM1}:{sM1+1}]")
    stamp(a, "adj")
    a(f"s_mov_b32 s{sTMP}, 0x1ffff")
    a(f"s_mov_b32 s{sTMP+1}, 0xff80")
    a(f"s_mov_b32 s{sTMP+2}, 0x7ffe0")
    a("s_waitcnt vmcnt(0)")
    a("K2_PLACE:")
    stamp(a, "rec")
    for s in range(12):
        rec = RECQ[s >> 2] + (s & 3)
        b = LTMP + 6 * (s & 1)
        a(f"v_cmpx_lt_u32 vcc, {s}, v{LLEN}")
        a("s_cbranch_execz K2_PLACED")
        a(f"v_and_b32_sdwa v{b+2}, v{rec}, v{LONE} dst_sel:DWORD dst_unused:UNUSED_PAD src0_sel:BYTE_3 src1_sel:DWORD")
        a(f"v_lshrrev_b32 v{b+3}, 13, v{rec}")
        a(f"v_and_b32 v{b+4}, s{sTMP}, v{rec}")
        a(f"v_lshrrev_b64 {vr(b,2)}, v{b+2}, {vr(LADJ,2)}")
        a(f"v_and_b32 v{b+3}, s{sTMP+2}, v{b+3}")
        a(f"v_add_u16 v{b}, {4*s}, v{b}")
        a(f"v_add_u32 v{b+4}, v{b+4}, v{LCHV}")
        a(f"v_and_b32 v{b+1}, s{sTMP+1}, v{b}")
        a(f"v_add3_u32 v{b}, v{b}, v{b+1}, v{LCB}")
        a(f"ds_write2st64_b32 v{b}, v{b+3}, v{b+4} offset0:{L_IDX//256} offset1:{L_EOF//256}")
    a(f"v_cmpx_lt_u32 vcc, 12, v{LLEN}")
    a("s_cbranch_execz K2_PLACED")
    a(f"v_subrev_u32 v{LLEN}, 12, v{LLEN}")
    a(f"v_add_u32 v{LRO}, 48, v{LRO}")
    a(f"v_add_u32 v{LADJ}, 0x00300030, v{LADJ}")
    a(f"v_add_u32 v{LADJ+1}, 0x00300030, v{LADJ+1}")
    for q in range(3):
        a(f"buffer_load_dwordx4 {vr(RECQ[q],4)}, v{LRO}, s[28:31], 0 offen offset:{16*q}")
    a("s_waitcnt vmcnt(0)")
    a("s_branch K2_PLACE")
    a("K2_PLACED:")
    a("s_mov_b64 exec, -1")
    stamp(a, "placed")
    a(f"v_and_b32 v{vT1}, 63, v0")
    a(f"s_lshl_b32 s{sTMP}, s{sCG}, 12")
    a(f"s_lshl_b32 s{sTMP+1}, s{sBETA}, 11")
    a(f"s_add_u32 s{sTMP}, s{sTMP}, s{sTMP+1}")
    a(f"s_add_u32 s{sTMP}, s{sTMP}, {L_RES}")
    a(f"v_lshl_add_u32 v{vT1}, v{vT1}, 4, s{sTMP}")
    a(f"s_cmp_eq_u32 s{sFIRST}, 0")
    a("s_cbranch_scc1 K2_NOWC")
    a(f"s_mov_b32 s{sTMP}, {LOG2E:#x}")
    a(f"s_mov_b32 s{sTMP+1}, {LOG2E:#x}")
    a("s_waitcnt vmcnt(0)")
    for j in range(8):
        a(f"v_lshlrev_b32 v{WCR+j}, 16, v{WCR+j}")
    for j in range(0, 8, 2):
        a(f"v_pk_mul_f32 {vr(WCR+j,2)}, {vr(WCR+j,2)}, s[{sTMP}:{sTMP+1}]")
    for j in range(4):
        a(f"v_cvt_pk_bf16_f32 v{WC+j}, v{WCR+2*j}, v{WCR+2*j+1}")
    a("K2_NOWC:")
    a("s_waitcnt lgkmcnt(0)")
    a("s_barrier")
    stamp(a, "bar2")
    idx_reads(a, 0)
    a("s_waitcnt lgkmcnt(0)")
    gathers(a, RAW[0])
    idx_reads(a, 1)
    a(f"s_cmp_eq_u32 s{sFIRST}, 0")
    a("s_cbranch_scc1 K2_NORES")
    for q in range(2):
        a(f"ds_read_b128 {vr(AP+4*q,4)}, v{vT1} offset:{q*1024}")
    a(f"s_mov_b32 s{sFIRST}, 0")
    a("K2_NORES:")
    a("s_waitcnt lgkmcnt(0)")
    a("s_mov_b64 exec, 1")
    a(f"ds_inc_u32 v{vT0}, v{vEA} offset:{L_WUD}")
    a("s_mov_b64 exec, -1")
    gathers(a, RAW[1])
    stamp(a, "g01")
    a(f"s_cmp_lt_i32 s{sTEND}, 1")
    a("s_cbranch_scc1 K2_RDONE")
    poll(a, stubs, "P")
    stamp(a, "polled")
    a(f"ds_read_b128 {vr(IX,4)}, v{vEA}")
    a(f"ds_read_b128 {vr(IX+4,4)}, v{vOT}")
    a("s_waitcnt vmcnt(16) lgkmcnt(0)")
    a(f"{MF} {vr(G[0],16)}, {vr(IX,4)}, {vr(WC,4)}, {vr(RAW[0],16)}")
    a(f"{MF} {vr(G[0],16)}, {vr(IX+4,4)}, {vr(AP,4)}, {vr(G[0],16)}")
    a("s_nop 3")
    idx_reads(a, 2)
    stamp(a, "loop0")
    a(".p2align 6")
    a("K2_LOOP:")
    for ph in range(6):
        R0, R1, R2 = RAW[ph % 3], RAW[(ph + 1) % 3], RAW[(ph + 2) % 3]
        Gc, Gn = G[ph % 2], G[(ph + 1) % 2]
        APn = AP + 4 * ((ph + 1) % 2)
        vS = (vS0, vS1)[ph % 2]
        sL = (sL0, sL1)[ph % 2]
        ms = ms_list(Gn)
        a(f"s_cmp_ge_u32 s{sT}, s{sL}")
        a(f"s_cbranch_scc1 K2_SKIP_{ph}")
        a(f"s_add_u32 s{sT}, s{sT}, 1")
        prio(a, 0)
        if ITS:
            a("s_memtime s[4:5]" if ITS == 1 else "s_memrealtime s[4:5]")
            a(f"s_add_u32 m0, s{sT}, 19")
        a("s_waitcnt lgkmcnt(0)")
        if ITS:
            a("v_writelane_b32 v167, s4, m0")
        if PACE and ph % 2 == 1:
            a(f"v_readfirstlane_b32 s{sRDY}, v{vT1}")
        a(f"s_cmp_ge_u32 s{sT}, s{(sG0, sG1)[ph % 2]}")
        a(f"s_cbranch_scc1 K2_NOG_{ph}")
        gathers(a, R2)
        a(f"K2_NOGD_{ph}:")
        stubs(f"K2_NOG_{ph}:")
        stubs("s_waitcnt vmcnt(0)")
        stubs(f"s_branch K2_NOGD_{ph}")
        if ph % 2 == 1:
            publish(a)
        poll(a, stubs, ph)
        a(f"ds_read_b128 {vr(IX,4)}, v{vEA} offset:{(ph+1)*1024}")
        a(f"ds_read_b128 {vr(IX+4,4)}, v{vOT} offset:{(ph+1)*1024}")
        for i in range(16):
            if i % 4 == 0 and "noms" not in DBG:
                a(ms[i // 4])
            a(f"v_exp_f32_e64 v{Gc+i}, -v{Gc+i}")
        prio(a, 1)
        if SHL64:
            for i in range(0, 16, 2):
                a(f"v_lshlrev_b64 {vr(R0+i,2)}, 16, {vr(R0+i,2)}")
        else:
            for i in range(16):
                a(f"v_lshlrev_b32 v{R0+i}, 16, v{R0+i}")
        for i in range(0, 16, 2):
            a(f"v_pk_add_f32 {vr(Gc+i,2)}, {vr(Gc+i,2)}, 1.0 op_sel_hi:[1,0]")
        prio(a, 2)
        for i in range(16):
            if i == 4:
                a("s_waitcnt vmcnt(16) lgkmcnt(0)")
                a(f"{MF} {vr(Gn,16)}, {vr(IX,4)}, {vr(WC,4)}, {vr(R1,16)}")
            if i == 8:
                if "nomg2" not in DBG:
                    a(f"{MF} {vr(Gn,16)}, {vr(IX+4,4)}, {vr(APn,4)}, {vr(Gn,16)}")
            a(f"v_rcp_f32 v{Gc+i}, v{Gc+i}")
            if i == 9:
                for u in range(4):
                    a(f"ds_read_b64_tr_b16 {vr(SA+2*u,2)}, v{vS} offset:{ph*1024+u*256}")
                idx_reads(a, ph + 3)
                if PACE and ph % 2 == 0:
                    a(f"ds_read_b32 v{vT1}, v{vT0} offset:{L_RDY}")
        prio(a, 3)
        for i in range(0, 16, 2):
            a(f"v_pk_mul_f32 {vr(R0+i,2)}, {vr(R0+i,2)}, {vr(Gc+i,2)}")
        for i in range(8):
            a(f"v_cvt_pk_bf16_f32 v{Gc+i}, v{Gc+2*i}, v{Gc+2*i+1}")
        for i in range(8):
            a(f"v_cvt_pk_bf16_f32 v{Gc+8+i}, v{R0+2*i}, v{R0+2*i+1}")
        a(f"s_cmp_ge_u32 s{sT}, s{sTEND}")
        a(f"s_cbranch_scc1 K2_DRAIN_{ph%2}")
        a(f"K2_NEXT_{ph}:")
        stubs(f"K2_SKIP_{ph}:")
        stubs(f"s_add_u32 s{sT}, s{sT}, 1")
        stubs("s_waitcnt lgkmcnt(0)")
        st2 = A()
        if ph % 2 == 1:
            publish(stubs)
        poll(stubs, st2, f"S{ph}")
        stubs(f"ds_read_b128 {vr(IX,4)}, v{vEA} offset:{(ph+1)*1024}")
        stubs(f"ds_read_b128 {vr(IX+4,4)}, v{vOT} offset:{(ph+1)*1024}")
        for m in ms:
            stubs(m)
        for r in range(0, 16, 2):
            stubs(f"v_mov_b64 {vr(Gc+r,2)}, 0")
        for j in range(0, 8, 2):
            stubs(f"v_mov_b64 {vr(SA+j,2)}, 0")
        stubs("s_waitcnt vmcnt(0) lgkmcnt(0)")
        stubs(f"{MF} {vr(Gn,16)}, {vr(IX,4)}, {vr(WC,4)}, {vr(R1,16)}")
        stubs(f"{MF} {vr(Gn,16)}, {vr(IX+4,4)}, {vr(APn,4)}, {vr(Gn,16)}")
        stubs("s_nop 3")
        idx_reads(stubs, ph + 3)
        stubs(f"s_branch K2_NEXT_{ph}")
        stubs.l += st2.l
    a(f"v_add_u32 v{vIDX}, {6*128}, v{vIDX}")
    a(f"v_add_u32 v{vEA}, {6*1024}, v{vEA}")
    a(f"v_add_u32 v{vOT}, {6*1024}, v{vOT}")
    a(f"v_add_u32 v{vSa}, {6*1024}, v{vSa}")
    a(f"v_cndmask_b32_e64 v{vS0}, 0, v{vSa}, s[{sM0}:{sM0+1}]")
    a(f"v_cndmask_b32_e64 v{vS1}, 0, v{vSa}, s[{sM1}:{sM1+1}]")
    a(f"s_cmp_lg_u32 s{sT}, s{sULD}")
    a("s_cbranch_scc1 K2_LOOP")
    uload(a, "L", UP + 7)
    a(f"s_mov_b32 s{sULD}, 0")
    a("s_branch K2_LOOP")
    for p in range(2):
        a(f"K2_DRAIN_{p}:")
        a("s_waitcnt lgkmcnt(0)")
        for m in ms_list(G[p]):
            a(m)
        if p == 0:
            a("s_branch K2_RDONE")
    a("K2_RDONE:")
    if PACE:
        a(f"v_mov_b32 v{vT1}, 16")
        a(f"ds_add_u32 v{vT0}, v{vT1} offset:{L_PROG}")
    a(f"s_cmp_lg_u32 s{sMODE}, 0")
    a("s_cbranch_scc1 K2_SLOWNEXT")
    a("K2_EPI:")
    stamp(a, "loopend")
    a(f"s_cmp_eq_u32 s{sULD}, 0")
    a("s_cbranch_scc1 K2_HAVEU")
    uload(a, "E", UP + 7)
    a("K2_HAVEU:")
    XD = IX
    for r in range(0, 16, 2):
        a(f"v_mov_b64 {vr(XD+r,2)}, 0")
    a("v_bfe_u32 v2, v0, 5, 1")
    a("v_bfe_u32 v3, v0, 3, 2")
    a(f"s_lshl_b32 s{sTMP+3}, s{sCG}, 2")
    a(f"v_lshl_or_b32 v3, v2, 2, v3")
    a(f"v_xor_b32 v3, s{sTMP+3}, v3")
    a("v_and_b32 v4, 7, v0")
    a("v_lshlrev_b32 v4, 1, v4")
    a("v_lshl_or_b32 v3, v3, 4, v4")
    a(f"s_lshl_b32 s{sTMP}, s{sBETA}, 13")
    a(f"s_add_u32 s{sTMP}, s{sTMP}, {L_X}")
    a(f"v_lshl_add_u32 v2, v2, 10, s{sTMP}")
    a(f"v_add_u32 v{SA}, v2, v3")
    for r in range(1, 8):
        k = 8 * (r >> 2) + (r & 3)
        a(f"v_xor_b32 v{SA+r}, {k*16}, v{SA}")
    for r in range(16):
        k = 8 * (r >> 2) + (r & 3)
        a(f"ds_read_u16_d16_hi v{XD+r}, v{SA+(r&7)} offset:{k*256}")
    a(f"s_mov_b32 s{sTMP+4}, 0x358637bd")
    a(f"s_mov_b32 s{sTMP+5}, 0x358637bd")
    for r in range(0, 16, 2):
        a(f"v_pk_add_f32 {vr(DEN+r,2)}, {vr(DEN+r,2)}, s[{sTMP+4}:{sTMP+5}]")
    for r in range(16):
        a(f"v_rcp_f32 v{DEN+r}, v{DEN+r}")
    a("v_bfe_u32 v2, v0, 2, 4")
    a("v_and_b32 v3, 3, v0")
    a(f"v_or_b32 v4, s{sTMP+3}, v3")
    a("v_xor_b32 v4, v4, v2")
    a("v_lshlrev_b32 v4, 4, v4")
    a("v_lshl_add_u32 v4, v2, 8, v4")
    a(f"v_add_u32 v4, s{sTMP}, v4")
    a("v_bfe_u32 v5, v0, 2, 2")
    a("v_bfe_u32 v6, v0, 4, 1")
    a("v_lshl_or_b32 v5, v6, 3, v5")
    a("v_bfe_u32 v6, v0, 5, 1")
    a("v_lshl_or_b32 v5, v6, 2, v5")
    a("v_lshlrev_b32 v3, 4, v3")
    a("v_lshl_or_b32 v5, v5, 18, v3")
    a(f"s_lshl_b32 s{sTMP}, s{sBETA}, 17")
    a(f"s_lshl_b32 s{sTMP+1}, s2, 8")
    a(f"s_add_u32 s{sTMP}, s{sTMP}, s{sTMP+1}")
    a(f"s_lshl_b32 s{sTMP+1}, s{sCG}, 6")
    a(f"s_add_u32 s{sTMP}, s{sTMP}, s{sTMP+1}")
    a(f"s_add_u32 s{sTMP+1}, s{sTMP}, 0x10000")
    UD = G[0]
    a("s_waitcnt vmcnt(0)")
    for r in range(16):
        if r & 1:
            a(f"v_and_b32 v{UD+r}, 0xffff0000, v{UP+r//2}")
        else:
            a(f"v_lshlrev_b32 v{UD+r}, 16, v{UP+r//2}")
    for r in range(0, 16, 2):
        a(f"v_pk_fma_f32 {vr(UD+r,2)}, {vr(NUM+r,2)}, {vr(DEN+r,2)}, {vr(UD+r,2)}")
    for r in range(16):
        a(f"v_max_f32 v{UD+r}, 0, v{UD+r}")
    a("s_waitcnt lgkmcnt(0)")
    for r in range(0, 16, 2):
        a(f"v_pk_add_f32 {vr(UD+r,2)}, {vr(UD+r,2)}, {vr(XD+r,2)}")
    for j in range(8):
        a(f"v_cvt_pk_bf16_f32 v{XD+j}, v{UD+2*j}, v{UD+2*j+1}")
    for r in range(16):
        k = 8 * (r >> 2) + (r & 3)
        op = "ds_write_b16_d16_hi" if r & 1 else "ds_write_b16"
        a(f"{op} v{SA+(r&7)}, v{XD+r//2} offset:{k*256}")
    a(f"ds_read_b128 {vr(UD,4)}, v4")
    a(f"ds_read_b128 {vr(UD+4,4)}, v4 offset:4096")
    a("s_waitcnt lgkmcnt(1)")
    a(f"buffer_store_dwordx4 {vr(UD,4)}, v5, s[36:39], s{sTMP} offen {OPOL}")
    a("s_waitcnt lgkmcnt(0)")
    a(f"buffer_store_dwordx4 {vr(UD+4,4)}, v5, s[36:39], s{sTMP+1} offen {OPOL}")
    if STAMP:
        a("s_waitcnt vmcnt(0)")
        a(f"s_add_u32 s6, s{sL0}, s{sL1}")
        a("s_lshr_b32 s6, s6, 1")
    stamp(a, "end")
    stamp_out(a, "s6")
    a("K2_END:")
    a("s_endpgm")
    a.l += stubs.l
    a("K2_SLOWNEXT:")
    a(f"s_cmp_eq_u32 s{sROUND}, 999")
    a("s_cbranch_scc1 K2_EPI")
    a(f"s_add_u32 s{sROUND}, s{sROUND}, 1")
    a("s_branch K2_AGAIN")
    a("K2_OVF:")
    a(f"s_mov_b32 s{sMODE}, 1")
    a(f"s_mov_b32 s{sULD}, -1")
    a("K2_AGAIN:")
    a("s_waitcnt vmcnt(0) lgkmcnt(0)")
    a(f"v_mov_b64 {vr(SA,2)}, 0")
    a(f"v_mov_b64 {vr(SA+2,2)}, 0")
    a("s_barrier")
    a("s_branch K2_ROUND")
    a("K2_SLOWSRC:")
    a("s_load_dwordx2 s[48:49], s[0:1], 16")
    a("s_load_dwordx2 s[52:53], s[0:1], 24")
    for d in (48, 52):
        a(f"s_mov_b32 s{d+2}, {E*4:#x}")
        a(f"s_mov_b32 s{d+3}, 0x20000")
    a(f"s_mul_i32 s{sTMP}, s{sROUND}, 1600")
    a(f"v_lshlrev_b32 v{LRO}, 2, v0")
    a("s_waitcnt lgkmcnt(0)")
    a(f"buffer_load_dword v{LKEY}, v{LRO}, s[52:55], s{sTMP} offen")
    a(f"buffer_load_dword v{LOFF}, v{LRO}, s[48:51], s{sTMP} offen")
    a(f"s_and_b32 s{sTMP+1}, s{sROUND}, 7")
    a(f"s_mul_i32 s{sTMP+1}, s{sTMP+1}, 400")
    a(f"s_lshr_b32 s{sTMP+2}, s{sROUND}, 3")
    a(f"s_mul_i32 s{sTMP+2}, s{sTMP+2}, {CH*32}")
    a(f"v_add_u32 v{LTMP}, s{sTMP+1}, v0")
    a(f"v_lshl_add_u32 v{LTMP}, v{LTMP}, 5, 1")
    a(f"v_mov_b32 v{LCHV}, s{sTMP+2}")
    a("s_waitcnt vmcnt(0)")
    a(f"v_lshl_or_b32 v{LTMP}, v{LOFF}, 18, v{LTMP}")
    a(f"v_lshrrev_b32 v{LTMP+1}, 10, v{LKEY}")
    a(f"v_add_u32 v{RECQ[0]}, v{LTMP+1}, v{LTMP}")
    a(f"v_and_b32 v{LTMP+1}, 255, v{LKEY}")
    a(f"v_cmp_eq_u32 vcc, s2, v{LTMP+1}")
    a(f"v_lshrrev_b32 v{LOFF}, 7, v{LOFF}")
    a(f"v_and_b32 v{LOFF}, {24 if PHMASK else 0}, v{LOFF}")
    a(f"v_cndmask_b32_e64 v{LOFF+1}, 0, 1, vcc")
    a("v_cmp_gt_u32 vcc, 400, v0")
    a(f"v_bfe_u32 v{LKEY}, v{LKEY}, 8, 2")
    a(f"v_lshlrev_b32 v{LOFF+1}, v{LOFF}, v{LOFF+1}")
    a(f"v_lshlrev_b32 v{LKEY}, 3, v{LKEY}")
    a(f"v_cndmask_b32 v{LOFF+1}, 0, v{LOFF+1}, vcc")
    a("s_branch K2_ALLOC")
    a("K2_HELP:")
    XR, WR, HA, XAD = 40, 72, 104, 32
    a("v_and_b32 v1, 63, v0")
    a("v_lshrrev_b32 v2, 4, v1")
    a("v_and_b32 v3, 15, v1")
    a("v_xor_b32 v4, v3, v2")
    a("v_lshlrev_b32 v4, 4, v4")
    a(f"v_lshl_add_u32 v{XR}, v2, 18, v4")
    for j in range(1, 4):
        a(f"v_xor_b32 v{XR+j}, {64*j}, v{XR}")
    a(f"s_lshl_b32 s{sTMP}, s2, 8")
    a(f"s_lshl_b32 s{sTMP+1}, s{sCG}, 16")
    a(f"s_add_u32 s{sTMP}, s{sTMP}, s{sTMP+1}")
    a(f"s_lshl_b32 s{sTMP+2}, s{sCG}, 12")
    a(f"s_add_u32 s{sTMP+5}, s{sTMP+2}, {L_RES}")
    a(f"s_add_u32 s{sTMP+2}, s{sTMP+2}, {L_X}")
    a(f"s_lshl_b32 s{sTMP+3}, s{sCG}, 13")
    a(f"s_add_u32 s{sTMP+3}, s{sTMP+3}, {WS_WOP:#x}")
    a(f"v_lshl_add_u32 v4, v1, 4, s{sTMP+3}")
    a("v_add_u32 v6, 4096, v4")
    a(f"s_mov_b32 s{sFIRST}, 1")
    a("s_waitcnt lgkmcnt(0)")
    for j in range(4):
        c16 = 8 * (j & 1) + 4 * (j >> 1)
        a(f"s_add_u32 m0, s{sTMP+2}, {j*1024}")
        a(f"s_add_u32 s{sTMP+1}, s{sTMP}, {c16*4*65536:#x}")
        a(f"buffer_load_dwordx4 v{XR+j}, s[20:23], s{sTMP+1} offen {X2POL} lds")
    def wld(lo, hi):
        for kk in range(lo, hi):
            a(f"buffer_load_dwordx4 {vr(WR+4*kk,4)}, v{(4,6)[kk>>2]}, s[28:31], 0 offen offset:{(kk&3)*1024}")
    a("v_lshrrev_b32 v5, 5, v1")
    a(f"v_xor_b32 v{XAD}, v3, v5")
    a(f"v_lshlrev_b32 v{XAD}, 4, v{XAD}")
    a("v_and_b32 v5, 31, v1")
    a(f"v_lshl_add_u32 v{XAD}, v5, 8, v{XAD}")
    a(f"v_add_u32 v{XAD}, {L_X}, v{XAD}")
    for kk in range(1, 8):
        a(f"v_xor_b32 v{XAD+kk}, {kk*32}, v{XAD}")
    a(f"v_lshl_add_u32 v5, v1, 4, s{sTMP+5}")
    a("v_mov_b32 v3, 1")
    if PF:
        a("v_lshlrev_b32 v2, 7, v1")
        a(f"s_lshl_b32 s{sTMP}, s{sU}, 13")
        a(f"v_add_u32 v2, s{sTMP}, v2")
        a(f"s_lshr_b32 s{sTMP}, s{sCG}, 1")
        a(f"s_lshl_b32 s{sTMP}, s{sTMP}, 21")
        a(f"s_and_b32 s{sTMP+1}, s{sCG}, 1")
        a(f"s_lshl_b32 s{sTMP+1}, s{sTMP+1}, 18")
        a(f"s_add_u32 s{sTMP}, s{sTMP}, s{sTMP+1}")
    if EPF:
        a(f"s_lshl_b32 s{sTMP+6}, s2, 2")
        a(f"s_add_u32 s{sTMP+6}, s{sTMP+6}, s{sCG}")
        a(f"s_mul_i32 s{sTMP+6}, s{sTMP+6}, {98*128}")
        a(f"v_lshl_add_u32 v161, v1, 7, s{sTMP+6}")
        a(f"v_add_u32 v162, {64*128}, v161")
    wld(0, HSPLIT)
    a("s_barrier")
    stamp(a, "bar1")
    a("s_barrier")
    stamp(a, "barA")
    wld(HSPLIT, 8)
    stamp(a, "hwa")
    if EPF:
        n0 = min(EPF, 64)
        a(f"s_mov_b32 exec_lo, {(1 << min(n0,32)) - 1:#x}")
        a(f"s_mov_b32 exec_hi, {(1 << max(n0-32,0)) - 1:#x}")
        a("buffer_load_dword v160, v161, s[24:27], 0 offen")
        if EPF > 64:
            n1 = EPF - 64
            a(f"s_mov_b32 exec_lo, {(1 << min(n1,32)) - 1:#x}")
            a(f"s_mov_b32 exec_hi, {(1 << max(n1-32,0)) - 1:#x}")
            a("buffer_load_dword v160, v162, s[24:27], 0 offen")
        a("s_mov_b64 exec, -1")
    for i in range(PF):
        a(f"buffer_load_dword v160, v2, s[32:35], s{sTMP} offen")
        a(f"s_add_u32 s{sTMP}, s{sTMP}, {2*2097152:#x}")
    def xrd(kk):
        for b in range(2):
            a(f"ds_read_b128 {vr(XR+8*(kk&3)+4*b,4)}, v{XAD+kk} offset:{b*8192}")
    def gemm():
        for kk in range(4):
            xrd(kk)
        for kk in range(8):
            a(f"s_waitcnt lgkmcnt({2*min(3, 7-kk)})")
            for b in range(2):
                c = "0" if kk == 0 else vr(HA + 16*b, 16)
                a(f"{MF} {vr(HA+16*b,16)}, {vr(XR+8*(kk&3)+4*b,4)}, {vr(WR+4*kk,4)}, {c}")
            if kk + 4 < 8:
                xrd(kk + 4)
    a(f"s_mov_b32 s{sTMP}, {LOG2E:#x}")
    a(f"s_mov_b32 s{sTMP+1}, {LOG2E:#x}")
    a("s_mov_b64 exec, 1")
    a(f"s_waitcnt vmcnt({PF + (EPF > 0) + (EPF > 64)})")
    a(f"ds_add_u32 v{vT0}, v3 offset:{L_XD}")
    a("s_mov_b64 exec, -1")
    a("K2_XW:")
    a(f"ds_read_b32 v2, v{vT0} offset:{L_XD}")
    a("s_waitcnt lgkmcnt(0)")
    a(f"v_readfirstlane_b32 s{sTMP+2}, v2")
    a(f"s_cmp_lt_u32 s{sTMP+2}, 4")
    a("s_cbranch_scc1 K2_XW")
    a(f"s_setprio {HPRIO}")
    stamp(a, "adj")
    gemm()
    a("s_nop 10")
    for q in range(4):
        for r in range(8*q, 8*q+8, 2):
            a(f"v_pk_mul_f32 {vr(HA+r,2)}, {vr(HA+r,2)}, s[{sTMP}:{sTMP+1}]")
        for j in range(4*q, 4*q+4):
            a(f"v_cvt_pk_bf16_f32 v{HA+j}, v{HA+2*j}, v{HA+2*j+1}")
        a(f"ds_write_b128 v5, {vr(HA+4*q,4)} offset:{q*1024}")
    a("v_add_u32 v158, 0x8000, v4")
    a("v_add_u32 v159, 0x8000, v6")
    stamp(a, "placed")
    a("s_branch K2_PROD")
    a("K2_PROUND:")
    a("s_barrier")
    a("s_barrier")
    a("K2_PROD:")
    a("v_and_b32 v1, 63, v0")
    a("v_and_b32 v2, 3, v1")
    a("v_lshlrev_b32 v2, 3, v2")
    a(f"ds_read_b64 v[8:9], v2 offset:{L_CNT}")
    a("v_lshrrev_b32 v2, 1, v1")
    a("v_lshlrev_b32 v2, 2, v2")
    a("v_and_b32 v3, 1, v1")
    a("v_lshlrev_b32 v3, 4, v3")
    a("v_mov_b32 v4, 0")
    a("v_mov_b32 v5, 1")
    a("v_and_b32 v10, 7, v1")
    a("v_bfe_u32 v11, v1, 3, 1")
    a("v_lshlrev_b32 v10, 1, v10")
    a("v_lshl_add_u32 v10, v11, 8, v10")
    a("v_lshl_add_u32 v10, v1, 4, v10")
    a("v_mov_b32 v11, 0x3f80")
    a("s_mov_b64 exec, 0x1fff")
    a(f"ds_write_b16 v10, v11 offset:{L_LUT+16}")
    a("s_mov_b64 exec, -1")
    a("s_waitcnt lgkmcnt(0)")
    totals(a, 8, 8)
    a("s_cbranch_scc1 K2_POVF")
    a(f"s_cmp_lg_u32 s{sW}, 8")
    a("s_cbranch_scc1 K2_EXP")
    a(f"s_max_u32 s{sTEND}, s{sC+4}, s{sC+5}")
    a(f"s_lshl_b32 s{sTMP+2}, s{sC+4}, 7")
    a(f"v_add_u32 v6, s{sTMP+2}, v2")
    a(f"s_mov_b32 s{sT}, 0")
    a(f"s_mov_b32 s{sTMP}, {L_EA}")
    a(f"s_mov_b32 s{sTMP+3}, {-4*(PK+LEADX)}")
    a(f"s_mov_b32 s{sTMP+4}, {L_RES}")
    a(f"s_mov_b32 s{sRDY}, 0")
    a(f"s_lshl_b32 s{sTMP+1}, s{sC+4}, 10")
    a(f"s_add_u32 s{sTMP+1}, s{sTMP+1}, {L_EA}")
    a(f"s_mov_b32 s{sTMP+6}, -32")
    a(f"s_mov_b32 s{sTMP+7}, 0")
    a(f"s_setprio {PPRIO}")
    a("s_barrier")
    stamp(a, "bar2")
    pst = A()
    a(f"ds_read_b32 v10, v2 offset:{L_EOF}")
    a(f"ds_read_b32 v11, v6 offset:{L_EOF}")
    a("K2_PSTEP:")
    a(f"s_cmp_ge_u32 s{sT}, s{sTEND}")
    a("s_cbranch_scc1 K2_PDRAIN")
    a(f"s_cmp_lt_i32 s{sRDY}, s{sTMP+3}")
    a("s_cbranch_scc1 K2_PW")
    a("K2_PWD:")
    a(f"s_cmp_ge_u32 s{sTMP+1}, s{sTMP+4}")
    a("s_cbranch_scc1 K2_PU")
    a("K2_PUD:")
    a(f"s_min_u32 m0, s{sTMP}, {L_EA + NT*1024}")
    a("s_waitcnt lgkmcnt(0)")
    for hb in range(2):
        if NOEA:
            a(f"v_mov_b32 v{12+hb}, v3")
        else:
            a(f"v_and_or_b32 v{12+hb}, v{10+hb}, s{sTMP+6}, v3")
    a("v_add_u32 v2, 128, v2")
    a("v_add_u32 v6, 128, v6")
    a(f"buffer_load_dwordx4 v12, s[24:27], 0 offen {EAPOL} lds")
    a(f"s_min_u32 m0, s{sTMP+1}, {L_EA + NT*1024}")
    a(f"ds_read_b32 v10, v2 offset:{L_EOF}")
    a(f"buffer_load_dwordx4 v13, s[24:27], 0 offen {EAPOL2} lds")
    a(f"ds_read_b32 v11, v6 offset:{L_EOF}")
    a(f"s_add_u32 s{sTMP}, s{sTMP}, 1024")
    a(f"s_add_u32 s{sTMP+1}, s{sTMP+1}, 1024")
    a(f"s_add_i32 s{sTMP+3}, s{sTMP+3}, 4")
    a(f"s_add_u32 s{sT}, s{sT}, 1")
    if STAMP and ITS:
        a("s_memtime s[4:5]")
        a(f"s_add_u32 m0, s{sT}, 19")
        a("s_waitcnt lgkmcnt(0)")
        a("v_writelane_b32 v167, s4, m0")
    a(f"s_cmp_le_u32 s{sT}, {PK}")
    a("s_cbranch_scc1 K2_PSTEP")
    a(f"s_cmp_eq_u32 s{sTMP+7}, 0")
    a("s_cbranch_scc1 K2_PO")
    a("K2_POD:")
    a("s_mov_b64 exec, 1")
    a(f"s_waitcnt vmcnt({2*PK})")
    a(f"ds_add_u32 v4, v5 offset:{L_RDY}")
    a("s_mov_b64 exec, -1")
    a("s_branch K2_PSTEP")
    a("K2_PW:")
    a(f"ds_read_b32 v8, v4 offset:{L_PROG}")
    a("s_waitcnt lgkmcnt(0)")
    a(f"v_readfirstlane_b32 s{sRDY}, v8")
    a(f"s_cmp_ge_i32 s{sRDY}, s{sTMP+3}")
    a("s_cbranch_scc1 K2_PWD")
    a("s_sleep 2")
    a("s_branch K2_PW")
    a("K2_PU:")
    a(f"ds_read_b32 v8, v4 offset:{L_WUD}")
    a("s_waitcnt lgkmcnt(0)")
    a(f"v_readfirstlane_b32 s{sTMP+5}, v8")
    a(f"s_cmp_lt_u32 s{sTMP+5}, 8")
    a("s_cbranch_scc1 K2_PU")
    a(f"s_mov_b32 s{sTMP+4}, -1")
    a("s_branch K2_PUD")
    a("K2_PO:")
    a(f"ds_read_b32 v8, v4 offset:{L_OD}")
    a("s_waitcnt lgkmcnt(0)")
    a(f"v_readfirstlane_b32 s{sTMP+7}, v8")
    a(f"s_cmp_ge_u32 s{sTMP+7}, 3")
    a("s_cbranch_scc1 K2_POD")
    a("s_sleep 1")
    a("s_branch K2_PO")
    a("K2_EXP:")
    EBN = 4
    a(f"s_sub_u32 s{sT}, s{sW}, 9")
    a(f"s_mul_i32 s{sTMP}, s{sT}, {EBN*128}")
    a(f"v_add_u32 v2, s{sTMP}, v2")
    a(f"s_mul_i32 s{sTMP}, s{sT}, {EBN*1024}")
    a(f"s_add_u32 s{sTMP}, s{sTMP}, {L_O}")
    a(f"v_lshl_add_u32 v6, v1, 4, s{sTMP}")
    a("v_lshlrev_b32 v3, 4, v3")
    a(f"s_mul_i32 s{sT}, s{sT}, {EBN}")
    a("s_barrier")
    a("K2_ELOOP:")
    a(f"s_cmp_ge_u32 s{sT}, s{sC+6}")
    a("s_cbranch_scc1 K2_EDONE")
    for i in range(EBN):
        a(f"ds_read_b32 v{10+i}, v2 offset:{L_EOF+128*i}")
    a(f"v_add_u32 v2, {3*EBN*128}, v2")
    a(f"s_add_u32 s{sT}, s{sT}, {3*EBN}")
    a("s_waitcnt lgkmcnt(0)")
    for i in range(EBN):
        a(f"v_and_b32 v{10+i}, 31, v{10+i}")
        a(f"v_lshl_add_u32 v{10+i}, v{10+i}, 4, v3")
        a(f"ds_read_b128 {vr(16+4*i,4)}, v{10+i} offset:{L_LUT}")
    for i in range(EBN):
        a(f"s_waitcnt lgkmcnt({EBN-1})")
        a(f"ds_write_b128 v6, {vr(16+4*i,4)} offset:{1024*i}")
    a(f"v_add_u32 v6, {3*EBN*1024}, v6")
    a("s_branch K2_ELOOP")
    a("K2_EDONE:")
    a("s_mov_b64 exec, 1")
    a("s_waitcnt lgkmcnt(0)")
    a(f"ds_add_u32 v4, v5 offset:{L_OD}")
    a("s_mov_b64 exec, -1")
    a("s_branch K2_PFIN")
    a("K2_PDRAIN:")
    a(f"ds_read_b32 v8, v4 offset:{L_OD}")
    a("s_waitcnt lgkmcnt(0)")
    a(f"v_readfirstlane_b32 s{sTMP+7}, v8")
    a(f"s_cmp_lt_u32 s{sTMP+7}, 3")
    a("s_cbranch_scc1 K2_PDRAIN")
    a("s_mov_b64 exec, 1")
    for k in range(PK - 1, 0, -1):
        a(f"s_cmp_le_u32 s{sT}, {k}")
        a(f"s_cbranch_scc1 K2_PD_{k}")
        a(f"s_waitcnt vmcnt({2*k})")
        a(f"ds_add_u32 v4, v5 offset:{L_RDY}")
        a(f"K2_PD_{k}:")
    a("v_mov_b32 v5, 0x7fffffff")
    a("s_waitcnt vmcnt(0)")
    a(f"ds_write_b32 v4, v5 offset:{L_RDY}")
    a("s_mov_b64 exec, -1")
    stamp(a, "loopend")
    stamp_out(a, "0")
    a("K2_PFIN:")
    a(f"s_cmp_eq_u32 s{sFIRST}, 0")
    a("s_cbranch_scc1 K2_NOU")
    a(f"s_mov_b32 s{sFIRST}, 0")
    a(f"s_cmp_eq_u32 s{sW}, 8")
    a("s_cbranch_scc1 K2_NOU")
    a("K2_UG:")
    for kk in range(8):
        a(f"buffer_load_dwordx4 {vr(WR+4*kk,4)}, v{158+(kk>>2)}, s[28:31], 0 offen offset:{(kk&3)*1024}")
    a(f"s_add_u32 s{sUD}, s32, {WS_U:#x}")
    a(f"s_addc_u32 s{sUD+1}, s33, 0")
    a(f"s_mov_b32 s{sUD+2}, {256*16384:#x}")
    a(f"s_mov_b32 s{sUD+3}, 0x20000")
    a(f"s_lshl_b32 s{sTMP}, s2, 14")
    a(f"s_lshl_b32 s{sTMP+1}, s{sCG}, 12")
    a(f"s_add_u32 s{sTMP}, s{sTMP}, s{sTMP+1}")
    a(f"v_lshl_add_u32 v5, v1, 4, s{sTMP}")
    a("v_mov_b32 v3, 1")
    a("s_waitcnt vmcnt(0)")
    gemm()
    a("s_nop 10")
    for q in range(4):
        for j in range(4*q, 4*q+4):
            a(f"v_cvt_pk_bf16_f32 v{XR+j}, v{HA+2*j}, v{HA+2*j+1}")
        a(f"buffer_store_dwordx4 {vr(XR+4*q,4)}, v5, s[{sUD}:{sUD+3}], 0 offen offset:{q*1024} {UPOL}")
    a("s_mov_b64 exec, 1")
    a("s_waitcnt vmcnt(0)")
    a(f"ds_add_u32 v{vT0}, v3 offset:{L_UD}")
    a("s_mov_b64 exec, -1")
    a(f"s_cmp_lg_u32 s{sCG}, 1")
    a("s_cbranch_scc1 K2_NOU")
    a(f"s_mov_b32 s{sCG}, 0")
    a("v_subrev_u32 v158, 0x2000, v158")
    a("v_subrev_u32 v159, 0x2000, v159")
    a("s_branch K2_UG")
    a("K2_NOU:")
    a(f"s_cmp_eq_u32 s{sMODE}, 0")
    a("s_cbranch_scc1 K2_PEND")
    a(f"s_cmp_eq_u32 s{sROUND}, 999")
    a("s_cbranch_scc1 K2_PEND")
    a(f"s_add_u32 s{sROUND}, s{sROUND}, 1")
    a("K2_POVF:")
    a(f"s_mov_b32 s{sMODE}, 1")
    a("s_waitcnt vmcnt(0) lgkmcnt(0)")
    a("s_barrier")
    a("s_branch K2_PROUND")
    a("K2_PEND:")
    a("s_endpgm")
    a("K2_CODE_END:")

def kd(name, vgpr, sgpr):
    return f""".amdhsa_kernel {name}
  .amdhsa_next_free_vgpr {vgpr}
  .amdhsa_next_free_sgpr {sgpr}
  .amdhsa_accum_offset {(vgpr+3)//4*4}
  .amdhsa_group_segment_fixed_size 0
  .amdhsa_kernarg_size 96
  .amdhsa_user_sgpr_count 2
  .amdhsa_user_sgpr_kernarg_segment_ptr 1
  .amdhsa_system_sgpr_workgroup_id_x 1
.end_amdhsa_kernel
"""

def main(out):
    K2 = "standalone__edge_featured_mpnn_gatedgcn__graph_kernel"
    ref = open("standalone__edge_featured_mpnn_gatedgcn__graph.s.ref").read().split("\n")
    head = []
    for line in ref:
        if not line.startswith(";"):
            break
        if "@launch" in line or "Override launch" in line or "grid=ceil" in line:
            continue
        head.append(line)
    t = "\n".join(head) + "\n"
    t += f"; @launch kernel=k1_kernel grid=({NS+NGEMM+1},1,1) block=(512,1,1) lds={K1_LDS}\n"
    t += f"; @launch kernel={K2} grid=(256,1,1) block=(768,1,1) lds={L_TOTAL}\n"
    t += '.amdgcn_target "amdgcn-amd-amdhsa--gfx950"\n.text\n'
    a = A()
    gen_k1(a)
    t += ".globl k1_kernel\n.p2align 8\n.type k1_kernel,@function\n" + a.text()
    a = A()
    gen_k2(a, K2)
    t += f".globl {K2}\n.p2align 8\n.type {K2},@function\n" + a.text()
    t += '.section .rodata,"a"\n.p2align 6\n' + kd("k1_kernel", 104, 72) + ".p2align 6\n" + kd(K2, 168, 102)
    if STAMP:
        t = "; stamps " + ",".join(STAMP_NAMES) + "\n" + t
    if STAMP1:
        t = t + "; k1stamps " + ",".join(K1_NAMES) + "\n"
    open(out, "w").write(t)

if __name__ == "__main__":
    main(sys.argv[1] if len(sys.argv) > 1 else "standalone__edge_featured_mpnn_gatedgcn__graph.s")
```

```python
import gen7 as g
import sys, os
A = g.A
MODE = os.environ.get("FM", "fence")
LIST = int(os.environ.get("LIST", "0"))
K = "standalone__edge_featured_mpnn_gatedgcn__graph_kernel"
a = A()
a(f"{K}:")
a("s_cmp_ge_u32 s2, 256")
a("s_cbranch_scc1 F_END")
a("s_mov_b32 s100, s2")
a("v_lshrrev_b32 v1, 6, v0")
a("s_nop 0")
a("v_readfirstlane_b32 s101, v1")
a("F_ROLE:")
a("s_cmp_ge_u32 s101, 8")
a("s_cbranch_scc0 k1_kernel")
a(f"s_cmp_lt_u32 s2, {g.NS}")
a("s_cbranch_scc0 F_B1")
for i in range(4):
    a("s_barrier")
a("F_B1:")
a("s_barrier")
a("s_branch F_NEXT")
k1 = A(); g.gen_k1(k1)
for l in k1.l:
    a.l.append("    s_branch F_NEXT" if l.strip() == "s_endpgm" else l)
a("F_NEXT:")
a("s_mov_b64 exec, -1")
a("s_waitcnt vmcnt(0) lgkmcnt(0)")
a("s_barrier")
a("s_add_u32 s2, s2, 256")
a(f"s_cmp_lt_u32 s2, {g.NS+g.NGEMM+1}")
a("s_cbranch_scc1 F_ROLE")
a("s_mov_b32 s2, s100")
a("s_cmp_lg_u32 s101, 0")
a("s_cbranch_scc1 F_WAIT")
a("s_load_dwordx2 s[4:5], s[0:1], 80")
a("s_mov_b32 s6, 256")
a("s_mov_b32 s7, 0x20000")
a("v_mov_b32 v1, 1")
a("v_mov_b32 v2, 0")
a("s_mov_b64 exec, 1")
if MODE == "fence":
    a("buffer_wbl2 sc1")
a("s_waitcnt vmcnt(0) lgkmcnt(0)")
a("buffer_atomic_add v1, v2, s[4:7], 0 offen sc1")
a("s_mov_b32 s9, 0")
a("F_POLL:")
a("s_add_u32 s9, s9, 1")
a("s_cmp_gt_u32 s9, 0x40000")
a("s_cbranch_scc1 F_GIVEUP")
a("s_sleep 2")
a("buffer_load_dword v3, v2, s[4:7], 0 offen sc1")
a("s_waitcnt vmcnt(0)")
a("v_readfirstlane_b32 s8, v3")
a("s_cmp_lt_u32 s8, 256")
a("s_cbranch_scc1 F_POLL")
a("F_GIVEUP:")
a("buffer_inv sc1")
a("s_waitcnt vmcnt(0)")
a("s_mov_b64 exec, -1")
a("F_WAIT:")
a("s_barrier")
k2 = A(); g.gen_k2(k2, "F_K2")
a.l += k2.l
a("F_END:")
a("s_endpgm")
ref = open("standalone__edge_featured_mpnn_gatedgcn__graph.s.ref").read().split("\n")
head = [l for l in ref if l.startswith(";") and "@launch" not in l and "Override launch" not in l and "grid=ceil" not in l][:13]
t = "\n".join(head) + "\n"
t += (f"; @launch kernel={K} " if LIST else "; @launch ") + f"grid=(256,1,1) block=(768,1,1) lds={g.L_TOTAL}\n"
t += '.amdgcn_target "amdgcn-amd-amdhsa--gfx950"\n.text\n'
t += f".globl {K}\n.p2align 8\n.type {K},@function\n" + a.text().replace("k1_kernel", "F_K1")
t += '.section .rodata,"a"\n.p2align 6\n' + g.kd(K, 168, 102)
open(sys.argv[1], "w").write(t)
```

```python
import sys, os

N = 12500
E = 400000
NS = 125
CH = 3200
NGEMM = 196
WS_TAB = 0
WS_REC = 0x620000
WS_WOP = 0x7B0000
WS_OFF = 0x7C0000
WS_U = 0x1000000
LOG2E = 0x3fb8aa3b
env = lambda k, d: type(d)(os.environ.get(k, d))
STAMP = env("STAMP", 0)
STAMPS = env("STAMPS", "all").split(",")
PK = env("PK", 1)
SHL64 = env("SHL64", 1)
NOEA = env("NOEA", 0)
EAPOL = env("EAPOL", "")
NOWC = env("NOWC", 0)
HPRIO = env("HPRIO", 3)
COOP = env("COOP", 1)
DBG = env("DBG", "")
EPF = env("EPF", 0)
XPOL = env("XPOL", "")
X2POL = env("X2POL", "")
SDPOL = env("SDPOL", "nt")
WPOL = env("WPOL", "")
OPOL = env("OPOL", "")
EAPOL2 = env("EAPOL2", EAPOL)
HSPLIT = env("HSPLIT", 3)
UPOL = env("UPOL", "")
UDELAY = env("UDELAY", 0)
PPRIO = env("PPRIO", 0)
CODEPF = env("CODEPF", 0)
K1PF = env("K1PF", 1)
STAMP1 = env("STAMP1", 0)
STPOL = env("STPOL", "")
ITS = env("ITS", 0)
PACE = env("PACE", 1)
LEADX = env("LEADX", 4)
PRIO = env("PRIO", "3210")
ROT = env("ROT", 1)
PFS = env("PFS", 0)
PFPOS = env("PFPOS", 1)
PF = env("PF", 1)
PHMASK = env("PHMASK", 1)

class A:
    def __init__(self):
        self.l = []
    def __call__(self, s):
        for line in s.strip("\n").split("\n"):
            line = line.strip()
            if not line:
                continue
            self.l.append(line if line.endswith(":") else "    " + line)
    def text(self):
        return "\n".join(self.l) + "\n"

def vr(a, n):
    return f"v[{a}:{a+n-1}]"

def srd(a, d, base, nbytes, add=0):
    if add:
        a(f"s_add_u32 s{d}, s{base}, {add:#x}")
        a(f"s_addc_u32 s{d+1}, s{base+1}, 0")
    else:
        a(f"s_mov_b32 s{d}, s{base}")
        a(f"s_mov_b32 s{d+1}, s{base+1}")
    a(f"s_mov_b32 s{d+2}, {nbytes:#x}")
    a(f"s_mov_b32 s{d+3}, 0x20000")

MF = "v_mfma_f32_32x32x16_bf16"

def dpp_scan(a, v):
    for sh in (1, 2, 4, 8):
        a("s_nop 1")
        a(f"v_add_u32_dpp v{v}, v{v}, v{v} row_shr:{sh} row_mask:0xf bank_mask:0xf")
    a("s_nop 1")
    a(f"v_add_u32_dpp v{v}, v{v}, v{v} row_bcast:15 row_mask:0xa bank_mask:0xf")
    a("s_nop 1")
    a(f"v_add_u32_dpp v{v}, v{v}, v{v} row_bcast:31 row_mask:0xc bank_mask:0xf")

K1_LDS = 81920
K1_NAMES = []
def st1(a, nm):
    if STAMP1:
        if nm not in K1_NAMES:
            K1_NAMES.append(nm)
        if nm == "start":
            a("v_mov_b32 v100, 0")
            a("s_memrealtime s[64:65]")
            a("s_waitcnt lgkmcnt(0)")
            a("v_writelane_b32 v100, s64, 61")
        a("s_memtime s[64:65]")
        a("s_waitcnt lgkmcnt(0)")
        a(f"v_writelane_b32 v100, s64, {K1_NAMES.index(nm)}")
def st1_out(a):
    if STAMP1:
        a("s_mov_b64 exec, -1")
        a("s_waitcnt vmcnt(0)")
        st1(a, "end")
        a("s_memrealtime s[64:65]")
        a("s_waitcnt lgkmcnt(0)")
        a("v_writelane_b32 v100, s64, 62")
        srd(a, 60, 20, 0x200000, add=0xA00000)
        a("v_lshlrev_b32 v101, 2, v0")
        a("s_lshl_b32 s66, s2, 11")
        a("buffer_store_dword v100, v101, s[60:63], s66 offen")
def k1pf(a):
    if not K1PF:
        return
    a("v_lshlrev_b32 v96, 7, v0")
    a("s_mov_b32 s18, 4096")
    a("s_mov_b32 s19, 0x20000")
    a("buffer_load_dword v97, v96, s[16:19], 0 offen")
    if K1PF > 1:
        a("s_getpc_b64 s[54:55]")
        a("K1_PC:")
        a("v_min_u32 v96, K2_CODE_END-K1_PC-4, v96")
        a("global_load_dword v97, v96, s[54:55]")
def gen_k1(a):
    a("k1_kernel:")
    a(f"s_cmp_ge_u32 s2, {NS + NGEMM + 1}")
    a("s_cbranch_scc1 K1_END")
    a("s_load_dwordx8 s[4:11], s[0:1], 0")
    a("s_load_dwordx2 s[24:25], s[0:1], 40")
    a("s_load_dwordx2 s[28:29], s[0:1], 64")
    a("s_load_dwordx2 s[20:21], s[0:1], 88")
    a("s_load_dwordx2 s[12:13], s[0:1], 32")
    a("s_load_dwordx2 s[14:15], s[0:1], 56")
    a("s_load_dwordx2 s[16:17], s[0:1], 48")
    a("v_lshrrev_b32 v1, 6, v0")
    a("v_and_b32 v2, 63, v0")
    a("v_readfirstlane_b32 s3, v1")
    st1(a, "start")
    a(f"s_cmp_lt_u32 s2, {NS}")
    a("s_cbranch_scc1 K1_SORT")
    a(f"s_sub_u32 s43, s2, {NS+1}")
    a(f"s_min_u32 s43, s43, {NGEMM}")
    a("v_lshrrev_b32 v3, 4, v2")
    a("v_lshlrev_b32 v4, 2, v3")
    a("v_and_b32 v6, 15, v2")
    a("v_xor_b32 v5, v6, v4")
    a("v_lshlrev_b32 v5, 4, v5")
    a("v_lshl_add_u32 v5, v3, 8, v5")
    a("s_and_b32 s46, s3, 1")
    a("s_lshl_b32 s46, s46, 3")
    a("v_xor_b32 v6, v6, v3")
    a("v_xor_b32 v6, s46, v6")
    a("v_lshlrev_b32 v6, 4, v6")
    a("v_lshl_add_u32 v6, v3, 8, v6")
    a("v_xor_b32 v7, 64, v6")
    a("s_lshl_b32 s22, s3, 12")
    a("s_add_u32 s23, s22, 32768")
    a("s_lshl_b32 s44, s43, 14")
    a("s_lshl_b32 s45, s3, 11")
    a("s_add_u32 s44, s44, s45")
    a("s_add_u32 s45, s45, 65536")
    a("s_waitcnt lgkmcnt(0)")
    srd(a, 32, 4, N * 256)
    a("s_mov_b32 m0, s45")
    a(f"s_cmp_eq_u32 s2, {NS}")
    a("s_cselect_b32 s24, s12, s24")
    a("s_cselect_b32 s25, s13, s25")
    a("s_cselect_b32 s28, s14, s28")
    a("s_cselect_b32 s29, s15, s29")
    a("s_mov_b32 s26, 32768")
    a(f"buffer_load_dwordx4 v6, s[32:35], s44 offen {XPOL} lds")
    a(f"buffer_load_dwordx4 v7, s[32:35], s44 offen offset:1024 {XPOL} lds")
    a("s_mov_b32 s27, 0x20000")
    a("s_mov_b32 s30, 32768")
    a("s_mov_b32 s31, 0x20000")
    a("s_mov_b32 m0, s22")
    a("s_nop 0")
    for i in range(4):
        a(f"buffer_load_dwordx4 v5, s[24:27], s22 offen offset:{i*1024} {WPOL} lds")
    a("s_mov_b32 m0, s23")
    a("s_nop 0")
    for i in range(4):
        a(f"buffer_load_dwordx4 v5, s[28:31], s22 offen offset:{i*1024} {WPOL} lds")
    st1(a, "issued")
    srd(a, 36, 20, N * 512, add=WS_TAB)
    a("v_and_b32 v6, 31, v2")
    a("v_lshrrev_b32 v7, 5, v2")
    a("s_and_b32 s46, s3, 3")
    a("s_lshr_b32 s47, s3, 2")
    a("v_bfe_u32 v9, v2, 2, 2")
    a("v_lshl_add_u32 v10, v7, 3, v9")
    a("v_lshlrev_b32 v10, 8, v10")
    a("v_xor_b32 v11, s46, v9")
    a("v_lshl_add_u32 v10, v11, 6, v10")
    a("v_bfe_u32 v11, v2, 4, 1")
    a("v_lshl_add_u32 v10, v11, 5, v10")
    a("v_and_b32 v11, 3, v2")
    a("v_lshl_add_u32 v10, v11, 3, v10")
    XAD = 16
    a("v_and_b32 v11, 15, v2")
    a("v_xor_b32 v11, v11, v7")
    a("v_lshlrev_b32 v11, 4, v11")
    a("v_lshl_add_u32 v11, v6, 8, v11")
    a("s_lshl_b32 s48, s47, 13")
    a("s_add_u32 s48, s48, 65536")
    a(f"v_add_u32 v{XAD}, s48, v11")
    for kk in range(1, 8):
        a(f"v_xor_b32 v{XAD+kk}, {kk*32}, v{XAD}")
    a("s_lshl_b32 s48, s43, 15")
    a("s_lshl_b32 s49, s47, 14")
    a("s_add_u32 s48, s48, s49")
    a("s_lshl_b32 s49, s46, 7")
    a("s_add_u32 s48, s48, s49")
    a("v_lshlrev_b32 v12, 2, v6")
    a("v_lshl_add_u32 v12, v7, 11, v12")
    a("v_add_u32 v12, s48, v12")
    a("v_add_u32 v13, 4096, v12")
    a("v_add_u32 v14, 8192, v12")
    a("v_add_u32 v15, 12288, v12")
    a(f"s_mov_b32 s50, {LOG2E:#x}")
    a(f"s_mov_b32 s51, {LOG2E:#x}")
    a("s_mov_b32 s52, 0x7f7e0000")
    a("v_mov_b32 v8, 0x21800000")
    a("v_mov_b32 v9, 0x21800000")
    a("s_waitcnt vmcnt(0)")
    st1(a, "landed")
    a("s_barrier")
    st1(a, "bar")
    a(f"s_cmp_eq_u32 s2, {NS}")
    a("s_cbranch_scc1 K1_PREP")
    SET = [24, 36, 48]
    AB, AV = 64, 80
    def reads(kk):
        b = SET[kk % 3]
        a(f"ds_read_b128 {vr(b,4)}, v{XAD+kk}")
        for u in range(2):
            a(f"ds_read_b64_tr_b16 {vr(b+4+2*u,2)}, v10 offset:{kk*4096+u*1024}")
        for u in range(2):
            a(f"ds_read_b64_tr_b16 {vr(b+8+2*u,2)}, v10 offset:{32768+kk*4096+u*1024}")
    for kk in range(3):
        reads(kk)
    for kk in range(8):
        b = SET[kk % 3]
        later = min(7 - kk, 2)
        a(f"s_waitcnt lgkmcnt({5*later})")
        cb = "0" if kk == 0 else vr(AB, 16)
        cv = "0" if kk == 0 else vr(AV, 16)
        a(f"{MF} {vr(AV,16)}, {vr(b,4)}, {vr(b+8,4)}, {cv}")
        a(f"{MF} {vr(AB,16)}, {vr(b,4)}, {vr(b+4,4)}, {cb}")
        if kk + 3 < 8:
            reads(kk + 3)
    a("s_nop 10")
    st1(a, "mfma")
    VP, VN = 24, 32
    for i in range(8):
        a(f"v_cvt_pk_bf16_f32 v{VP+i}, v{AV+2*i}, v{AV+2*i+1}")
        a(f"v_cvt_pk_bf16_f32 v{VN+i}, -v{AV+2*i}, -v{AV+2*i+1}")
    for q in range(4):
        for r in range(4*q, 4*q+4, 2):
            a(f"v_pk_fma_f32 {vr(AB+r,2)}, {vr(AB+r,2)}, s[50:51], v[8:9]")
        for r in range(4*q, 4*q+4):
            a(f"v_med3_f32 v{AB+r}, v{AB+r}, -s52, s52")
        for r in range(4*q, 4*q+4):
            a(f"v_sub_u32_sdwa v{AB+r}, v{AB+r}, sext(v{VN+r//2}) dst_sel:DWORD dst_unused:UNUSED_PAD src0_sel:DWORD src1_sel:WORD_{r&1}")
        for r in range(4*q, 4*q+4):
            a(f"v_mov_b32_sdwa v{AB+r}, v{VP+r//2} dst_sel:WORD_0 dst_unused:UNUSED_PRESERVE src0_sel:WORD_{r&1}")
        a("s_nop 0")
        for r in range(4*q, 4*q+4):
            a(f"buffer_store_dword v{AB+r}, v{12+q}, s[36:39], 0 offen offset:{(r&3)*512} {STPOL}")
    st1(a, "stored")
    st1_out(a)
    a("s_endpgm")
    a("K1_PREP:")
    srd(a, 40, 20, 65536, add=WS_WOP)
    a("s_lshl_b32 s47, s47, 15")
    a("v_add_u32 v10, s47, v10")
    for kk in range(8):
        for u in range(2):
            a(f"ds_read_b64_tr_b16 {vr(24+4*kk+2*u,2)}, v10 offset:{kk*4096+u*1024}")
    a("s_lshl_b32 s47, s3, 13")
    a("s_add_u32 s48, s47, 4096")
    a("v_lshlrev_b32 v12, 4, v2")
    a("s_waitcnt lgkmcnt(0)")
    for kk in range(8):
        a(f"buffer_store_dwordx4 {vr(24+4*kk,4)}, v12, s[40:43], s{47+(kk>>2)} offen offset:{(kk&3)*1024} {STPOL}")
    k1pf(a)
    a("s_endpgm")
    a("K1_SORT:")
    a("v_lshlrev_b32 v3, 3, v0")
    a("v_mov_b32 v4, 0")
    a("v_mov_b32 v5, 0")
    a("ds_write_b64 v3, v[4:5]")
    a("ds_write_b32 v4, v4 offset:4128")
    a("v_lshlrev_b32 v6, 4, v0")
    a("s_mov_b32 s43, s2")
    a(f"s_mul_i32 s22, s43, {CH*4}")
    a("s_add_u32 s23, s22, 8192")
    a("s_waitcnt lgkmcnt(0)")
    srd(a, 24, 8, E * 4)
    srd(a, 28, 10, E * 4)
    D, S, RK, RC, KA, SH = 16, 24, 32, 40, 48, 56
    a(f"buffer_load_dwordx4 {vr(D,4)}, v6, s[28:31], s22 offen {SDPOL}")
    a(f"buffer_load_dwordx4 {vr(S,4)}, v6, s[24:27], s22 offen {SDPOL}")
    a(f"buffer_load_dwordx4 {vr(D+4,4)}, v6, s[28:31], s23 offen {SDPOL}")
    a(f"buffer_load_dwordx4 {vr(S+4,4)}, v6, s[24:27], s23 offen {SDPOL}")
    srd(a, 32, 20, E * 4, add=WS_REC)
    srd(a, 36, 20, NS * 8192, add=WS_OFF)
    a("v_lshlrev_b32 v7, 7, v0")
    a("v_mov_b32 v8, 0")
    a(f"v_cmp_gt_u32 vcc, {(CH-2048)//4}, v0")
    a("s_mov_b64 s[40:41], vcc")
    a("s_barrier")
    def keys(lo, wait):
        a(f"s_waitcnt vmcnt({wait})")
        for i in range(lo, lo + 4):
            a(f"v_and_b32 v9, 255, v{D+i}")
            a(f"v_lshrrev_b32 v10, 6, v{D+i}")
            a(f"v_lshrrev_b32 v{SH+i}, 7, v{S+i}")
            a("v_and_b32 v10, 12, v10")
            a(f"v_and_b32 v{SH+i}, {24 if PHMASK else 0}, v{SH+i}")
            a(f"v_lshl_or_b32 v{KA+i}, v9, 4, v10")
            a(f"v_lshlrev_b32_e64 v9, v{SH+i}, 1")
            a(f"ds_add_rtn_u32 v{RK+i}, v{KA+i}, v9")
        for i in range(lo, lo + 4):
            a(f"v_lshrrev_b32 v9, 10, v{D+i}")
            a(f"v_add_u32 v10, {(((i&3) + (2048 if i >= 4 else 0)) << 5) + 1:#x}, v7")
            a(f"v_lshl_or_b32 v10, v{S+i}, 18, v10")
            a(f"v_add_u32 v{RC+i}, v9, v10")
        for i in range(lo, lo + 4):
            a(f"s_waitcnt lgkmcnt({3-(i-lo)})")
            a(f"v_bfe_u32 v{RK+i}, v{RK+i}, v{SH+i}, 8")
        a(f"v_max3_u32 v8, v8, v{RK+lo}, v{RK+lo+1}")
        a(f"v_max3_u32 v8, v8, v{RK+lo+2}, v{RK+lo+3}")
    st1(a, "s_bar0")
    if STAMP1:
        a(f"s_waitcnt vmcnt({2})")
    st1(a, "s_land")
    keys(0, 2)
    a("s_mov_b64 exec, s[40:41]")
    a("s_cbranch_execz K1_S1")
    keys(4, 0)
    a("K1_S1:")
    a("s_mov_b64 exec, -1")
    a("v_cmp_lt_u32 vcc, 62, v8")
    a("s_cbranch_vccz K1_S1B")
    a("v_mov_b32 v9, -1")
    a("ds_write_b32 v4, v9 offset:4128")
    a("s_waitcnt lgkmcnt(0)")
    a("K1_S1B:")
    st1(a, "s_keys")
    a("s_barrier")
    st1(a, "s_bar1")
    a("ds_read_b64 v[12:13], v3")
    a("ds_read_b32 v15, v4 offset:4128")
    a("s_waitcnt lgkmcnt(1)")
    a("v_sad_u8 v10, v12, 0, 0")
    a("v_sad_u8 v11, v13, 0, v10")
    a("v_mov_b32 v14, v11")
    dpp_scan(a, 14)
    a("s_lshl_b32 s42, s3, 2")
    a("v_mov_b32 v9, s42")
    a("s_mov_b32 exec_lo, 0")
    a("s_mov_b32 exec_hi, 0x80000000")
    a("ds_write_b32 v9, v14 offset:4096")
    a("s_mov_b64 exec, -1")
    a("v_sub_u32 v14, v14, v11")
    a("s_waitcnt lgkmcnt(0)")
    a("s_barrier")
    a("ds_read_b128 v[64:67], v4 offset:4096")
    a("ds_read_b128 v[68:71], v4 offset:4112")
    a("v_or_b32 v73, v12, v15")
    a("v_or_b32 v75, v13, v15")
    a("s_waitcnt lgkmcnt(0)")
    for w in range(7):
        a(f"s_cmp_gt_u32 s3, {w}")
        a(f"s_cselect_b32 s42, 1, 0")
        a(f"v_mad_u32_u24 v14, v{64+w}, s42, v14")
    a("v_mov_b32 v72, v14")
    a("v_add_u32 v74, v14, v10")
    a("v_mov_b32 v64, v14")
    a("v_mov_b32 v65, v12")
    a("v_mov_b32 v66, v74")
    a("v_mov_b32 v67, v13")
    a("ds_write_b128 v6, v[64:67] offset:8192")
    a("s_lshl_b32 s42, s43, 13")
    a(f"buffer_store_dwordx4 v[72:75], v6, s[36:39], s42 offen {STPOL}")
    a("s_waitcnt lgkmcnt(0)")
    a("s_barrier")
    st1(a, "s_bar3")
    LK = 64
    def place(lo):
        for i in range(lo, lo + 4):
            a(f"v_lshlrev_b32 v{KA+i}, 1, v{KA+i}")
            a(f"ds_read_b64 {vr(LK+2*(i-lo),2)}, v{KA+i} offset:8192")
        for i in range(lo, lo + 4):
            a("s_waitcnt lgkmcnt(3)")
            a(f"v_bfe_u32 v9, v{LK+2*(i-lo)+1}, 0, v{SH+i}")
            a(f"v_sad_u8 v9, v9, 0, v{LK+2*(i-lo)}")
            a(f"v_add_lshl_u32 v9, v9, v{RK+i}, 2")
            a(f"ds_write_b32 v9, v{RC+i} offset:16384")
    place(0)
    a("s_mov_b64 exec, s[40:41]")
    a("s_cbranch_execz K1_S3")
    a("s_waitcnt lgkmcnt(0)")
    place(4)
    a("K1_S3:")
    a("s_mov_b64 exec, -1")
    a("s_waitcnt lgkmcnt(0)")
    a("s_barrier")
    st1(a, "s_bar4")
    a(f"ds_read_b128 {vr(64,4)}, v6 offset:16384")
    a(f"ds_read_b128 {vr(68,4)}, v6 offset:24576")
    a("s_waitcnt lgkmcnt(1)")
    a(f"buffer_store_dwordx4 {vr(64,4)}, v6, s[32:35], s22 offen {STPOL}")
    a("s_mov_b64 exec, s[40:41]")
    a("s_cbranch_execz K1_S9")
    a("s_waitcnt lgkmcnt(0)")
    a(f"buffer_store_dwordx4 {vr(68,4)}, v6, s[32:35], s23 offen {STPOL}")
    a("K1_S9:")
    st1_out(a)
    a("K1_END:")
    a("s_endpgm")

NT = 60
L_CNT = 64
L_RDY = 96
L_IDX = 6144
L_EOF = L_IDX + NT * 128
L_O = L_EOF + NT * 128
L_EA = L_O + NT * 1024
L_X = L_EA + 65536
L_TOTAL = L_X + 15360
L_PROG = 100
L_WUD = 104
L_OD = 108
L_XD = 112
L_UD = 116
L_LUT = 272
assert L_O <= 1024 + 3 * 8192 and NT % 4 == 0

vIDX, vEA, vOT, vSa, vS0, vS1, vT0 = 1, 2, 3, 4, 5, 6, 7
IX = 8
SA = 24
WC, AP, UP = 32, 36, 44
DEN, NUM = 52, 68
G = [84, 100]
RAW = [116, 132, 148]
LO = 164
vT1 = 166
vW = 167 if not STAMP else 131
RECQ = [116, 120, 124]
sW, sCG, sBETA, sMODE, sROUND, sFIRST = 3, 56, 57, 58, 59, 60
sT, sTEND, sRDY, sF0, sL0, sL1 = 62, 63, 64, 65, 66, 67
sC = 68
sTMP = 76
sM0, sM1 = 84, 86
sUD = 44
sG0, sG1, sULD, sUO = 88, 89, 90, 91
sU = 96
sPO, sPH = 97, 98

STAMP_NAMES = []
def stamp(a, nm):
    if STAMP and (STAMPS == ["all"] or nm in STAMPS):
        if nm not in STAMP_NAMES:
            STAMP_NAMES.append(nm)
        i = STAMP_NAMES.index(nm)
        a("s_memtime s[4:5]")
        a("s_waitcnt lgkmcnt(0)")
        a(f"v_writelane_b32 v167, s4, {i}")
        if nm in ("loop0", "loopend"):
            a("s_memrealtime s[4:5]")
            a("s_waitcnt lgkmcnt(0)")
            a(f"v_writelane_b32 v167, s4, {59 if nm == 'loop0' else 60}")
def stamp_out(a, tiles):
    if STAMP:
        a("s_memrealtime s[4:5]")
        a("s_waitcnt lgkmcnt(0)")
        a("s_mov_b64 exec, -1")
        a("v_writelane_b32 v167, s4, 62")
        a(f"v_writelane_b32 v167, {tiles}, 63")
        a("v_and_b32 v3, 63, v0")
        a("v_lshlrev_b32 v3, 2, v3")
        a(f"s_mul_i32 s{sTMP}, s2, 9")
        a(f"s_add_u32 s{sTMP}, s{sTMP}, s{sW}")
        a(f"s_lshl_b32 s{sTMP}, s{sTMP}, 8")
        a(f"s_add_u32 s{sTMP}, s{sTMP}, 0x900000")
        a("s_mov_b32 s30, 0x1000000")
        a(f"buffer_store_dword v167, v3, s[28:31], s{sTMP} offen")

def idx_reads(a, tile_rel):
    for q in range(4):
        a(f"ds_read_b128 {vr(IX+4*q,4)}, v{vIDX} offset:{tile_rel*128+32*q}")
def gathers(a, dst):
    for k in range(0, 16, 2):
        a(f"v_lshl_add_u64 {vr(IX+k,2)}, {vr(IX+k,2)}, 4, {vr(LO,2)}")
    for k in range(16):
        if "nogather" in DBG: continue
        a(f"buffer_load_dword v{dst+k}, v{LO if 'l1hit' in DBG else IX+k}, s[32:35], 0 offen")
def ms_list(gx):
    return [f"{MF} {vr(DEN,16)}, {vr(SA,4)}, {vr(gx,4)}, {vr(DEN,16)}",
            f"{MF} {vr(NUM,16)}, {vr(SA,4)}, {vr(gx+8,4)}, {vr(NUM,16)}",
            f"{MF} {vr(DEN,16)}, {vr(SA+4,4)}, {vr(gx+4,4)}, {vr(DEN,16)}",
            f"{MF} {vr(NUM,16)}, {vr(SA+4,4)}, {vr(gx+12,4)}, {vr(NUM,16)}"]
def poll(a, stubs, tag):
    a(f"s_cmp_le_u32 s{sRDY}, s{sT}")
    a(f"s_cbranch_scc1 K2_POLL_{tag}")
    a(f"K2_POLLED_{tag}:")
    stubs(f"K2_POLL_{tag}:")
    stubs(f"ds_read_b32 v{vT1}, v{vT0} offset:{L_RDY}")
    stubs("s_waitcnt lgkmcnt(0)")
    stubs(f"v_readfirstlane_b32 s{sRDY}, v{vT1}")
    stubs(f"s_cmp_gt_u32 s{sRDY}, s{sT}")
    stubs(f"s_cbranch_scc1 K2_POLLED_{tag}")
    stubs("s_sleep 1")
    stubs(f"s_branch K2_POLL_{tag}")

def publish(a):
    if PACE:
        a("s_mov_b64 exec, 1")
        a(f"ds_inc_u32 v{vT0}, v{vEA} offset:{L_PROG}")
        a("s_mov_b64 exec, -1")
def prio(a, pos):
    c = PRIO[pos]
    if c != "-":
        a(f"s_setprio {c}")
def wstage(a, d, lds):
    a(f"s_lshl_b32 s{sTMP+1}, s{sW}, 12")
    a(f"s_add_u32 m0, s{sTMP+1}, {lds}")
    a("s_nop 0")
    for i in range(4):
        a(f"buffer_load_dwordx4 v14, s[{d}:{d+3}], s{sTMP+1} offen offset:{i*1024} lds")
def wreads(a, dst, off):
    for kk in range(8):
        for u in range(2):
            a(f"ds_read_b64_tr_b16 {vr(dst+4*kk+2*u,2)}, v{vW} offset:{off+kk*4096+u*1024}")
def pf_one(a):
    a(f"buffer_load_dword v17, v16, s[32:35], s{sPO} offen")
    a(f"s_bitcmp1_b32 s{sPO}, 18")
    a(f"s_mov_b32 s{sPO+2}, {262144:#x}")
    a(f"s_cselect_b32 s{sPO+2}, {2097152-262144:#x}, s{sPO+2}")
    a(f"s_add_u32 s{sPO}, s{sPO}, s{sPO+2}")
    a(f"s_add_u32 s{sPO+2}, s{sPH}, {524288:#x}")
    a(f"s_cmp_ge_u32 s{sPO}, {N*512:#x}")
    a(f"s_cselect_b32 s{sPH}, s{sPO+2}, s{sPH}")
    a(f"s_cselect_b32 s{sPO}, s{sPO+2}, s{sPO}")
    a(f"s_cmp_ge_u32 s{sPH}, {2097152:#x}")
    a(f"s_cselect_b32 s{sPO}, {0x1000000:#x}, s{sPO}")
    a(f"s_min_u32 s{sPH}, s{sPH}, {2097152:#x}")
def pf_first(a):
    for i in range(PF):
        pf_one(a)

def totals(a, t, tmp):
    a(f"v_add_u32 v{tmp}, v{t}, v{t+1}")
    a(f"v_add_u32_sdwa v{tmp}, v{tmp}, v{tmp} dst_sel:DWORD dst_unused:UNUSED_PAD src0_sel:WORD_0 src1_sel:WORD_1")
    a(f"v_add_u32 v{tmp}, 31, v{tmp}")
    a(f"v_lshrrev_b32 v{tmp}, 4, v{tmp}")
    a(f"v_and_b32 v{tmp}, -2, v{tmp}")
    a("s_nop 0")
    for k in range(4):
        a(f"v_readlane_b32 s{sC+k}, v{tmp}, {k}")
    a(f"s_sub_i32 s{sC+4}, s{sC}, 1")
    a(f"s_sub_i32 s{sC+5}, s{sC+2}, 1")
    a(f"s_max_i32 s{sC+4}, s{sC+4}, s{sC+1}")
    a(f"s_max_i32 s{sC+5}, s{sC+5}, s{sC+3}")
    a(f"s_add_u32 s{sC+6}, s{sC+4}, s{sC+5}")
    a(f"s_cmp_gt_u32 s{sC+6}, {NT}")

LOFF, LCHV, LKEY, LRO, LLEN, LC, LADJ, LTOT, LCB, LONE, LQ4, LTMP = 132, 134, 135, 136, 137, 138, 140, 142, 144, 145, 146, 148
L_RES = L_EA + 49152

def uload(a, tag, tmp):
    a(f"s_cmp_lg_u32 s{sMODE}, 0")
    a(f"s_cbranch_scc1 K2_UOK{tag}")
    a(f"K2_UW{tag}:")
    a(f"ds_read_b32 v{tmp}, v{vT0} offset:{L_UD}")
    a("s_waitcnt lgkmcnt(0)")
    a(f"v_readfirstlane_b32 s{sULD}, v{tmp}")
    a(f"s_cmp_lt_u32 s{sULD}, 4")
    a(f"s_cbranch_scc1 K2_UW{tag}")
    a(f"K2_UOK{tag}:")
    a(f"v_and_b32 v{tmp}, 63, v0")
    a(f"v_lshl_add_u32 v{tmp}, v{tmp}, 4, s{sUO}")
    for q in range(2):
        a(f"buffer_load_dwordx4 {vr(UP+4*q,4)}, v{tmp}, s[{sUD}:{sUD+3}], 0 offen offset:{q*1024} sc1")

def gen_k2(a, name):
    stubs = A()
    WCR = UP
    a(f"{name}:")
    a("s_cmp_ge_u32 s2, 256")
    a("s_cbranch_scc1 K2_END")
    a("s_load_dwordx2 s[28:29], s[0:1], 88")
    a("s_load_dwordx2 s[20:21], s[0:1], 0")
    a("s_load_dwordx2 s[40:41], s[0:1], 48")
    a("s_load_dwordx2 s[32:33], s[0:1], 88")
    a("s_load_dwordx2 s[24:25], s[0:1], 8")
    a("v_lshrrev_b32 v1, 6, v0")
    a(f"v_mov_b64 {vr(SA,2)}, 0")
    a(f"v_readfirstlane_b32 s{sW}, v1")
    a(f"v_mov_b64 {vr(SA+2,2)}, 0")
    a(f"s_lshr_b32 s{sU}, s2, 3")
    a("s_and_b32 s2, s2, 7")
    a("s_lshl_b32 s2, s2, 5")
    a(f"s_or_b32 s2, s2, s{sU}")
    for d, nb in ((28, WS_OFF + NS * 8192), (20, N * 256), (40, 4096), (32, N * 512), (24, E * 32)):
        a(f"s_mov_b32 s{d+2}, {nb:#x}")
        a(f"s_mov_b32 s{d+3}, 0x20000")
    a(f"s_mov_b32 s{sMODE}, 0")
    a(f"s_mov_b32 s{sROUND}, 0")
    a(f"s_and_b32 s{sCG}, s{sW}, 3")
    a(f"v_mov_b32 v{vT0}, 0")
    if STAMP:
        a("v_mov_b32 v167, 0")
        a("s_memrealtime s[6:7]")
        a("s_waitcnt lgkmcnt(0)")
        a("v_writelane_b32 v167, s6, 61")
    stamp(a, "start")
    if CODEPF:
        a(f"s_cmp_lg_u32 s{sW}, 0")
        a("s_cbranch_scc1 K2_NOCPF")
        a(f"s_getpc_b64 s[{sTMP}:{sTMP+1}]")
        a("K2_PC:")
        a(f"s_lshl_b32 s{sTMP+2}, s{sU}, 7")
        a(f"v_lshl_add_u32 v2, v0, 12, s{sTMP+2}")
        a("v_min_u32 v2, K2_CODE_END-K2_PC-4, v2")
        a("s_mov_b64 exec, 15")
        a(f"global_load_dword v163, v2, s[{sTMP}:{sTMP+1}]")
        a("s_mov_b64 exec, -1")
        a("K2_NOCPF:")
    a(f"s_cmp_ge_u32 s{sW}, 8")
    a("s_cbranch_scc1 K2_HELP")
    a(f"v_lshrrev_b32 v{LCHV}, 2, v0")
    a(f"v_and_b32 v{LKEY}, 3, v0")
    a(f"v_lshlrev_b32 v{LKEY}, 3, v{LKEY}")
    a(f"v_lshl_add_u32 v{LTMP}, v{LCHV}, 13, v{LKEY}")
    a(f"s_lshl_b32 s{sTMP}, s2, 5")
    a(f"s_add_u32 s{sTMP}, s{sTMP}, {WS_OFF:#x}")
    a(f"v_and_b32 v{LO}, 31, v0")
    a(f"v_bfe_u32 v{vT1}, v0, 5, 1")
    a(f"s_lshl_b32 s{sTMP+6}, s{sCG}, 6")
    a(f"v_lshl_add_u32 v{LTMP+1}, v{LO}, 1, s{sTMP+6}")
    a(f"v_lshl_add_u32 v{LTMP+1}, v{vT1}, 11, v{LTMP+1}")
    a("s_waitcnt lgkmcnt(0)")
    a(f"buffer_load_dwordx2 {vr(LOFF,2)}, v{LTMP}, s[28:31], s{sTMP} offen")
    a("K2_ROUND:")
    a(f"v_lshlrev_b32 v{LTMP+2}, 4, v0")
    a(f"s_cmp_lg_u32 s{sW}, 0")
    a("s_cbranch_scc1 K2_Z1")
    a(f"ds_write_b128 v{LTMP+2}, {vr(SA,4)}")
    a("K2_Z1:")
    for k in range(3):
        a(f"ds_write_b128 v{LTMP+2}, {vr(SA,4)} offset:{1024+k*8192}")
    a(f"v_bfe_u32 v{vT1}, v0, 5, 1")
    a(f"v_lshlrev_b32 v{vIDX}, 4, v{vT1}")
    a(f"v_and_b32 v{vOT}, 31, v0")
    a(f"v_lshl_add_u32 v{vOT}, v{vOT}, 5, v{vIDX}")
    a(f"v_bfe_u32 v{vSa}, v0, 2, 2")
    a(f"v_lshl_add_u32 v{vSa}, v{vT1}, 2, v{vSa}")
    a(f"v_lshlrev_b32 v{vSa}, 5, v{vSa}")
    a(f"v_and_b32 v{vS0}, 1, v0")
    a(f"v_lshl_add_u32 v{vSa}, v{vS0}, 4, v{vSa}")
    a(f"v_bfe_u32 v{vS0}, v0, 1, 1")
    a(f"v_lshl_add_u32 v{vSa}, v{vS0}, 3, v{vSa}")
    a(f"v_and_b32 v{LQ4}, 3, v0")
    a(f"v_lshlrev_b32 v{LQ4}, 3, v{LQ4}")
    a(f"v_mov_b32 v{LONE}, {48 if PHMASK else 0}")
    a(f"s_mov_b32 s{sT}, 0")
    a(f"s_mov_b32 s{sRDY}, 0")
    a(f"s_cmp_lg_u32 s{sMODE}, 0")
    a("s_cbranch_scc1 K2_SLOWSRC")
    for j in range(8):
        a(f"buffer_load_ushort v{WCR+j}, v{LTMP+1}, s[40:43], 0 offen offset:{j*256}")
    a("s_load_dwordx2 s[36:37], s[0:1], 72")
    a(f"s_add_u32 s{sUD}, s32, {WS_U:#x}")
    a(f"s_addc_u32 s{sUD+1}, s33, 0")
    a(f"s_mov_b32 s{sUD+2}, {256*16384:#x}")
    a(f"s_mov_b32 s{sUD+3}, 0x20000")
    a(f"s_lshl_b32 s{sUO}, s2, 14")
    a(f"s_lshl_b32 s{sTMP+1}, s{sCG}, 12")
    a(f"s_add_u32 s{sUO}, s{sUO}, s{sTMP+1}")
    a(f"s_and_b32 s{sTMP+1}, s{sW}, 4")
    a(f"s_lshl_b32 s{sTMP+1}, s{sTMP+1}, 9")
    a(f"s_add_u32 s{sUO}, s{sUO}, s{sTMP+1}")
    a(f"s_mov_b32 s{sULD}, {18 if UDELAY else 12}")
    a(f"s_mov_b32 s38, {N*256:#x}")
    a("s_mov_b32 s39, 0x20000")
    a(f"s_mov_b32 s{sFIRST}, 1")
    a(f"s_bfe_u32 s{sBETA}, s{sW}, 0x10002")
    a(f"s_mov_b32 s{sM0}, 0x0000ffff")
    a(f"s_mov_b32 s{sM0+1}, 0x0000ffff")
    a(f"s_mov_b32 s{sM1}, 0xffff0000")
    a(f"s_mov_b32 s{sM1+1}, 0xffff0000")
    a(f"s_lshl_b32 s{sTMP+2}, s{sCG}, 7")
    a(f"v_lshl_add_u32 v{LO}, v{LO}, 2, s{sTMP+2}")
    a(f"v_mov_b32 v{LO+1}, v{LO}")
    a(f"v_mul_u32_u24 v{LRO}, {CH*4}, v{LCHV}")
    a(f"v_lshlrev_b32 v{LCHV}, 3, v{LRO}")
    a(f"v_add_u32 v{LRO}, {WS_REC:#x}, v{LRO}")
    stamp(a, "zero")
    a("s_waitcnt vmcnt(8)")
    stamp(a, "off")
    a(f"v_lshl_add_u32 v{LRO}, v{LOFF}, 2, v{LRO}")
    for q in range(3):
        a(f"buffer_load_dwordx4 {vr(RECQ[q],4)}, v{LRO}, s[28:31], 0 offen offset:{16*q}")
    a("K2_ALLOC:")
    a(f"s_mov_b32 s{sTMP}, 0x0c010c00")
    a(f"s_mov_b32 s{sTMP+1}, 0x0c030c02")
    a(f"v_perm_b32 v{LC}, v{LOFF+1}, v{LOFF+1}, s{sTMP}")
    a(f"v_perm_b32 v{LC+1}, v{LOFF+1}, v{LOFF+1}, s{sTMP+1}")
    a("s_waitcnt lgkmcnt(0)")
    a("s_barrier")
    stamp(a, "bar1")
    a(f"ds_add_rtn_u64 {vr(LADJ,2)}, v{LKEY}, {vr(LC,2)} offset:{L_CNT}")
    a(f"v_sad_u8 v{LLEN}, v{LOFF+1}, 0, 0")
    a(f"s_cmp_lg_u32 s{sMODE}, 0")
    a("s_cbranch_scc1 K2_NOWCL")
    for r in range(0, 32, 2):
        a(f"v_mov_b64 {vr(DEN+r,2)}, 0")
    a("K2_NOWCL:")
    for r in range(0, 16, 2):
        a(f"v_mov_b64 {vr(G[1]+r,2)}, 0")
    a(f"v_mov_b64 {vr(SA+4,2)}, 0")
    a(f"v_mov_b64 {vr(SA+6,2)}, 0")
    a("s_waitcnt lgkmcnt(0)")
    a("s_barrier")
    stamp(a, "barA")
    a(f"ds_read_b64 {vr(LTMP,2)}, v{LQ4} offset:{L_CNT}")
    a(f"ds_read_b64 {vr(LTOT,2)}, v{LKEY} offset:{L_CNT}")
    a(f"v_lshrrev_b32 v{LCB}, 4, v{LKEY}")
    a(f"v_bfe_u32 v{LKEY}, v{LKEY}, 3, 1")
    a(f"s_mov_b32 s{sTMP+3}, 0x10001")
    a("s_waitcnt lgkmcnt(1)")
    totals(a, LTMP, LTMP)
    a("s_cbranch_scc1 K2_OVF")
    a("s_waitcnt lgkmcnt(0)")
    a(f"v_sub_u32 v{LTOT}, v{LTOT}, v{LC}")
    a(f"v_sub_u32 v{LTOT+1}, v{LTOT+1}, v{LC+1}")
    a(f"v_lshl_add_u32 v{LADJ}, v{LTOT}, 16, v{LADJ}")
    a(f"v_lshl_add_u32 v{LADJ+1}, v{LTOT+1}, 16, v{LADJ+1}")
    a(f"v_add_u32_sdwa v{LTOT}, v{LTOT}, v{LTOT} dst_sel:DWORD dst_unused:UNUSED_PAD src0_sel:WORD_0 src1_sel:WORD_1")
    a(f"v_mad_u32_u24 v{LCB}, v{LCB}, s{sC+4}, v{LKEY}")
    a(f"v_mad_u32_u24 v{LADJ+1}, v{LTOT}, s{sTMP+3}, v{LADJ+1}")
    a(f"v_lshlrev_b32 v{LCB}, 7, v{LCB}")
    a(f"v_lshlrev_b64 {vr(LADJ,2)}, 2, {vr(LADJ,2)}")
    a(f"s_cmp_eq_u32 s{sBETA}, 0")
    a(f"s_cselect_b32 s{sF0}, 0, s{sC+4}")
    a(f"s_cselect_b32 s{sL0}, s{sC}, s{sC+2}")
    a(f"s_cselect_b32 s{sL1}, s{sC+1}, s{sC+3}")
    a(f"s_cselect_b32 s{sTEND}, s{sC+4}, s{sC+5}")
    a(f"s_sub_u32 s{sG0}, s{sL0}, 1")
    a(f"s_sub_u32 s{sG1}, s{sL1}, 1")
    a(f"s_lshl_b32 s{sTMP}, s{sF0}, 7")
    a(f"s_add_u32 s{sTMP}, s{sTMP}, {L_IDX}")
    a(f"v_add_u32 v{vIDX}, s{sTMP}, v{vIDX}")
    a(f"s_lshl_b32 s{sTMP}, s{sF0}, 10")
    a(f"s_add_u32 s{sTMP+1}, s{sTMP}, {L_O}")
    a(f"v_add_u32 v{vOT}, s{sTMP+1}, v{vOT}")
    a(f"v_add_u32 v{vSa}, s{sTMP+1}, v{vSa}")
    a(f"v_add_u32 v{vEA}, {L_EA-L_O}, v{vOT}")
    a(f"v_cndmask_b32_e64 v{vS0}, 0, v{vSa}, s[{sM0}:{sM0+1}]")
    a(f"v_cndmask_b32_e64 v{vS1}, 0, v{vSa}, s[{sM1}:{sM1+1}]")
    stamp(a, "adj")
    a(f"s_mov_b32 s{sTMP}, 0x1ffff")
    a(f"s_mov_b32 s{sTMP+1}, 0xff80")
    a(f"s_mov_b32 s{sTMP+2}, 0x7ffe0")
    a("s_waitcnt vmcnt(0)")
    a("K2_PLACE:")
    stamp(a, "rec")
    for s in range(12):
        rec = RECQ[s >> 2] + (s & 3)
        b = LTMP + 6 * (s & 1)
        a(f"v_cmpx_lt_u32 vcc, {s}, v{LLEN}")
        a("s_cbranch_execz K2_PLACED")
        a(f"v_and_b32_sdwa v{b+2}, v{rec}, v{LONE} dst_sel:DWORD dst_unused:UNUSED_PAD src0_sel:BYTE_3 src1_sel:DWORD")
        a(f"v_lshrrev_b32 v{b+3}, 13, v{rec}")
        a(f"v_and_b32 v{b+4}, s{sTMP}, v{rec}")
        a(f"v_lshrrev_b64 {vr(b,2)}, v{b+2}, {vr(LADJ,2)}")
        a(f"v_and_b32 v{b+3}, s{sTMP+2}, v{b+3}")
        a(f"v_add_u16 v{b}, {4*s}, v{b}")
        a(f"v_add_u32 v{b+4}, v{b+4}, v{LCHV}")
        a(f"v_and_b32 v{b+1}, s{sTMP+1}, v{b}")
        a(f"v_add3_u32 v{b}, v{b}, v{b+1}, v{LCB}")
        a(f"ds_write2st64_b32 v{b}, v{b+3}, v{b+4} offset0:{L_IDX//256} offset1:{L_EOF//256}")
    a(f"v_cmpx_lt_u32 vcc, 12, v{LLEN}")
    a("s_cbranch_execz K2_PLACED")
    a(f"v_subrev_u32 v{LLEN}, 12, v{LLEN}")
    a(f"v_add_u32 v{LRO}, 48, v{LRO}")
    a(f"v_add_u32 v{LADJ}, 0x00300030, v{LADJ}")
    a(f"v_add_u32 v{LADJ+1}, 0x00300030, v{LADJ+1}")
    for q in range(3):
        a(f"buffer_load_dwordx4 {vr(RECQ[q],4)}, v{LRO}, s[28:31], 0 offen offset:{16*q}")
    a("s_waitcnt vmcnt(0)")
    a("s_branch K2_PLACE")
    a("K2_PLACED:")
    a("s_mov_b64 exec, -1")
    stamp(a, "placed")
    a(f"v_and_b32 v{vT1}, 63, v0")
    a(f"s_lshl_b32 s{sTMP}, s{sCG}, 12")
    a(f"s_lshl_b32 s{sTMP+1}, s{sBETA}, 11")
    a(f"s_add_u32 s{sTMP}, s{sTMP}, s{sTMP+1}")
    a(f"s_add_u32 s{sTMP}, s{sTMP}, {L_RES}")
    a(f"v_lshl_add_u32 v{vT1}, v{vT1}, 4, s{sTMP}")
    a(f"s_cmp_eq_u32 s{sFIRST}, 0")
    a("s_cbranch_scc1 K2_NOWC")
    a(f"s_mov_b32 s{sTMP}, {LOG2E:#x}")
    a(f"s_mov_b32 s{sTMP+1}, {LOG2E:#x}")
    a("s_waitcnt vmcnt(0)")
    for j in range(8):
        a(f"v_lshlrev_b32 v{WCR+j}, 16, v{WCR+j}")
    for j in range(0, 8, 2):
        a(f"v_pk_mul_f32 {vr(WCR+j,2)}, {vr(WCR+j,2)}, s[{sTMP}:{sTMP+1}]")
    for j in range(4):
        a(f"v_cvt_pk_bf16_f32 v{WC+j}, v{WCR+2*j}, v{WCR+2*j+1}")
    a("K2_NOWC:")
    a("s_waitcnt lgkmcnt(0)")
    a("s_barrier")
    stamp(a, "bar2")
    idx_reads(a, 0)
    a("s_waitcnt lgkmcnt(0)")
    gathers(a, RAW[0])
    idx_reads(a, 1)
    a(f"s_cmp_eq_u32 s{sFIRST}, 0")
    a("s_cbranch_scc1 K2_NORES")
    for q in range(2):
        a(f"ds_read_b128 {vr(AP+4*q,4)}, v{vT1} offset:{q*1024}")
    a(f"s_mov_b32 s{sFIRST}, 0")
    a("K2_NORES:")
    a("s_waitcnt lgkmcnt(0)")
    a("s_mov_b64 exec, 1")
    a(f"ds_inc_u32 v{vT0}, v{vEA} offset:{L_WUD}")
    a("s_mov_b64 exec, -1")
    gathers(a, RAW[1])
    stamp(a, "g01")
    a(f"s_cmp_lt_i32 s{sTEND}, 1")
    a("s_cbranch_scc1 K2_RDONE")
    poll(a, stubs, "P")
    stamp(a, "polled")
    a(f"ds_read_b128 {vr(IX,4)}, v{vEA}")
    a(f"ds_read_b128 {vr(IX+4,4)}, v{vOT}")
    a("s_waitcnt vmcnt(16) lgkmcnt(0)")
    a(f"{MF} {vr(G[0],16)}, {vr(IX,4)}, {vr(WC,4)}, {vr(RAW[0],16)}")
    a(f"{MF} {vr(G[0],16)}, {vr(IX+4,4)}, {vr(AP,4)}, {vr(G[0],16)}")
    a("s_nop 3")
    idx_reads(a, 2)
    stamp(a, "loop0")
    a(".p2align 6")
    a("K2_LOOP:")
    for ph in range(6):
        R0, R1, R2 = RAW[ph % 3], RAW[(ph + 1) % 3], RAW[(ph + 2) % 3]
        Gc, Gn = G[ph % 2], G[(ph + 1) % 2]
        APn = AP + 4 * ((ph + 1) % 2)
        vS = (vS0, vS1)[ph % 2]
        sL = (sL0, sL1)[ph % 2]
        ms = ms_list(Gn)
        a(f"s_cmp_ge_u32 s{sT}, s{sL}")
        a(f"s_cbranch_scc1 K2_SKIP_{ph}")
        a(f"s_add_u32 s{sT}, s{sT}, 1")
        prio(a, 0)
        if ITS:
            a("s_memtime s[4:5]" if ITS == 1 else "s_memrealtime s[4:5]")
            a(f"s_add_u32 m0, s{sT}, 19")
        a("s_waitcnt lgkmcnt(0)")
        if ITS:
            a("v_writelane_b32 v167, s4, m0")
        if PACE and ph % 2 == 1:
            a(f"v_readfirstlane_b32 s{sRDY}, v{vT1}")
        a(f"s_cmp_ge_u32 s{sT}, s{(sG0, sG1)[ph % 2]}")
        a(f"s_cbranch_scc1 K2_NOG_{ph}")
        gathers(a, R2)
        a(f"K2_NOGD_{ph}:")
        stubs(f"K2_NOG_{ph}:")
        stubs("s_waitcnt vmcnt(0)")
        stubs(f"s_branch K2_NOGD_{ph}")
        if ph % 2 == 1:
            publish(a)
        poll(a, stubs, ph)
        a(f"ds_read_b128 {vr(IX,4)}, v{vEA} offset:{(ph+1)*1024}")
        a(f"ds_read_b128 {vr(IX+4,4)}, v{vOT} offset:{(ph+1)*1024}")
        for i in range(16):
            if i % 4 == 0 and "noms" not in DBG:
                a(ms[i // 4])
            a(f"v_exp_f32_e64 v{Gc+i}, -v{Gc+i}")
        prio(a, 1)
        if SHL64:
            for i in range(0, 16, 2):
                a(f"v_lshlrev_b64 {vr(R0+i,2)}, 16, {vr(R0+i,2)}")
        else:
            for i in range(16):
                a(f"v_lshlrev_b32 v{R0+i}, 16, v{R0+i}")
        for i in range(0, 16, 2):
            a(f"v_pk_add_f32 {vr(Gc+i,2)}, {vr(Gc+i,2)}, 1.0 op_sel_hi:[1,0]")
        prio(a, 2)
        for i in range(16):
            if i == 4:
                a("s_waitcnt vmcnt(16) lgkmcnt(0)")
                a(f"{MF} {vr(Gn,16)}, {vr(IX,4)}, {vr(WC,4)}, {vr(R1,16)}")
            if i == 8:
                if "nomg2" not in DBG:
                    a(f"{MF} {vr(Gn,16)}, {vr(IX+4,4)}, {vr(APn,4)}, {vr(Gn,16)}")
            a(f"v_rcp_f32 v{Gc+i}, v{Gc+i}")
            if i == 9:
                for u in range(4):
                    a(f"ds_read_b64_tr_b16 {vr(SA+2*u,2)}, v{vS} offset:{ph*1024+u*256}")
                idx_reads(a, ph + 3)
                if PACE and ph % 2 == 0:
                    a(f"ds_read_b32 v{vT1}, v{vT0} offset:{L_RDY}")
        prio(a, 3)
        for i in range(0, 16, 2):
            a(f"v_pk_mul_f32 {vr(R0+i,2)}, {vr(R0+i,2)}, {vr(Gc+i,2)}")
        for i in range(8):
            a(f"v_cvt_pk_bf16_f32 v{Gc+i}, v{Gc+2*i}, v{Gc+2*i+1}")
        for i in range(8):
            a(f"v_cvt_pk_bf16_f32 v{Gc+8+i}, v{R0+2*i}, v{R0+2*i+1}")
        a(f"s_cmp_ge_u32 s{sT}, s{sTEND}")
        a(f"s_cbranch_scc1 K2_DRAIN_{ph%2}")
        a(f"K2_NEXT_{ph}:")
        stubs(f"K2_SKIP_{ph}:")
        stubs(f"s_add_u32 s{sT}, s{sT}, 1")
        stubs("s_waitcnt lgkmcnt(0)")
        st2 = A()
        if ph % 2 == 1:
            publish(stubs)
        poll(stubs, st2, f"S{ph}")
        stubs(f"ds_read_b128 {vr(IX,4)}, v{vEA} offset:{(ph+1)*1024}")
        stubs(f"ds_read_b128 {vr(IX+4,4)}, v{vOT} offset:{(ph+1)*1024}")
        for m in ms:
            stubs(m)
        for r in range(0, 16, 2):
            stubs(f"v_mov_b64 {vr(Gc+r,2)}, 0")
        for j in range(0, 8, 2):
            stubs(f"v_mov_b64 {vr(SA+j,2)}, 0")
        stubs("s_waitcnt vmcnt(0) lgkmcnt(0)")
        stubs(f"{MF} {vr(Gn,16)}, {vr(IX,4)}, {vr(WC,4)}, {vr(R1,16)}")
        stubs(f"{MF} {vr(Gn,16)}, {vr(IX+4,4)}, {vr(APn,4)}, {vr(Gn,16)}")
        stubs("s_nop 3")
        idx_reads(stubs, ph + 3)
        stubs(f"s_branch K2_NEXT_{ph}")
        stubs.l += st2.l
    a(f"v_add_u32 v{vIDX}, {6*128}, v{vIDX}")
    a(f"v_add_u32 v{vEA}, {6*1024}, v{vEA}")
    a(f"v_add_u32 v{vOT}, {6*1024}, v{vOT}")
    a(f"v_add_u32 v{vSa}, {6*1024}, v{vSa}")
    a(f"v_cndmask_b32_e64 v{vS0}, 0, v{vSa}, s[{sM0}:{sM0+1}]")
    a(f"v_cndmask_b32_e64 v{vS1}, 0, v{vSa}, s[{sM1}:{sM1+1}]")
    a(f"s_cmp_lg_u32 s{sT}, s{sULD}")
    a("s_cbranch_scc1 K2_LOOP")
    uload(a, "L", UP + 7)
    a(f"s_mov_b32 s{sULD}, 0")
    a("s_branch K2_LOOP")
    for p in range(2):
        a(f"K2_DRAIN_{p}:")
        a("s_waitcnt lgkmcnt(0)")
        for m in ms_list(G[p]):
            a(m)
        if p == 0:
            a("s_branch K2_RDONE")
    a("K2_RDONE:")
    if PACE:
        a(f"v_mov_b32 v{vT1}, 16")
        a(f"ds_add_u32 v{vT0}, v{vT1} offset:{L_PROG}")
    a(f"s_cmp_lg_u32 s{sMODE}, 0")
    a("s_cbranch_scc1 K2_SLOWNEXT")
    a("K2_EPI:")
    stamp(a, "loopend")
    a(f"s_cmp_eq_u32 s{sULD}, 0")
    a("s_cbranch_scc1 K2_HAVEU")
    uload(a, "E", UP + 7)
    a("K2_HAVEU:")
    XD = IX
    for r in range(0, 16, 2):
        a(f"v_mov_b64 {vr(XD+r,2)}, 0")
    a("v_bfe_u32 v2, v0, 5, 1")
    a("v_bfe_u32 v3, v0, 3, 2")
    a(f"s_lshl_b32 s{sTMP+3}, s{sCG}, 2")
    a(f"v_lshl_or_b32 v3, v2, 2, v3")
    a(f"v_xor_b32 v3, s{sTMP+3}, v3")
    a("v_and_b32 v4, 7, v0")
    a("v_lshlrev_b32 v4, 1, v4")
    a("v_lshl_or_b32 v3, v3, 4, v4")
    a(f"s_lshl_b32 s{sTMP}, s{sBETA}, 13")
    a(f"s_add_u32 s{sTMP}, s{sTMP}, {L_X}")
    a(f"v_lshl_add_u32 v2, v2, 10, s{sTMP}")
    a(f"v_add_u32 v{SA}, v2, v3")
    for r in range(1, 8):
        k = 8 * (r >> 2) + (r & 3)
        a(f"v_xor_b32 v{SA+r}, {k*16}, v{SA}")
    for r in range(16):
        k = 8 * (r >> 2) + (r & 3)
        a(f"ds_read_u16_d16_hi v{XD+r}, v{SA+(r&7)} offset:{k*256}")
    a(f"s_mov_b32 s{sTMP+4}, 0x358637bd")
    a(f"s_mov_b32 s{sTMP+5}, 0x358637bd")
    for r in range(0, 16, 2):
        a(f"v_pk_add_f32 {vr(DEN+r,2)}, {vr(DEN+r,2)}, s[{sTMP+4}:{sTMP+5}]")
    for r in range(16):
        a(f"v_rcp_f32 v{DEN+r}, v{DEN+r}")
    a("v_bfe_u32 v2, v0, 2, 4")
    a("v_and_b32 v3, 3, v0")
    a(f"v_or_b32 v4, s{sTMP+3}, v3")
    a("v_xor_b32 v4, v4, v2")
    a("v_lshlrev_b32 v4, 4, v4")
    a("v_lshl_add_u32 v4, v2, 8, v4")
    a(f"v_add_u32 v4, s{sTMP}, v4")
    a("v_bfe_u32 v5, v0, 2, 2")
    a("v_bfe_u32 v6, v0, 4, 1")
    a("v_lshl_or_b32 v5, v6, 3, v5")
    a("v_bfe_u32 v6, v0, 5, 1")
    a("v_lshl_or_b32 v5, v6, 2, v5")
    a("v_lshlrev_b32 v3, 4, v3")
    a("v_lshl_or_b32 v5, v5, 18, v3")
    a(f"s_lshl_b32 s{sTMP}, s{sBETA}, 17")
    a(f"s_lshl_b32 s{sTMP+1}, s2, 8")
    a(f"s_add_u32 s{sTMP}, s{sTMP}, s{sTMP+1}")
    a(f"s_lshl_b32 s{sTMP+1}, s{sCG}, 6")
    a(f"s_add_u32 s{sTMP}, s{sTMP}, s{sTMP+1}")
    a(f"s_add_u32 s{sTMP+1}, s{sTMP}, 0x10000")
    UD = G[0]
    a("s_waitcnt vmcnt(0)")
    for r in range(16):
        if r & 1:
            a(f"v_and_b32 v{UD+r}, 0xffff0000, v{UP+r//2}")
        else:
            a(f"v_lshlrev_b32 v{UD+r}, 16, v{UP+r//2}")
    for r in range(0, 16, 2):
        a(f"v_pk_fma_f32 {vr(UD+r,2)}, {vr(NUM+r,2)}, {vr(DEN+r,2)}, {vr(UD+r,2)}")
    for r in range(16):
        a(f"v_max_f32 v{UD+r}, 0, v{UD+r}")
    a("s_waitcnt lgkmcnt(0)")
    for r in range(0, 16, 2):
        a(f"v_pk_add_f32 {vr(UD+r,2)}, {vr(UD+r,2)}, {vr(XD+r,2)}")
    for j in range(8):
        a(f"v_cvt_pk_bf16_f32 v{XD+j}, v{UD+2*j}, v{UD+2*j+1}")
    for r in range(16):
        k = 8 * (r >> 2) + (r & 3)
        op = "ds_write_b16_d16_hi" if r & 1 else "ds_write_b16"
        a(f"{op} v{SA+(r&7)}, v{XD+r//2} offset:{k*256}")
    a(f"ds_read_b128 {vr(UD,4)}, v4")
    a(f"ds_read_b128 {vr(UD+4,4)}, v4 offset:4096")
    a("s_waitcnt lgkmcnt(1)")
    a(f"buffer_store_dwordx4 {vr(UD,4)}, v5, s[36:39], s{sTMP} offen {OPOL}")
    a("s_waitcnt lgkmcnt(0)")
    a(f"buffer_store_dwordx4 {vr(UD+4,4)}, v5, s[36:39], s{sTMP+1} offen {OPOL}")
    if STAMP:
        a("s_waitcnt vmcnt(0)")
        a(f"s_add_u32 s6, s{sL0}, s{sL1}")
        a("s_lshr_b32 s6, s6, 1")
    stamp(a, "end")
    stamp_out(a, "s6")
    a("K2_END:")
    a("s_endpgm")
    a.l += stubs.l
    a("K2_SLOWNEXT:")
    a(f"s_cmp_eq_u32 s{sROUND}, 999")
    a("s_cbranch_scc1 K2_EPI")
    a(f"s_add_u32 s{sROUND}, s{sROUND}, 1")
    a("s_branch K2_AGAIN")
    a("K2_OVF:")
    a(f"s_mov_b32 s{sMODE}, 1")
    a(f"s_mov_b32 s{sULD}, -1")
    a("K2_AGAIN:")
    a("s_waitcnt vmcnt(0) lgkmcnt(0)")
    a(f"v_mov_b64 {vr(SA,2)}, 0")
    a(f"v_mov_b64 {vr(SA+2,2)}, 0")
    a("s_barrier")
    a("s_branch K2_ROUND")
    a("K2_SLOWSRC:")
    a("s_load_dwordx2 s[48:49], s[0:1], 16")
    a("s_load_dwordx2 s[52:53], s[0:1], 24")
    for d in (48, 52):
        a(f"s_mov_b32 s{d+2}, {E*4:#x}")
        a(f"s_mov_b32 s{d+3}, 0x20000")
    a(f"s_mul_i32 s{sTMP}, s{sROUND}, 1600")
    a(f"v_lshlrev_b32 v{LRO}, 2, v0")
    a("s_waitcnt lgkmcnt(0)")
    a(f"buffer_load_dword v{LKEY}, v{LRO}, s[52:55], s{sTMP} offen")
    a(f"buffer_load_dword v{LOFF}, v{LRO}, s[48:51], s{sTMP} offen")
    a(f"s_and_b32 s{sTMP+1}, s{sROUND}, 7")
    a(f"s_mul_i32 s{sTMP+1}, s{sTMP+1}, 400")
    a(f"s_lshr_b32 s{sTMP+2}, s{sROUND}, 3")
    a(f"s_mul_i32 s{sTMP+2}, s{sTMP+2}, {CH*32}")
    a(f"v_add_u32 v{LTMP}, s{sTMP+1}, v0")
    a(f"v_lshl_add_u32 v{LTMP}, v{LTMP}, 5, 1")
    a(f"v_mov_b32 v{LCHV}, s{sTMP+2}")
    a("s_waitcnt vmcnt(0)")
    a(f"v_lshl_or_b32 v{LTMP}, v{LOFF}, 18, v{LTMP}")
    a(f"v_lshrrev_b32 v{LTMP+1}, 10, v{LKEY}")
    a(f"v_add_u32 v{RECQ[0]}, v{LTMP+1}, v{LTMP}")
    a(f"v_and_b32 v{LTMP+1}, 255, v{LKEY}")
    a(f"v_cmp_eq_u32 vcc, s2, v{LTMP+1}")
    a(f"v_lshrrev_b32 v{LOFF}, 7, v{LOFF}")
    a(f"v_and_b32 v{LOFF}, {24 if PHMASK else 0}, v{LOFF}")
    a(f"v_cndmask_b32_e64 v{LOFF+1}, 0, 1, vcc")
    a("v_cmp_gt_u32 vcc, 400, v0")
    a(f"v_bfe_u32 v{LKEY}, v{LKEY}, 8, 2")
    a(f"v_lshlrev_b32 v{LOFF+1}, v{LOFF}, v{LOFF+1}")
    a(f"v_lshlrev_b32 v{LKEY}, 3, v{LKEY}")
    a(f"v_cndmask_b32 v{LOFF+1}, 0, v{LOFF+1}, vcc")
    a("s_branch K2_ALLOC")
    a("K2_HELP:")
    XR, WR, HA, XAD = 40, 72, 104, 32
    a("v_and_b32 v1, 63, v0")
    a("v_lshrrev_b32 v2, 4, v1")
    a("v_and_b32 v3, 15, v1")
    a("v_xor_b32 v4, v3, v2")
    a("v_lshlrev_b32 v4, 4, v4")
    a(f"v_lshl_add_u32 v{XR}, v2, 18, v4")
    for j in range(1, 4):
        a(f"v_xor_b32 v{XR+j}, {64*j}, v{XR}")
    a(f"s_lshl_b32 s{sTMP}, s2, 8")
    a(f"s_lshl_b32 s{sTMP+1}, s{sCG}, 16")
    a(f"s_add_u32 s{sTMP}, s{sTMP}, s{sTMP+1}")
    a(f"s_lshl_b32 s{sTMP+2}, s{sCG}, 12")
    a(f"s_add_u32 s{sTMP+5}, s{sTMP+2}, {L_RES}")
    a(f"s_add_u32 s{sTMP+2}, s{sTMP+2}, {L_X}")
    a(f"s_lshl_b32 s{sTMP+3}, s{sCG}, 13")
    a(f"s_add_u32 s{sTMP+3}, s{sTMP+3}, {WS_WOP:#x}")
    a(f"v_lshl_add_u32 v4, v1, 4, s{sTMP+3}")
    a("v_add_u32 v6, 4096, v4")
    a(f"s_mov_b32 s{sFIRST}, 1")
    a("s_waitcnt lgkmcnt(0)")
    for j in range(4):
        c16 = 8 * (j & 1) + 4 * (j >> 1)
        a(f"s_add_u32 m0, s{sTMP+2}, {j*1024}")
        a(f"s_add_u32 s{sTMP+1}, s{sTMP}, {c16*4*65536:#x}")
        a(f"buffer_load_dwordx4 v{XR+j}, s[20:23], s{sTMP+1} offen {X2POL} lds")
    def wld(lo, hi):
        for kk in range(lo, hi):
            a(f"buffer_load_dwordx4 {vr(WR+4*kk,4)}, v{(4,6)[kk>>2]}, s[28:31], 0 offen offset:{(kk&3)*1024}")
    a("v_lshrrev_b32 v5, 5, v1")
    a(f"v_xor_b32 v{XAD}, v3, v5")
    a(f"v_lshlrev_b32 v{XAD}, 4, v{XAD}")
    a("v_and_b32 v5, 31, v1")
    a(f"v_lshl_add_u32 v{XAD}, v5, 8, v{XAD}")
    a(f"v_add_u32 v{XAD}, {L_X}, v{XAD}")
    for kk in range(1, 8):
        a(f"v_xor_b32 v{XAD+kk}, {kk*32}, v{XAD}")
    a(f"v_lshl_add_u32 v5, v1, 4, s{sTMP+5}")
    a("v_mov_b32 v3, 1")
    if PF:
        a("v_lshlrev_b32 v2, 7, v1")
        a(f"s_lshl_b32 s{sTMP}, s{sU}, 13")
        a(f"v_add_u32 v2, s{sTMP}, v2")
        a(f"s_lshr_b32 s{sTMP}, s{sCG}, 1")
        a(f"s_lshl_b32 s{sTMP}, s{sTMP}, 21")
        a(f"s_and_b32 s{sTMP+1}, s{sCG}, 1")
        a(f"s_lshl_b32 s{sTMP+1}, s{sTMP+1}, 18")
        a(f"s_add_u32 s{sTMP}, s{sTMP}, s{sTMP+1}")
    if EPF:
        a(f"s_lshl_b32 s{sTMP+6}, s2, 2")
        a(f"s_add_u32 s{sTMP+6}, s{sTMP+6}, s{sCG}")
        a(f"s_mul_i32 s{sTMP+6}, s{sTMP+6}, {98*128}")
        a(f"v_lshl_add_u32 v161, v1, 7, s{sTMP+6}")
        a(f"v_add_u32 v162, {64*128}, v161")
    wld(0, HSPLIT)
    a("s_barrier")
    stamp(a, "bar1")
    a("s_barrier")
    stamp(a, "barA")
    wld(HSPLIT, 8)
    stamp(a, "hwa")
    if EPF:
        n0 = min(EPF, 64)
        a(f"s_mov_b32 exec_lo, {(1 << min(n0,32)) - 1:#x}")
        a(f"s_mov_b32 exec_hi, {(1 << max(n0-32,0)) - 1:#x}")
        a("buffer_load_dword v160, v161, s[24:27], 0 offen")
        if EPF > 64:
            n1 = EPF - 64
            a(f"s_mov_b32 exec_lo, {(1 << min(n1,32)) - 1:#x}")
            a(f"s_mov_b32 exec_hi, {(1 << max(n1-32,0)) - 1:#x}")
            a("buffer_load_dword v160, v162, s[24:27], 0 offen")
        a("s_mov_b64 exec, -1")
    for i in range(PF):
        a(f"buffer_load_dword v160, v2, s[32:35], s{sTMP} offen")
        a(f"s_add_u32 s{sTMP}, s{sTMP}, {2*2097152:#x}")
    def xrd(kk):
        for b in range(2):
            a(f"ds_read_b128 {vr(XR+8*(kk&3)+4*b,4)}, v{XAD+kk} offset:{b*8192}")
    def gemm():
        for kk in range(4):
            xrd(kk)
        for kk in range(8):
            a(f"s_waitcnt lgkmcnt({2*min(3, 7-kk)})")
            for b in range(2):
                c = "0" if kk == 0 else vr(HA + 16*b, 16)
                a(f"{MF} {vr(HA+16*b,16)}, {vr(XR+8*(kk&3)+4*b,4)}, {vr(WR+4*kk,4)}, {c}")
            if kk + 4 < 8:
                xrd(kk + 4)
    a(f"s_mov_b32 s{sTMP}, {LOG2E:#x}")
    a(f"s_mov_b32 s{sTMP+1}, {LOG2E:#x}")
    a("s_mov_b64 exec, 1")
    a(f"s_waitcnt vmcnt({PF + (EPF > 0) + (EPF > 64)})")
    a(f"ds_add_u32 v{vT0}, v3 offset:{L_XD}")
    a("s_mov_b64 exec, -1")
    a("K2_XW:")
    a(f"ds_read_b32 v2, v{vT0} offset:{L_XD}")
    a("s_waitcnt lgkmcnt(0)")
    a(f"v_readfirstlane_b32 s{sTMP+2}, v2")
    a(f"s_cmp_lt_u32 s{sTMP+2}, 4")
    a("s_cbranch_scc1 K2_XW")
    a(f"s_setprio {HPRIO}")
    stamp(a, "adj")
    gemm()
    a("s_nop 10")
    for q in range(4):
        for r in range(8*q, 8*q+8, 2):
            a(f"v_pk_mul_f32 {vr(HA+r,2)}, {vr(HA+r,2)}, s[{sTMP}:{sTMP+1}]")
        for j in range(4*q, 4*q+4):
            a(f"v_cvt_pk_bf16_f32 v{HA+j}, v{HA+2*j}, v{HA+2*j+1}")
        a(f"ds_write_b128 v5, {vr(HA+4*q,4)} offset:{q*1024}")
    a("v_add_u32 v158, 0x8000, v4")
    a("v_add_u32 v159, 0x8000, v6")
    stamp(a, "placed")
    a("s_branch K2_PROD")
    a("K2_PROUND:")
    a("s_barrier")
    a("s_barrier")
    a("K2_PROD:")
    a("v_and_b32 v1, 63, v0")
    a("v_and_b32 v2, 3, v1")
    a("v_lshlrev_b32 v2, 3, v2")
    a(f"ds_read_b64 v[8:9], v2 offset:{L_CNT}")
    a("v_lshrrev_b32 v2, 1, v1")
    a("v_lshlrev_b32 v2, 2, v2")
    a("v_and_b32 v3, 1, v1")
    a("v_lshlrev_b32 v3, 4, v3")
    a("v_mov_b32 v4, 0")
    a("v_mov_b32 v5, 1")
    a("v_and_b32 v10, 7, v1")
    a("v_bfe_u32 v11, v1, 3, 1")
    a("v_lshlrev_b32 v10, 1, v10")
    a("v_lshl_add_u32 v10, v11, 8, v10")
    a("v_lshl_add_u32 v10, v1, 4, v10")
    a("v_mov_b32 v11, 0x3f80")
    a("s_mov_b64 exec, 0x1fff")
    a(f"ds_write_b16 v10, v11 offset:{L_LUT+16}")
    a("s_mov_b64 exec, -1")
    a("s_waitcnt lgkmcnt(0)")
    totals(a, 8, 8)
    a("s_cbranch_scc1 K2_POVF")
    a(f"s_cmp_lg_u32 s{sW}, 8")
    a("s_cbranch_scc1 K2_EXP")
    a(f"s_max_u32 s{sTEND}, s{sC+4}, s{sC+5}")
    a(f"s_lshl_b32 s{sTMP+2}, s{sC+4}, 7")
    a(f"v_add_u32 v6, s{sTMP+2}, v2")
    a(f"s_mov_b32 s{sT}, 0")
    a(f"s_mov_b32 s{sTMP}, {L_EA}")
    a(f"s_mov_b32 s{sTMP+3}, {-4*(PK+LEADX)}")
    a(f"s_mov_b32 s{sTMP+4}, {L_RES}")
    a(f"s_mov_b32 s{sRDY}, 0")
    a(f"s_lshl_b32 s{sTMP+1}, s{sC+4}, 10")
    a(f"s_add_u32 s{sTMP+1}, s{sTMP+1}, {L_EA}")
    a(f"s_mov_b32 s{sTMP+6}, -32")
    a(f"s_mov_b32 s{sTMP+7}, 0")
    a(f"s_setprio {PPRIO}")
    a("s_barrier")
    stamp(a, "bar2")
    pst = A()
    a(f"ds_read_b32 v10, v2 offset:{L_EOF}")
    a(f"ds_read_b32 v11, v6 offset:{L_EOF}")
    a("K2_PSTEP:")
    a(f"s_cmp_ge_u32 s{sT}, s{sTEND}")
    a("s_cbranch_scc1 K2_PDRAIN")
    a(f"s_cmp_lt_i32 s{sRDY}, s{sTMP+3}")
    a("s_cbranch_scc1 K2_PW")
    a("K2_PWD:")
    a(f"s_cmp_ge_u32 s{sTMP+1}, s{sTMP+4}")
    a("s_cbranch_scc1 K2_PU")
    a("K2_PUD:")
    a(f"s_min_u32 m0, s{sTMP}, {L_EA + NT*1024}")
    a("s_waitcnt lgkmcnt(0)")
    for hb in range(2):
        if NOEA:
            a(f"v_mov_b32 v{12+hb}, v3")
        else:
            a(f"v_and_or_b32 v{12+hb}, v{10+hb}, s{sTMP+6}, v3")
    a("v_add_u32 v2, 128, v2")
    a("v_add_u32 v6, 128, v6")
    a(f"buffer_load_dwordx4 v12, s[24:27], 0 offen {EAPOL} lds")
    a(f"s_min_u32 m0, s{sTMP+1}, {L_EA + NT*1024}")
    a(f"ds_read_b32 v10, v2 offset:{L_EOF}")
    a(f"buffer_load_dwordx4 v13, s[24:27], 0 offen {EAPOL2} lds")
    a(f"ds_read_b32 v11, v6 offset:{L_EOF}")
    a(f"s_add_u32 s{sTMP}, s{sTMP}, 1024")
    a(f"s_add_u32 s{sTMP+1}, s{sTMP+1}, 1024")
    a(f"s_add_i32 s{sTMP+3}, s{sTMP+3}, 4")
    a(f"s_add_u32 s{sT}, s{sT}, 1")
    if STAMP and ITS:
        a("s_memtime s[4:5]")
        a(f"s_add_u32 m0, s{sT}, 19")
        a("s_waitcnt lgkmcnt(0)")
        a("v_writelane_b32 v167, s4, m0")
    a(f"s_cmp_le_u32 s{sT}, {PK}")
    a("s_cbranch_scc1 K2_PSTEP")
    a(f"s_cmp_eq_u32 s{sTMP+7}, 0")
    a("s_cbranch_scc1 K2_PO")
    a("K2_POD:")
    a("s_mov_b64 exec, 1")
    a(f"s_waitcnt vmcnt({2*PK})")
    a(f"ds_add_u32 v4, v5 offset:{L_RDY}")
    a("s_mov_b64 exec, -1")
    a("s_branch K2_PSTEP")
    a("K2_PW:")
    a(f"ds_read_b32 v8, v4 offset:{L_PROG}")
    a("s_waitcnt lgkmcnt(0)")
    a(f"v_readfirstlane_b32 s{sRDY}, v8")
    a(f"s_cmp_ge_i32 s{sRDY}, s{sTMP+3}")
    a("s_cbranch_scc1 K2_PWD")
    a("s_sleep 2")
    a("s_branch K2_PW")
    a("K2_PU:")
    a(f"ds_read_b32 v8, v4 offset:{L_WUD}")
    a("s_waitcnt lgkmcnt(0)")
    a(f"v_readfirstlane_b32 s{sTMP+5}, v8")
    a(f"s_cmp_lt_u32 s{sTMP+5}, 8")
    a("s_cbranch_scc1 K2_PU")
    a(f"s_mov_b32 s{sTMP+4}, -1")
    a("s_branch K2_PUD")
    a("K2_PO:")
    a(f"ds_read_b32 v8, v4 offset:{L_OD}")
    a("s_waitcnt lgkmcnt(0)")
    a(f"v_readfirstlane_b32 s{sTMP+7}, v8")
    a(f"s_cmp_ge_u32 s{sTMP+7}, 3")
    a("s_cbranch_scc1 K2_POD")
    a("s_sleep 1")
    a("s_branch K2_PO")
    a("K2_EXP:")
    EBN = 4
    a(f"s_sub_u32 s{sT}, s{sW}, 9")
    a(f"s_mul_i32 s{sTMP}, s{sT}, {EBN*128}")
    a(f"v_add_u32 v2, s{sTMP}, v2")
    a(f"s_mul_i32 s{sTMP}, s{sT}, {EBN*1024}")
    a(f"s_add_u32 s{sTMP}, s{sTMP}, {L_O}")
    a(f"v_lshl_add_u32 v6, v1, 4, s{sTMP}")
    a("v_lshlrev_b32 v3, 4, v3")
    a(f"s_mul_i32 s{sT}, s{sT}, {EBN}")
    a("s_barrier")
    a("K2_ELOOP:")
    a(f"s_cmp_ge_u32 s{sT}, s{sC+6}")
    a("s_cbranch_scc1 K2_EDONE")
    for i in range(EBN):
        a(f"ds_read_b32 v{10+i}, v2 offset:{L_EOF+128*i}")
    a(f"v_add_u32 v2, {3*EBN*128}, v2")
    a(f"s_add_u32 s{sT}, s{sT}, {3*EBN}")
    a("s_waitcnt lgkmcnt(0)")
    for i in range(EBN):
        a(f"v_and_b32 v{10+i}, 31, v{10+i}")
        a(f"v_lshl_add_u32 v{10+i}, v{10+i}, 4, v3")
        a(f"ds_read_b128 {vr(16+4*i,4)}, v{10+i} offset:{L_LUT}")
    for i in range(EBN):
        a(f"s_waitcnt lgkmcnt({EBN-1})")
        a(f"ds_write_b128 v6, {vr(16+4*i,4)} offset:{1024*i}")
    a(f"v_add_u32 v6, {3*EBN*1024}, v6")
    a("s_branch K2_ELOOP")
    a("K2_EDONE:")
    a("s_mov_b64 exec, 1")
    a("s_waitcnt lgkmcnt(0)")
    a(f"ds_add_u32 v4, v5 offset:{L_OD}")
    a("s_mov_b64 exec, -1")
    a("s_branch K2_PFIN")
    a("K2_PDRAIN:")
    a(f"ds_read_b32 v8, v4 offset:{L_OD}")
    a("s_waitcnt lgkmcnt(0)")
    a(f"v_readfirstlane_b32 s{sTMP+7}, v8")
    a(f"s_cmp_lt_u32 s{sTMP+7}, 3")
    a("s_cbranch_scc1 K2_PDRAIN")
    a("s_mov_b64 exec, 1")
    for k in range(PK - 1, 0, -1):
        a(f"s_cmp_le_u32 s{sT}, {k}")
        a(f"s_cbranch_scc1 K2_PD_{k}")
        a(f"s_waitcnt vmcnt({2*k})")
        a(f"ds_add_u32 v4, v5 offset:{L_RDY}")
        a(f"K2_PD_{k}:")
    a("v_mov_b32 v5, 0x7fffffff")
    a("s_waitcnt vmcnt(0)")
    a(f"ds_write_b32 v4, v5 offset:{L_RDY}")
    a("s_mov_b64 exec, -1")
    stamp(a, "loopend")
    stamp_out(a, "0")
    a("K2_PFIN:")
    a(f"s_cmp_eq_u32 s{sFIRST}, 0")
    a("s_cbranch_scc1 K2_NOU")
    a(f"s_mov_b32 s{sFIRST}, 0")
    a(f"s_cmp_eq_u32 s{sW}, 8")
    a("s_cbranch_scc1 K2_NOU")
    if UDELAY:
        a("s_setprio 0")
        a("K2_UD:")
        a("s_sleep 8")
        a(f"ds_read_b32 v8, v{vT0} offset:{L_PROG}")
        a("s_waitcnt lgkmcnt(0)")
        a(f"v_readfirstlane_b32 s{sTMP}, v8")
        a(f"s_cmp_lt_u32 s{sTMP}, {4*UDELAY}")
        a("s_cbranch_scc1 K2_UD")
        a(f"s_setprio {HPRIO}")
    a("K2_UG:")
    for kk in range(8):
        a(f"buffer_load_dwordx4 {vr(WR+4*kk,4)}, v{158+(kk>>2)}, s[28:31], 0 offen offset:{(kk&3)*1024}")
    a(f"s_add_u32 s{sUD}, s32, {WS_U:#x}")
    a(f"s_addc_u32 s{sUD+1}, s33, 0")
    a(f"s_mov_b32 s{sUD+2}, {256*16384:#x}")
    a(f"s_mov_b32 s{sUD+3}, 0x20000")
    a(f"s_lshl_b32 s{sTMP}, s2, 14")
    a(f"s_lshl_b32 s{sTMP+1}, s{sCG}, 12")
    a(f"s_add_u32 s{sTMP}, s{sTMP}, s{sTMP+1}")
    a(f"v_lshl_add_u32 v5, v1, 4, s{sTMP}")
    a("v_mov_b32 v3, 1")
    a("s_waitcnt vmcnt(0)")
    gemm()
    a("s_nop 10")
    for q in range(4):
        for j in range(4*q, 4*q+4):
            a(f"v_cvt_pk_bf16_f32 v{XR+j}, v{HA+2*j}, v{HA+2*j+1}")
        a(f"buffer_store_dwordx4 {vr(XR+4*q,4)}, v5, s[{sUD}:{sUD+3}], 0 offen offset:{q*1024} {UPOL}")
    a("s_mov_b64 exec, 1")
    a("s_waitcnt vmcnt(0)")
    a(f"ds_add_u32 v{vT0}, v3 offset:{L_UD}")
    a("s_mov_b64 exec, -1")
    a(f"s_cmp_lg_u32 s{sCG}, 1")
    a("s_cbranch_scc1 K2_NOU")
    a(f"s_mov_b32 s{sCG}, 0")
    a("v_subrev_u32 v158, 0x2000, v158")
    a("v_subrev_u32 v159, 0x2000, v159")
    a("s_branch K2_UG")
    a("K2_NOU:")
    a(f"s_cmp_eq_u32 s{sMODE}, 0")
    a("s_cbranch_scc1 K2_PEND")
    a(f"s_cmp_eq_u32 s{sROUND}, 999")
    a("s_cbranch_scc1 K2_PEND")
    a(f"s_add_u32 s{sROUND}, s{sROUND}, 1")
    a("K2_POVF:")
    a(f"s_mov_b32 s{sMODE}, 1")
    a("s_waitcnt vmcnt(0) lgkmcnt(0)")
    a("s_barrier")
    a("s_branch K2_PROUND")
    a("K2_PEND:")
    a("s_endpgm")
    a("K2_CODE_END:")

def kd(name, vgpr, sgpr):
    return f""".amdhsa_kernel {name}
  .amdhsa_next_free_vgpr {vgpr}
  .amdhsa_next_free_sgpr {sgpr}
  .amdhsa_accum_offset {(vgpr+3)//4*4}
  .amdhsa_group_segment_fixed_size 0
  .amdhsa_kernarg_size 96
  .amdhsa_user_sgpr_count 2
  .amdhsa_user_sgpr_kernarg_segment_ptr 1
  .amdhsa_system_sgpr_workgroup_id_x 1
.end_amdhsa_kernel
"""

def main(out):
    K2 = "standalone__edge_featured_mpnn_gatedgcn__graph_kernel"
    ref = open("standalone__edge_featured_mpnn_gatedgcn__graph.s.ref").read().split("\n")
    head = []
    for line in ref:
        if not line.startswith(";"):
            break
        if "@launch" in line or "Override launch" in line or "grid=ceil" in line:
            continue
        head.append(line)
    t = "\n".join(head) + "\n"
    t += f"; @launch kernel=k1_kernel grid=({NS+NGEMM+1},1,1) block=(512,1,1) lds={K1_LDS}\n"
    t += f"; @launch kernel={K2} grid=(256,1,1) block=(768,1,1) lds={L_TOTAL}\n"
    t += '.amdgcn_target "amdgcn-amd-amdhsa--gfx950"\n.text\n'
    a = A()
    gen_k1(a)
    t += ".globl k1_kernel\n.p2align 8\n.type k1_kernel,@function\n" + a.text()
    a = A()
    gen_k2(a, K2)
    t += f".globl {K2}\n.p2align 8\n.type {K2},@function\n" + a.text()
    t += '.section .rodata,"a"\n.p2align 6\n' + kd("k1_kernel", 104, 72) + ".p2align 6\n" + kd(K2, 168, 102)
    if STAMP:
        t = "; stamps " + ",".join(STAMP_NAMES) + "\n" + t
    if STAMP1:
        t = t + "; k1stamps " + ",".join(K1_NAMES) + "\n"
    open(out, "w").write(t)

if __name__ == "__main__":
    main(sys.argv[1] if len(sys.argv) > 1 else "standalone__edge_featured_mpnn_gatedgcn__graph.s")
```

```python
import sys
src=open(sys.argv[1]).read().split("\n")
out=[]
cnt=[0]
def probe(slots, sub, vt, st, tid=0):
    l=[]
    for wg,idx in slots.items():
        cnt[0]+=1; lab=f"DBG_{cnt[0]}"
        l+=[f"    s_cmp_lg_u32 s2, {wg}", f"    s_cbranch_scc1 {lab}",
            f"    s_load_dwordx2 s[{st}:{st+1}], s[0:1], 88", f"    s_memrealtime s[{st+4}:{st+5}]", f"    s_mov_b32 s{st+2}, 256", f"    s_mov_b32 s{st+3}, 0x20000", "    s_waitcnt lgkmcnt(0)"]
        l+= [f"    s_add_u32 s{st}, s{st}, 0xD00000", f"    s_addc_u32 s{st+1}, s{st+1}, 0"]
        l+= [f"    s_mov_b64 s[{st+6}:{st+7}], exec", f"    v_mov_b32 v{vt}, s{st+4}", f"    v_mov_b32 v{vt+1}, 0",
             f"    v_cmp_eq_u32 vcc, {tid}, v0", "    s_mov_b64 exec, vcc",
             f"    buffer_store_dword v{vt}, v{vt+1}, s[{st}:{st+3}], 0 offen offset:{idx*4}", f"    s_mov_b64 exec, s[{st+6}:{st+7}]", f"{lab}:"]
    return l
k=0;i=0
while i<len(src):
    l=src[i]
    if l.startswith("k1_kernel:"):
        k=1; out.append(l); out+=src[i+1:i+3]; out+=probe({0:0},0,102,72); i+=3; continue
    if l.startswith("standalone__") and l.endswith("_kernel:"):
        k=2; out.append(l); out+=src[i+1:i+3]; out+=probe({0:5,255:9},1,160,8); i+=3; continue
    if l.strip()=="s_endpgm" and k==1 and not src[i-1].startswith("K1_END"):
        out+=["    s_waitcnt vmcnt(0)"]+probe({200:3,250:4},0,102,72)
    if l.startswith("K1_END:"):
        out+=["    s_mov_b64 exec, -1","    s_waitcnt vmcnt(0)"]+probe({0:1,100:2},0,102,72)
    if l.startswith("K2_END:"):
        out+=["    s_waitcnt vmcnt(0)"]+probe({0:8,255:12,100:13,150:14,200:15},1,160,8,448)
    if l.startswith("K2_PLACED:"):
        out.append(l); out.append(src[i+1]); out+=["    s_waitcnt lgkmcnt(0)"]+probe({0:6,255:10},1,160,8); i+=2; continue
    if l.strip()==".p2align 6" and k==2 and src[i+1].startswith("K2_LOOP"):
        out+=["    s_waitcnt lgkmcnt(0)"]+probe({0:7,255:11},1,44,8)
    out.append(l); i+=1
t="\n".join(out).replace("next_free_sgpr 72","next_free_sgpr 88")
I,J,M=int(sys.argv[3]),int(sys.argv[4]),int(sys.argv[5])
z=f""".globl z_kernel
.p2align 8
.type z_kernel,@function
z_kernel:
    s_cmp_lg_u32 s2, 0
    s_cbranch_scc1 Z_END
    s_load_dwordx2 s[4:5], s[0:1], 88
    s_waitcnt lgkmcnt(0)
    s_add_u32 s4, s4, 0xD00000
    s_addc_u32 s5, s5, 0
    s_load_dword s6, s[4:5], {I*4}
    s_load_dword s7, s[4:5], {J*4}
    s_memrealtime s[8:9]
    s_waitcnt lgkmcnt(0)
    s_sub_u32 s6, s7, s6
    s_min_u32 s6, s6, 10000
    s_mul_i32 s6, s6, {M}
Z_L:
    s_memrealtime s[10:11]
    s_waitcnt lgkmcnt(0)
    s_sub_u32 s10, s10, s8
    s_cmp_lt_u32 s10, s6
    s_cbranch_scc1 Z_L
Z_END:
    s_endpgm
"""
kd=""".p2align 6
.amdhsa_kernel z_kernel
  .amdhsa_next_free_vgpr 8
  .amdhsa_next_free_sgpr 16
  .amdhsa_accum_offset 8
  .amdhsa_group_segment_fixed_size 0
  .amdhsa_kernarg_size 96
  .amdhsa_user_sgpr_count 2
  .amdhsa_user_sgpr_kernarg_segment_ptr 1
  .amdhsa_system_sgpr_workgroup_id_x 1
.end_amdhsa_kernel
"""
l2=[x for x in t.split("\n") if "@launch kernel=standalone" in x][0]
t=t.replace(l2,l2+"\n; @launch kernel=z_kernel grid=(1,1,1) block=(64,1,1) lds=0")
t=t.replace('.section .rodata,"a"',z+'.section .rodata,"a"')+kd
open(sys.argv[2],"w").write(t)
```

```python
import sys, os

N, E = 12500, 400000
NS, CH = 125, 3200
NG = 131
WS_TAB, WS_REC, WS_MB, WS_ARR, WS_OFF = 0, 0x620000, 0x7B0000, 0x7B8000, 0x7C0000
NLOG2E = 0xbfb8aa3b
env = lambda k, d: type(d)(os.environ.get(k, d))
STAMP = env("STAMP", 0); STAMPS = env("STAMPS", "all").split(","); ITS = env("ITS", 0)
PK = env("PK", 1); LEADX = env("LEADX", 4); PRIO = env("PRIO", "3210")
SHL64 = env("SHL64", 1); PF = env("PF", 1); NOEA = env("NOEA", 0)
SDPOL = env("SDPOL", "nt"); SIG = env("SIG", "byte"); SLP = env("SLP", 1); MSLP = env("MSLP", 1)
NCOL = env("NCOL", 8); CODEPF = env("CODEPF", 1); LIST = env("LIST", 0); DBG = env("DBG", "")
SPIN = 0x100000
MF = "v_mfma_f32_32x32x16_bf16"

class A:
    def __init__(self): self.l = []
    def __call__(self, s):
        for line in s.strip("\n").split("\n"):
            line = line.strip()
            if line:
                self.l.append(line if line.endswith(":") else "    " + line)
    def text(self): return "\n".join(self.l) + "\n"
def vr(a, n): return f"v[{a}:{a+n-1}]"

NT = 60
L_CNT, L_RDY, L_PROG, L_OD, L_LUT = 64, 96, 100, 108, 272
L_IDX = 6144
L_EOF = L_IDX + NT * 128
L_O = L_EOF + NT * 128
L_EA = L_O + NT * 1024
L_X = L_EA + 65536
L_TOTAL = L_X + 15360
S_CNT = 25600
S_TOT, S_BAD, S_TBL, S_SRT = S_CNT + 4096, S_CNT + 4128, S_CNT + 4352, S_CNT + 12544
L_X96 = L_TOTAL - 24576
L_WBV, L_WAU = 8192, 73728
assert L_WAU + 65536 == L_X96
vIDX, vEA, vOT, vSa, vS0, vS1, vT0 = 1, 2, 3, 4, 5, 6, 7
IX, SA, WC, AP, UP, DEN, NUM = 8, 24, 32, 36, 44, 52, 68
G = [84, 100]
RAW = [116, 132, 148]
LO, vT1 = 164, 166
RECQ = [116, 120, 124]
LOFF, LCHV, LKEY, LRO, LLEN, LC, LADJ, LTOT, LCB, LONE, LQ4, LTMP = 132, 134, 135, 136, 137, 138, 140, 142, 144, 145, 146, 148
sW = 3
dX, dEA, dWS, dTAB, dOUT, dWC, dW0, dW1, dSRC, dDST = 8, 12, 16, 20, 24, 28, 32, 36, 40, 44
dDBG = 48
sCG, sBETA, sMODE, sROUND, sID, sU, sSTAGE = 52, 53, 54, 55, 56, 57, 58
sT, sTEND, sRDY, sF0, sL0, sL1, sG0, sG1 = 60, 61, 62, 63, 64, 65, 66, 67
sC = 68
sTMP = 76
sM0, sM1 = 88, 90
sPA, sPU = 92, 94
sOK = 96

NAMES = []
def stamp(a, nm):
    if STAMP and (STAMPS == ["all"] or nm in STAMPS):
        if nm not in NAMES: NAMES.append(nm)
        a("s_memtime s[4:5]"); a("s_waitcnt lgkmcnt(0)")
        a(f"v_writelane_b32 v167, s4, {NAMES.index(nm)}")
        if nm in ("loop0", "loopend"):
            a("s_memrealtime s[4:5]"); a("s_waitcnt lgkmcnt(0)")
            a(f"v_writelane_b32 v167, s4, {59 if nm == 'loop0' else 60}")
def stamp_out(a, tiles):
    if STAMP:
        a("s_memrealtime s[4:5]"); a("s_waitcnt lgkmcnt(0)"); a("s_mov_b64 exec, -1")
        a("v_writelane_b32 v167, s4, 62"); a(f"v_writelane_b32 v167, {tiles}, 63")
        a("v_and_b32 v3, 63, v0"); a("v_lshlrev_b32 v3, 2, v3")
        a(f"s_mul_i32 s{sTMP}, s{sID}, 9"); a(f"s_add_u32 s{sTMP}, s{sTMP}, s{sW}")
        a(f"s_lshl_b32 s{sTMP}, s{sTMP}, 8"); a(f"s_add_u32 s{sTMP}, s{sTMP}, 0x900000")
        a(f"s_mov_b32 s{dWS+2}, 0x1000000")
        a(f"buffer_store_dword v167, v3, s[{dWS}:{dWS+3}], s{sTMP} offen")
def D(d): return f"s[{d}:{d+3}]"

def idx_reads(a, rel):
    for q in range(4):
        a(f"ds_read_b128 {vr(IX+4*q,4)}, v{vIDX} offset:{rel*128+32*q}")
def gathers(a, dst):
    for k in range(0, 16, 2):
        a(f"v_lshl_add_u64 {vr(IX+k,2)}, {vr(IX+k,2)}, 4, {vr(LO,2)}")
    for k in range(16):
        a(f"buffer_load_dword v{dst+k}, v{IX+k}, {D(dTAB)}, 0 offen sc1")
def ms_list(gx):
    return [f"{MF} {vr(DEN,16)}, {vr(SA,4)}, {vr(gx,4)}, {vr(DEN,16)}",
            f"{MF} {vr(NUM,16)}, {vr(SA,4)}, {vr(gx+8,4)}, {vr(NUM,16)}",
            f"{MF} {vr(DEN,16)}, {vr(SA+4,4)}, {vr(gx+4,4)}, {vr(DEN,16)}",
            f"{MF} {vr(NUM,16)}, {vr(SA+4,4)}, {vr(gx+12,4)}, {vr(NUM,16)}"]
def poll(a, stubs, tag):
    a(f"s_cmp_le_u32 s{sRDY}, s{sT}"); a(f"s_cbranch_scc1 POLL_{tag}"); a(f"POLLED_{tag}:")
    stubs(f"POLL_{tag}:")
    stubs(f"ds_read_b32 v{vT1}, v{vT0} offset:{L_RDY}"); stubs("s_waitcnt lgkmcnt(0)")
    stubs(f"v_readfirstlane_b32 s{sRDY}, v{vT1}")
    stubs(f"s_cmp_gt_u32 s{sRDY}, s{sT}"); stubs(f"s_cbranch_scc1 POLLED_{tag}")
    stubs("s_sleep 1"); stubs(f"s_branch POLL_{tag}")
def publish(a):
    a("s_mov_b64 exec, 1"); a(f"ds_inc_u32 v{vT0}, v{vEA} offset:{L_PROG}"); a("s_mov_b64 exec, -1")
def prio(a, pos):
    if PRIO[pos] != "-": a(f"s_setprio {PRIO[pos]}")
def totals(a, t):
    a(f"v_add_u32 v{t}, v{t}, v{t+1}")
    a(f"v_add_u32_sdwa v{t}, v{t}, v{t} dst_sel:DWORD dst_unused:UNUSED_PAD src0_sel:WORD_0 src1_sel:WORD_1")
    a(f"v_add_u32 v{t}, 31, v{t}"); a(f"v_lshrrev_b32 v{t}, 4, v{t}"); a(f"v_and_b32 v{t}, -2, v{t}")
    a("s_nop 0")
    for k in range(4): a(f"v_readlane_b32 s{sC+k}, v{t}, {k}")
    a(f"s_sub_i32 s{sC+4}, s{sC}, 1"); a(f"s_sub_i32 s{sC+5}, s{sC+2}, 1")
    a(f"s_max_i32 s{sC+4}, s{sC+4}, s{sC+1}"); a(f"s_max_i32 s{sC+5}, s{sC+5}, s{sC+3}")
    a(f"s_add_u32 s{sC+6}, s{sC+4}, s{sC+5}"); a(f"s_cmp_gt_u32 s{sC+6}, {NT}")

vL, vWS, vTR, XAD, SET, AB, AV = 1, 2, 3, 8, [116, 128, 140], 84, 100

def own_x(a):
    a(f"v_lshrrev_b32 v4, 4, v{vL}"); a(f"v_and_b32 v5, 15, v{vL}")
    a("v_xor_b32 v5, v5, v4"); a("v_lshlrev_b32 v5, 4, v5"); a("v_lshl_add_u32 v16, v4, 18, v5")
    for j in range(1, 4): a(f"v_xor_b32 v{16+j}, {64*j}, v16")
    a(f"s_lshl_b32 s{sTMP}, s2, 8"); a(f"s_lshl_b32 s{sTMP+1}, s{sCG}, 16"); a(f"s_add_u32 s{sTMP}, s{sTMP}, s{sTMP+1}")
    a(f"s_lshl_b32 s{sTMP+2}, s{sCG}, 12"); a(f"s_add_u32 s{sTMP+2}, s{sTMP+2}, {L_X}")
    for j in range(4):
        c16 = 8 * (j & 1) + 4 * (j >> 1)
        a(f"s_add_u32 m0, s{sTMP+2}, {j*1024}"); a(f"s_add_u32 s{sTMP+1}, s{sTMP}, {c16*4*65536:#x}")
        a(f"buffer_load_dwordx4 v{16+j}, {D(dX)}, s{sTMP+1} offen lds")
def w_group(a, sreg, lds):
    for d, base in ((dW0, lds), (dW1, lds + 32768)):
        a(f"s_add_u32 m0, s{sreg}, {base}"); a("s_nop 0")
        for i in range(4):
            a(f"buffer_load_dwordx4 v{vWS}, {D(d)}, s{sreg} offen offset:{i*1024} lds")

def gen(a, name):
    stubs = A()
    a(f"{name}:")
    a("s_cmp_ge_u32 s2, 256"); a("s_cbranch_scc1 F_END")
    a(f"s_load_dwordx2 s[{dDST}:{dDST+1}], s[0:1], 24")
    a(f"s_load_dwordx2 s[{dSRC}:{dSRC+1}], s[0:1], 16")
    a(f"s_load_dwordx2 s[{dX}:{dX+1}], s[0:1], 0")
    a(f"s_load_dwordx2 s[{dW0}:{dW0+1}], s[0:1], 40")
    a(f"s_load_dwordx2 s[{dW1}:{dW1+1}], s[0:1], 64")
    a(f"s_load_dwordx2 s[{sPA}:{sPA+1}], s[0:1], 32")
    a(f"s_load_dwordx2 s[{sPU}:{sPU+1}], s[0:1], 56")
    a(f"v_lshrrev_b32 v{vWS}, 6, v0")
    a(f"v_and_b32 v{vL}, 63, v0")
    a(f"v_readfirstlane_b32 s{sW}, v{vWS}")
    a(f"s_mov_b32 s{sID}, s2")
    a(f"s_lshr_b32 s{sU}, s2, 3"); a("s_and_b32 s2, s2, 7"); a("s_lshl_b32 s2, s2, 5"); a(f"s_or_b32 s2, s2, s{sU}")
    for d, nb in ((dDST, E*4), (dSRC, E*4), (dX, N*256), (dW0, 32768), (dW1, 32768)):
        a(f"s_mov_b32 s{d+2}, {nb:#x}"); a(f"s_mov_b32 s{d+3}, 0x20000")
    a(f"s_and_b32 s{sCG}, s{sW}, 3")
    a(f"v_lshrrev_b32 v4, 4, v{vL}"); a("v_lshlrev_b32 v5, 2, v4"); a(f"v_and_b32 v6, 15, v{vL}")
    a("v_xor_b32 v5, v5, v6"); a("v_lshlrev_b32 v5, 4, v5"); a(f"v_lshl_add_u32 v{vWS}, v4, 8, v5")
    a(f"v_mov_b32 v{vT0}, 0")
    if STAMP:
        a("v_mov_b32 v167, 0"); a("s_memrealtime s[6:7]"); a("s_waitcnt lgkmcnt(0)"); a("v_writelane_b32 v167, s6, 61")
    stamp(a, "start")
    if CODEPF:
        a("s_cmp_lg_u32 s3, 0"); a("s_cbranch_scc1 NOCPF")
        a(f"s_getpc_b64 s[{sTMP}:{sTMP+1}]")
        a("PCREF:")
        a(f"s_lshl_b32 s{sTMP+2}, s{sU}, 7")
        a(f"v_lshl_add_u32 v160, v{vL}, 12, s{sTMP+2}")
        a("v_min_u32 v160, CODE_END-PCREF-4, v160")
        a("v_mov_b32 v161, 0")
        a(f"v_lshl_add_u64 v[160:161], v[160:161], 0, s[{sTMP}:{sTMP+1}]")
        a("s_mov_b64 exec, 31")
        a("global_load_dword v162, v[160:161], off")
        a("s_mov_b64 exec, -1")
        a("NOCPF:")
    def late_args():
        a(f"s_load_dwordx2 s[{dWS}:{dWS+1}], s[0:1], 88")
        a(f"s_load_dwordx2 s[{dTAB}:{dTAB+1}], s[0:1], 88")
        a(f"s_load_dwordx2 s[{dEA}:{dEA+1}], s[0:1], 8")
        a(f"s_load_dwordx2 s[{dOUT}:{dOUT+1}], s[0:1], 72")
        a(f"s_load_dwordx2 s[{dWC}:{dWC+1}], s[0:1], 48")
        a(f"s_load_dwordx2 s[{dDBG}:{dDBG+1}], s[0:1], 80")
        for d, nb in ((dWS, WS_OFF + NS*8192), (dTAB, N*512), (dEA, E*32), (dOUT, N*256), (dWC, 4096), (dDBG, 256)):
            a(f"s_mov_b32 s{d+2}, {nb:#x}"); a(f"s_mov_b32 s{d+3}, 0x20000")
        a(f"s_mov_b32 s{sMODE}, 0"); a(f"s_mov_b32 s{sROUND}, 0")
        a(f"s_bfe_u32 s{sBETA}, s{sW}, 0x10002")
    def clear_mailbox():
        a(f"s_lshl_b32 s{sTMP+8}, s{sID}, 7"); a(f"s_add_u32 s{sTMP+8}, s{sTMP+8}, {WS_MB:#x}")
        a("s_waitcnt lgkmcnt(0)")
        a("s_mov_b64 exec, 1"); a(f"buffer_store_dword v{vT0}, v{vT0}, {D(dWS)}, s{sTMP+8} offen sc1"); a("s_mov_b64 exec, -1")
    def see_clear(tag):
        a(f"s_mov_b32 s{sOK}, 0")
        a("s_cmp_lt_u32 s3, 8"); a(f"s_cbranch_scc1 SC_D{tag}")
        a("s_cmp_gt_u32 s3, 9"); a(f"s_cbranch_scc1 SC_D{tag}")
        a(f"s_load_dword s{sOK}, s[{dDBG}:{dDBG+1}], 0")
        a(f"SC_D{tag}:")
    def need_clear(tag):
        a("s_waitcnt lgkmcnt(0)")
        a(f"v_mov_b32 v24, s{sOK}")
        a(f"s_mov_b32 s{sTMP+5}, 0")
        a(f"NC_L{tag}:")
        a("v_cmp_eq_u32 vcc, 0, v24"); a(f"s_cbranch_vccz NC_E{tag}")
        a(f"s_add_u32 s{sTMP+5}, s{sTMP+5}, 1"); a(f"s_cmp_gt_u32 s{sTMP+5}, {SPIN:#x}"); a(f"s_cbranch_scc1 NC_E{tag}")
        a(f"buffer_load_dword v24, v{vT0}, {D(dDBG)}, 0 offen sc1")
        a("s_waitcnt vmcnt(0)"); a(f"s_branch NC_L{tag}")
        a(f"NC_E{tag}:")
    def gemm_addr(xbase_sreg, wbase):
        a(f"v_lshrrev_b32 v5, 5, v{vL}"); a(f"v_bfe_u32 v4, v{vL}, 2, 2")
        a(f"v_lshl_add_u32 v{vTR}, v5, 3, v4"); a(f"v_lshlrev_b32 v{vTR}, 8, v{vTR}")
        a(f"v_xor_b32 v4, s{sCG}, v4"); a(f"v_lshl_add_u32 v{vTR}, v4, 6, v{vTR}")
        a(f"v_bfe_u32 v4, v{vL}, 4, 1"); a(f"v_lshl_add_u32 v{vTR}, v4, 5, v{vTR}")
        a(f"v_and_b32 v4, 3, v{vL}"); a(f"v_lshl_add_u32 v{vTR}, v4, 3, v{vTR}")
        a(f"v_add_u32 v{vTR}, {wbase}, v{vTR}")
        a(f"v_and_b32 v4, 15, v{vL}"); a("v_xor_b32 v4, v4, v5"); a("v_lshlrev_b32 v4, 4, v4")
        a(f"v_and_b32 v6, 31, v{vL}"); a("v_lshl_add_u32 v4, v6, 8, v4")
        a(f"v_add_u32 v{XAD}, s{xbase_sreg}, v4")
        for kk in range(1, 8): a(f"v_xor_b32 v{XAD+kk}, {kk*32}, v{XAD}")
    a(f"s_cmp_lt_u32 s{sID}, {NS}"); a("s_cbranch_scc1 SORT")
    a(f"s_sub_u32 s{sTMP+9}, s{sID}, {NS}")
    a("s_cmp_lt_u32 s3, 4"); a("s_cbranch_scc1 G_XLD")
    a(f"s_sub_u32 s{sTMP+3}, s3, 4"); a(f"s_lshl_b32 s{sTMP+3}, s{sTMP+3}, 12")
    a("s_waitcnt lgkmcnt(0)")
    w_group(a, sTMP + 3, L_WBV)
    late_args()
    a("s_branch G_LDD")
    a("G_XLD:")
    a(f"s_lshl_b32 s{sTMP+1}, s{sCG}, 2")
    a("v_xor_b32 v5, v6, v4"); a(f"v_xor_b32 v5, s{sTMP+1}, v5"); a("v_lshlrev_b32 v5, 4, v5"); a("v_lshl_add_u32 v20, v4, 8, v5")
    a(f"s_mul_i32 s{sTMP}, s{sTMP+9}, {96*256}"); a(f"s_lshl_b32 s{sTMP+1}, s{sCG}, 10")
    a(f"s_add_u32 s{sTMP}, s{sTMP}, s{sTMP+1}"); a(f"s_add_u32 s{sTMP+1}, s{sTMP+1}, {L_X96}")
    a("s_waitcnt lgkmcnt(0)")
    for i in range(6):
        a(f"s_add_u32 m0, s{sTMP+1}, {i*4096}"); a(f"s_add_u32 s{sTMP+2}, s{sTMP}, {i*4096}")
        a(f"buffer_load_dwordx4 v20, {D(dX)}, s{sTMP+2} offen lds")
    late_args()
    clear_mailbox()
    a("G_LDD:")
    a(f"s_lshr_b32 s{sTMP+4}, s3, 2")
    a(f"s_lshl_b32 s{sTMP+5}, s{sTMP+4}, 13"); a(f"s_add_u32 s{sTMP+5}, s{sTMP+5}, {L_X96}")
    gemm_addr(sTMP + 5, L_WBV)
    a(f"s_mul_i32 s{sTMP+5}, s{sTMP+9}, {96*512}"); a(f"s_lshl_b32 s{sTMP+6}, s{sTMP+4}, 14"); a(f"s_add_u32 s{sTMP+5}, s{sTMP+5}, s{sTMP+6}")
    a(f"s_lshl_b32 s{sTMP+6}, s{sCG}, 7"); a(f"s_add_u32 s{sTMP+5}, s{sTMP+5}, s{sTMP+6}")
    a("v_lshlrev_b32 v20, 2, v6"); a("v_lshl_add_u32 v20, v5, 11, v20"); a(f"v_add_u32 v20, s{sTMP+5}, v20")
    for q in range(1, 4): a(f"v_add_u32 v{20+q}, {4096*q}, v20")
    a(f"s_mov_b32 s{sSTAGE}, 0")
    a("s_waitcnt vmcnt(0) lgkmcnt(0)")
    stamp(a, "p1land")
    a(f"s_mov_b64 s[{dW0}:{dW0+1}], s[{sPA}:{sPA+1}]"); a(f"s_mov_b64 s[{dW1}:{dW1+1}], s[{sPU}:{sPU+1}]")
    a("s_barrier")
    a("s_cmp_lt_u32 s3, 8"); a("s_cbranch_scc1 CORE")
    a(f"s_lshl_b32 s{sTMP+3}, s{sCG}, 13")
    w_group(a, sTMP + 3, L_WAU)
    a(f"s_add_u32 s{sTMP+3}, s{sTMP+3}, 4096")
    w_group(a, sTMP + 3, L_WAU)
    a("CORE:")
    def reads(kk):
        b = SET[kk % 3]
        a(f"ds_read_b128 {vr(b,4)}, v{XAD+kk}")
        for u in range(2): a(f"ds_read_b64_tr_b16 {vr(b+4+2*u,2)}, v{vTR} offset:{kk*4096+u*1024}")
        for u in range(2): a(f"ds_read_b64_tr_b16 {vr(b+8+2*u,2)}, v{vTR} offset:{32768+kk*4096+u*1024}")
    for kk in range(3): reads(kk)
    for kk in range(8):
        b = SET[kk % 3]
        a(f"s_waitcnt lgkmcnt({5*min(7-kk,2)})")
        a(f"{MF} {vr(AV,16)}, {vr(b,4)}, {vr(b+8,4)}, {'0' if kk == 0 else vr(AV,16)}")
        a(f"{MF} {vr(AB,16)}, {vr(b,4)}, {vr(b+4,4)}, {'0' if kk == 0 else vr(AB,16)}")
        if kk + 3 < 8: reads(kk + 3)
    a(f"s_mov_b32 s{sTMP+6}, {NLOG2E:#x}")
    a(f"s_mov_b32 s{sTMP+7}, {NLOG2E:#x}")
    a(f"s_cmp_lg_u32 s{sSTAGE}, 0"); a("s_cbranch_scc1 AU_DONE")
    a(f"s_mov_b32 s{sTMP+5}, 0x7f7e0000")
    a("v_mov_b32 v4, 0x21800000")
    see_clear("G")
    stamp(a, "g_core")
    a("s_nop 2")
    VP, VN = 116, 124
    for i in range(8):
        a(f"v_cvt_pk_bf16_f32 v{VP+i}, v{AV+2*i}, v{AV+2*i+1}")
        a(f"v_xor_b32 v{VN+i}, 0x80008000, v{VP+i}")
    for q in range(4):
        R = range(4*q, 4*q+4)
        for r in R: a(f"v_fma_f32 v{AB+r}, v{AB+r}, s{sTMP+6}, v4")
        for r in R: a(f"v_med3_f32 v{AB+r}, v{AB+r}, -s{sTMP+5}, s{sTMP+5}")
        for r in R: a(f"v_sub_u32_sdwa v{AB+r}, v{AB+r}, sext(v{VN+r//2}) dst_sel:DWORD dst_unused:UNUSED_PAD src0_sel:DWORD src1_sel:WORD_{r&1}")
        for r in R: a(f"v_mov_b32_sdwa v{AB+r}, v{VP+r//2} dst_sel:WORD_0 dst_unused:UNUSED_PRESERVE src0_sel:WORD_{r&1}")
        a("s_nop 0")
        for r in R: a(f"buffer_store_dword v{AB+r}, v{20+q}, {D(dTAB)}, 0 offen offset:{(r&3)*512} sc1")
    stamp(a, "p1st")
    a("s_barrier")
    a("s_cmp_lt_u32 s3, 8"); a("s_cbranch_scc1 G_DRAIN")
    own_x(a)
    a("G_DRAIN:")
    a("s_waitcnt vmcnt(0)")
    a("s_branch ARRIVE")
    a("SORT:")
    a("s_cmp_ge_u32 s3, 8"); a("s_cbranch_scc1 S_HELP")
    Dd, S, RK, RC, KA, SH = 16, 24, 32, 40, 48, 56
    a("v_lshlrev_b32 v11, 3, v0"); a("v_mov_b64 v[12:13], 0")
    a(f"ds_write_b64 v11, v[12:13] offset:{S_CNT}"); a(f"ds_write_b32 v{vT0}, v12 offset:{S_BAD}")
    a("v_lshlrev_b32 v6, 4, v0")
    a(f"s_mul_i32 s{sTMP}, s{sID}, {CH*4}"); a(f"s_add_u32 s{sTMP+1}, s{sTMP}, 8192")
    a("s_waitcnt lgkmcnt(0)")
    a(f"buffer_load_dwordx4 {vr(Dd,4)}, v6, {D(dDST)}, s{sTMP} offen {SDPOL}")
    a(f"buffer_load_dwordx4 {vr(S,4)}, v6, {D(dSRC)}, s{sTMP} offen {SDPOL}")
    a("s_cmp_ge_u32 s3, 5"); a("s_cbranch_scc1 S_0")
    a(f"buffer_load_dwordx4 {vr(Dd+4,4)}, v6, {D(dDST)}, s{sTMP+1} offen {SDPOL}")
    a(f"buffer_load_dwordx4 {vr(S+4,4)}, v6, {D(dSRC)}, s{sTMP+1} offen {SDPOL}")
    a("S_0:")
    a("s_barrier")
    late_args()
    a("v_lshlrev_b32 v5, 7, v0"); a("v_mov_b32 v8, 0")
    a(f"v_cmp_gt_u32 vcc, {(CH-2048)//4}, v0"); a(f"s_mov_b64 s[{sTMP+2}:{sTMP+3}], vcc")
    def keys(lo):
        for i in range(lo, lo + 4):
            a(f"v_lshlrev_b32_sdwa v9, 4, v{Dd+i} dst_sel:DWORD dst_unused:UNUSED_PAD src0_sel:DWORD src1_sel:BYTE_0")
            a(f"v_bfe_u32 v10, v{Dd+i}, 8, 2")
            a(f"v_lshrrev_b32 v{SH+i}, 7, v{S+i}")
            a(f"v_lshl_or_b32 v{KA+i}, v10, 2, v9")
            a(f"v_and_b32 v{SH+i}, 24, v{SH+i}")
            a(f"v_lshlrev_b32_e64 v9, v{SH+i}, 1")
            a(f"ds_add_rtn_u32 v{RK+i}, v{KA+i}, v9 offset:{S_CNT}")
        for i in range(lo, lo + 4):
            a(f"v_lshrrev_b32 v9, 10, v{Dd+i}")
            a(f"v_add_u32 v10, {(((i&3) + (2048 if i >= 4 else 0)) << 5) + 1:#x}, v5")
            a(f"v_lshl_or_b32 v10, v{S+i}, 18, v10")
            a(f"v_add_u32 v{RC+i}, v9, v10")
            a(f"v_lshlrev_b32 v{KA+i}, 1, v{KA+i}")
        for i in range(lo, lo + 4):
            a(f"s_waitcnt lgkmcnt({3-(i-lo)})"); a(f"v_bfe_u32 v{RK+i}, v{RK+i}, v{SH+i}, 8")
        a(f"v_max3_u32 v8, v8, v{RK+lo}, v{RK+lo+1}"); a(f"v_max3_u32 v8, v8, v{RK+lo+2}, v{RK+lo+3}")
    a("s_waitcnt vmcnt(0) lgkmcnt(0)")
    stamp(a, "p1land")
    keys(0)
    a(f"s_mov_b64 exec, s[{sTMP+2}:{sTMP+3}]"); a("s_cbranch_execz S_1")
    keys(4)
    a("S_1:")
    a("s_mov_b64 exec, -1")
    a("v_cmp_lt_u32 vcc, 62, v8"); a("s_cbranch_vccz S_1B")
    a("v_mov_b32 v9, -1"); a(f"ds_write_b32 v{vT0}, v9 offset:{S_BAD}"); a("s_waitcnt lgkmcnt(0)")
    a("S_1B:")
    stamp(a, "s_keys")
    a("s_barrier")
    stamp(a, "s_b2")
    a(f"ds_read_b64 v[12:13], v11 offset:{S_CNT}"); a(f"ds_read_b32 v15, v{vT0} offset:{S_BAD}")
    a(f"s_lshl_b32 s{sTMP+4}, s3, 2"); a(f"v_mov_b32 v9, s{sTMP+4}")
    a("s_waitcnt lgkmcnt(1)")
    a("v_sad_u8 v10, v12, 0, 0"); a("v_sad_u8 v8, v13, 0, v10"); a("v_mov_b32 v14, v8")
    for ctl in ("row_shr:1 row_mask:0xf", "row_shr:2 row_mask:0xf", "row_shr:4 row_mask:0xf", "row_shr:8 row_mask:0xf",
                "row_bcast:15 row_mask:0xa", "row_bcast:31 row_mask:0xc"):
        a("s_nop 1"); a(f"v_add_u32_dpp v14, v14, v14 {ctl} bank_mask:0xf")
    a("s_mov_b32 exec_lo, 0"); a("s_mov_b32 exec_hi, 0x80000000")
    a(f"ds_write_b32 v9, v14 offset:{S_TOT}")
    a("s_mov_b64 exec, -1")
    a("v_sub_u32 v14, v14, v8")
    a("s_waitcnt lgkmcnt(0)"); a("s_barrier")
    a(f"ds_read_b128 v[64:67], v{vT0} offset:{S_TOT}"); a(f"ds_read_b128 v[68:71], v{vT0} offset:{S_TOT+16}")
    a("v_or_b32 v73, v12, v15"); a("v_or_b32 v75, v13, v15")
    a("s_waitcnt lgkmcnt(0)")
    for w in range(7):
        a(f"s_cmp_gt_u32 s3, {w}"); a(f"s_cselect_b32 s{sTMP+4}, 1, 0"); a(f"v_mad_u32_u24 v14, v{64+w}, s{sTMP+4}, v14")
    a("v_mov_b32 v72, v14"); a("v_add_u32 v74, v14, v10")
    a("v_mov_b32 v64, v14"); a("v_mov_b32 v65, v12"); a("v_mov_b32 v66, v74"); a("v_mov_b32 v67, v13")
    a(f"ds_write_b128 v6, v[64:67] offset:{S_TBL}")
    a(f"s_lshl_b32 s{sTMP+4}, s{sID}, 13"); a(f"s_add_u32 s{sTMP+4}, s{sTMP+4}, {WS_OFF:#x}")
    a(f"buffer_store_dwordx4 v[72:75], v6, {D(dWS)}, s{sTMP+4} offen sc1")
    a("s_waitcnt lgkmcnt(0)"); a("s_barrier")
    stamp(a, "s_b4")
    LK = 64
    def place(lo):
        for i in range(lo, lo + 4): a(f"ds_read_b64 {vr(LK+2*(i-lo),2)}, v{KA+i} offset:{S_TBL}")
        for i in range(lo, lo + 4):
            a("s_waitcnt lgkmcnt(3)")
            a(f"v_bfe_u32 v9, v{LK+2*(i-lo)+1}, 0, v{SH+i}"); a(f"v_sad_u8 v9, v9, 0, v{LK+2*(i-lo)}")
            a(f"v_add_lshl_u32 v9, v9, v{RK+i}, 2"); a(f"ds_write_b32 v9, v{RC+i} offset:{S_SRT}")
    place(0)
    a(f"s_mov_b64 exec, s[{sTMP+2}:{sTMP+3}]"); a("s_cbranch_execz S_3")
    a("s_waitcnt lgkmcnt(0)")
    place(4)
    a("S_3:")
    a("s_mov_b64 exec, -1")
    a(f"s_add_u32 s{sTMP}, s{sTMP}, {WS_REC:#x}"); a(f"s_add_u32 s{sTMP+1}, s{sTMP+1}, {WS_REC:#x}")
    a("s_waitcnt lgkmcnt(0)"); a("s_barrier")
    stamp(a, "s_b5")
    a(f"ds_read_b128 v[64:67], v6 offset:{S_SRT}"); a(f"ds_read_b128 v[68:71], v6 offset:{S_SRT+8192}")
    a("s_waitcnt lgkmcnt(1)")
    a(f"buffer_store_dwordx4 v[64:67], v6, {D(dWS)}, s{sTMP} offen sc1")
    a("s_waitcnt lgkmcnt(0)")
    a(f"s_mov_b64 exec, s[{sTMP+2}:{sTMP+3}]"); a("s_cbranch_execz S_4")
    a(f"buffer_store_dwordx4 v[68:71], v6, {D(dWS)}, s{sTMP+1} offen sc1")
    a("S_4:")
    a("s_mov_b64 exec, -1")
    stamp(a, "p1st")
    a("s_waitcnt vmcnt(0)")
    a("s_branch ARRIVE")
    a("S_HELP:")
    a("s_waitcnt lgkmcnt(0)")
    a(f"s_mov_b64 s[{dW0}:{dW0+1}], s[{sPA}:{sPA+1}]"); a(f"s_mov_b64 s[{dW1}:{dW1+1}], s[{sPU}:{sPU+1}]")
    late_args()
    a(f"s_lshl_b32 s{sTMP}, s{sID}, 4"); a(f"s_add_u32 s{sTMP}, s{sTMP}, s3")
    a(f"s_cmp_lg_u32 s{sTMP}, 9"); a("s_cbranch_scc1 S_H1")
    a(f"v_lshrrev_b32 v4, 1, v{vL}"); a(f"v_and_b32 v5, 1, v{vL}"); a("v_lshlrev_b32 v5, 4, v5")
    a("v_lshl_add_u32 v4, v4, 7, v5"); a(f"v_add_u32 v4, {WS_ARR:#x}, v4")
    a("v_mov_b64 v[8:9], 0"); a("v_mov_b64 v[10:11], 0"); a("v_mov_b32 v5, 1")
    a("s_waitcnt lgkmcnt(0)")
    a(f"buffer_store_dwordx4 v[8:11], v4, {D(dWS)}, 0 offen sc1")
    a("s_barrier")
    a("s_mov_b64 exec, 1")
    a("s_waitcnt vmcnt(0)")
    a(f"buffer_store_dword v5, v{vT0}, {D(dDBG)}, 0 offen sc1")
    a("s_mov_b64 exec, -1")
    a("s_branch S_H2")
    a("S_H1:")
    a("s_barrier")
    a("S_H2:")
    clear_mailbox()
    own_x(a)
    a(f"s_lshl_b32 s{sTMP+3}, s{sCG}, 13")
    w_group(a, sTMP + 3, L_WAU)
    a(f"s_add_u32 s{sTMP+3}, s{sTMP+3}, 4096")
    w_group(a, sTMP + 3, L_WAU)
    stamp(a, "s_keys")
    a("s_barrier")
    see_clear("S")
    for _ in range(3): a("s_barrier")
    a("s_waitcnt vmcnt(0)")
    a("ARRIVE:")
    a("s_barrier")
    stamp(a, "arrive")
    a("s_cmp_ge_u32 s3, 8"); a("s_cbranch_scc1 HELP")
    a(f"v_and_b32 v{LO}, 31, v0"); a(f"v_bfe_u32 v4, v0, 5, 1")
    a(f"s_lshl_b32 s{sTMP+6}, s{sCG}, 6")
    a(f"v_lshl_add_u32 v5, v{LO}, 1, s{sTMP+6}"); a("v_lshl_add_u32 v5, v4, 11, v5")
    WCR = 24
    for j in range(8): a(f"buffer_load_ushort v{WCR+j}, v5, {D(dWC)}, 0 offen offset:{j*256}")
    a(f"s_lshl_b32 s{sTMP+5}, s{sBETA}, 13"); a(f"s_add_u32 s{sTMP+5}, s{sTMP+5}, {L_X}")
    gemm_addr(sTMP + 5, L_WAU)
    a(f"s_lshl_b32 s{sTMP+2}, s{sCG}, 7")
    a(f"v_lshl_add_u32 v{LO}, v{LO}, 2, s{sTMP+2}"); a(f"v_mov_b32 v{LO+1}, v{LO}")
    a(f"s_mov_b32 s{sM0}, 0x0000ffff"); a(f"s_mov_b32 s{sM0+1}, 0x0000ffff")
    a(f"s_mov_b32 s{sM1}, 0xffff0000"); a(f"s_mov_b32 s{sM1+1}, 0xffff0000")
    for r in range(0, 32, 2): a(f"v_mov_b64 {vr(DEN+r,2)}, 0")
    a(f"s_mov_b32 s{sSTAGE}, 1")
    a("s_branch CORE")
    a("AU_DONE:")
    a("s_waitcnt vmcnt(0)")
    for j in range(8): a(f"v_lshlrev_b32 v{WCR+j}, 16, v{WCR+j}")
    for j in range(8): a(f"v_mul_f32 v{WCR+j}, s{sTMP+6}, v{WCR+j}")
    for j in range(4): a(f"v_cvt_pk_bf16_f32 v{WC+j}, v{WCR+2*j}, v{WCR+2*j+1}")
    for j in range(8): a(f"v_cvt_pk_bf16_f32 v{UP+j}, v{AV+2*j}, v{AV+2*j+1}")
    for r in range(0, 16, 2): a(f"v_pk_mul_f32 {vr(AB+r,2)}, {vr(AB+r,2)}, s[{sTMP+6}:{sTMP+7}]")
    for j in range(8): a(f"v_cvt_pk_bf16_f32 v{AP+j}, v{AB+2*j}, v{AB+2*j+1}")
    stamp(a, "au")
    a("ROUND:")
    for j in range(0, 8, 2): a(f"v_mov_b64 {vr(SA+j,2)}, 0")
    a(f"v_lshlrev_b32 v{LTMP+2}, 4, v0")
    for k in range(3):
        a(f"ds_write_b128 v{LTMP+2}, {vr(SA,4)} offset:{k*8192}")
    a(f"v_bfe_u32 v{vT1}, v0, 5, 1")
    a(f"v_lshlrev_b32 v{vIDX}, 4, v{vT1}")
    a(f"v_and_b32 v{vOT}, 31, v0"); a(f"v_lshl_add_u32 v{vOT}, v{vOT}, 5, v{vIDX}")
    a(f"v_bfe_u32 v{vSa}, v0, 2, 2"); a(f"v_lshl_add_u32 v{vSa}, v{vT1}, 2, v{vSa}"); a(f"v_lshlrev_b32 v{vSa}, 5, v{vSa}")
    a(f"v_and_b32 v{vS0}, 1, v0"); a(f"v_lshl_add_u32 v{vSa}, v{vS0}, 4, v{vSa}")
    a(f"v_bfe_u32 v{vS0}, v0, 1, 1"); a(f"v_lshl_add_u32 v{vSa}, v{vS0}, 3, v{vSa}")
    a(f"v_and_b32 v{LQ4}, 3, v0"); a(f"v_lshlrev_b32 v{LQ4}, 3, v{LQ4}")
    a(f"v_mov_b32 v{LONE}, 48")
    for r in range(0, 16, 2): a(f"v_mov_b64 {vr(G[1]+r,2)}, 0")
    a(f"s_mov_b32 s{sT}, 0"); a(f"s_mov_b32 s{sRDY}, 0")
    a(f"s_mov_b32 s{sTMP+8}, 0x0c010c00"); a(f"s_mov_b32 s{sTMP+9}, 0x0c030c02"); a(f"s_mov_b32 s{sTMP+3}, 0x10001")
    a(f"s_cmp_lg_u32 s{sMODE}, 0"); a("s_cbranch_scc1 SLOWSRC")
    a(f"v_lshrrev_b32 v{LCHV}, 2, v0"); a(f"v_mov_b32 v{LKEY}, v{LQ4}")
    a(f"s_lshl_b32 s{sTMP}, s2, 5"); a(f"s_add_u32 s{sTMP}, s{sTMP}, {WS_OFF:#x}")
    a(f"v_lshl_add_u32 v{LTMP}, v{LCHV}, 13, v{LKEY}"); a(f"v_add_u32 v{LTMP}, s{sTMP}, v{LTMP}")
    a(f"v_mul_u32_u24 v{LRO}, {CH*4}, v{LCHV}"); a(f"v_lshlrev_b32 v{LCHV}, 3, v{LRO}"); a(f"v_add_u32 v{LRO}, {WS_REC:#x}, v{LRO}")
    a("s_waitcnt lgkmcnt(0)")
    stamp(a, "pre")
    a("s_barrier")
    stamp(a, "go")
    a(f"buffer_load_dwordx2 {vr(LOFF,2)}, v{LTMP}, {D(dWS)}, 0 offen sc1")
    a("s_waitcnt vmcnt(0)")
    stamp(a, "off")
    a(f"v_lshl_add_u32 v{LRO}, v{LOFF}, 2, v{LRO}")
    for q in range(3): a(f"buffer_load_dwordx4 {vr(RECQ[q],4)}, v{LRO}, {D(dWS)}, 0 offen offset:{16*q} sc1")
    a("ALLOC:")
    a(f"v_perm_b32 v{LC}, v{LOFF+1}, v{LOFF+1}, s{sTMP+8}"); a(f"v_perm_b32 v{LC+1}, v{LOFF+1}, v{LOFF+1}, s{sTMP+9}")
    a(f"ds_add_rtn_u64 {vr(LADJ,2)}, v{LKEY}, {vr(LC,2)} offset:{L_CNT}")
    a(f"v_sad_u8 v{LLEN}, v{LOFF+1}, 0, 0")
    a("s_waitcnt lgkmcnt(0)"); a("s_barrier")
    stamp(a, "barA")
    a(f"ds_read_b64 {vr(LTMP,2)}, v{LQ4} offset:{L_CNT}"); a(f"ds_read_b64 {vr(LTOT,2)}, v{LKEY} offset:{L_CNT}")
    a(f"v_lshrrev_b32 v{LCB}, 4, v{LKEY}"); a(f"v_bfe_u32 v{LKEY}, v{LKEY}, 3, 1")
    a("s_waitcnt lgkmcnt(1)")
    totals(a, LTMP)
    a("s_cbranch_scc1 OVF")
    a("s_waitcnt lgkmcnt(0)")
    a(f"v_sub_u32 v{LTOT}, v{LTOT}, v{LC}"); a(f"v_sub_u32 v{LTOT+1}, v{LTOT+1}, v{LC+1}")
    a(f"v_lshl_add_u32 v{LADJ}, v{LTOT}, 16, v{LADJ}"); a(f"v_lshl_add_u32 v{LADJ+1}, v{LTOT+1}, 16, v{LADJ+1}")
    a(f"v_add_u32_sdwa v{LTOT}, v{LTOT}, v{LTOT} dst_sel:DWORD dst_unused:UNUSED_PAD src0_sel:WORD_0 src1_sel:WORD_1")
    a(f"v_mad_u32_u24 v{LCB}, v{LCB}, s{sC+4}, v{LKEY}")
    a(f"v_mad_u32_u24 v{LADJ+1}, v{LTOT}, s{sTMP+3}, v{LADJ+1}")
    a(f"v_lshlrev_b32 v{LCB}, 7, v{LCB}"); a(f"v_lshlrev_b64 {vr(LADJ,2)}, 2, {vr(LADJ,2)}")
    a(f"s_cmp_eq_u32 s{sBETA}, 0")
    a(f"s_cselect_b32 s{sF0}, 0, s{sC+4}"); a(f"s_cselect_b32 s{sL0}, s{sC}, s{sC+2}")
    a(f"s_cselect_b32 s{sL1}, s{sC+1}, s{sC+3}"); a(f"s_cselect_b32 s{sTEND}, s{sC+4}, s{sC+5}")
    a(f"s_sub_u32 s{sG0}, s{sL0}, 1"); a(f"s_sub_u32 s{sG1}, s{sL1}, 1")
    a(f"s_lshl_b32 s{sTMP}, s{sF0}, 7"); a(f"s_add_u32 s{sTMP}, s{sTMP}, {L_IDX}"); a(f"v_add_u32 v{vIDX}, s{sTMP}, v{vIDX}")
    a(f"s_lshl_b32 s{sTMP}, s{sF0}, 10"); a(f"s_add_u32 s{sTMP+1}, s{sTMP}, {L_O}")
    a(f"v_add_u32 v{vOT}, s{sTMP+1}, v{vOT}"); a(f"v_add_u32 v{vSa}, s{sTMP+1}, v{vSa}"); a(f"v_add_u32 v{vEA}, {L_EA-L_O}, v{vOT}")
    a(f"v_cndmask_b32_e64 v{vS0}, 0, v{vSa}, s[{sM0}:{sM0+1}]"); a(f"v_cndmask_b32_e64 v{vS1}, 0, v{vSa}, s[{sM1}:{sM1+1}]")
    a(f"s_mov_b32 s{sTMP}, 0x1ffff"); a(f"s_mov_b32 s{sTMP+1}, 0xff80"); a(f"s_mov_b32 s{sTMP+2}, 0x7ffe0")
    a("PLACE:")
    a("s_waitcnt vmcnt(0)")
    stamp(a, "rec")
    for s in range(12):
        rec = RECQ[s >> 2] + (s & 3); b = LTMP + 6 * (s & 1)
        a(f"v_cmpx_lt_u32 vcc, {s}, v{LLEN}"); a("s_cbranch_execz PLACED")
        a(f"v_and_b32_sdwa v{b+2}, v{rec}, v{LONE} dst_sel:DWORD dst_unused:UNUSED_PAD src0_sel:BYTE_3 src1_sel:DWORD")
        a(f"v_lshrrev_b32 v{b+3}, 13, v{rec}"); a(f"v_and_b32 v{b+4}, s{sTMP}, v{rec}")
        a(f"v_lshrrev_b64 {vr(b,2)}, v{b+2}, {vr(LADJ,2)}")
        a(f"v_and_b32 v{b+3}, s{sTMP+2}, v{b+3}"); a(f"v_add_u16 v{b}, {4*s}, v{b}")
        a(f"v_add_u32 v{b+4}, v{b+4}, v{LCHV}"); a(f"v_and_b32 v{b+1}, s{sTMP+1}, v{b}")
        a(f"v_add3_u32 v{b}, v{b}, v{b+1}, v{LCB}")
        a(f"ds_write2st64_b32 v{b}, v{b+3}, v{b+4} offset0:{L_IDX//256} offset1:{L_EOF//256}")
    a(f"v_cmpx_lt_u32 vcc, 12, v{LLEN}"); a("s_cbranch_execz PLACED")
    a(f"v_subrev_u32 v{LLEN}, 12, v{LLEN}"); a(f"v_add_u32 v{LRO}, 48, v{LRO}")
    a(f"v_add_u32 v{LADJ}, 0x00300030, v{LADJ}"); a(f"v_add_u32 v{LADJ+1}, 0x00300030, v{LADJ+1}")
    for q in range(3): a(f"buffer_load_dwordx4 {vr(RECQ[q],4)}, v{LRO}, {D(dWS)}, 0 offen offset:{16*q} sc1")
    a("s_branch PLACE")
    a("PLACED:")
    a("s_mov_b64 exec, -1")
    a("s_waitcnt lgkmcnt(0)"); a("s_barrier")
    stamp(a, "bar2")
    a(f"s_cmp_lt_i32 s{sTEND}, 1"); a("s_cbranch_scc1 RDONE")
    idx_reads(a, 0); a("s_waitcnt lgkmcnt(0)"); gathers(a, RAW[0])
    idx_reads(a, 1); a("s_waitcnt lgkmcnt(0)"); gathers(a, RAW[1])
    stamp(a, "g01")
    poll(a, stubs, "P")
    a(f"ds_read_b128 {vr(IX,4)}, v{vEA}"); a(f"ds_read_b128 {vr(IX+4,4)}, v{vOT}")
    a("s_waitcnt vmcnt(16) lgkmcnt(0)")
    a(f"{MF} {vr(G[0],16)}, {vr(IX,4)}, {vr(WC,4)}, {vr(RAW[0],16)}")
    a(f"{MF} {vr(G[0],16)}, {vr(IX+4,4)}, {vr(AP,4)}, {vr(G[0],16)}")
    a("s_nop 3")
    idx_reads(a, 2)
    stamp(a, "loop0")
    a(".p2align 6")
    a("LOOP:")
    for ph in range(6):
        R0, R1, R2 = RAW[ph % 3], RAW[(ph + 1) % 3], RAW[(ph + 2) % 3]
        Gc, Gn = G[ph % 2], G[(ph + 1) % 2]
        APn = AP + 4 * ((ph + 1) % 2); vS = (vS0, vS1)[ph % 2]
        ms = ms_list(Gn)
        a(f"s_cmp_ge_u32 s{sT}, s{(sL0, sL1)[ph % 2]}"); a(f"s_cbranch_scc1 SKIP_{ph}")
        a(f"s_add_u32 s{sT}, s{sT}, 1")
        prio(a, 0)
        if ITS: a("s_memtime s[4:5]"); a(f"s_add_u32 m0, s{sT}, 19")
        a("s_waitcnt lgkmcnt(0)")
        if ITS: a("v_writelane_b32 v167, s4, m0")
        if ph % 2 == 1: a(f"v_readfirstlane_b32 s{sRDY}, v{vT1}")
        a(f"s_cmp_ge_u32 s{sT}, s{(sG0, sG1)[ph % 2]}"); a(f"s_cbranch_scc1 NOG_{ph}")
        gathers(a, R2)
        a(f"NOGD_{ph}:")
        stubs(f"NOG_{ph}:"); stubs("s_waitcnt vmcnt(0)"); stubs(f"s_branch NOGD_{ph}")
        if ph % 2 == 1: publish(a)
        poll(a, stubs, ph)
        a(f"ds_read_b128 {vr(IX,4)}, v{vEA} offset:{(ph+1)*1024}"); a(f"ds_read_b128 {vr(IX+4,4)}, v{vOT} offset:{(ph+1)*1024}")
        for i in range(16):
            if i % 4 == 0: a(ms[i // 4])
            a(f"v_exp_f32 v{Gc+i}, v{Gc+i}")
        prio(a, 1)
        if SHL64:
            for i in range(0, 16, 2): a(f"v_lshlrev_b64 {vr(R0+i,2)}, 16, {vr(R0+i,2)}")
        else:
            for i in range(16): a(f"v_lshlrev_b32 v{R0+i}, 16, v{R0+i}")
        for i in range(0, 16, 2): a(f"v_pk_add_f32 {vr(Gc+i,2)}, {vr(Gc+i,2)}, 1.0 op_sel_hi:[1,0]")
        prio(a, 2)
        for i in range(16):
            if i == 4:
                a("s_waitcnt vmcnt(16) lgkmcnt(0)")
                a(f"{MF} {vr(Gn,16)}, {vr(IX,4)}, {vr(WC,4)}, {vr(R1,16)}")
            if i == 8: a(f"{MF} {vr(Gn,16)}, {vr(IX+4,4)}, {vr(APn,4)}, {vr(Gn,16)}")
            a(f"v_rcp_f32 v{Gc+i}, v{Gc+i}")
            if i == 9:
                for u in range(4): a(f"ds_read_b64_tr_b16 {vr(SA+2*u,2)}, v{vS} offset:{ph*1024+u*256}")
                idx_reads(a, ph + 3)
                if ph % 2 == 0: a(f"ds_read_b32 v{vT1}, v{vT0} offset:{L_RDY}")
        prio(a, 3)
        for i in range(0, 16, 2): a(f"v_pk_mul_f32 {vr(R0+i,2)}, {vr(R0+i,2)}, {vr(Gc+i,2)}")
        for i in range(8): a(f"v_cvt_pk_bf16_f32 v{Gc+i}, v{Gc+2*i}, v{Gc+2*i+1}")
        for i in range(8): a(f"v_cvt_pk_bf16_f32 v{Gc+8+i}, v{R0+2*i}, v{R0+2*i+1}")
        a(f"s_cmp_ge_u32 s{sT}, s{sTEND}"); a(f"s_cbranch_scc1 DRAIN_{ph%2}")
        a(f"NEXT_{ph}:")
        stubs(f"SKIP_{ph}:")
        stubs(f"s_add_u32 s{sT}, s{sT}, 1"); stubs("s_waitcnt lgkmcnt(0)")
        st2 = A()
        if ph % 2 == 1: publish(stubs)
        poll(stubs, st2, f"S{ph}")
        stubs(f"ds_read_b128 {vr(IX,4)}, v{vEA} offset:{(ph+1)*1024}"); stubs(f"ds_read_b128 {vr(IX+4,4)}, v{vOT} offset:{(ph+1)*1024}")
        for m in ms: stubs(m)
        for r in range(0, 16, 2): stubs(f"v_mov_b64 {vr(Gc+r,2)}, 0")
        for j in range(0, 8, 2): stubs(f"v_mov_b64 {vr(SA+j,2)}, 0")
        stubs("s_waitcnt vmcnt(0) lgkmcnt(0)")
        stubs(f"{MF} {vr(Gn,16)}, {vr(IX,4)}, {vr(WC,4)}, {vr(R1,16)}")
        stubs(f"{MF} {vr(Gn,16)}, {vr(IX+4,4)}, {vr(APn,4)}, {vr(Gn,16)}")
        stubs("s_nop 3")
        idx_reads(stubs, ph + 3)
        stubs(f"s_branch NEXT_{ph}")
        stubs.l += st2.l
    a(f"v_add_u32 v{vIDX}, {6*128}, v{vIDX}"); a(f"v_add_u32 v{vEA}, {6*1024}, v{vEA}")
    a(f"v_add_u32 v{vOT}, {6*1024}, v{vOT}"); a(f"v_add_u32 v{vSa}, {6*1024}, v{vSa}")
    a(f"v_cndmask_b32_e64 v{vS0}, 0, v{vSa}, s[{sM0}:{sM0+1}]"); a(f"v_cndmask_b32_e64 v{vS1}, 0, v{vSa}, s[{sM1}:{sM1+1}]")
    a("s_branch LOOP")
    for p in range(2):
        a(f"DRAIN_{p}:"); a("s_waitcnt lgkmcnt(0)")
        for m in ms_list(G[p]): a(m)
        if p == 0: a("s_branch RDONE")
    a("RDONE:")
    a(f"v_mov_b32 v{vT1}, 16"); a(f"ds_add_u32 v{vT0}, v{vT1} offset:{L_PROG}")
    a(f"s_cmp_lg_u32 s{sMODE}, 0"); a("s_cbranch_scc1 SLOWNEXT")
    a("EPI:")
    stamp(a, "loopend")
    XD = IX
    for r in range(0, 16, 2): a(f"v_mov_b64 {vr(XD+r,2)}, 0")
    a("v_bfe_u32 v2, v0, 5, 1"); a("v_bfe_u32 v3, v0, 3, 2")
    a(f"s_lshl_b32 s{sTMP+3}, s{sCG}, 2")
    a("v_lshl_or_b32 v3, v2, 2, v3"); a(f"v_xor_b32 v3, s{sTMP+3}, v3")
    a("v_and_b32 v4, 7, v0"); a("v_lshlrev_b32 v4, 1, v4"); a("v_lshl_or_b32 v3, v3, 4, v4")
    a(f"s_lshl_b32 s{sTMP}, s{sBETA}, 13"); a(f"s_add_u32 s{sTMP}, s{sTMP}, {L_X}")
    a(f"v_lshl_add_u32 v2, v2, 10, s{sTMP}"); a(f"v_add_u32 v{SA}, v2, v3")
    for r in range(1, 8): a(f"v_xor_b32 v{SA+r}, {(8*(r>>2)+(r&3))*16}, v{SA}")
    for r in range(16): a(f"ds_read_u16_d16_hi v{XD+r}, v{SA+(r&7)} offset:{(8*(r>>2)+(r&3))*256}")
    a(f"s_mov_b32 s{sTMP+4}, 0x358637bd"); a(f"s_mov_b32 s{sTMP+5}, 0x358637bd")
    for r in range(0, 16, 2): a(f"v_pk_add_f32 {vr(DEN+r,2)}, {vr(DEN+r,2)}, s[{sTMP+4}:{sTMP+5}]")
    for r in range(16): a(f"v_rcp_f32 v{DEN+r}, v{DEN+r}")
    a("v_bfe_u32 v2, v0, 2, 4"); a("v_and_b32 v3, 3, v0"); a(f"v_or_b32 v4, s{sTMP+3}, v3"); a("v_xor_b32 v4, v4, v2")
    a("v_lshlrev_b32 v4, 4, v4"); a("v_lshl_add_u32 v4, v2, 8, v4"); a(f"v_add_u32 v4, s{sTMP}, v4")
    a("v_bfe_u32 v5, v0, 2, 2"); a("v_bfe_u32 v6, v0, 4, 1"); a("v_lshl_or_b32 v5, v6, 3, v5")
    a("v_bfe_u32 v6, v0, 5, 1"); a("v_lshl_or_b32 v5, v6, 2, v5"); a("v_lshlrev_b32 v3, 4, v3"); a("v_lshl_or_b32 v5, v5, 18, v3")
    a(f"s_lshl_b32 s{sTMP}, s{sBETA}, 17"); a(f"s_lshl_b32 s{sTMP+1}, s2, 8"); a(f"s_add_u32 s{sTMP}, s{sTMP}, s{sTMP+1}")
    a(f"s_lshl_b32 s{sTMP+1}, s{sCG}, 6"); a(f"s_add_u32 s{sTMP}, s{sTMP}, s{sTMP+1}"); a(f"s_add_u32 s{sTMP+1}, s{sTMP}, 0x10000")
    UD = G[0]
    for r in range(16):
        a(f"v_and_b32 v{UD+r}, 0xffff0000, v{UP+r//2}" if r & 1 else f"v_lshlrev_b32 v{UD+r}, 16, v{UP+r//2}")
    for r in range(0, 16, 2): a(f"v_pk_fma_f32 {vr(UD+r,2)}, {vr(NUM+r,2)}, {vr(DEN+r,2)}, {vr(UD+r,2)}")
    for r in range(16): a(f"v_max_f32 v{UD+r}, 0, v{UD+r}")
    a("s_waitcnt lgkmcnt(0)")
    for r in range(0, 16, 2): a(f"v_pk_add_f32 {vr(UD+r,2)}, {vr(UD+r,2)}, {vr(XD+r,2)}")
    for j in range(8): a(f"v_cvt_pk_bf16_f32 v{XD+j}, v{UD+2*j}, v{UD+2*j+1}")
    for r in range(16):
        a(f"{'ds_write_b16_d16_hi' if r & 1 else 'ds_write_b16'} v{SA+(r&7)}, v{XD+r//2} offset:{(8*(r>>2)+(r&3))*256}")
    a(f"ds_read_b128 {vr(UD,4)}, v4"); a(f"ds_read_b128 {vr(UD+4,4)}, v4 offset:4096")
    a("s_waitcnt lgkmcnt(1)"); a(f"buffer_store_dwordx4 {vr(UD,4)}, v5, {D(dOUT)}, s{sTMP} offen")
    a("s_waitcnt lgkmcnt(0)"); a(f"buffer_store_dwordx4 {vr(UD+4,4)}, v5, {D(dOUT)}, s{sTMP+1} offen")
    if STAMP:
        a("s_waitcnt vmcnt(0)"); a(f"s_add_u32 s6, s{sL0}, s{sL1}"); a("s_lshr_b32 s6, s6, 1")
    stamp(a, "end"); stamp_out(a, "s6")
    a("F_END:")
    a("s_endpgm")
    a.l += stubs.l
    a("SLOWNEXT:")
    a(f"s_cmp_eq_u32 s{sROUND}, 999"); a("s_cbranch_scc1 EPI")
    a(f"s_add_u32 s{sROUND}, s{sROUND}, 1")
    a("OVF:")
    a(f"s_mov_b32 s{sMODE}, 1")
    a("s_waitcnt vmcnt(0) lgkmcnt(0)"); a("s_barrier"); a("s_branch ROUND")
    a("SLOWSRC:")
    a(f"s_mul_i32 s{sTMP}, s{sROUND}, 1600"); a(f"v_lshlrev_b32 v{LRO}, 2, v0")
    a(f"buffer_load_dword v{LKEY}, v{LRO}, {D(dDST)}, s{sTMP} offen"); a(f"buffer_load_dword v{LOFF}, v{LRO}, {D(dSRC)}, s{sTMP} offen")
    a(f"s_mul_i32 s{sTMP+2}, s{sROUND}, {400*32}")
    a(f"v_lshl_add_u32 v{LTMP}, v0, 5, 1"); a(f"v_mov_b32 v{LCHV}, s{sTMP+2}")
    a("s_waitcnt vmcnt(0) lgkmcnt(0)"); a("s_barrier")
    a(f"v_lshl_or_b32 v{LTMP}, v{LOFF}, 18, v{LTMP}"); a(f"v_lshrrev_b32 v{LTMP+1}, 10, v{LKEY}")
    a(f"v_add_u32 v{RECQ[0]}, v{LTMP+1}, v{LTMP}")
    a(f"v_and_b32 v{LTMP+1}, 255, v{LKEY}"); a(f"v_cmp_eq_u32 vcc, s2, v{LTMP+1}")
    a(f"v_lshrrev_b32 v{LOFF}, 7, v{LOFF}"); a(f"v_and_b32 v{LOFF}, 24, v{LOFF}")
    a(f"v_cndmask_b32_e64 v{LOFF+1}, 0, 1, vcc"); a("v_cmp_gt_u32 vcc, 400, v0")
    a(f"v_bfe_u32 v{LKEY}, v{LKEY}, 8, 2"); a(f"v_lshlrev_b32 v{LOFF+1}, v{LOFF}, v{LOFF+1}"); a(f"v_lshlrev_b32 v{LKEY}, 3, v{LKEY}")
    a(f"v_cndmask_b32 v{LOFF+1}, 0, v{LOFF+1}, vcc")
    a("s_branch ALLOC")
    a("HELP:")
    a("s_cmp_lg_u32 s3, 8"); a("s_cbranch_scc1 H_NS")
    a(f"s_and_b32 s{sTMP}, s{sID}, 31"); a(f"s_lshl_b32 s{sTMP}, s{sTMP}, 7")
    a(f"s_lshr_b32 s{sTMP+1}, s{sID}, 5"); a(f"s_lshl_b32 s{sTMP+1}, s{sTMP+1}, 2")
    a(f"s_add_u32 s{sTMP}, s{sTMP}, s{sTMP+1}"); a(f"s_add_u32 s{sTMP}, s{sTMP}, {WS_ARR:#x}")
    a("v_mov_b32 v4, 1")
    a("s_mov_b64 exec, 1")
    need_clear("A")
    a(f"buffer_store_dword v4, v{vT0}, {D(dWS)}, s{sTMP} offen sc1")
    a("s_mov_b64 exec, -1")
    a("H_NS:")
    a(f"s_mov_b32 s{sTMP+5}, 0")
    a("s_cmp_eq_u32 s3, 8"); a("s_cbranch_scc1 H_MAIL")
    a("s_cmp_lg_u32 s3, 9"); a("s_cbranch_scc1 H_GO")
    a(f"s_cmp_ge_u32 s{sID}, {NCOL}"); a("s_cbranch_scc1 H_GO")
    a("s_mov_b64 exec, 1")
    need_clear("C")
    a("s_mov_b64 exec, -1")
    a(f"s_mov_b32 s{sTMP+5}, 0")
    a(f"v_lshrrev_b32 v4, 1, v{vL}"); a(f"v_and_b32 v5, 1, v{vL}"); a("v_lshlrev_b32 v5, 4, v5")
    a("v_lshl_add_u32 v4, v4, 7, v5"); a(f"v_add_u32 v4, {WS_ARR:#x}, v4")
    a("H_COL:")
    a(f"buffer_load_dwordx4 v[8:11], v4, {D(dWS)}, 0 offen sc1")
    a(f"s_add_u32 s{sTMP+5}, s{sTMP+5}, 1"); a(f"s_cmp_gt_u32 s{sTMP+5}, {SPIN:#x}"); a("s_cbranch_scc1 H_POST")
    a("s_waitcnt vmcnt(0)")
    a("v_and_b32 v8, v8, v9"); a("v_and_b32 v10, v10, v11"); a("v_and_b32 v8, v8, v10")
    a("v_cmp_ne_u32 vcc, 1, v8"); a("s_cbranch_vccz H_POST")
    if MSLP: a(f"s_sleep {MSLP}")
    a("s_branch H_COL")
    a("H_POST:")
    a(f"v_mul_u32_u24 v4, {NCOL*128}, v{vL}"); a("v_mov_b32 v6, 1")
    a(f"s_lshl_b32 s{sTMP}, s{sID}, 7"); a(f"s_add_u32 s{sTMP}, s{sTMP}, {WS_MB:#x}")
    nl = 256 // NCOL
    assert nl <= 64
    a(f"s_mov_b32 exec_lo, {(1 << min(nl,32)) - 1:#x}"); a(f"s_mov_b32 exec_hi, {(1 << max(nl-32,0)) - 1:#x}")
    a(f"buffer_store_dword v6, v4, {D(dWS)}, s{sTMP} offen sc1")
    a("s_mov_b64 exec, -1")
    a("s_branch H_GO")
    a("H_MAIL:")
    a(f"s_lshl_b32 s{sTMP+8}, s{sID}, 7"); a(f"s_add_u32 s{sTMP+8}, s{sTMP+8}, {WS_MB:#x}")
    a("s_mov_b64 exec, 1")
    a("H_ML:")
    a(f"buffer_load_dword v5, v{vT0}, {D(dWS)}, s{sTMP+8} offen sc1")
    a(f"s_add_u32 s{sTMP+5}, s{sTMP+5}, 1"); a(f"s_cmp_gt_u32 s{sTMP+5}, {SPIN:#x}"); a("s_cbranch_scc1 H_MD")
    a("s_waitcnt vmcnt(0)")
    a("v_cmp_eq_u32 vcc, 0, v5"); a("s_cbranch_vccz H_MD")
    if SLP: a(f"s_sleep {SLP}")
    a("s_branch H_ML")
    a("H_MD:")
    a("s_mov_b64 exec, -1")
    a("H_GO:")
    a("s_waitcnt vmcnt(0)")
    a(f"v_lshlrev_b32 v14, 7, v{vL}"); a(f"s_lshl_b32 s{sTMP}, s{sU}, 13"); a(f"v_add_u32 v14, s{sTMP}, v14")
    a(f"s_lshr_b32 s{sTMP+10}, s{sCG}, 1"); a(f"s_lshl_b32 s{sTMP+10}, s{sTMP+10}, 21")
    a(f"s_and_b32 s{sTMP+1}, s{sCG}, 1"); a(f"s_lshl_b32 s{sTMP+1}, s{sTMP+1}, 18"); a(f"s_add_u32 s{sTMP+10}, s{sTMP+10}, s{sTMP+1}")
    a("PROUND:")
    a(f"v_and_b32 v15, 3, v{vL}"); a("v_lshlrev_b32 v15, 3, v15")
    a(f"v_lshrrev_b32 v2, 1, v{vL}"); a("v_lshlrev_b32 v2, 2, v2")
    a(f"v_and_b32 v3, 1, v{vL}"); a("v_lshlrev_b32 v3, 4, v3")
    a("v_mov_b32 v5, 1")
    a(f"v_and_b32 v10, 7, v{vL}"); a(f"v_bfe_u32 v11, v{vL}, 3, 1"); a("v_lshlrev_b32 v10, 1, v10")
    a("v_lshl_add_u32 v10, v11, 8, v10"); a(f"v_lshl_add_u32 v10, v{vL}, 4, v10"); a("v_mov_b32 v11, 0x3f80")
    stamp(a, "pre")
    a("s_barrier")
    stamp(a, "go")
    a("s_mov_b64 exec, 0x1fff"); a(f"ds_write_b16 v10, v11 offset:{L_LUT+16}"); a("s_mov_b64 exec, -1")
    a("s_barrier")
    a(f"ds_read_b64 v[8:9], v15 offset:{L_CNT}")
    for i in range(PF):
        a(f"buffer_load_dword v160, v14, {D(dTAB)}, s{sTMP+10} offen sc1"); a(f"s_add_u32 s{sTMP+10}, s{sTMP+10}, {2*2097152:#x}")
    a(f"s_mov_b32 s{sTMP+10}, 0x1000000")
    a("s_waitcnt lgkmcnt(0)")
    totals(a, 8)
    a("s_cbranch_scc1 POVF")
    a("s_cmp_lg_u32 s3, 8"); a("s_cbranch_scc1 EXP")
    a(f"s_max_u32 s{sTEND}, s{sC+4}, s{sC+5}")
    a(f"s_lshl_b32 s{sTMP+2}, s{sC+4}, 7"); a(f"v_add_u32 v6, s{sTMP+2}, v2")
    a(f"s_mov_b32 s{sT}, 0"); a(f"s_mov_b32 s{sTMP}, {L_EA}"); a(f"s_mov_b32 s{sTMP+3}, {-4*(PK+LEADX)}"); a(f"s_mov_b32 s{sRDY}, 0")
    a(f"s_lshl_b32 s{sTMP+1}, s{sC+4}, 10"); a(f"s_add_u32 s{sTMP+1}, s{sTMP+1}, {L_EA}")
    a(f"s_mov_b32 s{sTMP+6}, -32"); a(f"s_mov_b32 s{sTMP+7}, 0")
    a("s_barrier")
    stamp(a, "bar2")
    a(f"ds_read_b32 v10, v2 offset:{L_EOF}"); a(f"ds_read_b32 v11, v6 offset:{L_EOF}")
    a("PSTEP:")
    a(f"s_cmp_ge_u32 s{sT}, s{sTEND}"); a("s_cbranch_scc1 PDRAIN")
    a(f"s_cmp_lt_i32 s{sRDY}, s{sTMP+3}"); a("s_cbranch_scc1 PW")
    a("PWD:")
    a(f"s_min_u32 m0, s{sTMP}, {L_EA + NT*1024}")
    a("s_waitcnt lgkmcnt(0)")
    for hb in range(2):
        a(f"v_mov_b32 v{12+hb}, v3" if NOEA else f"v_and_or_b32 v{12+hb}, v{10+hb}, s{sTMP+6}, v3")
    a("v_add_u32 v2, 128, v2"); a("v_add_u32 v6, 128, v6")
    a(f"buffer_load_dwordx4 v12, {D(dEA)}, 0 offen lds")
    a(f"s_min_u32 m0, s{sTMP+1}, {L_EA + NT*1024}")
    a(f"ds_read_b32 v10, v2 offset:{L_EOF}")
    a(f"buffer_load_dwordx4 v13, {D(dEA)}, 0 offen lds")
    a(f"ds_read_b32 v11, v6 offset:{L_EOF}")
    a(f"s_add_u32 s{sTMP}, s{sTMP}, 1024"); a(f"s_add_u32 s{sTMP+1}, s{sTMP+1}, 1024")
    a(f"s_add_i32 s{sTMP+3}, s{sTMP+3}, 4"); a(f"s_add_u32 s{sT}, s{sT}, 1")
    if STAMP and ITS:
        a("s_memtime s[4:5]"); a(f"s_add_u32 m0, s{sT}, 19"); a("s_waitcnt lgkmcnt(0)"); a("v_writelane_b32 v167, s4, m0")
    a(f"s_cmp_le_u32 s{sT}, {PK}"); a("s_cbranch_scc1 PSTEP")
    a(f"s_cmp_eq_u32 s{sTMP+7}, 0"); a("s_cbranch_scc1 PO")
    a("POD:")
    a("s_mov_b64 exec, 1"); a(f"s_waitcnt vmcnt({2*PK})"); a(f"ds_add_u32 v{vT0}, v5 offset:{L_RDY}"); a("s_mov_b64 exec, -1")
    a("s_branch PSTEP")
    a("PW:")
    a(f"ds_read_b32 v8, v{vT0} offset:{L_PROG}"); a("s_waitcnt lgkmcnt(0)"); a(f"v_readfirstlane_b32 s{sRDY}, v8")
    a(f"s_cmp_ge_i32 s{sRDY}, s{sTMP+3}"); a("s_cbranch_scc1 PWD"); a("s_sleep 2"); a("s_branch PW")
    a("PO:")
    a(f"ds_read_b32 v8, v{vT0} offset:{L_OD}"); a("s_waitcnt lgkmcnt(0)"); a(f"v_readfirstlane_b32 s{sTMP+7}, v8")
    a(f"s_cmp_ge_u32 s{sTMP+7}, 3"); a("s_cbranch_scc1 POD"); a("s_sleep 1"); a("s_branch PO")
    a("EXP:")
    EBN = 4
    a(f"s_sub_u32 s{sT}, s3, 9")
    a(f"s_mul_i32 s{sTMP}, s{sT}, {EBN*128}"); a(f"v_add_u32 v2, s{sTMP}, v2")
    a(f"s_mul_i32 s{sTMP}, s{sT}, {EBN*1024}"); a(f"s_add_u32 s{sTMP}, s{sTMP}, {L_O}"); a(f"v_lshl_add_u32 v6, v{vL}, 4, s{sTMP}")
    a("v_lshlrev_b32 v3, 4, v3"); a(f"s_mul_i32 s{sT}, s{sT}, {EBN}")
    a("s_barrier")
    a("ELOOP:")
    a(f"s_cmp_ge_u32 s{sT}, s{sC+6}"); a("s_cbranch_scc1 EDONE")
    for i in range(EBN): a(f"ds_read_b32 v{10+i}, v2 offset:{L_EOF+128*i}")
    a(f"v_add_u32 v2, {3*EBN*128}, v2"); a(f"s_add_u32 s{sT}, s{sT}, {3*EBN}")
    a("s_waitcnt lgkmcnt(0)")
    for i in range(EBN):
        a(f"v_and_b32 v{10+i}, 31, v{10+i}"); a(f"v_lshl_add_u32 v{10+i}, v{10+i}, 4, v3")
        a(f"ds_read_b128 {vr(16+4*i,4)}, v{10+i} offset:{L_LUT}")
    for i in range(EBN):
        a(f"s_waitcnt lgkmcnt({EBN-1})"); a(f"ds_write_b128 v6, {vr(16+4*i,4)} offset:{1024*i}")
    a(f"v_add_u32 v6, {3*EBN*1024}, v6"); a("s_branch ELOOP")
    a("EDONE:")
    a("s_mov_b64 exec, 1"); a("s_waitcnt lgkmcnt(0)"); a(f"ds_add_u32 v{vT0}, v5 offset:{L_OD}"); a("s_mov_b64 exec, -1")
    a("s_branch PFIN")
    a("PDRAIN:")
    a(f"ds_read_b32 v8, v{vT0} offset:{L_OD}"); a("s_waitcnt lgkmcnt(0)"); a(f"v_readfirstlane_b32 s{sTMP+7}, v8")
    a(f"s_cmp_lt_u32 s{sTMP+7}, 3"); a("s_cbranch_scc1 PDRAIN")
    a("s_mov_b64 exec, 1")
    for k in range(PK - 1, 0, -1):
        a(f"s_cmp_le_u32 s{sT}, {k}"); a(f"s_cbranch_scc1 PD_{k}")
        a(f"s_waitcnt vmcnt({2*k})"); a(f"ds_add_u32 v{vT0}, v5 offset:{L_RDY}"); a(f"PD_{k}:")
    a("v_mov_b32 v5, 0x7fffffff"); a("s_waitcnt vmcnt(0)"); a(f"ds_write_b32 v{vT0}, v5 offset:{L_RDY}")
    a("s_mov_b64 exec, -1")
    stamp(a, "loopend"); stamp_out(a, "0")
    a("PFIN:")
    a(f"s_cmp_eq_u32 s{sMODE}, 0"); a("s_cbranch_scc1 PEND")
    a(f"s_cmp_eq_u32 s{sROUND}, 999"); a("s_cbranch_scc1 PEND")
    a(f"s_add_u32 s{sROUND}, s{sROUND}, 1")
    a("POVF:")
    a(f"s_mov_b32 s{sMODE}, 1")
    a("s_waitcnt vmcnt(0) lgkmcnt(0)"); a("s_barrier"); a("s_branch PROUND")
    a("PEND:")
    a("s_endpgm")
    a("CODE_END:")

def main(out):
    K = "standalone__edge_featured_mpnn_gatedgcn__graph_kernel"
    head = []
    for line in open("standalone__edge_featured_mpnn_gatedgcn__graph.s.ref").read().split("\n"):
        if not line.startswith(";"): break
        if "@launch" in line or "Override launch" in line or "grid=ceil" in line: continue
        head.append(line)
    a = A(); gen(a, K)
    t = "\n".join(head) + "\n"
    t += (f"; @launch kernel={K} " if LIST else "; @launch ") + f"grid=(256,1,1) block=(768,1,1) lds={L_TOTAL}\n"
    t += '.amdgcn_target "amdgcn-amd-amdhsa--gfx950"\n.text\n'
    t += f".globl {K}\n.p2align 8\n.type {K},@function\n" + a.text()
    t += f'''.section .rodata,"a"
.p2align 6
.amdhsa_kernel {K}
  .amdhsa_next_free_vgpr 168
  .amdhsa_next_free_sgpr 102
  .amdhsa_accum_offset 168
  .amdhsa_group_segment_fixed_size 0
  .amdhsa_kernarg_size 96
  .amdhsa_user_sgpr_count 2
  .amdhsa_user_sgpr_kernarg_segment_ptr 1
  .amdhsa_system_sgpr_workgroup_id_x 1
.end_amdhsa_kernel
'''
    if STAMP: t = "; stamps " + ",".join(NAMES) + "\n" + t
    open(out, "w").write(t)

if __name__ == "__main__":
    main(sys.argv[1] if len(sys.argv) > 1 else "standalone__edge_featured_mpnn_gatedgcn__graph.s")
```

```python
import sys, os

N, E = 12500, 400000
NS, CH = 125, 3200
NG = 131
WS_TAB, WS_REC, WS_ARR, WS_OFF = 0, 0x620000, 0x7B0000, 0x7D0000
NLOG2E = 0xbfb8aa3b
env = lambda k, d: type(d)(os.environ.get(k, d))
STAMP = env("STAMP", 0); STAMPS = env("STAMPS", "all").split(","); ITS = env("ITS", 0)
PK = env("PK", 1); LEADX = env("LEADX", 4); PRIO = env("PRIO", "3210")
SHL64 = env("SHL64", 1); PF = env("PF", 2); PFW = env("PFW", 0); G1LATE = env("G1LATE", 0); NOEA = env("NOEA", 0)
SDPOL = env("SDPOL", "nt"); SIG = env("SIG", "byte"); SLP = env("SLP", 2); MSLP = env("MSLP", 1)
NCOL = env("NCOL", 8); CODEPF = env("CODEPF", 1); PDEL = env("PDEL", 0); NREP = env("NREP", 16); CDEPTH = env("CDEPTH", 1); HS2 = env("HS2", 0); TLB = env("TLB", 0); TLBSH = env("TLBSH", 18); EPF = env("EPF", 0); HPRIO = env("HPRIO", 3); HOOKK = env("HOOKK", 5); HPLAN = env("HPLAN", "011"); PPRIO = env("PPRIO", 0); LIST = env("LIST", 0); DBG = env("DBG", "")
SPIN = 0x100000
MF = "v_mfma_f32_32x32x16_bf16"

class A:
    def __init__(self): self.l = []
    def __call__(self, s):
        for line in s.strip("\n").split("\n"):
            line = line.strip()
            if line:
                self.l.append(line if line.endswith(":") else "    " + line)
    def text(self): return "\n".join(self.l) + "\n"
def vr(a, n): return f"v[{a}:{a+n-1}]"

NT = 60
L_CNT, L_RDY, L_PROG, L_AD, L_OD, L_LUT = 64, 96, 100, 104, 108, 272
L_IDX = 6144
L_EOF = L_IDX + NT * 128
L_O = L_EOF + NT * 128
L_EA = L_O + NT * 1024
L_X = L_EA + 65536
L_TOTAL = L_X + 15360
S_CNT = 25600
S_TOT, S_BAD, S_TBL, S_SRT = S_CNT + 4096, S_CNT + 4128, S_CNT + 4352, S_CNT + 12544
L_X96 = L_TOTAL - 24576
L_WBV, L_WAU = 8192, 73728
assert L_WAU + 65536 == L_X96
vIDX, vEA, vOT, vSa, vS0, vS1, vT0 = 1, 2, 3, 4, 5, 6, 7
IX, SA, WC, AP, UP, DEN, NUM = 8, 24, 32, 36, 44, 52, 68
G = [84, 100]
RAW = [116, 132, 148]
LO, vT1 = 164, 166
RECQ = [116, 120, 124, 128]
LOFF, LCHV, LKEY, LRO, LLEN, LC, LADJ, LTOT, LCB, LONE, LQ4, LTMP = 132, 134, 135, 136, 137, 138, 140, 142, 144, 145, 146, 148
sW = 3
dX, dEA, dWS, dTAB, dOUT, dWC, dW0, dW1, dSRC, dDST = 8, 12, 16, 20, 24, 28, 32, 36, 40, 44
dDBG = 48
sCG, sBETA, sMODE, sROUND, sID, sU, sSTAGE = 52, 53, 54, 55, 56, 57, 58
sT, sTEND, sRDY, sF0, sL0, sL1, sG0, sG1 = 60, 61, 62, 63, 64, 65, 66, 67
sC = 68
sTMP = 76
sM0, sM1 = 88, 90
sPA, sPU = 92, 94
sOK = 96

NAMES = []
def stamp(a, nm):
    if STAMP and (STAMPS == ["all"] or nm in STAMPS):
        if nm not in NAMES: NAMES.append(nm)
        a("s_memtime s[4:5]"); a("s_waitcnt lgkmcnt(0)")
        a(f"v_writelane_b32 v167, s4, {NAMES.index(nm)}")
        rt = {"loop0": 59, "loopend": 60, "arrive": 55, "go": 56, "go2": 57, "bar2": 58}
        if nm in rt:
            a("s_memrealtime s[4:5]"); a("s_waitcnt lgkmcnt(0)")
            a(f"v_writelane_b32 v167, s4, {rt[nm]}")
def stamp_out(a, tiles):
    if STAMP:
        a("s_memrealtime s[4:5]"); a("s_waitcnt lgkmcnt(0)"); a("s_mov_b64 exec, -1")
        a("v_writelane_b32 v167, s4, 62"); a(f"v_writelane_b32 v167, {tiles}, 63")
        a("v_and_b32 v3, 63, v0"); a("v_lshlrev_b32 v3, 2, v3")
        a(f"s_mul_i32 s{sTMP}, s{sID}, 9"); a(f"s_add_u32 s{sTMP}, s{sTMP}, s{sW}")
        a(f"s_lshl_b32 s{sTMP}, s{sTMP}, 8"); a(f"s_add_u32 s{sTMP}, s{sTMP}, 0x900000")
        a(f"s_mov_b32 s{dWS+2}, 0x1000000")
        a(f"buffer_store_dword v167, v3, s[{dWS}:{dWS+3}], s{sTMP} offen")
def D(d): return f"s[{d}:{d+3}]"

def idx_reads(a, rel):
    for q in range(2 if "m16" in DBG else 4):
        a(f"ds_read_b128 {vr(IX+4*q,4)}, v{vIDX} offset:{rel*128+32*q}")
def gathers(a, dst):
    if "m16" in DBG:
        for k in range(0, 8, 2):
            a(f"v_lshl_add_u64 {vr(IX+k,2)}, {vr(IX+k,2)}, 4, {vr(LO,2)}")
        for k in range(16):
            a(f"buffer_load_dword v{dst+k}, v{IX+k//2}, {D(dTAB)}, 0 offen offset:{(k&1)*64} sc1")
        return
    for k in range(0, 16, 2):
        a(f"v_lshl_add_u64 {vr(IX+k,2)}, {vr(IX+k,2)}, 4, {vr(LO,2)}")
    for k in range(16):
        a(f"buffer_load_dword v{dst+k}, v{IX+k}, {D(dTAB)}, 0 offen sc1")
M16 = "v_mfma_f32_16x16x32_bf16"
def ms_list(gx):
    if "m16" in DBG:
        return [f"{M16} {vr(DEN+4*i,4)}, {vr(SA,4)}, {vr(gx+4*i,4)}, {vr(DEN+4*i,4)}" for i in range(4)]
    return [f"{MF} {vr(DEN,16)}, {vr(SA,4)}, {vr(gx,4)}, {vr(DEN,16)}",
            f"{MF} {vr(NUM,16)}, {vr(SA,4)}, {vr(gx+8,4)}, {vr(NUM,16)}",
            f"{MF} {vr(DEN,16)}, {vr(SA+4,4)}, {vr(gx+4,4)}, {vr(DEN,16)}",
            f"{MF} {vr(NUM,16)}, {vr(SA+4,4)}, {vr(gx+12,4)}, {vr(NUM,16)}"]
def poll(a, stubs, tag):
    a(f"s_cmp_le_u32 s{sRDY}, s{sT}"); a(f"s_cbranch_scc1 POLL_{tag}"); a(f"POLLED_{tag}:")
    stubs(f"POLL_{tag}:")
    stubs(f"ds_read_b32 v{vT1}, v{vT0} offset:{L_RDY}"); stubs("s_waitcnt lgkmcnt(0)")
    stubs(f"v_readfirstlane_b32 s{sRDY}, v{vT1}")
    stubs(f"s_cmp_gt_u32 s{sRDY}, s{sT}"); stubs(f"s_cbranch_scc1 POLLED_{tag}")
    stubs("s_sleep 1"); stubs(f"s_branch POLL_{tag}")
def publish(a):
    a("s_mov_b64 exec, 1"); a(f"ds_inc_u32 v{vT0}, v{vEA} offset:{L_PROG}"); a("s_mov_b64 exec, -1")
def prio(a, pos):
    if PRIO[pos] != "-": a(f"s_setprio {PRIO[pos]}")
def totals(a, t):
    a(f"v_add_u32 v{t}, v{t}, v{t+1}")
    a(f"v_add_u32_sdwa v{t}, v{t}, v{t} dst_sel:DWORD dst_unused:UNUSED_PAD src0_sel:WORD_0 src1_sel:WORD_1")
    a(f"v_add_u32 v{t}, 31, v{t}"); a(f"v_lshrrev_b32 v{t}, 4, v{t}"); a(f"v_and_b32 v{t}, -2, v{t}")
    a("s_nop 0")
    for k in range(4): a(f"v_readlane_b32 s{sC+k}, v{t}, {k}")
    a(f"s_sub_i32 s{sC+4}, s{sC}, 1"); a(f"s_sub_i32 s{sC+5}, s{sC+2}, 1")
    a(f"s_max_i32 s{sC+4}, s{sC+4}, s{sC+1}"); a(f"s_max_i32 s{sC+5}, s{sC+5}, s{sC+3}")
    a(f"s_add_u32 s{sC+6}, s{sC+4}, s{sC+5}"); a(f"s_cmp_gt_u32 s{sC+6}, {NT}")

vL, vWS, vTR, XAD, SET, AB, AV = 1, 2, 36, 8, [48, 60, 72], 84, 100

def own_x(a):
    a(f"v_lshrrev_b32 v4, 4, v{vL}"); a(f"v_and_b32 v5, 15, v{vL}")
    a("v_xor_b32 v5, v5, v4"); a("v_lshlrev_b32 v5, 4, v5"); a("v_lshl_add_u32 v16, v4, 18, v5")
    for j in range(1, 4): a(f"v_xor_b32 v{16+j}, {64*j}, v16")
    a(f"s_lshl_b32 s{sTMP}, s2, 8"); a(f"s_lshl_b32 s{sTMP+1}, s{sCG}, 16"); a(f"s_add_u32 s{sTMP}, s{sTMP}, s{sTMP+1}")
    a(f"s_lshl_b32 s{sTMP+2}, s{sCG}, 12"); a(f"s_add_u32 s{sTMP+2}, s{sTMP+2}, {L_X}")
    for j in range(4):
        c16 = 8 * (j & 1) + 4 * (j >> 1)
        a(f"s_add_u32 m0, s{sTMP+2}, {j*1024}"); a(f"s_add_u32 s{sTMP+1}, s{sTMP}, {c16*4*65536:#x}")
        a(f"buffer_load_dwordx4 v{16+j}, {D(dX)}, s{sTMP+1} offen lds")
def w_group(a, sreg, lds):
    for d, base in ((dW0, lds), (dW1, lds + 32768)):
        a(f"s_add_u32 m0, s{sreg}, {base}"); a("s_nop 0")
        for i in range(4):
            a(f"buffer_load_dwordx4 v{vWS}, {D(d)}, s{sreg} offen offset:{i*1024} lds")

def gen(a, name):
    stubs = A()
    a(f"{name}:")
    a("s_cmp_ge_u32 s2, 256"); a("s_cbranch_scc1 F_END")
    a(f"s_load_dwordx2 s[{dDST}:{dDST+1}], s[0:1], 24")
    a(f"s_load_dwordx2 s[{dSRC}:{dSRC+1}], s[0:1], 16")
    a(f"s_load_dwordx2 s[{dX}:{dX+1}], s[0:1], 0")
    a(f"s_load_dwordx2 s[{dW0}:{dW0+1}], s[0:1], 40")
    a(f"s_load_dwordx2 s[{dW1}:{dW1+1}], s[0:1], 64")
    a(f"s_load_dwordx2 s[{sPA}:{sPA+1}], s[0:1], 32")
    a(f"s_load_dwordx2 s[{sPU}:{sPU+1}], s[0:1], 56")
    a(f"s_load_dwordx2 s[{dWC}:{dWC+1}], s[0:1], 48")
    a(f"v_lshrrev_b32 v{vWS}, 6, v0")
    a(f"v_and_b32 v{vL}, 63, v0")
    a(f"v_readfirstlane_b32 s{sW}, v{vWS}")
    a(f"s_mov_b32 s{sID}, s2")
    a(f"s_lshr_b32 s{sU}, s2, 3"); a("s_and_b32 s2, s2, 7"); a("s_lshl_b32 s2, s2, 5"); a(f"s_or_b32 s2, s2, s{sU}")
    for d, nb in ((dDST, E*4), (dSRC, E*4), (dX, N*256), (dW0, 32768), (dW1, 32768), (dWC, 4096)):
        a(f"s_mov_b32 s{d+2}, {nb:#x}"); a(f"s_mov_b32 s{d+3}, 0x20000")
    a(f"s_and_b32 s{sCG}, s{sW}, 3")
    a(f"v_lshrrev_b32 v4, 4, v{vL}"); a("v_lshlrev_b32 v5, 2, v4"); a(f"v_and_b32 v6, 15, v{vL}")
    a("v_xor_b32 v5, v5, v6"); a("v_lshlrev_b32 v5, 4, v5"); a(f"v_lshl_add_u32 v{vWS}, v4, 8, v5")
    a(f"v_mov_b32 v{vT0}, 0")
    a("v_mov_b32 v32, 0")
    if STAMP:
        a("v_mov_b32 v167, 0"); a("s_memrealtime s[6:7]"); a("s_waitcnt lgkmcnt(0)"); a("v_writelane_b32 v167, s6, 61")
    stamp(a, "start")
    if CODEPF:
        a("s_cmp_lg_u32 s3, 0"); a("s_cbranch_scc1 NOCPF")
        a(f"s_getpc_b64 s[{sTMP}:{sTMP+1}]")
        a("PCREF:")
        a(f"s_lshl_b32 s{sTMP+2}, s{sU}, 7")
        a(f"v_lshl_add_u32 v160, v{vL}, 12, s{sTMP+2}")
        a("v_min_u32 v160, CODE_END-PCREF-4, v160")
        a("v_mov_b32 v161, 0")
        a(f"v_lshl_add_u64 v[160:161], v[160:161], 0, s[{sTMP}:{sTMP+1}]")
        a("s_mov_b64 exec, 31")
        a("global_load_dword v162, v[160:161], off")
        a("s_mov_b64 exec, -1")
        a("NOCPF:")
    def late_args():
        a(f"s_load_dwordx2 s[{dWS}:{dWS+1}], s[0:1], 88")
        a(f"s_load_dwordx2 s[{dTAB}:{dTAB+1}], s[0:1], 88")
        a(f"s_load_dwordx2 s[{dEA}:{dEA+1}], s[0:1], 8")
        a(f"s_load_dwordx2 s[{dOUT}:{dOUT+1}], s[0:1], 72")
        a(f"s_load_dwordx2 s[{dDBG}:{dDBG+1}], s[0:1], 80")
        for d, nb in ((dWS, WS_OFF + NS*8192), (dTAB, N*512), (dEA, E*32), (dOUT, N*256), (dDBG, 256)):
            a(f"s_mov_b32 s{d+2}, {nb:#x}"); a(f"s_mov_b32 s{d+3}, 0x20000")
        a(f"s_mov_b32 s{sMODE}, 0"); a(f"s_mov_b32 s{sROUND}, 0")
        a(f"s_bfe_u32 s{sBETA}, s{sW}, 0x10002")
    def see_clear(tag):
        a(f"s_mov_b32 s{sOK}, 0")
        a("s_cmp_lg_u32 s3, 8"); a(f"s_cbranch_scc1 SC_D{tag}")
        a(f"s_load_dword s{sOK}, s[{dDBG}:{dDBG+1}], 0")
        a(f"SC_D{tag}:")
    def need_clear(tag):
        a("s_waitcnt lgkmcnt(0)")
        a(f"v_mov_b32 v24, s{sOK}")
        a(f"s_mov_b32 s{sTMP+5}, 0")
        a(f"NC_L{tag}:")
        a("v_cmp_eq_u32 vcc, 0, v24"); a(f"s_cbranch_vccz NC_E{tag}")
        a(f"s_add_u32 s{sTMP+5}, s{sTMP+5}, 1"); a(f"s_cmp_gt_u32 s{sTMP+5}, {SPIN:#x}"); a(f"s_cbranch_scc1 NC_E{tag}")
        a(f"buffer_load_dword v24, v{vT0}, {D(dDBG)}, 0 offen sc1")
        a("s_waitcnt vmcnt(0)"); a(f"s_branch NC_L{tag}")
        a(f"NC_E{tag}:")
    def page_touch(tag):
        if not TLB: return
        a(f"s_cmp_lg_u32 s3, {tag[1]}"); a(f"s_cbranch_scc1 PT_{tag[0]}")
        a(f"v_lshlrev_b32 v163, {TLBSH}, v{vL}")
        a("s_waitcnt lgkmcnt(0)")
        a(f"buffer_load_dword v162, v163, {D(dEA)}, 0 offen")
        if TLB > 1:
            a(f"buffer_load_dword v162, v163, {D(dOUT)}, 0 offen")
        a(f"PT_{tag[0]}:")
    def wait_flags(stage):
        a(f"s_mov_b32 s{sTMP+5}, 0")
        if stage == 1:
            a("s_mov_b32 exec_hi, 0")
        for k in range(CDEPTH - 1):
            a(f"buffer_load_dwordx4 {vr(40+4*k,4)}, v32, {D(dWS)}, 0 offen sc1"); a(f"s_sleep {SLP}")
        a(f"WAITF{stage}:")
        for k in range(CDEPTH):
            b = 40 + 4 * k
            a(f"buffer_load_dwordx4 {vr(40+4*((k+CDEPTH-1)%CDEPTH),4)}, v32, {D(dWS)}, 0 offen sc1")
            a(f"s_waitcnt vmcnt({CDEPTH-1})")
            if stage == 1: a(f"v_or_b32 v{b+3}, v{b+3}, v36")
            a(f"v_and_b32 v{b}, v{b}, v{b+1}"); a(f"v_and_b32 v{b+2}, v{b+2}, v{b+3}"); a(f"v_and_b32 v{b}, v{b}, v{b+2}")
            a(f"v_cmpx_ne_u32 vcc, 1, v{b}"); a(f"s_cbranch_execz ALLIN{stage}")
            if SLP: a(f"s_sleep {SLP}")
        a(f"s_add_u32 s{sTMP+5}, s{sTMP+5}, 1"); a(f"s_cmp_lt_u32 s{sTMP+5}, {SPIN:#x}"); a(f"s_cbranch_scc1 WAITF{stage}")
        a(f"ALLIN{stage}:")
        a("s_mov_b64 exec, -1")
    def wait_alloc(tag, tmp):
        a(f"WA_{tag}:")
        a(f"ds_read_b32 v{tmp}, v{vT0} offset:{L_AD}"); a("s_waitcnt lgkmcnt(0)")
        a(f"v_readfirstlane_b32 s{sTMP+4}, v{tmp}"); a(f"s_cmp_lt_u32 s{sTMP+4}, 8"); a(f"s_cbranch_scc1 WA_{tag}")
    WCR = 152
    def wc_loads():
        a(f"v_and_b32 v{LO}, 31, v0"); a(f"v_bfe_u32 v{LO+1}, v0, 5, 1")
        a(f"s_lshl_b32 s{sTMP+10}, s{sCG}, 6")
        a(f"v_lshl_add_u32 v{vT1}, v{LO}, 1, s{sTMP+10}"); a(f"v_lshl_add_u32 v{vT1}, v{LO+1}, 11, v{vT1}")
        for j in range(8): a(f"buffer_load_ushort v{WCR+j}, v{vT1}, {D(dWC)}, 0 offen offset:{j*256}")
    def gemm_addr(xbase_sreg, wbase):
        a(f"v_lshrrev_b32 v5, 5, v{vL}"); a(f"v_bfe_u32 v4, v{vL}, 2, 2")
        a(f"v_lshl_add_u32 v{vTR}, v5, 3, v4"); a(f"v_lshlrev_b32 v{vTR}, 8, v{vTR}")
        a(f"v_xor_b32 v4, s{sCG}, v4"); a(f"v_lshl_add_u32 v{vTR}, v4, 6, v{vTR}")
        a(f"v_bfe_u32 v4, v{vL}, 4, 1"); a(f"v_lshl_add_u32 v{vTR}, v4, 5, v{vTR}")
        a(f"v_and_b32 v4, 3, v{vL}"); a(f"v_lshl_add_u32 v{vTR}, v4, 3, v{vTR}")
        a(f"v_add_u32 v{vTR}, {wbase}, v{vTR}")
        a(f"v_and_b32 v4, 15, v{vL}"); a("v_xor_b32 v4, v4, v5"); a("v_lshlrev_b32 v4, 4, v4")
        a(f"v_and_b32 v6, 31, v{vL}"); a("v_lshl_add_u32 v4, v6, 8, v4")
        a(f"v_add_u32 v{XAD}, s{xbase_sreg}, v4")
        for kk in range(1, 8): a(f"v_xor_b32 v{XAD+kk}, {kk*32}, v{XAD}")
    a(f"s_cmp_lt_u32 s{sID}, {NS}"); a("s_cbranch_scc1 SORT")
    a(f"s_sub_u32 s{sTMP+9}, s{sID}, {NS}")
    a("s_cmp_lt_u32 s3, 4"); a("s_cbranch_scc1 G_XLD")
    a(f"s_sub_u32 s{sTMP+3}, s3, 4"); a(f"s_lshl_b32 s{sTMP+3}, s{sTMP+3}, 12")
    a("s_waitcnt lgkmcnt(0)")
    w_group(a, sTMP + 3, L_WBV)
    late_args()
    a("s_branch G_LDD")
    a("G_XLD:")
    a(f"s_lshl_b32 s{sTMP+1}, s{sCG}, 2")
    a("v_xor_b32 v5, v6, v4"); a(f"v_xor_b32 v5, s{sTMP+1}, v5"); a("v_lshlrev_b32 v5, 4, v5"); a("v_lshl_add_u32 v20, v4, 8, v5")
    a(f"s_mul_i32 s{sTMP}, s{sTMP+9}, {96*256}"); a(f"s_lshl_b32 s{sTMP+1}, s{sCG}, 10")
    a(f"s_add_u32 s{sTMP}, s{sTMP}, s{sTMP+1}"); a(f"s_add_u32 s{sTMP+1}, s{sTMP+1}, {L_X96}")
    a("s_waitcnt lgkmcnt(0)")
    for i in range(6):
        a(f"s_add_u32 m0, s{sTMP+1}, {i*4096}"); a(f"s_add_u32 s{sTMP+2}, s{sTMP}, {i*4096}")
        a(f"buffer_load_dwordx4 v20, {D(dX)}, s{sTMP+2} offen lds")
    late_args()
    a("G_LDD:")
    page_touch(("G", 3))
    a("s_cmp_ge_u32 s3, 8"); a("s_cbranch_scc1 G_NWC")
    wc_loads()
    a("G_NWC:")
    a(f"s_lshr_b32 s{sTMP+4}, s3, 2")
    a(f"s_lshl_b32 s{sTMP+5}, s{sTMP+4}, 13"); a(f"s_add_u32 s{sTMP+5}, s{sTMP+5}, {L_X96}")
    gemm_addr(sTMP + 5, L_WBV)
    a(f"s_mul_i32 s{sTMP+5}, s{sTMP+9}, {96*512}"); a(f"s_lshl_b32 s{sTMP+6}, s{sTMP+4}, 14"); a(f"s_add_u32 s{sTMP+5}, s{sTMP+5}, s{sTMP+6}")
    a(f"s_lshl_b32 s{sTMP+6}, s{sCG}, 7"); a(f"s_add_u32 s{sTMP+5}, s{sTMP+5}, s{sTMP+6}")
    a("v_lshlrev_b32 v20, 2, v6"); a("v_lshl_add_u32 v20, v5, 11, v20"); a(f"v_add_u32 v20, s{sTMP+5}, v20")
    for q in range(1, 4): a(f"v_add_u32 v{20+q}, {4096*q}, v20")
    a(f"s_mov_b32 s{sSTAGE}, 0")
    a("s_waitcnt vmcnt(0) lgkmcnt(0)")
    stamp(a, "p1land")
    a(f"s_mov_b64 s[{dW0}:{dW0+1}], s[{sPA}:{sPA+1}]"); a(f"s_mov_b64 s[{dW1}:{dW1+1}], s[{sPU}:{sPU+1}]")
    a("s_barrier")
    a("s_cmp_lt_u32 s3, 8"); a("s_cbranch_scc1 CORE")
    a(f"s_lshl_b32 s{sTMP+3}, s{sCG}, 13")
    w_group(a, sTMP + 3, L_WAU)
    a(f"s_add_u32 s{sTMP+3}, s{sTMP+3}, 4096")
    w_group(a, sTMP + 3, L_WAU)
    a("CORE:")
    def reads(kk):
        b = SET[kk % 3]
        a(f"ds_read_b128 {vr(b,4)}, v{XAD+kk}")
        for u in range(2): a(f"ds_read_b64_tr_b16 {vr(b+4+2*u,2)}, v{vTR} offset:{kk*4096+u*1024}")
        for u in range(2): a(f"ds_read_b64_tr_b16 {vr(b+8+2*u,2)}, v{vTR} offset:{32768+kk*4096+u*1024}")
    for kk in range(3): reads(kk)
    for kk in range(8):
        b = SET[kk % 3]
        a(f"s_waitcnt lgkmcnt({5*min(7-kk,2)})")
        a(f"{MF} {vr(AV,16)}, {vr(b,4)}, {vr(b+8,4)}, {'0' if kk == 0 else vr(AV,16)}")
        a(f"{MF} {vr(AB,16)}, {vr(b,4)}, {vr(b+4,4)}, {'0' if kk == 0 else vr(AB,16)}")
        if kk + 3 < 8: reads(kk + 3)
        if kk == HOOKK:
            a(f"s_cmp_lg_u32 s{sSTAGE}, 0"); a("s_cbranch_scc1 HOOK"); a("HOOKED:")
    a(f"s_mov_b32 s{sTMP+6}, {NLOG2E:#x}")
    a(f"s_mov_b32 s{sTMP+7}, {NLOG2E:#x}")
    a(f"s_cmp_lg_u32 s{sSTAGE}, 0"); a("s_cbranch_scc1 AU_DONE")
    a(f"s_mov_b32 s{sTMP+5}, 0x7f7e0000")
    a("v_mov_b32 v4, 0x21800000")
    see_clear("G")
    stamp(a, "g_core")
    a("s_nop 2")
    VP, VN = 116, 124
    for i in range(8):
        a(f"v_cvt_pk_bf16_f32 v{VP+i}, v{AV+2*i}, v{AV+2*i+1}")
        a(f"v_xor_b32 v{VN+i}, 0x80008000, v{VP+i}")
    for q in range(4):
        R = range(4*q, 4*q+4)
        for r in R: a(f"v_fma_f32 v{AB+r}, v{AB+r}, s{sTMP+6}, v4")
        for r in R: a(f"v_med3_f32 v{AB+r}, v{AB+r}, -s{sTMP+5}, s{sTMP+5}")
        for r in R: a(f"v_sub_u32_sdwa v{AB+r}, v{AB+r}, sext(v{VN+r//2}) dst_sel:DWORD dst_unused:UNUSED_PAD src0_sel:DWORD src1_sel:WORD_{r&1}")
        for r in R: a(f"v_mov_b32_sdwa v{AB+r}, v{VP+r//2} dst_sel:WORD_0 dst_unused:UNUSED_PRESERVE src0_sel:WORD_{r&1}")
        a("s_nop 0")
        for r in R: a(f"buffer_store_dword v{AB+r}, v{20+q}, {D(dTAB)}, 0 offen offset:{(r&3)*512} sc1")
    stamp(a, "p1st")
    a("s_barrier")
    a("s_cmp_lt_u32 s3, 8"); a("s_cbranch_scc1 G_DRAIN")
    own_x(a)
    a("G_DRAIN:")
    a("s_branch ARRIVE")
    a("SORT:")
    a("s_cmp_ge_u32 s3, 8"); a("s_cbranch_scc1 S_HELP")
    Dd, S, RK, RC, KA, SH = 16, 24, 32, 40, 48, 56
    a("v_lshlrev_b32 v11, 3, v0"); a("v_mov_b64 v[12:13], 0")
    a(f"ds_write_b64 v11, v[12:13] offset:{S_CNT}"); a(f"ds_write_b32 v{vT0}, v12 offset:{S_BAD}")
    a("v_lshlrev_b32 v6, 4, v0")
    a(f"s_mul_i32 s{sTMP}, s{sID}, {CH*4}"); a(f"s_add_u32 s{sTMP+1}, s{sTMP}, 8192")
    a("s_waitcnt lgkmcnt(0)")
    a(f"buffer_load_dwordx4 {vr(Dd,4)}, v6, {D(dDST)}, s{sTMP} offen {SDPOL}")
    a(f"buffer_load_dwordx4 {vr(S,4)}, v6, {D(dSRC)}, s{sTMP} offen {SDPOL}")
    a("s_cmp_ge_u32 s3, 5"); a("s_cbranch_scc1 S_0")
    a(f"buffer_load_dwordx4 {vr(Dd+4,4)}, v6, {D(dDST)}, s{sTMP+1} offen {SDPOL}")
    a(f"buffer_load_dwordx4 {vr(S+4,4)}, v6, {D(dSRC)}, s{sTMP+1} offen {SDPOL}")
    a("S_0:")
    a("s_barrier")
    wc_loads()
    late_args()
    a("v_lshlrev_b32 v5, 7, v0"); a("v_mov_b32 v8, 0")
    a(f"v_cmp_gt_u32 vcc, {(CH-2048)//4}, v0"); a(f"s_mov_b64 s[{sTMP+2}:{sTMP+3}], vcc")
    def keys(lo):
        for i in range(lo, lo + 4):
            a(f"v_lshlrev_b32_sdwa v9, 4, v{Dd+i} dst_sel:DWORD dst_unused:UNUSED_PAD src0_sel:DWORD src1_sel:BYTE_0")
            a(f"v_bfe_u32 v10, v{Dd+i}, 8, 2")
            a(f"v_lshrrev_b32 v{SH+i}, 7, v{S+i}")
            a(f"v_lshl_or_b32 v{KA+i}, v10, 2, v9")
            a(f"v_and_b32 v{SH+i}, 24, v{SH+i}")
            a(f"v_lshlrev_b32_e64 v9, v{SH+i}, 1")
            a(f"ds_add_rtn_u32 v{RK+i}, v{KA+i}, v9 offset:{S_CNT}")
        for i in range(lo, lo + 4):
            a(f"v_lshrrev_b32 v9, 10, v{Dd+i}")
            a(f"v_add_u32 v10, {(((i&3) + (2048 if i >= 4 else 0)) << 5) + 1:#x}, v5")
            a(f"v_lshl_or_b32 v10, v{S+i}, 18, v10")
            a(f"v_add_u32 v{RC+i}, v9, v10")
            a(f"v_lshlrev_b32 v{KA+i}, 1, v{KA+i}")
        for i in range(lo, lo + 4):
            a(f"s_waitcnt lgkmcnt({3-(i-lo)})"); a(f"v_bfe_u32 v{RK+i}, v{RK+i}, v{SH+i}, 8")
        a(f"v_max3_u32 v8, v8, v{RK+lo}, v{RK+lo+1}"); a(f"v_max3_u32 v8, v8, v{RK+lo+2}, v{RK+lo+3}")
    a("s_waitcnt vmcnt(8) lgkmcnt(0)")
    stamp(a, "p1land")
    keys(0)
    a(f"s_mov_b64 exec, s[{sTMP+2}:{sTMP+3}]"); a("s_cbranch_execz S_1")
    keys(4)
    a("S_1:")
    a("s_mov_b64 exec, -1")
    a("v_cmp_lt_u32 vcc, 62, v8"); a("s_cbranch_vccz S_1B")
    a("v_mov_b32 v9, -1"); a(f"ds_write_b32 v{vT0}, v9 offset:{S_BAD}"); a("s_waitcnt lgkmcnt(0)")
    a("S_1B:")
    a(f"v_lshlrev_b32 v9, 4, v{vL}"); a("v_mov_b64 v[92:93], 0")
    stamp(a, "s_keys")
    a("s_barrier")
    stamp(a, "s_b2")
    a(f"ds_read_b64 v[12:13], v11 offset:{S_CNT}")
    for q in range(4): a(f"ds_read_b128 {vr(76+4*q,4)}, v9 offset:{S_CNT+1024*q}")
    a(f"ds_read_b32 v15, v{vT0} offset:{S_BAD}")
    a("s_waitcnt lgkmcnt(5)")
    a("v_sad_u8 v10, v12, 0, 0"); a("v_sad_u8 v8, v13, 0, v10"); a("v_mov_b32 v14, v8")
    for q in range(4):
        a(f"s_cmp_gt_u32 s3, {2*q}"); a("s_cselect_b32 exec_lo, -1, 0")
        a(f"s_cmp_gt_u32 s3, {2*q+1}"); a("s_cselect_b32 exec_hi, -1, 0")
        a(f"s_waitcnt lgkmcnt({4-q})")
        for i in range(4):
            a(f"v_sad_u8 v{92+(i&1)}, v{76+4*q+i}, 0, v{92+(i&1)}")
    a("s_mov_b64 exec, -1")
    a("v_add_u32 v92, v92, v93")
    a("s_nop 1")
    for ctl in ("row_shr:1 row_mask:0xf", "row_shr:2 row_mask:0xf", "row_shr:4 row_mask:0xf", "row_shr:8 row_mask:0xf",
                "row_bcast:15 row_mask:0xa", "row_bcast:31 row_mask:0xc"):
        a(f"v_add_u32_dpp v92, v92, v92 {ctl} bank_mask:0xf"); a(f"v_add_u32_dpp v14, v14, v14 {ctl} bank_mask:0xf"); a("s_nop 0")
    a(f"v_readlane_b32 s{sTMP+5}, v92, 63")
    a("v_sub_u32 v14, v14, v8")
    a("s_waitcnt lgkmcnt(0)")
    a("v_or_b32 v73, v12, v15"); a("v_or_b32 v75, v13, v15")
    a(f"v_add_u32 v14, s{sTMP+5}, v14")
    a("v_mov_b32 v72, v14"); a("v_add_u32 v74, v14, v10")
    a("v_mov_b32 v64, v14"); a("v_mov_b32 v65, v12"); a("v_mov_b32 v66, v74"); a("v_mov_b32 v67, v13")
    a(f"ds_write_b128 v6, v[64:67] offset:{S_TBL}")
    a("s_waitcnt lgkmcnt(0)"); a("s_barrier")
    stamp(a, "s_b4")
    LK = 76
    def lookups(lo):
        for i in range(lo, lo + 4): a(f"ds_read_b64 {vr(LK+2*i,2)}, v{KA+i} offset:{S_TBL}")
    def place(lo, wait):
        for i in range(lo, lo + 4):
            a(f"s_waitcnt lgkmcnt({wait})")
            a(f"v_bfe_u32 v9, v{LK+2*i+1}, 0, v{SH+i}"); a(f"v_sad_u8 v9, v9, 0, v{LK+2*i}")
            a(f"v_add_lshl_u32 v9, v9, v{RK+i}, 2"); a(f"ds_write_b32 v9, v{RC+i} offset:{S_SRT}")
    lookups(0)
    a("s_cmp_ge_u32 s3, 5"); a("s_cbranch_scc1 S_2")
    a(f"s_mov_b64 exec, s[{sTMP+2}:{sTMP+3}]")
    lookups(4)
    a("s_mov_b64 exec, -1")
    place(0, 7)
    a(f"s_mov_b64 exec, s[{sTMP+2}:{sTMP+3}]")
    place(4, 7)
    a("s_branch S_3")
    a("S_2:")
    place(0, 3)
    a("S_3:")
    a("s_mov_b64 exec, -1")
    a(f"s_add_u32 s{sTMP}, s{sTMP}, {WS_REC:#x}"); a(f"s_add_u32 s{sTMP+1}, s{sTMP+1}, {WS_REC:#x}")
    a(f"s_lshl_b32 s{sTMP+4}, s{sID}, 13"); a(f"s_add_u32 s{sTMP+4}, s{sTMP+4}, {WS_OFF:#x}")
    a("s_waitcnt vmcnt(0)")
    a(f"buffer_store_dwordx4 v[72:75], v6, {D(dWS)}, s{sTMP+4} offen sc1")
    a("s_waitcnt lgkmcnt(0)"); a("s_barrier")
    stamp(a, "s_b5")
    a(f"ds_read_b128 v[64:67], v6 offset:{S_SRT}"); a(f"ds_read_b128 v[68:71], v6 offset:{S_SRT+8192}")
    a("s_waitcnt lgkmcnt(1)")
    a(f"buffer_store_dwordx4 v[64:67], v6, {D(dWS)}, s{sTMP} offen sc1")
    a("s_waitcnt lgkmcnt(0)")
    a(f"s_mov_b64 exec, s[{sTMP+2}:{sTMP+3}]"); a("s_cbranch_execz S_4")
    a(f"buffer_store_dwordx4 v[68:71], v6, {D(dWS)}, s{sTMP+1} offen sc1")
    a("S_4:")
    a("s_mov_b64 exec, -1")
    stamp(a, "p1st")
    a("s_branch ARRIVE")
    a("S_HELP:")
    a("s_waitcnt lgkmcnt(0)")
    a(f"s_mov_b64 s[{dW0}:{dW0+1}], s[{sPA}:{sPA+1}]"); a(f"s_mov_b64 s[{dW1}:{dW1+1}], s[{sPU}:{sPU+1}]")
    late_args()
    a(f"s_lshl_b32 s{sTMP}, s{sID}, 4"); a(f"s_add_u32 s{sTMP}, s{sTMP}, s3")
    a(f"s_cmp_lg_u32 s{sTMP}, 9"); a("s_cbranch_scc1 S_H1")
    a(f"v_lshrrev_b32 v4, 2, v{vL}"); a(f"v_and_b32 v5, 3, v{vL}"); a("v_lshlrev_b32 v5, 4, v5")
    a("v_lshl_add_u32 v4, v4, 7, v5"); a(f"v_add_u32 v4, {WS_ARR:#x}, v4")
    a("v_mov_b64 v[8:9], 0"); a("v_mov_b64 v[10:11], 0"); a("v_mov_b32 v5, 1")
    a("s_waitcnt lgkmcnt(0)")
    a("s_barrier")
    a(f"s_mov_b32 s{sTMP}, {NREP//2}")
    a("S_CLR:")
    a(f"buffer_store_dwordx4 v[8:11], v4, {D(dWS)}, 0 offen sc1")
    a(f"buffer_store_dwordx4 v[8:11], v4, {D(dWS)}, 0 offen offset:2048 sc1")
    a("v_add_u32 v4, 4096, v4")
    a(f"s_sub_u32 s{sTMP}, s{sTMP}, 1"); a(f"s_cmp_lg_u32 s{sTMP}, 0"); a("s_cbranch_scc1 S_CLR")
    a("s_mov_b64 exec, 1")
    a("s_waitcnt vmcnt(0)")
    a(f"buffer_store_dword v5, v{vT0}, {D(dDBG)}, 0 offen sc1")
    a("s_mov_b64 exec, -1")
    a("s_branch S_H2")
    a("S_H1:")
    a("s_barrier")
    a("S_H2:")
    a("s_waitcnt lgkmcnt(0)")
    page_touch(("S", 10))
    parts = [lambda: (a(f"s_lshl_b32 s{sTMP+3}, s{sCG}, 13"), w_group(a, sTMP + 3, L_WAU)),
             lambda: (a(f"s_add_u32 s{sTMP+3}, s{sTMP+3}, 4096"), w_group(a, sTMP + 3, L_WAU)),
             lambda: own_x(a)]
    for slot in range(3):
        for p, where in zip(parts, HPLAN):
            if int(where) == slot: p()
        if slot == 0: stamp(a, "s_keys")
        a("s_barrier")
        if slot == 0: see_clear("S")
    a("ARRIVE:")
    a("s_cmp_lt_u32 s3, 8"); a("s_cbranch_scc1 NODE")
    a("s_cmp_eq_u32 s3, 8"); a("s_cbranch_scc1 SIGNAL")
    a("s_waitcnt vmcnt(0)")
    a("s_barrier")
    a(f"s_cmp_ge_u32 s{sID}, {NS}"); a("s_cbranch_scc1 HELP")
    a("s_barrier")
    a("s_branch HELP")
    a("SIGNAL:")
    a(f"s_and_b32 s{sTMP}, s{sID}, 7"); a(f"s_lshl_b32 s{sTMP}, s{sTMP}, 7")
    a(f"s_bfe_u32 s{sTMP+1}, s{sID}, 0x40003"); a(f"s_lshl_b32 s{sTMP+1}, s{sTMP+1}, 2")
    a(f"s_add_u32 s{sTMP}, s{sTMP}, s{sTMP+1}")
    a(f"s_lshr_b32 s{sTMP+1}, s{sID}, 7"); a(f"s_lshl_b32 s{sTMP+1}, s{sTMP+1}, 10")
    a(f"s_add_u32 s{sTMP}, s{sTMP}, s{sTMP+1}"); a(f"s_add_u32 s{sTMP}, s{sTMP}, {WS_ARR:#x}")
    a(f"v_lshl_add_u32 v33, v{vL}, 11, s{sTMP}")
    a(f"s_and_b32 s{sTMP}, s{sID}, {NREP-1}"); a(f"s_lshl_b32 s{sTMP}, s{sTMP}, 11"); a(f"s_add_u32 s{sTMP}, s{sTMP}, {WS_ARR:#x}")
    a(f"v_lshrrev_b32 v32, 2, v{vL}"); a(f"v_and_b32 v34, 3, v{vL}"); a("v_lshlrev_b32 v34, 4, v34")
    a("v_lshl_add_u32 v32, v32, 7, v34"); a(f"v_add_u32 v32, s{sTMP}, v32")
    a("v_mov_b32 v35, 1")
    a("s_mov_b32 vcc_lo, 0x88800000"); a("s_mov_b32 vcc_hi, 0")
    a("v_cndmask_b32_e64 v36, 0, 1, vcc")
    a("s_mov_b64 exec, 1")
    need_clear("A")
    a(f"s_mov_b32 exec_lo, {(1 << min(NREP,32)) - 1:#x}"); a(f"s_mov_b32 exec_hi, {(1 << max(NREP-32,0)) - 1:#x}")
    a(f"s_mov_b32 s{sTMP+5}, 0")
    a("s_waitcnt vmcnt(0)")
    a("s_barrier")
    a(f"buffer_store_dword v35, v33, {D(dWS)}, 0 offen sc1")
    a("s_mov_b64 exec, -1")
    stamp(a, "arrive")
    a(f"s_cmp_ge_u32 s{sID}, {NS}"); a("s_cbranch_scc1 SIG2")
    a("s_barrier")
    a("SIG2:")
    wait_flags(1)
    a("s_branch HELP")
    a("NODE:")
    a(f"s_lshl_b32 s{sTMP+5}, s{sBETA}, 13"); a(f"s_add_u32 s{sTMP+5}, s{sTMP+5}, {L_X}")
    gemm_addr(sTMP + 5, L_WAU)
    a(f"s_lshl_b32 s{sTMP+2}, s{sCG}, 7")
    a(f"v_lshl_add_u32 v{LO}, v{LO}, 2, s{sTMP+2}"); a(f"v_mov_b32 v{LO+1}, v{LO}")
    a(f"s_mov_b32 s{sM0}, 0x0000ffff"); a(f"s_mov_b32 s{sM0+1}, 0x0000ffff")
    a(f"s_mov_b32 s{sM1}, 0xffff0000"); a(f"s_mov_b32 s{sM1+1}, 0xffff0000")
    a(f"s_cmp_lt_u32 s{sID}, {NS}")
    a(f"s_cselect_b32 s{sSTAGE}, 2, 1")
    a(f"s_mov_b32 s{sTMP+6}, {NLOG2E:#x}")
    for j in range(8): a(f"v_lshlrev_b32 v{WCR+j}, 16, v{WCR+j}")
    for j in range(8): a(f"v_mul_f32 v{WCR+j}, s{sTMP+6}, v{WCR+j}")
    for j in range(4): a(f"v_cvt_pk_bf16_f32 v{WC+j}, v{WCR+2*j}, v{WCR+2*j+1}")
    a("ROUND:")
    for j in range(0, 8, 2): a(f"v_mov_b64 {vr(SA+j,2)}, 0")
    a(f"v_lshlrev_b32 v{LTMP+2}, 4, v0")
    for k in range(3):
        a(f"ds_write_b128 v{LTMP+2}, {vr(SA,4)} offset:{k*8192}")
    a(f"v_bfe_u32 v{vT1}, v0, 5, 1")
    a(f"v_lshlrev_b32 v{vIDX}, 4, v{vT1}")
    a(f"v_and_b32 v{vOT}, 31, v0"); a(f"v_lshl_add_u32 v{vOT}, v{vOT}, 5, v{vIDX}")
    if "m16" in DBG:
        a(f"v_bfe_u32 v{vS0}, v0, 4, 1"); a(f"v_lshl_add_u32 v{vIDX}, v{vS0}, 6, v{vIDX}")
        a(f"v_and_b32 v{LO}, 0xffffffbf, v{LO}"); a(f"v_mov_b32 v{LO+1}, v{LO}")
    a(f"v_bfe_u32 v{vSa}, v0, 2, 2"); a(f"v_lshl_add_u32 v{vSa}, v{vT1}, 2, v{vSa}"); a(f"v_lshlrev_b32 v{vSa}, 5, v{vSa}")
    a(f"v_and_b32 v{vS0}, 1, v0"); a(f"v_lshl_add_u32 v{vSa}, v{vS0}, 4, v{vSa}")
    a(f"v_bfe_u32 v{vS0}, v0, 1, 1"); a(f"v_lshl_add_u32 v{vSa}, v{vS0}, 3, v{vSa}")
    a(f"v_and_b32 v{LQ4}, 3, v0"); a(f"v_lshlrev_b32 v{LQ4}, 3, v{LQ4}")
    a(f"v_mov_b32 v{LONE}, 48")
    a(f"s_mov_b32 s{sT}, 0"); a(f"s_mov_b32 s{sRDY}, 0")
    a(f"s_mov_b32 s{sTMP+8}, 0x0c010c00"); a(f"s_mov_b32 s{sTMP+9}, 0x0c030c02"); a(f"s_mov_b32 s{sTMP+3}, 0x10001")
    a(f"s_cmp_lg_u32 s{sMODE}, 0"); a("s_cbranch_scc1 SLOWSRC")
    a(f"v_lshrrev_b32 v{LCHV}, 2, v0"); a(f"v_mov_b32 v{LKEY}, v{LQ4}")
    a(f"s_lshl_b32 s{sTMP}, s2, 5"); a(f"s_add_u32 s{sTMP}, s{sTMP}, {WS_OFF:#x}")
    a(f"v_lshl_add_u32 v{LTMP}, v{LCHV}, 13, v{LKEY}"); a(f"v_add_u32 v{LTMP}, s{sTMP}, v{LTMP}")
    a(f"v_mul_u32_u24 v{LRO}, {CH*4}, v{LCHV}"); a(f"v_lshlrev_b32 v{LCHV}, 3, v{LRO}"); a(f"v_add_u32 v{LRO}, {WS_REC:#x}, v{LRO}")
    a("s_waitcnt vmcnt(0) lgkmcnt(0)")
    a("s_barrier")
    stamp(a, "arrive")
    a("s_branch CORE")
    offload = f"buffer_load_dwordx2 {vr(LOFF,2)}, v{LTMP}, {D(dWS)}, 0 offen sc1"
    a("HOOK:")
    a("s_barrier")
    a(f"s_cmp_eq_u32 s{sSTAGE}, 2"); a("s_cbranch_scc1 HOOKED")
    a(offload)
    a("s_branch HOOKED")
    a("AU_DONE:")
    a(f"s_cmp_lg_u32 s{sSTAGE}, 2"); a("s_cbranch_scc1 AU_G")
    def au_pack():
        for j in range(8): a(f"v_cvt_pk_bf16_f32 v{UP+j}, v{AV+2*j}, v{AV+2*j+1}")
        for r in range(0, 16, 2): a(f"v_pk_mul_f32 {vr(AB+r,2)}, {vr(AB+r,2)}, s[{sTMP+6}:{sTMP+7}]")
        for j in range(8): a(f"v_cvt_pk_bf16_f32 v{AP+j}, v{AB+2*j}, v{AB+2*j+1}")
        for r in range(0, 32, 2): a(f"v_mov_b64 {vr(DEN+r,2)}, 0")
    a("s_barrier")
    a(offload)
    a("AU_G:")
    a("s_waitcnt vmcnt(0)")
    stamp(a, "off")
    a(f"v_lshl_add_u32 v{LRO}, v{LOFF}, 2, v{LRO}")
    a(f"v_sad_u8 v{LLEN}, v{LOFF+1}, 0, 0")
    for q in range(4):
        if q: a(f"v_cmpx_lt_u32 vcc, {4*q}, v{LLEN}"); a("s_cbranch_execz RECD")
        a(f"buffer_load_dwordx4 {vr(RECQ[q],4)}, v{LRO}, {D(dWS)}, 0 offen offset:{16*q} sc1")
    a("RECD:")
    a("s_mov_b64 exec, -1")
    a("ALLOC:")
    a(f"v_perm_b32 v{LC}, v{LOFF+1}, v{LOFF+1}, s{sTMP+8}"); a(f"v_perm_b32 v{LC+1}, v{LOFF+1}, v{LOFF+1}, s{sTMP+9}")
    a(f"ds_add_rtn_u64 {vr(LADJ,2)}, v{LKEY}, {vr(LC,2)} offset:{L_CNT}")
    a("s_mov_b64 exec, 1")
    a(f"ds_inc_u32 v{vT0}, v{LONE} offset:{L_AD}")
    a("s_mov_b64 exec, -1")
    a(f"v_sad_u8 v{LLEN}, v{LOFF+1}, 0, 0")
    wait_alloc("C", LTMP)
    stamp(a, "barA")
    a(f"ds_read_b64 {vr(LTMP,2)}, v{LQ4} offset:{L_CNT}"); a(f"ds_read_b64 {vr(LTOT,2)}, v{LKEY} offset:{L_CNT}")
    a(f"v_lshrrev_b32 v{LCB}, 4, v{LKEY}"); a(f"v_bfe_u32 v{LKEY}, v{LKEY}, 3, 1")
    a(f"s_cmp_lg_u32 s{sMODE}, 0"); a("s_cbranch_scc1 NOPACK")
    au_pack()
    a("NOPACK:")
    for r in range(0, 16, 2): a(f"v_mov_b64 {vr(G[1]+r,2)}, 0")
    a("s_waitcnt lgkmcnt(1)")
    totals(a, LTMP)
    a("s_cbranch_scc1 OVF")
    a("s_waitcnt lgkmcnt(0)")
    a(f"v_sub_u32 v{LTOT}, v{LTOT}, v{LC}"); a(f"v_sub_u32 v{LTOT+1}, v{LTOT+1}, v{LC+1}")
    a(f"v_lshl_add_u32 v{LADJ}, v{LTOT}, 16, v{LADJ}"); a(f"v_lshl_add_u32 v{LADJ+1}, v{LTOT+1}, 16, v{LADJ+1}")
    a(f"v_add_u32_sdwa v{LTOT}, v{LTOT}, v{LTOT} dst_sel:DWORD dst_unused:UNUSED_PAD src0_sel:WORD_0 src1_sel:WORD_1")
    a(f"v_mad_u32_u24 v{LCB}, v{LCB}, s{sC+4}, v{LKEY}")
    a(f"v_mad_u32_u24 v{LADJ+1}, v{LTOT}, s{sTMP+3}, v{LADJ+1}")
    a(f"v_lshlrev_b32 v{LCB}, 7, v{LCB}"); a(f"v_lshlrev_b64 {vr(LADJ,2)}, 2, {vr(LADJ,2)}")
    a(f"s_cmp_eq_u32 s{sBETA}, 0")
    a(f"s_cselect_b32 s{sF0}, 0, s{sC+4}"); a(f"s_cselect_b32 s{sL0}, s{sC}, s{sC+2}")
    a(f"s_cselect_b32 s{sL1}, s{sC+1}, s{sC+3}"); a(f"s_cselect_b32 s{sTEND}, s{sC+4}, s{sC+5}")
    a(f"s_sub_u32 s{sG0}, s{sL0}, 1"); a(f"s_sub_u32 s{sG1}, s{sL1}, 1")
    a(f"s_lshl_b32 s{sTMP}, s{sF0}, 7"); a(f"s_add_u32 s{sTMP}, s{sTMP}, {L_IDX}"); a(f"v_add_u32 v{vIDX}, s{sTMP}, v{vIDX}")
    a(f"s_lshl_b32 s{sTMP}, s{sF0}, 10"); a(f"s_add_u32 s{sTMP+1}, s{sTMP}, {L_O}")
    a(f"v_add_u32 v{vOT}, s{sTMP+1}, v{vOT}"); a(f"v_add_u32 v{vSa}, s{sTMP+1}, v{vSa}"); a(f"v_add_u32 v{vEA}, {L_EA-L_O}, v{vOT}")
    a(f"v_cndmask_b32_e64 v{vS0}, 0, v{vSa}, s[{sM0}:{sM0+1}]"); a(f"v_cndmask_b32_e64 v{vS1}, 0, v{vSa}, s[{sM1}:{sM1+1}]")
    a(f"s_mov_b32 s{sTMP}, 0x1ffff"); a(f"s_mov_b32 s{sTMP+1}, 0xff80"); a(f"s_mov_b32 s{sTMP+2}, 0x7ffe0")
    a("PLACE:")
    a("s_waitcnt vmcnt(0)")
    stamp(a, "rec")
    for s in range(16):
        rec = RECQ[s >> 2] + (s & 3); b = LTMP + 6 * (s & 1)
        a(f"v_cmpx_lt_u32 vcc, {s}, v{LLEN}"); a("s_cbranch_execz PLACED")
        a(f"v_and_b32_sdwa v{b+2}, v{rec}, v{LONE} dst_sel:DWORD dst_unused:UNUSED_PAD src0_sel:BYTE_3 src1_sel:DWORD")
        a(f"v_lshrrev_b32 v{b+3}, 13, v{rec}"); a(f"v_and_b32 v{b+4}, s{sTMP}, v{rec}")
        a(f"v_lshrrev_b64 {vr(b,2)}, v{b+2}, {vr(LADJ,2)}")
        a(f"v_and_b32 v{b+3}, s{sTMP+2}, v{b+3}"); a(f"v_add_u16 v{b}, {4*s}, v{b}")
        a(f"v_add_u32 v{b+4}, v{b+4}, v{LCHV}"); a(f"v_and_b32 v{b+1}, s{sTMP+1}, v{b}")
        a(f"v_add3_u32 v{b}, v{b}, v{b+1}, v{LCB}")
        a(f"ds_write2st64_b32 v{b}, v{b+3}, v{b+4} offset0:{L_IDX//256} offset1:{L_EOF//256}")
    a(f"v_cmpx_lt_u32 vcc, 16, v{LLEN}"); a("s_cbranch_execz PLACED")
    a(f"v_subrev_u32 v{LLEN}, 16, v{LLEN}"); a(f"v_add_u32 v{LRO}, 64, v{LRO}")
    a(f"v_add_u32 v{LADJ}, 0x00400040, v{LADJ}"); a(f"v_add_u32 v{LADJ+1}, 0x00400040, v{LADJ+1}")
    for q in range(4): a(f"buffer_load_dwordx4 {vr(RECQ[q],4)}, v{LRO}, {D(dWS)}, 0 offen offset:{16*q} sc1")
    a("s_branch PLACE")
    a("PLACED:")
    a("s_mov_b64 exec, -1")
    stamp(a, "placed")
    a("s_waitcnt lgkmcnt(0)"); a("s_barrier")
    stamp(a, "bar2")
    a(f"s_cmp_lt_i32 s{sTEND}, 1"); a("s_cbranch_scc1 RDONE")
    idx_reads(a, 0); a("s_waitcnt lgkmcnt(0)"); gathers(a, RAW[0])
    if not G1LATE:
        idx_reads(a, 1); a("s_waitcnt lgkmcnt(0)"); gathers(a, RAW[1])
    stamp(a, "g01")
    poll(a, stubs, "P")
    a(f"ds_read_b128 {vr(IX,4)}, v{vEA}"); a(f"ds_read_b128 {vr(IX+4,4)}, v{vOT}")
    a(f"s_waitcnt vmcnt({0 if G1LATE else 16}) lgkmcnt(0)")
    a(f"{MF} {vr(G[0],16)}, {vr(IX,4)}, {vr(WC,4)}, {vr(RAW[0],16)}")
    a(f"{MF} {vr(G[0],16)}, {vr(IX+4,4)}, {vr(AP,4)}, {vr(G[0],16)}")
    a("s_nop 3")
    if G1LATE:
        idx_reads(a, 1); a("s_waitcnt lgkmcnt(0)"); gathers(a, RAW[1])
    idx_reads(a, 2)
    stamp(a, "loop0")
    a(".p2align 6")
    a("LOOP:")
    for ph in range(6):
        R0, R1, R2 = RAW[ph % 3], RAW[(ph + 1) % 3], RAW[(ph + 2) % 3]
        Gc, Gn = G[ph % 2], G[(ph + 1) % 2]
        APn = AP + 4 * ((ph + 1) % 2); vS = (vS0, vS1)[ph % 2]
        ms = ms_list(Gn)
        a(f"s_cmp_ge_u32 s{sT}, s{(sL0, sL1)[ph % 2]}"); a(f"s_cbranch_scc1 SKIP_{ph}")
        a(f"s_add_u32 s{sT}, s{sT}, 1")
        prio(a, 0)
        if ITS: a("s_memtime s[4:5]"); a(f"s_add_u32 m0, s{sT}, 19")
        a("s_waitcnt lgkmcnt(0)")
        if ITS: a("v_writelane_b32 v167, s4, m0")
        if ph % 2 == 1: a(f"v_readfirstlane_b32 s{sRDY}, v{vT1}")
        a(f"s_cmp_ge_u32 s{sT}, s{(sG0, sG1)[ph % 2]}"); a(f"s_cbranch_scc1 NOG_{ph}")
        gathers(a, R2)
        a(f"NOGD_{ph}:")
        stubs(f"NOG_{ph}:"); stubs("s_waitcnt vmcnt(0)"); stubs(f"s_branch NOGD_{ph}")
        if ph % 2 == 1: publish(a)
        poll(a, stubs, ph)
        xo = 8 if "m16" in DBG else 0
        a(f"ds_read_b128 {vr(IX+xo,4)}, v{vEA} offset:{(ph+1)*1024}"); a(f"ds_read_b128 {vr(IX+xo+4,4)}, v{vEA if xo else vOT} offset:{(ph+1)*1024}")
        for i in range(16):
            if i % 4 == 0: a(ms[i // 4])
            a(f"v_exp_f32 v{Gc+i}, v{Gc+i}")
        prio(a, 1)
        if SHL64:
            for i in range(0, 16, 2): a(f"v_lshlrev_b64 {vr(R0+i,2)}, 16, {vr(R0+i,2)}")
        else:
            for i in range(16): a(f"v_lshlrev_b32 v{R0+i}, 16, v{R0+i}")
        for i in range(0, 16, 2): a(f"v_pk_add_f32 {vr(Gc+i,2)}, {vr(Gc+i,2)}, 1.0 op_sel_hi:[1,0]")
        prio(a, 2)
        for i in range(16):
            if i == 4:
                a("s_waitcnt vmcnt(16) lgkmcnt(0)")
                if "m16" not in DBG: a(f"{MF} {vr(Gn,16)}, {vr(IX,4)}, {vr(WC,4)}, {vr(R1,16)}")
            if "m16" in DBG:
                if i in (4, 6, 8, 10):
                    j = (i - 4) // 2
                    a(f"{M16} {vr(Gn+4*j,4)}, {vr(IX+8+4*(j>>1),4)}, {vr(APn if j & 1 else WC,4)}, {vr(R1+4*j,4)}")
            elif i == 8: a(f"{MF} {vr(Gn,16)}, {vr(IX+4,4)}, {vr(APn,4)}, {vr(Gn,16)}")
            a(f"v_rcp_f32 v{Gc+i}, v{Gc+i}")
            if i == 9:
                for u in range(2 if "m16" in DBG else 4): a(f"ds_read_b64_tr_b16 {vr(SA+2*u,2)}, v{vSa if 'm16' in DBG else vS} offset:{ph*1024+u*256}")
                idx_reads(a, ph + 3)
                if ph % 2 == 0: a(f"ds_read_b32 v{vT1}, v{vT0} offset:{L_RDY}")
        prio(a, 3)
        for i in range(0, 16, 2): a(f"v_pk_mul_f32 {vr(R0+i,2)}, {vr(R0+i,2)}, {vr(Gc+i,2)}")
        for i in range(8): a(f"v_cvt_pk_bf16_f32 v{Gc+i}, v{Gc+2*i}, v{Gc+2*i+1}")
        for i in range(8): a(f"v_cvt_pk_bf16_f32 v{Gc+8+i}, v{R0+2*i}, v{R0+2*i+1}")
        a(f"s_cmp_ge_u32 s{sT}, s{sTEND}"); a(f"s_cbranch_scc1 DRAIN_{ph%2}")
        a(f"NEXT_{ph}:")
        stubs(f"SKIP_{ph}:")
        stubs(f"s_add_u32 s{sT}, s{sT}, 1"); stubs("s_waitcnt lgkmcnt(0)")
        st2 = A()
        if ph % 2 == 1: publish(stubs)
        poll(stubs, st2, f"S{ph}")
        stubs(f"ds_read_b128 {vr(IX,4)}, v{vEA} offset:{(ph+1)*1024}"); stubs(f"ds_read_b128 {vr(IX+4,4)}, v{vOT} offset:{(ph+1)*1024}")
        for m in ms: stubs(m)
        for r in range(0, 16, 2): stubs(f"v_mov_b64 {vr(Gc+r,2)}, 0")
        for j in range(0, 8, 2): stubs(f"v_mov_b64 {vr(SA+j,2)}, 0")
        stubs("s_waitcnt vmcnt(0) lgkmcnt(0)")
        stubs(f"{MF} {vr(Gn,16)}, {vr(IX,4)}, {vr(WC,4)}, {vr(R1,16)}")
        stubs(f"{MF} {vr(Gn,16)}, {vr(IX+4,4)}, {vr(APn,4)}, {vr(Gn,16)}")
        stubs("s_nop 3")
        idx_reads(stubs, ph + 3)
        stubs(f"s_branch NEXT_{ph}")
        stubs.l += st2.l
    a(f"v_add_u32 v{vIDX}, {6*128}, v{vIDX}"); a(f"v_add_u32 v{vEA}, {6*1024}, v{vEA}")
    a(f"v_add_u32 v{vOT}, {6*1024}, v{vOT}"); a(f"v_add_u32 v{vSa}, {6*1024}, v{vSa}")
    a(f"v_cndmask_b32_e64 v{vS0}, 0, v{vSa}, s[{sM0}:{sM0+1}]"); a(f"v_cndmask_b32_e64 v{vS1}, 0, v{vSa}, s[{sM1}:{sM1+1}]")
    a("s_branch LOOP")
    for p in range(2):
        a(f"DRAIN_{p}:"); a("s_waitcnt lgkmcnt(0)")
        for m in ms_list(G[p]): a(m)
        if p == 0: a("s_branch RDONE")
    a("RDONE:")
    a(f"v_mov_b32 v{vT1}, 16"); a(f"ds_add_u32 v{vT0}, v{vT1} offset:{L_PROG}")
    a(f"s_cmp_lg_u32 s{sMODE}, 0"); a("s_cbranch_scc1 SLOWNEXT")
    a("EPI:")
    stamp(a, "loopend")
    XD = IX
    for r in range(0, 16, 2): a(f"v_mov_b64 {vr(XD+r,2)}, 0")
    a("v_bfe_u32 v2, v0, 5, 1"); a("v_bfe_u32 v3, v0, 3, 2")
    a(f"s_lshl_b32 s{sTMP+3}, s{sCG}, 2")
    a("v_lshl_or_b32 v3, v2, 2, v3"); a(f"v_xor_b32 v3, s{sTMP+3}, v3")
    a("v_and_b32 v4, 7, v0"); a("v_lshlrev_b32 v4, 1, v4"); a("v_lshl_or_b32 v3, v3, 4, v4")
    a(f"s_lshl_b32 s{sTMP}, s{sBETA}, 13"); a(f"s_add_u32 s{sTMP}, s{sTMP}, {L_X}")
    a(f"v_lshl_add_u32 v2, v2, 10, s{sTMP}"); a(f"v_add_u32 v{SA}, v2, v3")
    for r in range(1, 8): a(f"v_xor_b32 v{SA+r}, {(8*(r>>2)+(r&3))*16}, v{SA}")
    for r in range(16): a(f"ds_read_u16_d16_hi v{XD+r}, v{SA+(r&7)} offset:{(8*(r>>2)+(r&3))*256}")
    a(f"s_mov_b32 s{sTMP+4}, 0x358637bd"); a(f"s_mov_b32 s{sTMP+5}, 0x358637bd")
    for r in range(0, 16, 2): a(f"v_pk_add_f32 {vr(DEN+r,2)}, {vr(DEN+r,2)}, s[{sTMP+4}:{sTMP+5}]")
    for r in range(16): a(f"v_rcp_f32 v{DEN+r}, v{DEN+r}")
    a("v_bfe_u32 v2, v0, 2, 4"); a("v_and_b32 v3, 3, v0"); a(f"v_or_b32 v4, s{sTMP+3}, v3"); a("v_xor_b32 v4, v4, v2")
    a("v_lshlrev_b32 v4, 4, v4"); a("v_lshl_add_u32 v4, v2, 8, v4"); a(f"v_add_u32 v4, s{sTMP}, v4")
    a("v_bfe_u32 v5, v0, 2, 2"); a("v_bfe_u32 v6, v0, 4, 1"); a("v_lshl_or_b32 v5, v6, 3, v5")
    a("v_bfe_u32 v6, v0, 5, 1"); a("v_lshl_or_b32 v5, v6, 2, v5"); a("v_lshlrev_b32 v3, 4, v3"); a("v_lshl_or_b32 v5, v5, 18, v3")
    a(f"s_lshl_b32 s{sTMP}, s{sBETA}, 17"); a(f"s_lshl_b32 s{sTMP+1}, s2, 8"); a(f"s_add_u32 s{sTMP}, s{sTMP}, s{sTMP+1}")
    a(f"s_lshl_b32 s{sTMP+1}, s{sCG}, 6"); a(f"s_add_u32 s{sTMP}, s{sTMP}, s{sTMP+1}"); a(f"s_add_u32 s{sTMP+1}, s{sTMP}, 0x10000")
    UD = G[0]
    for r in range(16):
        a(f"v_and_b32 v{UD+r}, 0xffff0000, v{UP+r//2}" if r & 1 else f"v_lshlrev_b32 v{UD+r}, 16, v{UP+r//2}")
    for r in range(0, 16, 2): a(f"v_pk_fma_f32 {vr(UD+r,2)}, {vr(NUM+r,2)}, {vr(DEN+r,2)}, {vr(UD+r,2)}")
    for r in range(16): a(f"v_max_f32 v{UD+r}, 0, v{UD+r}")
    a("s_waitcnt lgkmcnt(0)")
    for r in range(0, 16, 2): a(f"v_pk_add_f32 {vr(UD+r,2)}, {vr(UD+r,2)}, {vr(XD+r,2)}")
    for j in range(8): a(f"v_cvt_pk_bf16_f32 v{XD+j}, v{UD+2*j}, v{UD+2*j+1}")
    for r in range(16):
        a(f"{'ds_write_b16_d16_hi' if r & 1 else 'ds_write_b16'} v{SA+(r&7)}, v{XD+r//2} offset:{(8*(r>>2)+(r&3))*256}")
    a(f"ds_read_b128 {vr(UD,4)}, v4"); a(f"ds_read_b128 {vr(UD+4,4)}, v4 offset:4096")
    a("s_waitcnt lgkmcnt(1)"); a(f"buffer_store_dwordx4 {vr(UD,4)}, v5, {D(dOUT)}, s{sTMP} offen")
    a("s_waitcnt lgkmcnt(0)"); a(f"buffer_store_dwordx4 {vr(UD+4,4)}, v5, {D(dOUT)}, s{sTMP+1} offen")
    if STAMP:
        a("s_waitcnt vmcnt(0)"); a(f"s_add_u32 s6, s{sL0}, s{sL1}"); a("s_lshr_b32 s6, s6, 1")
    stamp(a, "end"); stamp_out(a, "s6")
    a("F_END:")
    a("s_endpgm")
    a.l += stubs.l
    a("SLOWNEXT:")
    a(f"s_cmp_eq_u32 s{sROUND}, 999"); a("s_cbranch_scc1 EPI")
    a(f"s_add_u32 s{sROUND}, s{sROUND}, 1")
    a("OVF:")
    a(f"s_mov_b32 s{sMODE}, 1")
    a("s_waitcnt vmcnt(0) lgkmcnt(0)"); a("s_barrier"); a("s_branch ROUND")
    a("SLOWSRC:")
    a(f"s_mul_i32 s{sTMP}, s{sROUND}, 1600"); a(f"v_lshlrev_b32 v{LRO}, 2, v0")
    a(f"buffer_load_dword v{LKEY}, v{LRO}, {D(dDST)}, s{sTMP} offen"); a(f"buffer_load_dword v{LOFF}, v{LRO}, {D(dSRC)}, s{sTMP} offen")
    a(f"s_mul_i32 s{sTMP+2}, s{sROUND}, {400*32}")
    a(f"v_lshl_add_u32 v{LTMP}, v0, 5, 1"); a(f"v_mov_b32 v{LCHV}, s{sTMP+2}")
    a("s_waitcnt vmcnt(0) lgkmcnt(0)"); a("s_barrier")
    a(f"v_lshl_or_b32 v{LTMP}, v{LOFF}, 18, v{LTMP}"); a(f"v_lshrrev_b32 v{LTMP+1}, 10, v{LKEY}")
    a(f"v_add_u32 v{RECQ[0]}, v{LTMP+1}, v{LTMP}")
    a(f"v_and_b32 v{LTMP+1}, 255, v{LKEY}"); a(f"v_cmp_eq_u32 vcc, s2, v{LTMP+1}")
    a(f"v_lshrrev_b32 v{LOFF}, 7, v{LOFF}"); a(f"v_and_b32 v{LOFF}, 24, v{LOFF}")
    a(f"v_cndmask_b32_e64 v{LOFF+1}, 0, 1, vcc"); a("v_cmp_gt_u32 vcc, 400, v0")
    a(f"v_bfe_u32 v{LKEY}, v{LKEY}, 8, 2"); a(f"v_lshlrev_b32 v{LOFF+1}, v{LOFF}, v{LOFF+1}"); a(f"v_lshlrev_b32 v{LKEY}, 3, v{LKEY}")
    a(f"v_cndmask_b32 v{LOFF+1}, 0, v{LOFF+1}, vcc")
    a("s_branch ALLOC")
    a("HELP:")
    a("PROUND:")
    a(f"v_and_b32 v15, 3, v{vL}"); a("v_lshlrev_b32 v15, 3, v15")
    a(f"v_lshrrev_b32 v2, 1, v{vL}"); a("v_lshlrev_b32 v2, 2, v2")
    a(f"v_and_b32 v3, 1, v{vL}"); a("v_lshlrev_b32 v3, 4, v3")
    a("v_mov_b32 v5, 1")
    a(f"v_and_b32 v10, 7, v{vL}"); a(f"v_bfe_u32 v11, v{vL}, 3, 1"); a("v_lshlrev_b32 v10, 1, v10")
    a("v_lshl_add_u32 v10, v11, 8, v10"); a(f"v_lshl_add_u32 v10, v{vL}, 4, v10"); a("v_mov_b32 v11, 0x3f80")
    stamp(a, "pre")
    a("s_barrier")
    stamp(a, "go")
    a("s_mov_b64 exec, 0x1fff"); a(f"ds_write_b16 v10, v11 offset:{L_LUT+16}"); a("s_mov_b64 exec, -1")
    a("s_cmp_lg_u32 s3, 8"); a("s_cbranch_scc1 H_G2")
    a(f"s_cmp_lg_u32 s{sMODE}, 0"); a("s_cbranch_scc1 H_G2")
    a(f"v_lshlrev_b32 v14, 7, v{vL}"); a(f"s_lshl_b32 s{sTMP}, s{sU}, 13"); a(f"v_add_u32 v14, s{sTMP}, v14")
    wait_flags(2)
    stamp(a, "go2")
    if PFW: wait_alloc("P", 8)
    for i in range(PF):
        a(f"s_mov_b32 s{sTMP}, {(i>>1)*2097152 + (i&1)*262144:#x}")
        a(f"buffer_load_dword v160, v14, {D(dTAB)}, s{sTMP} offen sc1")
    a("H_G2:")
    a("s_sleep 8")
    wait_alloc("H", 8)
    a(f"ds_read_b64 v[8:9], v15 offset:{L_CNT}")
    a("s_waitcnt lgkmcnt(0)")
    totals(a, 8)
    a("s_cbranch_scc1 POVF")
    a("s_cmp_lg_u32 s3, 8"); a("s_cbranch_scc1 EXP")
    a(f"s_max_u32 s{sTEND}, s{sC+4}, s{sC+5}")
    a(f"s_lshl_b32 s{sTMP+2}, s{sC+4}, 7"); a(f"v_add_u32 v6, s{sTMP+2}, v2")
    a(f"s_mov_b32 s{sT}, 0"); a(f"s_mov_b32 s{sTMP}, {L_EA}"); a(f"s_mov_b32 s{sTMP+3}, {-4*(PK+LEADX)}"); a(f"s_mov_b32 s{sRDY}, 0")
    a(f"s_lshl_b32 s{sTMP+1}, s{sC+4}, 10"); a(f"s_add_u32 s{sTMP+1}, s{sTMP+1}, {L_EA}")
    a(f"s_mov_b32 s{sTMP+6}, -32"); a(f"s_mov_b32 s{sTMP+7}, 0")
    if PPRIO: a(f"s_setprio {PPRIO}")
    a("s_barrier")
    stamp(a, "bar2")
    a(f"ds_read_b32 v10, v2 offset:{L_EOF}"); a(f"ds_read_b32 v11, v6 offset:{L_EOF}")
    a("PSTEP:")
    a(f"s_cmp_ge_u32 s{sT}, s{sTEND}"); a("s_cbranch_scc1 PDRAIN")
    a(f"s_cmp_lt_i32 s{sRDY}, s{sTMP+3}"); a("s_cbranch_scc1 PW")
    a("PWD:")
    a(f"s_min_u32 m0, s{sTMP}, {L_EA + NT*1024}")
    a("s_waitcnt lgkmcnt(0)")
    for hb in range(2):
        a(f"v_mov_b32 v{12+hb}, v3" if NOEA else f"v_and_or_b32 v{12+hb}, v{10+hb}, s{sTMP+6}, v3")
    a("v_add_u32 v2, 128, v2"); a("v_add_u32 v6, 128, v6")
    a(f"buffer_load_dwordx4 v12, {D(dEA)}, 0 offen lds")
    a(f"s_min_u32 m0, s{sTMP+1}, {L_EA + NT*1024}")
    a(f"ds_read_b32 v10, v2 offset:{L_EOF}")
    a(f"buffer_load_dwordx4 v13, {D(dEA)}, 0 offen lds")
    a(f"ds_read_b32 v11, v6 offset:{L_EOF}")
    a(f"s_add_u32 s{sTMP}, s{sTMP}, 1024"); a(f"s_add_u32 s{sTMP+1}, s{sTMP+1}, 1024")
    a(f"s_add_i32 s{sTMP+3}, s{sTMP+3}, 4"); a(f"s_add_u32 s{sT}, s{sT}, 1")
    if STAMP and ITS:
        a("s_memtime s[4:5]"); a(f"s_add_u32 m0, s{sT}, 19"); a("s_waitcnt lgkmcnt(0)"); a("v_writelane_b32 v167, s4, m0")
    a(f"s_cmp_le_u32 s{sT}, {PK}"); a("s_cbranch_scc1 PSTEP")
    a(f"s_cmp_eq_u32 s{sTMP+7}, 0"); a("s_cbranch_scc1 PO")
    a("POD:")
    if PPRIO: a("s_setprio 0")
    a("s_mov_b64 exec, 1"); a(f"s_waitcnt vmcnt({2*PK})"); a(f"ds_add_u32 v{vT0}, v5 offset:{L_RDY}"); a("s_mov_b64 exec, -1")
    a("s_branch PSTEP")
    a("PW:")
    a(f"ds_read_b32 v8, v{vT0} offset:{L_PROG}"); a("s_waitcnt lgkmcnt(0)"); a(f"v_readfirstlane_b32 s{sRDY}, v8")
    a(f"s_cmp_ge_i32 s{sRDY}, s{sTMP+3}"); a("s_cbranch_scc1 PWD"); a("s_sleep 2"); a("s_branch PW")
    a("PO:")
    a(f"ds_read_b32 v8, v{vT0} offset:{L_OD}"); a("s_waitcnt lgkmcnt(0)"); a(f"v_readfirstlane_b32 s{sTMP+7}, v8")
    a(f"s_cmp_ge_u32 s{sTMP+7}, 3"); a("s_cbranch_scc1 POD"); a("s_sleep 1"); a("s_branch PO")
    a("EXP:")
    NE = NT // 3
    a(f"s_sub_u32 s{sT}, s3, 9")
    a(f"s_mul_i32 s{sTMP}, s{sT}, {NE*128}"); a(f"s_add_u32 s{sTMP}, s{sTMP}, {L_EOF}"); a(f"v_add_u32 v2, s{sTMP}, v2")
    a(f"s_mul_i32 s{sTMP}, s{sT}, {NE*1024}"); a(f"s_add_u32 s{sTMP}, s{sTMP}, {L_O}"); a(f"v_lshl_add_u32 v6, v{vL}, 4, s{sTMP}")
    a("v_lshlrev_b32 v3, 4, v3")
    a(f"s_setprio {HPRIO}")
    a("s_barrier")
    EA_, ED_ = 16, 40
    for i in range(0, NE, 2):
        a(f"ds_read2_b32 {vr(EA_+i,2)}, v2 offset0:{(i%8)*32} offset1:{(i%8)*32+32}")
        if i % 8 == 6: a("v_add_u32 v2, 1024, v2")
    seq = [("E", i) for i in range(0, NE, 2)]
    def wait_for(op):
        a(f"s_waitcnt lgkmcnt({min(len(seq) - 1 - seq.index(op), 15)})")
    LA = 5
    def lut(i):
        if i % 2 == 0: wait_for(("E", i))
        a(f"v_and_b32 v{EA_+i}, 31, v{EA_+i}"); a(f"v_lshl_add_u32 v{EA_+i}, v{EA_+i}, 4, v3")
        a(f"ds_read_b128 {vr(ED_+4*i,4)}, v{EA_+i} offset:{L_LUT}"); seq.append(("L", i))
    for i in range(LA): lut(i)
    for i in range(NE):
        if i + LA < NE: lut(i + LA)
        wait_for(("L", i))
        a(f"ds_write_b128 v6, {vr(ED_+4*i,4)} offset:{1024*i}"); seq.append(("W", i))
    a("EDONE:")
    a("s_mov_b64 exec, 1"); a("s_waitcnt lgkmcnt(0)"); a(f"ds_add_u32 v{vT0}, v5 offset:{L_OD}"); a("s_mov_b64 exec, -1")
    a("s_branch PFIN")
    a("PDRAIN:")
    a(f"ds_read_b32 v8, v{vT0} offset:{L_OD}"); a("s_waitcnt lgkmcnt(0)"); a(f"v_readfirstlane_b32 s{sTMP+7}, v8")
    a(f"s_cmp_lt_u32 s{sTMP+7}, 3"); a("s_cbranch_scc1 PDRAIN")
    a("s_mov_b64 exec, 1")
    for k in range(PK - 1, 0, -1):
        a(f"s_cmp_le_u32 s{sT}, {k}"); a(f"s_cbranch_scc1 PD_{k}")
        a(f"s_waitcnt vmcnt({2*k})"); a(f"ds_add_u32 v{vT0}, v5 offset:{L_RDY}"); a(f"PD_{k}:")
    a("v_mov_b32 v5, 0x7fffffff"); a("s_waitcnt vmcnt(0)"); a(f"ds_write_b32 v{vT0}, v5 offset:{L_RDY}")
    a("s_mov_b64 exec, -1")
    stamp(a, "loopend"); stamp_out(a, "0")
    a("PFIN:")
    a(f"s_cmp_eq_u32 s{sMODE}, 0"); a("s_cbranch_scc1 PEND")
    a(f"s_cmp_eq_u32 s{sROUND}, 999"); a("s_cbranch_scc1 PEND")
    a(f"s_add_u32 s{sROUND}, s{sROUND}, 1")
    a("POVF:")
    a(f"s_mov_b32 s{sMODE}, 1")
    a("s_waitcnt vmcnt(0) lgkmcnt(0)"); a("s_barrier"); a("s_branch PROUND")
    a("PEND:")
    a("s_endpgm")
    a("CODE_END:")

def main(out):
    K = "standalone__edge_featured_mpnn_gatedgcn__graph_kernel"
    head = []
    for line in open("standalone__edge_featured_mpnn_gatedgcn__graph.s.ref").read().split("\n"):
        if not line.startswith(";"): break
        if "@launch" in line or "Override launch" in line or "grid=ceil" in line: continue
        head.append(line)
    a = A(); gen(a, K)
    t = "\n".join(head) + "\n"
    t += (f"; @launch kernel={K} " if LIST else "; @launch ") + f"grid=(256,1,1) block=(768,1,1) lds={L_TOTAL}\n"
    t += '.amdgcn_target "amdgcn-amd-amdhsa--gfx950"\n.text\n'
    t += f".globl {K}\n.p2align 8\n.type {K},@function\n" + a.text()
    t += f'''.section .rodata,"a"
.p2align 6
.amdhsa_kernel {K}
  .amdhsa_next_free_vgpr 168
  .amdhsa_next_free_sgpr 102
  .amdhsa_accum_offset 168
  .amdhsa_group_segment_fixed_size 0
  .amdhsa_kernarg_size 96
  .amdhsa_user_sgpr_count 2
  .amdhsa_user_sgpr_kernarg_segment_ptr 1
  .amdhsa_system_sgpr_workgroup_id_x 1
.end_amdhsa_kernel
'''
    if STAMP: t = "; stamps " + ",".join(NAMES) + "\n" + t
    open(out, "w").write(t)

if __name__ == "__main__":
    main(sys.argv[1] if len(sys.argv) > 1 else "standalone__edge_featured_mpnn_gatedgcn__graph.s")
```

```python
import sys, os

N, E = 12500, 400000
NS, CH = 125, 3200
NG = 131
WS_TAB, WS_REC, WS_ARR, WS_OFF = 0, 0x620000, 0x7B0000, 0x7D0000
NLOG2E = 0xbfb8aa3b
env = lambda k, d: type(d)(os.environ.get(k, d))
STAMP = env("STAMP", 0); STAMPS = env("STAMPS", "all").split(","); ITS = env("ITS", 0)
PK = env("PK", 1); LEADX = env("LEADX", 4); PRIO = env("PRIO", "3210")
SHL64 = env("SHL64", 1); PF = env("PF", 2); PFW = env("PFW", 0); G1LATE = env("G1LATE", 0); NOEA = env("NOEA", 0)
SDPOL = env("SDPOL", "nt"); SIG = env("SIG", "byte"); SLP = env("SLP", 2); MSLP = env("MSLP", 1)
NCOL = env("NCOL", 8); CODEPF = env("CODEPF", 1); PDEL = env("PDEL", 0); NREP = env("NREP", 16); CDEPTH = env("CDEPTH", 1); HS2 = env("HS2", 0); TLB = env("TLB", 0); TLBSH = env("TLBSH", 18); EPF = env("EPF", 0); HPRIO = env("HPRIO", 3); HOOKK = env("HOOKK", 5); HPLAN = env("HPLAN", "011"); PPRIO = env("PPRIO", 0); HPRIO2 = env("HPRIO2", 3); ETS = env("ETS", 2); ETQ = env("ETQ", 1); PACE = env("PACE", 1); RDYP = env("RDYP", 2); OFFLATE = env("OFFLATE", 1); SPRIO = env("SPRIO", 0); LIST = env("LIST", 0); DBG = env("DBG", "")
SPIN = 0x100000
MF = "v_mfma_f32_32x32x16_bf16"

class A:
    def __init__(self): self.l = []
    def __call__(self, s):
        for line in s.strip("\n").split("\n"):
            line = line.strip()
            if line:
                self.l.append(line if line.endswith(":") else "    " + line)
    def text(self): return "\n".join(self.l) + "\n"
def vr(a, n): return f"v[{a}:{a+n-1}]"

NT = 60
L_CNT, L_RDY, L_PROG, L_AD, L_OD, L_LUT = 64, 96, 100, 104, 108, 272
L_IDX = 6144
L_EOF = L_IDX + NT * 128
L_O = L_EOF + NT * 128
L_EA = L_O + NT * 1024
L_X = L_EA + 65536
L_TOTAL = L_X + 15360
S_CNT = 25600
S_TOT, S_BAD, S_TBL, S_SRT = S_CNT + 4096, S_CNT + 4128, S_CNT + 4352, S_CNT + 12544
L_X96 = L_TOTAL - 24576
L_WBV, L_WAU = 8192, 73728
assert L_WAU + 65536 == L_X96
vIDX, vEA, vOT, vSa, vS0, vS1, vT0 = 1, 2, 3, 4, 5, 6, 7
IX, SA, WC, AP, UP, DEN, NUM = 8, 24, 32, 36, 44, 52, 68
G = [84, 100]
RAW = [116, 132, 148]
LO, vT1 = 164, 166
RECQ = [116, 120, 124, 128]
LOFF, LCHV, LKEY, LRO, LLEN, LC, LADJ, LTOT, LCB, LONE, LQ4, LTMP = 132, 134, 135, 136, 137, 138, 140, 142, 144, 145, 146, 148
sW = 3
dX, dEA, dWS, dTAB, dOUT, dWC, dW0, dW1, dSRC, dDST = 8, 12, 16, 20, 24, 28, 32, 36, 40, 44
dDBG = 48
sCG, sBETA, sMODE, sROUND, sID, sU, sSTAGE = 52, 53, 54, 55, 56, 57, 58
sT, sTEND, sRDY, sF0, sL0, sL1, sG0, sG1 = 60, 61, 62, 63, 64, 65, 66, 67
sC = 68
sTMP = 76
sM0, sM1 = 88, 90
sPA, sPU = 92, 94
sOK = 96

NAMES = []
def stamp(a, nm):
    if STAMP and (STAMPS == ["all"] or nm in STAMPS):
        if nm not in NAMES: NAMES.append(nm)
        a("s_memtime s[4:5]"); a("s_waitcnt lgkmcnt(0)")
        a(f"v_writelane_b32 v167, s4, {NAMES.index(nm)}")
        rt = {"loop0": 59, "loopend": 60, "arrive": 55, "go": 56, "go2": 57, "bar2": 58}
        if nm in rt:
            a("s_memrealtime s[4:5]"); a("s_waitcnt lgkmcnt(0)")
            a(f"v_writelane_b32 v167, s4, {rt[nm]}")
def stamp_out(a, tiles):
    if STAMP:
        a("s_memrealtime s[4:5]"); a("s_waitcnt lgkmcnt(0)"); a("s_mov_b64 exec, -1")
        a("v_writelane_b32 v167, s4, 62"); a(f"v_writelane_b32 v167, {tiles}, 63")
        a("v_and_b32 v3, 63, v0"); a("v_lshlrev_b32 v3, 2, v3")
        a(f"s_mul_i32 s{sTMP}, s{sID}, 9"); a(f"s_add_u32 s{sTMP}, s{sTMP}, s{sW}")
        a(f"s_lshl_b32 s{sTMP}, s{sTMP}, 8"); a(f"s_add_u32 s{sTMP}, s{sTMP}, 0x900000")
        a(f"s_mov_b32 s{dWS+2}, 0x1000000")
        a(f"buffer_store_dword v167, v3, s[{dWS}:{dWS+3}], s{sTMP} offen")
def D(d): return f"s[{d}:{d+3}]"

def idx_reads(a, rel):
    for q in range(2 if "m16" in DBG else 4):
        a(f"ds_read_b128 {vr(IX+4*q,4)}, v{vIDX} offset:{rel*128+32*q}")
def gathers(a, dst):
    if "m16" in DBG:
        for k in range(0, 8, 2):
            a(f"v_lshl_add_u64 {vr(IX+k,2)}, {vr(IX+k,2)}, 4, {vr(LO,2)}")
        for k in range(16):
            a(f"buffer_load_dword v{dst+k}, v{IX+k//2}, {D(dTAB)}, 0 offen offset:{(k&1)*64} sc1")
        return
    for k in range(0, 16, 2):
        a(f"v_lshl_add_u64 {vr(IX+k,2)}, {vr(IX+k,2)}, 4, {vr(LO,2)}")
    for k in range(16):
        a(f"buffer_load_dword v{dst+k}, v{IX+k}, {D(dTAB)}, 0 offen sc1")
M16 = "v_mfma_f32_16x16x32_bf16"
def ms_list(gx):
    if "m16" in DBG:
        return [f"{M16} {vr(DEN+4*i,4)}, {vr(SA,4)}, {vr(gx+4*i,4)}, {vr(DEN+4*i,4)}" for i in range(4)]
    return [f"{MF} {vr(DEN,16)}, {vr(SA,4)}, {vr(gx,4)}, {vr(DEN,16)}",
            f"{MF} {vr(NUM,16)}, {vr(SA,4)}, {vr(gx+8,4)}, {vr(NUM,16)}",
            f"{MF} {vr(DEN,16)}, {vr(SA+4,4)}, {vr(gx+4,4)}, {vr(DEN,16)}",
            f"{MF} {vr(NUM,16)}, {vr(SA+4,4)}, {vr(gx+12,4)}, {vr(NUM,16)}"]
def poll(a, stubs, tag):
    a(f"s_cmp_le_u32 s{sRDY}, s{sT}"); a(f"s_cbranch_scc1 POLL_{tag}"); a(f"POLLED_{tag}:")
    stubs(f"POLL_{tag}:")
    stubs(f"ds_read_b32 v{vT1}, v{vT0} offset:{L_RDY}"); stubs("s_waitcnt lgkmcnt(0)")
    stubs(f"v_readfirstlane_b32 s{sRDY}, v{vT1}")
    stubs(f"s_cmp_gt_u32 s{sRDY}, s{sT}"); stubs(f"s_cbranch_scc1 POLLED_{tag}")
    stubs("s_sleep 1"); stubs(f"s_branch POLL_{tag}")
def publish(a):
    if not PACE: return
    a("s_mov_b64 exec, 1"); a(f"ds_inc_u32 v{vT0}, v{vEA} offset:{L_PROG}"); a("s_mov_b64 exec, -1")
def prio(a, pos):
    if PRIO[pos] != "-": a(f"s_setprio {PRIO[pos]}")
def totals(a, t):
    a(f"v_add_u32 v{t}, v{t}, v{t+1}")
    a(f"v_add_u32_sdwa v{t}, v{t}, v{t} dst_sel:DWORD dst_unused:UNUSED_PAD src0_sel:WORD_0 src1_sel:WORD_1")
    a(f"v_add_u32 v{t}, 31, v{t}"); a(f"v_lshrrev_b32 v{t}, 4, v{t}"); a(f"v_and_b32 v{t}, -2, v{t}")
    a("s_nop 0")
    for k in range(4): a(f"v_readlane_b32 s{sC+k}, v{t}, {k}")
    a(f"s_sub_i32 s{sC+4}, s{sC}, 1"); a(f"s_sub_i32 s{sC+5}, s{sC+2}, 1")
    a(f"s_max_i32 s{sC+4}, s{sC+4}, s{sC+1}"); a(f"s_max_i32 s{sC+5}, s{sC+5}, s{sC+3}")
    a(f"s_add_u32 s{sC+6}, s{sC+4}, s{sC+5}"); a(f"s_cmp_gt_u32 s{sC+6}, {NT}")

vL, vWS, vTR, XAD, SET, AB, AV = 1, 2, 36, 8, [48, 60, 72], 84, 100

def own_x(a):
    a(f"v_lshrrev_b32 v4, 4, v{vL}"); a(f"v_and_b32 v5, 15, v{vL}")
    a("v_xor_b32 v5, v5, v4"); a("v_lshlrev_b32 v5, 4, v5"); a("v_lshl_add_u32 v16, v4, 18, v5")
    for j in range(1, 4): a(f"v_xor_b32 v{16+j}, {64*j}, v16")
    a(f"s_lshl_b32 s{sTMP}, s2, 8"); a(f"s_lshl_b32 s{sTMP+1}, s{sCG}, 16"); a(f"s_add_u32 s{sTMP}, s{sTMP}, s{sTMP+1}")
    a(f"s_lshl_b32 s{sTMP+2}, s{sCG}, 12"); a(f"s_add_u32 s{sTMP+2}, s{sTMP+2}, {L_X}")
    for j in range(4):
        c16 = 8 * (j & 1) + 4 * (j >> 1)
        a(f"s_add_u32 m0, s{sTMP+2}, {j*1024}"); a(f"s_add_u32 s{sTMP+1}, s{sTMP}, {c16*4*65536:#x}")
        a(f"buffer_load_dwordx4 v{16+j}, {D(dX)}, s{sTMP+1} offen lds")
def w_group(a, sreg, lds):
    for d, base in ((dW0, lds), (dW1, lds + 32768)):
        a(f"s_add_u32 m0, s{sreg}, {base}"); a("s_nop 0")
        for i in range(4):
            a(f"buffer_load_dwordx4 v{vWS}, {D(d)}, s{sreg} offen offset:{i*1024} lds")

def gen(a, name):
    stubs = A()
    a(f"{name}:")
    a("s_cmp_ge_u32 s2, 256"); a("s_cbranch_scc1 F_END")
    a(f"s_load_dwordx2 s[{dDST}:{dDST+1}], s[0:1], 24")
    a(f"s_load_dwordx2 s[{dSRC}:{dSRC+1}], s[0:1], 16")
    a(f"s_load_dwordx2 s[{dX}:{dX+1}], s[0:1], 0")
    a(f"s_load_dwordx2 s[{dW0}:{dW0+1}], s[0:1], 40")
    a(f"s_load_dwordx2 s[{dW1}:{dW1+1}], s[0:1], 64")
    a(f"s_load_dwordx2 s[{sPA}:{sPA+1}], s[0:1], 32")
    a(f"s_load_dwordx2 s[{sPU}:{sPU+1}], s[0:1], 56")
    a(f"s_load_dwordx2 s[{dWC}:{dWC+1}], s[0:1], 48")
    a(f"v_lshrrev_b32 v{vWS}, 6, v0")
    a(f"v_and_b32 v{vL}, 63, v0")
    a(f"v_readfirstlane_b32 s{sW}, v{vWS}")
    a(f"s_mov_b32 s{sID}, s2")
    a(f"s_lshr_b32 s{sU}, s2, 3"); a("s_and_b32 s2, s2, 7"); a("s_lshl_b32 s2, s2, 5"); a(f"s_or_b32 s2, s2, s{sU}")
    for d, nb in ((dDST, E*4), (dSRC, E*4), (dX, N*256), (dW0, 32768), (dW1, 32768), (dWC, 4096)):
        a(f"s_mov_b32 s{d+2}, {nb:#x}"); a(f"s_mov_b32 s{d+3}, 0x20000")
    a(f"s_and_b32 s{sCG}, s{sW}, 3")
    a(f"v_lshrrev_b32 v4, 4, v{vL}"); a("v_lshlrev_b32 v5, 2, v4"); a(f"v_and_b32 v6, 15, v{vL}")
    a("v_xor_b32 v5, v5, v6"); a("v_lshlrev_b32 v5, 4, v5"); a(f"v_lshl_add_u32 v{vWS}, v4, 8, v5")
    a(f"v_mov_b32 v{vT0}, 0")
    a("v_mov_b32 v32, 0")
    if STAMP:
        a("v_mov_b32 v167, 0"); a("s_memrealtime s[6:7]"); a("s_waitcnt lgkmcnt(0)"); a("v_writelane_b32 v167, s6, 61")
    stamp(a, "start")
    if CODEPF:
        a("s_cmp_lg_u32 s3, 0"); a("s_cbranch_scc1 NOCPF")
        a(f"s_getpc_b64 s[{sTMP}:{sTMP+1}]")
        a("PCREF:")
        a(f"s_lshl_b32 s{sTMP+2}, s{sU}, 7")
        a(f"v_lshl_add_u32 v160, v{vL}, 12, s{sTMP+2}")
        a("v_min_u32 v160, CODE_END-PCREF-4, v160")
        a("v_mov_b32 v161, 0")
        a(f"v_lshl_add_u64 v[160:161], v[160:161], 0, s[{sTMP}:{sTMP+1}]")
        a("s_mov_b64 exec, 31")
        a("global_load_dword v162, v[160:161], off")
        a("s_mov_b64 exec, -1")
        a("NOCPF:")
    def late_args():
        a(f"s_load_dwordx2 s[{dWS}:{dWS+1}], s[0:1], 88")
        a(f"s_load_dwordx2 s[{dTAB}:{dTAB+1}], s[0:1], 88")
        a(f"s_load_dwordx2 s[{dEA}:{dEA+1}], s[0:1], 8")
        a(f"s_load_dwordx2 s[{dOUT}:{dOUT+1}], s[0:1], 72")
        a(f"s_load_dwordx2 s[{dDBG}:{dDBG+1}], s[0:1], 80")
        for d, nb in ((dWS, WS_OFF + NS*8192), (dTAB, N*512), (dEA, E*32), (dOUT, N*256), (dDBG, 256)):
            a(f"s_mov_b32 s{d+2}, {nb:#x}"); a(f"s_mov_b32 s{d+3}, 0x20000")
        a(f"s_mov_b32 s{sMODE}, 0"); a(f"s_mov_b32 s{sROUND}, 0")
        a(f"s_bfe_u32 s{sBETA}, s{sW}, 0x10002")
    def see_clear(tag):
        a(f"s_mov_b32 s{sOK}, 0")
        a("s_cmp_lg_u32 s3, 8"); a(f"s_cbranch_scc1 SC_D{tag}")
        a(f"s_load_dword s{sOK}, s[{dDBG}:{dDBG+1}], 0")
        a(f"SC_D{tag}:")
    def need_clear(tag):
        a("s_waitcnt lgkmcnt(0)")
        a(f"v_mov_b32 v24, s{sOK}")
        a(f"s_mov_b32 s{sTMP+5}, 0")
        a(f"NC_L{tag}:")
        a("v_cmp_eq_u32 vcc, 0, v24"); a(f"s_cbranch_vccz NC_E{tag}")
        a(f"s_add_u32 s{sTMP+5}, s{sTMP+5}, 1"); a(f"s_cmp_gt_u32 s{sTMP+5}, {SPIN:#x}"); a(f"s_cbranch_scc1 NC_E{tag}")
        a(f"buffer_load_dword v24, v{vT0}, {D(dDBG)}, 0 offen sc1")
        a("s_waitcnt vmcnt(0)"); a(f"s_branch NC_L{tag}")
        a(f"NC_E{tag}:")
    def page_touch(tag):
        if not TLB: return
        a(f"s_cmp_lg_u32 s3, {tag[1]}"); a(f"s_cbranch_scc1 PT_{tag[0]}")
        a(f"v_lshlrev_b32 v163, {TLBSH}, v{vL}")
        a("s_waitcnt lgkmcnt(0)")
        a(f"buffer_load_dword v162, v163, {D(dEA)}, 0 offen")
        if TLB > 1:
            a(f"buffer_load_dword v162, v163, {D(dOUT)}, 0 offen")
        a(f"PT_{tag[0]}:")
    def wait_flags(stage):
        a(f"s_mov_b32 s{sTMP+5}, 0")
        if stage == 1:
            a("s_mov_b32 exec_hi, 0")
        for k in range(CDEPTH - 1):
            a(f"buffer_load_dwordx4 {vr(40+4*k,4)}, v32, {D(dWS)}, 0 offen sc1"); a(f"s_sleep {SLP}")
        a(f"WAITF{stage}:")
        for k in range(CDEPTH):
            b = 40 + 4 * k
            a(f"buffer_load_dwordx4 {vr(40+4*((k+CDEPTH-1)%CDEPTH),4)}, v32, {D(dWS)}, 0 offen sc1")
            a(f"s_waitcnt vmcnt({CDEPTH-1})")
            if stage == 1: a(f"v_or_b32 v{b+3}, v{b+3}, v36")
            a(f"v_and_b32 v{b}, v{b}, v{b+1}"); a(f"v_and_b32 v{b+2}, v{b+2}, v{b+3}"); a(f"v_and_b32 v{b}, v{b}, v{b+2}")
            a(f"v_cmpx_ne_u32 vcc, 1, v{b}"); a(f"s_cbranch_execz ALLIN{stage}")
            if SLP: a(f"s_sleep {SLP}")
        a(f"s_add_u32 s{sTMP+5}, s{sTMP+5}, 1"); a(f"s_cmp_lt_u32 s{sTMP+5}, {SPIN:#x}"); a(f"s_cbranch_scc1 WAITF{stage}")
        a(f"ALLIN{stage}:")
        a("s_mov_b64 exec, -1")
    def wait_alloc(tag, tmp):
        a(f"WA_{tag}:")
        a(f"ds_read_b32 v{tmp}, v{vT0} offset:{L_AD}"); a("s_waitcnt lgkmcnt(0)")
        a(f"v_readfirstlane_b32 s{sTMP+4}, v{tmp}"); a(f"s_cmp_lt_u32 s{sTMP+4}, 8"); a(f"s_cbranch_scc1 WA_{tag}")
    WCR = 152
    def wc_loads():
        a(f"v_and_b32 v{LO}, 31, v0"); a(f"v_bfe_u32 v{LO+1}, v0, 5, 1")
        a(f"s_lshl_b32 s{sTMP+10}, s{sCG}, 6")
        a(f"v_lshl_add_u32 v{vT1}, v{LO}, 1, s{sTMP+10}"); a(f"v_lshl_add_u32 v{vT1}, v{LO+1}, 11, v{vT1}")
        for j in range(8): a(f"buffer_load_ushort v{WCR+j}, v{vT1}, {D(dWC)}, 0 offen offset:{j*256}")
    def gemm_addr(xbase_sreg, wbase):
        a(f"v_lshrrev_b32 v5, 5, v{vL}"); a(f"v_bfe_u32 v4, v{vL}, 2, 2")
        a(f"v_lshl_add_u32 v{vTR}, v5, 3, v4"); a(f"v_lshlrev_b32 v{vTR}, 8, v{vTR}")
        a(f"v_xor_b32 v4, s{sCG}, v4"); a(f"v_lshl_add_u32 v{vTR}, v4, 6, v{vTR}")
        a(f"v_bfe_u32 v4, v{vL}, 4, 1"); a(f"v_lshl_add_u32 v{vTR}, v4, 5, v{vTR}")
        a(f"v_and_b32 v4, 3, v{vL}"); a(f"v_lshl_add_u32 v{vTR}, v4, 3, v{vTR}")
        a(f"v_add_u32 v{vTR}, {wbase}, v{vTR}")
        a(f"v_and_b32 v4, 15, v{vL}"); a("v_xor_b32 v4, v4, v5"); a("v_lshlrev_b32 v4, 4, v4")
        a(f"v_and_b32 v6, 31, v{vL}"); a("v_lshl_add_u32 v4, v6, 8, v4")
        a(f"v_add_u32 v{XAD}, s{xbase_sreg}, v4")
        for kk in range(1, 8): a(f"v_xor_b32 v{XAD+kk}, {kk*32}, v{XAD}")
    a(f"s_cmp_lt_u32 s{sID}, {NS}"); a("s_cbranch_scc1 SORT")
    a(f"s_sub_u32 s{sTMP+9}, s{sID}, {NS}")
    a("s_cmp_lt_u32 s3, 4"); a("s_cbranch_scc1 G_XLD")
    a(f"s_sub_u32 s{sTMP+3}, s3, 4"); a(f"s_lshl_b32 s{sTMP+3}, s{sTMP+3}, 12")
    a("s_waitcnt lgkmcnt(0)")
    w_group(a, sTMP + 3, L_WBV)
    late_args()
    a("s_branch G_LDD")
    a("G_XLD:")
    a(f"s_lshl_b32 s{sTMP+1}, s{sCG}, 2")
    a("v_xor_b32 v5, v6, v4"); a(f"v_xor_b32 v5, s{sTMP+1}, v5"); a("v_lshlrev_b32 v5, 4, v5"); a("v_lshl_add_u32 v20, v4, 8, v5")
    a(f"s_mul_i32 s{sTMP}, s{sTMP+9}, {96*256}"); a(f"s_lshl_b32 s{sTMP+1}, s{sCG}, 10")
    a(f"s_add_u32 s{sTMP}, s{sTMP}, s{sTMP+1}"); a(f"s_add_u32 s{sTMP+1}, s{sTMP+1}, {L_X96}")
    a("s_waitcnt lgkmcnt(0)")
    for i in range(6):
        a(f"s_add_u32 m0, s{sTMP+1}, {i*4096}"); a(f"s_add_u32 s{sTMP+2}, s{sTMP}, {i*4096}")
        a(f"buffer_load_dwordx4 v20, {D(dX)}, s{sTMP+2} offen lds")
    late_args()
    a("G_LDD:")
    page_touch(("G", 3))
    a("s_cmp_ge_u32 s3, 8"); a("s_cbranch_scc1 G_NWC")
    wc_loads()
    a("G_NWC:")
    a(f"s_lshr_b32 s{sTMP+4}, s3, 2")
    a(f"s_lshl_b32 s{sTMP+5}, s{sTMP+4}, 13"); a(f"s_add_u32 s{sTMP+5}, s{sTMP+5}, {L_X96}")
    gemm_addr(sTMP + 5, L_WBV)
    a(f"s_mul_i32 s{sTMP+5}, s{sTMP+9}, {96*512}"); a(f"s_lshl_b32 s{sTMP+6}, s{sTMP+4}, 14"); a(f"s_add_u32 s{sTMP+5}, s{sTMP+5}, s{sTMP+6}")
    a(f"s_lshl_b32 s{sTMP+6}, s{sCG}, 7"); a(f"s_add_u32 s{sTMP+5}, s{sTMP+5}, s{sTMP+6}")
    a("v_lshlrev_b32 v20, 2, v6"); a("v_lshl_add_u32 v20, v5, 11, v20"); a(f"v_add_u32 v20, s{sTMP+5}, v20")
    for q in range(1, 4): a(f"v_add_u32 v{20+q}, {4096*q}, v20")
    a(f"s_mov_b32 s{sSTAGE}, 0")
    a("s_waitcnt vmcnt(0) lgkmcnt(0)")
    stamp(a, "p1land")
    a(f"s_mov_b64 s[{dW0}:{dW0+1}], s[{sPA}:{sPA+1}]"); a(f"s_mov_b64 s[{dW1}:{dW1+1}], s[{sPU}:{sPU+1}]")
    a("s_barrier")
    a("s_cmp_lt_u32 s3, 8"); a("s_cbranch_scc1 CORE")
    a(f"s_lshl_b32 s{sTMP+3}, s{sCG}, 13")
    w_group(a, sTMP + 3, L_WAU)
    a(f"s_add_u32 s{sTMP+3}, s{sTMP+3}, 4096")
    w_group(a, sTMP + 3, L_WAU)
    a("CORE:")
    def reads(kk):
        b = SET[kk % 3]
        a(f"ds_read_b128 {vr(b,4)}, v{XAD+kk}")
        for u in range(2): a(f"ds_read_b64_tr_b16 {vr(b+4+2*u,2)}, v{vTR} offset:{kk*4096+u*1024}")
        for u in range(2): a(f"ds_read_b64_tr_b16 {vr(b+8+2*u,2)}, v{vTR} offset:{32768+kk*4096+u*1024}")
    for kk in range(3): reads(kk)
    for kk in range(8):
        b = SET[kk % 3]
        a(f"s_waitcnt lgkmcnt({5*min(7-kk,2)})")
        a(f"{MF} {vr(AV,16)}, {vr(b,4)}, {vr(b+8,4)}, {'0' if kk == 0 else vr(AV,16)}")
        a(f"{MF} {vr(AB,16)}, {vr(b,4)}, {vr(b+4,4)}, {'0' if kk == 0 else vr(AB,16)}")
        if kk + 3 < 8: reads(kk + 3)
        if kk == HOOKK:
            a(f"s_cmp_lg_u32 s{sSTAGE}, 0"); a("s_cbranch_scc1 HOOK"); a("HOOKED:")
    a(f"s_mov_b32 s{sTMP+6}, {NLOG2E:#x}")
    a(f"s_mov_b32 s{sTMP+7}, {NLOG2E:#x}")
    a(f"s_cmp_lg_u32 s{sSTAGE}, 0"); a("s_cbranch_scc1 AU_DONE")
    a(f"s_mov_b32 s{sTMP+5}, 0x7f7e0000")
    a("v_mov_b32 v4, 0x21800000")
    see_clear("G")
    stamp(a, "g_core")
    a("s_nop 2")
    VP, VN = 116, 124
    for i in range(8):
        a(f"v_cvt_pk_bf16_f32 v{VP+i}, v{AV+2*i}, v{AV+2*i+1}")
        a(f"v_xor_b32 v{VN+i}, 0x80008000, v{VP+i}")
    for q in range(4):
        R = range(4*q, 4*q+4)
        for r in R: a(f"v_fma_f32 v{AB+r}, v{AB+r}, s{sTMP+6}, v4")
        for r in R: a(f"v_med3_f32 v{AB+r}, v{AB+r}, -s{sTMP+5}, s{sTMP+5}")
        for r in R: a(f"v_sub_u32_sdwa v{AB+r}, v{AB+r}, sext(v{VN+r//2}) dst_sel:DWORD dst_unused:UNUSED_PAD src0_sel:DWORD src1_sel:WORD_{r&1}")
        for r in R: a(f"v_mov_b32_sdwa v{AB+r}, v{VP+r//2} dst_sel:WORD_0 dst_unused:UNUSED_PRESERVE src0_sel:WORD_{r&1}")
        a("s_nop 0")
        for r in R: a(f"buffer_store_dword v{AB+r}, v{20+q}, {D(dTAB)}, 0 offen offset:{(r&3)*512} sc1")
    stamp(a, "p1st")
    a("s_barrier")
    a("s_cmp_lt_u32 s3, 8"); a("s_cbranch_scc1 G_DRAIN")
    own_x(a)
    a("G_DRAIN:")
    a("s_branch ARRIVE")
    a("SORT:")
    if SPRIO: a("s_setprio 2")
    a("s_cmp_ge_u32 s3, 8"); a("s_cbranch_scc1 S_HELP")
    Dd, S, RK, RC, KA, SH = 16, 24, 32, 40, 48, 56
    a("v_lshlrev_b32 v11, 3, v0"); a("v_mov_b64 v[12:13], 0")
    a(f"ds_write_b64 v11, v[12:13] offset:{S_CNT}"); a(f"ds_write_b32 v{vT0}, v12 offset:{S_BAD}")
    a("v_lshlrev_b32 v6, 4, v0")
    a(f"s_mul_i32 s{sTMP}, s{sID}, {CH*4}"); a(f"s_add_u32 s{sTMP+1}, s{sTMP}, 8192")
    a("s_waitcnt lgkmcnt(0)")
    a(f"buffer_load_dwordx4 {vr(Dd,4)}, v6, {D(dDST)}, s{sTMP} offen {SDPOL}")
    a(f"buffer_load_dwordx4 {vr(S,4)}, v6, {D(dSRC)}, s{sTMP} offen {SDPOL}")
    a("s_cmp_ge_u32 s3, 5"); a("s_cbranch_scc1 S_0")
    a(f"buffer_load_dwordx4 {vr(Dd+4,4)}, v6, {D(dDST)}, s{sTMP+1} offen {SDPOL}")
    a(f"buffer_load_dwordx4 {vr(S+4,4)}, v6, {D(dSRC)}, s{sTMP+1} offen {SDPOL}")
    a("S_0:")
    a("s_barrier")
    wc_loads()
    late_args()
    a("v_lshlrev_b32 v5, 7, v0"); a("v_mov_b32 v8, 0")
    a(f"v_cmp_gt_u32 vcc, {(CH-2048)//4}, v0"); a(f"s_mov_b64 s[{sTMP+2}:{sTMP+3}], vcc")
    def keys(lo):
        for i in range(lo, lo + 4):
            a(f"v_lshlrev_b32_sdwa v9, 4, v{Dd+i} dst_sel:DWORD dst_unused:UNUSED_PAD src0_sel:DWORD src1_sel:BYTE_0")
            a(f"v_bfe_u32 v10, v{Dd+i}, 8, 2")
            a(f"v_lshrrev_b32 v{SH+i}, 7, v{S+i}")
            a(f"v_lshl_or_b32 v{KA+i}, v10, 2, v9")
            a(f"v_and_b32 v{SH+i}, 24, v{SH+i}")
            a(f"v_lshlrev_b32_e64 v9, v{SH+i}, 1")
            a(f"ds_add_rtn_u32 v{RK+i}, v{KA+i}, v9 offset:{S_CNT}")
        for i in range(lo, lo + 4):
            a(f"v_lshrrev_b32 v9, 10, v{Dd+i}")
            a(f"v_add_u32 v10, {(((i&3) + (2048 if i >= 4 else 0)) << 5) + 1:#x}, v5")
            a(f"v_lshl_or_b32 v10, v{S+i}, 18, v10")
            a(f"v_add_u32 v{RC+i}, v9, v10")
            a(f"v_lshlrev_b32 v{KA+i}, 1, v{KA+i}")
        for i in range(lo, lo + 4):
            a(f"s_waitcnt lgkmcnt({3-(i-lo)})"); a(f"v_bfe_u32 v{RK+i}, v{RK+i}, v{SH+i}, 8")
        a(f"v_max3_u32 v8, v8, v{RK+lo}, v{RK+lo+1}"); a(f"v_max3_u32 v8, v8, v{RK+lo+2}, v{RK+lo+3}")
    a("s_waitcnt vmcnt(8) lgkmcnt(0)")
    stamp(a, "p1land")
    keys(0)
    a(f"s_mov_b64 exec, s[{sTMP+2}:{sTMP+3}]"); a("s_cbranch_execz S_1")
    keys(4)
    a("S_1:")
    a("s_mov_b64 exec, -1")
    a("v_cmp_lt_u32 vcc, 62, v8"); a("s_cbranch_vccz S_1B")
    a("v_mov_b32 v9, -1"); a(f"ds_write_b32 v{vT0}, v9 offset:{S_BAD}"); a("s_waitcnt lgkmcnt(0)")
    a("S_1B:")
    a(f"v_lshlrev_b32 v9, 4, v{vL}"); a("v_mov_b64 v[92:93], 0")
    stamp(a, "s_keys")
    a("s_barrier")
    stamp(a, "s_b2")
    a(f"ds_read_b64 v[12:13], v11 offset:{S_CNT}")
    for q in range(4): a(f"ds_read_b128 {vr(76+4*q,4)}, v9 offset:{S_CNT+1024*q}")
    a(f"ds_read_b32 v15, v{vT0} offset:{S_BAD}")
    a("s_waitcnt lgkmcnt(5)")
    a("v_sad_u8 v10, v12, 0, 0"); a("v_sad_u8 v8, v13, 0, v10"); a("v_mov_b32 v14, v8")
    for q in range(4):
        a(f"s_cmp_gt_u32 s3, {2*q}"); a("s_cselect_b32 exec_lo, -1, 0")
        a(f"s_cmp_gt_u32 s3, {2*q+1}"); a("s_cselect_b32 exec_hi, -1, 0")
        a(f"s_waitcnt lgkmcnt({4-q})")
        for i in range(4):
            a(f"v_sad_u8 v{92+(i&1)}, v{76+4*q+i}, 0, v{92+(i&1)}")
    a("s_mov_b64 exec, -1")
    a("v_add_u32 v92, v92, v93")
    a("s_nop 1")
    for ctl in ("row_shr:1 row_mask:0xf", "row_shr:2 row_mask:0xf", "row_shr:4 row_mask:0xf", "row_shr:8 row_mask:0xf",
                "row_bcast:15 row_mask:0xa", "row_bcast:31 row_mask:0xc"):
        a(f"v_add_u32_dpp v92, v92, v92 {ctl} bank_mask:0xf"); a(f"v_add_u32_dpp v14, v14, v14 {ctl} bank_mask:0xf"); a("s_nop 0")
    a(f"v_readlane_b32 s{sTMP+5}, v92, 63")
    a("v_sub_u32 v14, v14, v8")
    a("s_waitcnt lgkmcnt(0)")
    a("v_or_b32 v73, v12, v15"); a("v_or_b32 v75, v13, v15")
    a(f"v_add_u32 v14, s{sTMP+5}, v14")
    a("v_mov_b32 v72, v14"); a("v_add_u32 v74, v14, v10")
    a("v_mov_b32 v64, v14"); a("v_mov_b32 v65, v12"); a("v_mov_b32 v66, v74"); a("v_mov_b32 v67, v13")
    a(f"ds_write_b128 v6, v[64:67] offset:{S_TBL}")
    a("s_waitcnt lgkmcnt(0)"); a("s_barrier")
    stamp(a, "s_b4")
    LK = 76
    def lookups(lo):
        for i in range(lo, lo + 4): a(f"ds_read_b64 {vr(LK+2*i,2)}, v{KA+i} offset:{S_TBL}")
    def place(lo, wait):
        for i in range(lo, lo + 4):
            a(f"s_waitcnt lgkmcnt({wait})")
            a(f"v_bfe_u32 v9, v{LK+2*i+1}, 0, v{SH+i}"); a(f"v_sad_u8 v9, v9, 0, v{LK+2*i}")
            a(f"v_add_lshl_u32 v9, v9, v{RK+i}, 2"); a(f"ds_write_b32 v9, v{RC+i} offset:{S_SRT}")
    lookups(0)
    a("s_cmp_ge_u32 s3, 5"); a("s_cbranch_scc1 S_2")
    a(f"s_mov_b64 exec, s[{sTMP+2}:{sTMP+3}]")
    lookups(4)
    a("s_mov_b64 exec, -1")
    place(0, 7)
    a(f"s_mov_b64 exec, s[{sTMP+2}:{sTMP+3}]")
    place(4, 7)
    a("s_branch S_3")
    a("S_2:")
    place(0, 3)
    a("S_3:")
    a("s_mov_b64 exec, -1")
    a(f"s_add_u32 s{sTMP}, s{sTMP}, {WS_REC:#x}"); a(f"s_add_u32 s{sTMP+1}, s{sTMP+1}, {WS_REC:#x}")
    a(f"s_lshl_b32 s{sTMP+4}, s{sID}, 13"); a(f"s_add_u32 s{sTMP+4}, s{sTMP+4}, {WS_OFF:#x}")
    if not OFFLATE:
        a("s_waitcnt vmcnt(0)")
        a(f"buffer_store_dwordx4 v[72:75], v6, {D(dWS)}, s{sTMP+4} offen sc1")
    a("s_waitcnt lgkmcnt(0)"); a("s_barrier")
    stamp(a, "s_b5")
    a(f"ds_read_b128 v[64:67], v6 offset:{S_SRT}"); a(f"ds_read_b128 v[68:71], v6 offset:{S_SRT+8192}")
    if OFFLATE:
        a("s_waitcnt vmcnt(0)")
        a(f"buffer_store_dwordx4 v[72:75], v6, {D(dWS)}, s{sTMP+4} offen sc1")
    a("s_waitcnt lgkmcnt(1)")
    a(f"buffer_store_dwordx4 v[64:67], v6, {D(dWS)}, s{sTMP} offen sc1")
    a("s_waitcnt lgkmcnt(0)")
    a(f"s_mov_b64 exec, s[{sTMP+2}:{sTMP+3}]"); a("s_cbranch_execz S_4")
    a(f"buffer_store_dwordx4 v[68:71], v6, {D(dWS)}, s{sTMP+1} offen sc1")
    a("S_4:")
    a("s_mov_b64 exec, -1")
    stamp(a, "p1st")
    a("s_branch ARRIVE")
    a("S_HELP:")
    if SPRIO: a("s_setprio 0")
    a("s_waitcnt lgkmcnt(0)")
    a(f"s_mov_b64 s[{dW0}:{dW0+1}], s[{sPA}:{sPA+1}]"); a(f"s_mov_b64 s[{dW1}:{dW1+1}], s[{sPU}:{sPU+1}]")
    late_args()
    a(f"s_lshl_b32 s{sTMP}, s{sID}, 4"); a(f"s_add_u32 s{sTMP}, s{sTMP}, s3")
    a(f"s_cmp_lg_u32 s{sTMP}, 9"); a("s_cbranch_scc1 S_H1")
    a(f"v_lshrrev_b32 v4, 2, v{vL}"); a(f"v_and_b32 v5, 3, v{vL}"); a("v_lshlrev_b32 v5, 4, v5")
    a("v_lshl_add_u32 v4, v4, 7, v5"); a(f"v_add_u32 v4, {WS_ARR:#x}, v4")
    a("v_mov_b64 v[8:9], 0"); a("v_mov_b64 v[10:11], 0"); a("v_mov_b32 v5, 1")
    a("s_waitcnt lgkmcnt(0)")
    a("s_barrier")
    a(f"s_mov_b32 s{sTMP}, {NREP//2}")
    a("S_CLR:")
    a(f"buffer_store_dwordx4 v[8:11], v4, {D(dWS)}, 0 offen sc1")
    a(f"buffer_store_dwordx4 v[8:11], v4, {D(dWS)}, 0 offen offset:2048 sc1")
    a("v_add_u32 v4, 4096, v4")
    a(f"s_sub_u32 s{sTMP}, s{sTMP}, 1"); a(f"s_cmp_lg_u32 s{sTMP}, 0"); a("s_cbranch_scc1 S_CLR")
    a("s_mov_b64 exec, 1")
    a("s_waitcnt vmcnt(0)")
    a(f"buffer_store_dword v5, v{vT0}, {D(dDBG)}, 0 offen sc1")
    a("s_mov_b64 exec, -1")
    a("s_branch S_H2")
    a("S_H1:")
    a("s_barrier")
    a("S_H2:")
    a("s_waitcnt lgkmcnt(0)")
    page_touch(("S", 10))
    parts = [lambda: (a(f"s_lshl_b32 s{sTMP+3}, s{sCG}, 13"), w_group(a, sTMP + 3, L_WAU)),
             lambda: (a(f"s_add_u32 s{sTMP+3}, s{sTMP+3}, 4096"), w_group(a, sTMP + 3, L_WAU)),
             lambda: own_x(a)]
    for slot in range(3):
        for p, where in zip(parts, HPLAN):
            if int(where) == slot: p()
        if slot == 0: stamp(a, "s_keys")
        a("s_barrier")
        if slot == 0: see_clear("S")
    a("ARRIVE:")
    a("s_cmp_lt_u32 s3, 8"); a("s_cbranch_scc1 NODE")
    a("s_cmp_eq_u32 s3, 8"); a("s_cbranch_scc1 SIGNAL")
    a("s_waitcnt vmcnt(0)")
    a("s_barrier")
    a(f"s_cmp_ge_u32 s{sID}, {NS}"); a("s_cbranch_scc1 HELP")
    a("s_barrier")
    a("s_branch HELP")
    a("SIGNAL:")
    a(f"s_and_b32 s{sTMP}, s{sID}, 7"); a(f"s_lshl_b32 s{sTMP}, s{sTMP}, 7")
    a(f"s_bfe_u32 s{sTMP+1}, s{sID}, 0x40003"); a(f"s_lshl_b32 s{sTMP+1}, s{sTMP+1}, 2")
    a(f"s_add_u32 s{sTMP}, s{sTMP}, s{sTMP+1}")
    a(f"s_lshr_b32 s{sTMP+1}, s{sID}, 7"); a(f"s_lshl_b32 s{sTMP+1}, s{sTMP+1}, 10")
    a(f"s_add_u32 s{sTMP}, s{sTMP}, s{sTMP+1}"); a(f"s_add_u32 s{sTMP}, s{sTMP}, {WS_ARR:#x}")
    a(f"v_lshl_add_u32 v33, v{vL}, 11, s{sTMP}")
    a(f"s_and_b32 s{sTMP}, s{sID}, {NREP-1}"); a(f"s_lshl_b32 s{sTMP}, s{sTMP}, 11"); a(f"s_add_u32 s{sTMP}, s{sTMP}, {WS_ARR:#x}")
    a(f"v_lshrrev_b32 v32, 2, v{vL}"); a(f"v_and_b32 v34, 3, v{vL}"); a("v_lshlrev_b32 v34, 4, v34")
    a("v_lshl_add_u32 v32, v32, 7, v34"); a(f"v_add_u32 v32, s{sTMP}, v32")
    a("v_mov_b32 v35, 1")
    a("s_mov_b32 vcc_lo, 0x88800000"); a("s_mov_b32 vcc_hi, 0")
    a("v_cndmask_b32_e64 v36, 0, 1, vcc")
    a("s_mov_b64 exec, 1")
    need_clear("A")
    a(f"s_mov_b32 exec_lo, {(1 << min(NREP,32)) - 1:#x}"); a(f"s_mov_b32 exec_hi, {(1 << max(NREP-32,0)) - 1:#x}")
    a(f"s_mov_b32 s{sTMP+5}, 0")
    a("s_waitcnt vmcnt(0)")
    a("s_barrier")
    a(f"buffer_store_dword v35, v33, {D(dWS)}, 0 offen sc1")
    a("s_mov_b64 exec, -1")
    stamp(a, "arrive")
    a(f"s_cmp_ge_u32 s{sID}, {NS}"); a("s_cbranch_scc1 SIG2")
    a("s_barrier")
    a("SIG2:")
    wait_flags(1)
    a("s_branch HELP")
    a("NODE:")
    a(f"s_lshl_b32 s{sTMP+5}, s{sBETA}, 13"); a(f"s_add_u32 s{sTMP+5}, s{sTMP+5}, {L_X}")
    gemm_addr(sTMP + 5, L_WAU)
    a(f"s_lshl_b32 s{sTMP+2}, s{sCG}, 7")
    a(f"v_lshl_add_u32 v{LO}, v{LO}, 2, s{sTMP+2}"); a(f"v_mov_b32 v{LO+1}, v{LO}")
    a(f"s_mov_b32 s{sM0}, 0x0000ffff"); a(f"s_mov_b32 s{sM0+1}, 0x0000ffff")
    a(f"s_mov_b32 s{sM1}, 0xffff0000"); a(f"s_mov_b32 s{sM1+1}, 0xffff0000")
    a(f"s_cmp_lt_u32 s{sID}, {NS}")
    a(f"s_cselect_b32 s{sSTAGE}, 2, 1")
    a(f"s_mov_b32 s{sTMP+6}, {NLOG2E:#x}")
    for j in range(8): a(f"v_lshlrev_b32 v{WCR+j}, 16, v{WCR+j}")
    for j in range(8): a(f"v_mul_f32 v{WCR+j}, s{sTMP+6}, v{WCR+j}")
    for j in range(4): a(f"v_cvt_pk_bf16_f32 v{WC+j}, v{WCR+2*j}, v{WCR+2*j+1}")
    a("ROUND:")
    for j in range(0, 8, 2): a(f"v_mov_b64 {vr(SA+j,2)}, 0")
    a(f"v_lshlrev_b32 v{LTMP+2}, 4, v0")
    for k in range(3):
        a(f"ds_write_b128 v{LTMP+2}, {vr(SA,4)} offset:{k*8192}")
    a(f"v_bfe_u32 v{vT1}, v0, 5, 1")
    a(f"v_lshlrev_b32 v{vIDX}, 4, v{vT1}")
    a(f"v_and_b32 v{vOT}, 31, v0"); a(f"v_lshl_add_u32 v{vOT}, v{vOT}, 5, v{vIDX}")
    if "m16" in DBG:
        a(f"v_bfe_u32 v{vS0}, v0, 4, 1"); a(f"v_lshl_add_u32 v{vIDX}, v{vS0}, 6, v{vIDX}")
        a(f"v_and_b32 v{LO}, 0xffffffbf, v{LO}"); a(f"v_mov_b32 v{LO+1}, v{LO}")
    a(f"v_bfe_u32 v{vSa}, v0, 2, 2"); a(f"v_lshl_add_u32 v{vSa}, v{vT1}, 2, v{vSa}"); a(f"v_lshlrev_b32 v{vSa}, 5, v{vSa}")
    a(f"v_and_b32 v{vS0}, 1, v0"); a(f"v_lshl_add_u32 v{vSa}, v{vS0}, 4, v{vSa}")
    a(f"v_bfe_u32 v{vS0}, v0, 1, 1"); a(f"v_lshl_add_u32 v{vSa}, v{vS0}, 3, v{vSa}")
    a(f"v_and_b32 v{LQ4}, 3, v0"); a(f"v_lshlrev_b32 v{LQ4}, 3, v{LQ4}")
    a(f"v_mov_b32 v{LONE}, 48")
    a(f"s_mov_b32 s{sT}, 0"); a(f"s_mov_b32 s{sRDY}, 0")
    a(f"s_mov_b32 s{sTMP+8}, 0x0c010c00"); a(f"s_mov_b32 s{sTMP+9}, 0x0c030c02"); a(f"s_mov_b32 s{sTMP+3}, 0x10001")
    a(f"s_cmp_lg_u32 s{sMODE}, 0"); a("s_cbranch_scc1 SLOWSRC")
    a(f"v_lshrrev_b32 v{LCHV}, 2, v0"); a(f"v_mov_b32 v{LKEY}, v{LQ4}")
    a(f"s_lshl_b32 s{sTMP}, s2, 5"); a(f"s_add_u32 s{sTMP}, s{sTMP}, {WS_OFF:#x}")
    a(f"v_lshl_add_u32 v{LTMP}, v{LCHV}, 13, v{LKEY}"); a(f"v_add_u32 v{LTMP}, s{sTMP}, v{LTMP}")
    a(f"v_mul_u32_u24 v{LRO}, {CH*4}, v{LCHV}"); a(f"v_lshlrev_b32 v{LCHV}, 3, v{LRO}"); a(f"v_add_u32 v{LRO}, {WS_REC:#x}, v{LRO}")
    a("s_waitcnt vmcnt(0) lgkmcnt(0)")
    a("s_barrier")
    stamp(a, "arrive")
    a("s_branch CORE")
    offload = f"buffer_load_dwordx2 {vr(LOFF,2)}, v{LTMP}, {D(dWS)}, 0 offen sc1"
    a("HOOK:")
    a("s_barrier")
    a(f"s_cmp_eq_u32 s{sSTAGE}, 2"); a("s_cbranch_scc1 HOOKED")
    a(offload)
    a("s_branch HOOKED")
    a("AU_DONE:")
    a(f"s_cmp_lg_u32 s{sSTAGE}, 2"); a("s_cbranch_scc1 AU_G")
    def au_pack():
        for j in range(8): a(f"v_cvt_pk_bf16_f32 v{UP+j}, v{AV+2*j}, v{AV+2*j+1}")
        for r in range(0, 16, 2): a(f"v_pk_mul_f32 {vr(AB+r,2)}, {vr(AB+r,2)}, s[{sTMP+6}:{sTMP+7}]")
        for j in range(8): a(f"v_cvt_pk_bf16_f32 v{AP+j}, v{AB+2*j}, v{AB+2*j+1}")
        for r in range(0, 32, 2): a(f"v_mov_b64 {vr(DEN+r,2)}, 0")
    a("s_barrier")
    a(offload)
    a("AU_G:")
    a("s_waitcnt vmcnt(0)")
    stamp(a, "off")
    a(f"v_lshl_add_u32 v{LRO}, v{LOFF}, 2, v{LRO}")
    a(f"v_sad_u8 v{LLEN}, v{LOFF+1}, 0, 0")
    for q in range(4):
        if q: a(f"v_cmpx_lt_u32 vcc, {4*q}, v{LLEN}"); a("s_cbranch_execz RECD")
        a(f"buffer_load_dwordx4 {vr(RECQ[q],4)}, v{LRO}, {D(dWS)}, 0 offen offset:{16*q} sc1")
    a("RECD:")
    a("s_mov_b64 exec, -1")
    a("ALLOC:")
    a(f"v_perm_b32 v{LC}, v{LOFF+1}, v{LOFF+1}, s{sTMP+8}"); a(f"v_perm_b32 v{LC+1}, v{LOFF+1}, v{LOFF+1}, s{sTMP+9}")
    a(f"ds_add_rtn_u64 {vr(LADJ,2)}, v{LKEY}, {vr(LC,2)} offset:{L_CNT}")
    a("s_mov_b64 exec, 1")
    a(f"ds_inc_u32 v{vT0}, v{LONE} offset:{L_AD}")
    a("s_mov_b64 exec, -1")
    a(f"v_sad_u8 v{LLEN}, v{LOFF+1}, 0, 0")
    wait_alloc("C", LTMP)
    stamp(a, "barA")
    a(f"ds_read_b64 {vr(LTMP,2)}, v{LQ4} offset:{L_CNT}"); a(f"ds_read_b64 {vr(LTOT,2)}, v{LKEY} offset:{L_CNT}")
    a(f"v_lshrrev_b32 v{LCB}, 4, v{LKEY}"); a(f"v_bfe_u32 v{LKEY}, v{LKEY}, 3, 1")
    a(f"s_cmp_lg_u32 s{sMODE}, 0"); a("s_cbranch_scc1 NOPACK")
    au_pack()
    a("NOPACK:")
    for r in range(0, 16, 2): a(f"v_mov_b64 {vr(G[1]+r,2)}, 0")
    a("s_waitcnt lgkmcnt(1)")
    totals(a, LTMP)
    a("s_cbranch_scc1 OVF")
    a("s_waitcnt lgkmcnt(0)")
    a(f"v_sub_u32 v{LTOT}, v{LTOT}, v{LC}"); a(f"v_sub_u32 v{LTOT+1}, v{LTOT+1}, v{LC+1}")
    a(f"v_lshl_add_u32 v{LADJ}, v{LTOT}, 16, v{LADJ}"); a(f"v_lshl_add_u32 v{LADJ+1}, v{LTOT+1}, 16, v{LADJ+1}")
    a(f"v_add_u32_sdwa v{LTOT}, v{LTOT}, v{LTOT} dst_sel:DWORD dst_unused:UNUSED_PAD src0_sel:WORD_0 src1_sel:WORD_1")
    a(f"v_mad_u32_u24 v{LCB}, v{LCB}, s{sC+4}, v{LKEY}")
    a(f"v_mad_u32_u24 v{LADJ+1}, v{LTOT}, s{sTMP+3}, v{LADJ+1}")
    a(f"v_lshlrev_b32 v{LCB}, 7, v{LCB}"); a(f"v_lshlrev_b64 {vr(LADJ,2)}, 2, {vr(LADJ,2)}")
    a(f"s_cmp_eq_u32 s{sBETA}, 0")
    a(f"s_cselect_b32 s{sF0}, 0, s{sC+4}"); a(f"s_cselect_b32 s{sL0}, s{sC}, s{sC+2}")
    a(f"s_cselect_b32 s{sL1}, s{sC+1}, s{sC+3}"); a(f"s_cselect_b32 s{sTEND}, s{sC+4}, s{sC+5}")
    a(f"s_sub_u32 s{sG0}, s{sL0}, 1"); a(f"s_sub_u32 s{sG1}, s{sL1}, 1")
    a(f"s_lshl_b32 s{sTMP}, s{sF0}, 7"); a(f"s_add_u32 s{sTMP}, s{sTMP}, {L_IDX}"); a(f"v_add_u32 v{vIDX}, s{sTMP}, v{vIDX}")
    a(f"s_lshl_b32 s{sTMP}, s{sF0}, 10"); a(f"s_add_u32 s{sTMP+1}, s{sTMP}, {L_O}")
    a(f"v_add_u32 v{vOT}, s{sTMP+1}, v{vOT}"); a(f"v_add_u32 v{vSa}, s{sTMP+1}, v{vSa}"); a(f"v_add_u32 v{vEA}, {L_EA-L_O}, v{vOT}")
    a(f"v_cndmask_b32_e64 v{vS0}, 0, v{vSa}, s[{sM0}:{sM0+1}]"); a(f"v_cndmask_b32_e64 v{vS1}, 0, v{vSa}, s[{sM1}:{sM1+1}]")
    a(f"s_mov_b32 s{sTMP}, 0x1ffff"); a(f"s_mov_b32 s{sTMP+1}, 0xff80"); a(f"s_mov_b32 s{sTMP+2}, 0x7ffe0")
    a(f"s_mov_b32 s{sTMP+10}, {ETQ*128}")
    a("PLACE:")
    a("s_waitcnt vmcnt(0)")
    stamp(a, "rec")
    for s in range(16):
        rec = RECQ[s >> 2] + (s & 3); b = LTMP + 6 * (s & 1)
        a(f"v_cmpx_lt_u32 vcc, {s}, v{LLEN}"); a("s_cbranch_execz PLACED")
        a(f"v_and_b32_sdwa v{b+2}, v{rec}, v{LONE} dst_sel:DWORD dst_unused:UNUSED_PAD src0_sel:BYTE_3 src1_sel:DWORD")
        a(f"v_lshrrev_b32 v{b+3}, 13, v{rec}"); a(f"v_and_b32 v{b+4}, s{sTMP}, v{rec}")
        a(f"v_lshrrev_b64 {vr(b,2)}, v{b+2}, {vr(LADJ,2)}")
        a(f"v_and_b32 v{b+3}, s{sTMP+2}, v{b+3}"); a(f"v_add_u16 v{b}, {4*s}, v{b}")
        a(f"v_add_u32 v{b+4}, v{b+4}, v{LCHV}"); a(f"v_and_b32 v{b+1}, s{sTMP+1}, v{b}")
        if s < ETS:
            a(f"v_cmp_gt_u32 vcc, s{sTMP+10}, v{b}")
        a(f"v_add3_u32 v{b}, v{b}, v{b+1}, v{LCB}")
        a(f"ds_write2st64_b32 v{b}, v{b+3}, v{b+4} offset0:{L_IDX//256} offset1:{L_EOF//256}")
        if s < ETS:
            a(f"s_and_saveexec_b64 s[{sTMP+4}:{sTMP+5}], vcc")
            a(f"buffer_load_ubyte v163, v{b+4}, {D(dEA)}, 0 offen")
            a(f"s_mov_b64 exec, s[{sTMP+4}:{sTMP+5}]")
    a(f"v_cmpx_lt_u32 vcc, 16, v{LLEN}"); a("s_cbranch_execz PLACED")
    a(f"v_subrev_u32 v{LLEN}, 16, v{LLEN}"); a(f"v_add_u32 v{LRO}, 64, v{LRO}")
    a(f"v_add_u32 v{LADJ}, 0x00400040, v{LADJ}"); a(f"v_add_u32 v{LADJ+1}, 0x00400040, v{LADJ+1}")
    for q in range(4): a(f"buffer_load_dwordx4 {vr(RECQ[q],4)}, v{LRO}, {D(dWS)}, 0 offen offset:{16*q} sc1")
    a("s_branch PLACE")
    a("PLACED:")
    a("s_mov_b64 exec, -1")
    stamp(a, "placed")
    a("s_waitcnt lgkmcnt(0)"); a("s_barrier")
    stamp(a, "bar2")
    a(f"s_cmp_lt_i32 s{sTEND}, 1"); a("s_cbranch_scc1 RDONE")
    idx_reads(a, 0); a("s_waitcnt lgkmcnt(0)"); gathers(a, RAW[0])
    if not G1LATE:
        idx_reads(a, 1); a("s_waitcnt lgkmcnt(0)"); gathers(a, RAW[1])
    stamp(a, "g01")
    poll(a, stubs, "P")
    stamp(a, "polled")
    a(f"ds_read_b128 {vr(IX,4)}, v{vEA}"); a(f"ds_read_b128 {vr(IX+4,4)}, v{vOT}")
    a(f"s_waitcnt vmcnt({0 if G1LATE else 16}) lgkmcnt(0)")
    a(f"{MF} {vr(G[0],16)}, {vr(IX,4)}, {vr(WC,4)}, {vr(RAW[0],16)}")
    a(f"{MF} {vr(G[0],16)}, {vr(IX+4,4)}, {vr(AP,4)}, {vr(G[0],16)}")
    a("s_nop 3")
    if G1LATE:
        idx_reads(a, 1); a("s_waitcnt lgkmcnt(0)"); gathers(a, RAW[1])
    idx_reads(a, 2)
    stamp(a, "loop0")
    a(".p2align 6")
    a("LOOP:")
    for ph in range(6):
        R0, R1, R2 = RAW[ph % 3], RAW[(ph + 1) % 3], RAW[(ph + 2) % 3]
        Gc, Gn = G[ph % 2], G[(ph + 1) % 2]
        APn = AP + 4 * ((ph + 1) % 2); vS = (vS0, vS1)[ph % 2]
        ms = ms_list(Gn)
        a(f"s_cmp_ge_u32 s{sT}, s{(sL0, sL1)[ph % 2]}"); a(f"s_cbranch_scc1 SKIP_{ph}")
        a(f"s_add_u32 s{sT}, s{sT}, 1")
        prio(a, 0)
        if ITS: a("s_memtime s[4:5]"); a(f"s_add_u32 m0, s{sT}, 19")
        a("s_waitcnt lgkmcnt(0)")
        if ITS: a("v_writelane_b32 v167, s4, m0")
        if ph % RDYP == RDYP - 1 and RDYP < 7: a(f"v_readfirstlane_b32 s{sRDY}, v{vT1}")
        a(f"s_cmp_ge_u32 s{sT}, s{(sG0, sG1)[ph % 2]}"); a(f"s_cbranch_scc1 NOG_{ph}")
        gathers(a, R2)
        a(f"NOGD_{ph}:")
        stubs(f"NOG_{ph}:"); stubs("s_waitcnt vmcnt(0)"); stubs(f"s_branch NOGD_{ph}")
        if ph % 2 == 1: publish(a)
        poll(a, stubs, ph)
        xo = 8 if "m16" in DBG else 0
        a(f"ds_read_b128 {vr(IX+xo,4)}, v{vEA} offset:{(ph+1)*1024}"); a(f"ds_read_b128 {vr(IX+xo+4,4)}, v{vEA if xo else vOT} offset:{(ph+1)*1024}")
        for i in range(16):
            if i % 4 == 0 and not ("ms2" in DBG and i >= 8): a(ms[i // 4])
            if "noexp" not in DBG: a(f"v_exp_f32 v{Gc+i}, v{Gc+i}")
        prio(a, 1)
        if SHL64:
            for i in range(0, 16, 2):
                if "noshl" not in DBG: a(f"v_lshlrev_b64 {vr(R0+i,2)}, 16, {vr(R0+i,2)}")
        else:
            for i in range(16): a(f"v_lshlrev_b32 v{R0+i}, 16, v{R0+i}")
        for i in range(0, 16, 2):
            if "noadd" not in DBG: a(f"v_pk_add_f32 {vr(Gc+i,2)}, {vr(Gc+i,2)}, 1.0 op_sel_hi:[1,0]")
        prio(a, 2)
        for i in range(16):
            if i == 4:
                a("s_waitcnt vmcnt(16) lgkmcnt(0)")
                if "m16" not in DBG: a(f"{MF} {vr(Gn,16)}, {vr(IX,4)}, {vr(WC,4)}, {vr(R1,16)}")
            if "m16" in DBG:
                if i in (4, 6, 8, 10):
                    j = (i - 4) // 2
                    a(f"{M16} {vr(Gn+4*j,4)}, {vr(IX+8+4*(j>>1),4)}, {vr(APn if j & 1 else WC,4)}, {vr(R1+4*j,4)}")
            elif i == 8: a(f"{MF} {vr(Gn,16)}, {vr(IX+4,4)}, {vr(APn,4)}, {vr(Gn,16)}")
            if "norcp" not in DBG: a(f"v_rcp_f32 v{Gc+i}, v{Gc+i}")
            if i == 9:
                for u in range(2 if "m16" in DBG else 4): a(f"ds_read_b64_tr_b16 {vr(SA+2*u,2)}, v{vSa if 'm16' in DBG else vS} offset:{ph*1024+u*256}")
                idx_reads(a, ph + 3)
                if ph % RDYP == RDYP - 2 and RDYP < 7: a(f"ds_read_b32 v{vT1}, v{vT0} offset:{L_RDY}")
        prio(a, 3)
        for i in range(0, 16, 2):
            if "nomul" not in DBG: a(f"v_pk_mul_f32 {vr(R0+i,2)}, {vr(R0+i,2)}, {vr(Gc+i,2)}")
        for i in range(8): a(f"v_cvt_pk_bf16_f32 v{Gc+i}, v{Gc+2*i}, v{Gc+2*i+1}")
        for i in range(8):
            if "nocvt" not in DBG: a(f"v_cvt_pk_bf16_f32 v{Gc+8+i}, v{R0+2*i}, v{R0+2*i+1}")
        a(f"s_cmp_ge_u32 s{sT}, s{sTEND}"); a(f"s_cbranch_scc1 DRAIN_{ph%2}")
        a(f"NEXT_{ph}:")
        stubs(f"SKIP_{ph}:")
        stubs(f"s_add_u32 s{sT}, s{sT}, 1"); stubs("s_waitcnt lgkmcnt(0)")
        st2 = A()
        if ph % 2 == 1: publish(stubs)
        poll(stubs, st2, f"S{ph}")
        stubs(f"ds_read_b128 {vr(IX,4)}, v{vEA} offset:{(ph+1)*1024}"); stubs(f"ds_read_b128 {vr(IX+4,4)}, v{vOT} offset:{(ph+1)*1024}")
        for m in ms: stubs(m)
        for r in range(0, 16, 2): stubs(f"v_mov_b64 {vr(Gc+r,2)}, 0")
        for j in range(0, 8, 2): stubs(f"v_mov_b64 {vr(SA+j,2)}, 0")
        stubs("s_waitcnt vmcnt(0) lgkmcnt(0)")
        stubs(f"{MF} {vr(Gn,16)}, {vr(IX,4)}, {vr(WC,4)}, {vr(R1,16)}")
        stubs(f"{MF} {vr(Gn,16)}, {vr(IX+4,4)}, {vr(APn,4)}, {vr(Gn,16)}")
        stubs("s_nop 3")
        idx_reads(stubs, ph + 3)
        stubs(f"s_branch NEXT_{ph}")
        stubs.l += st2.l
    a(f"v_add_u32 v{vIDX}, {6*128}, v{vIDX}"); a(f"v_add_u32 v{vEA}, {6*1024}, v{vEA}")
    a(f"v_add_u32 v{vOT}, {6*1024}, v{vOT}"); a(f"v_add_u32 v{vSa}, {6*1024}, v{vSa}")
    a(f"v_cndmask_b32_e64 v{vS0}, 0, v{vSa}, s[{sM0}:{sM0+1}]"); a(f"v_cndmask_b32_e64 v{vS1}, 0, v{vSa}, s[{sM1}:{sM1+1}]")
    a("s_branch LOOP")
    for p in range(2):
        a(f"DRAIN_{p}:"); a("s_waitcnt lgkmcnt(0)")
        for m in ms_list(G[p]): a(m)
        if p == 0: a("s_branch RDONE")
    a("RDONE:")
    a(f"v_mov_b32 v{vT1}, 16"); a(f"ds_add_u32 v{vT0}, v{vT1} offset:{L_PROG}")
    a(f"s_cmp_lg_u32 s{sMODE}, 0"); a("s_cbranch_scc1 SLOWNEXT")
    a("EPI:")
    stamp(a, "loopend")
    XD = IX
    for r in range(0, 16, 2): a(f"v_mov_b64 {vr(XD+r,2)}, 0")
    a("v_bfe_u32 v2, v0, 5, 1"); a("v_bfe_u32 v3, v0, 3, 2")
    a(f"s_lshl_b32 s{sTMP+3}, s{sCG}, 2")
    a("v_lshl_or_b32 v3, v2, 2, v3"); a(f"v_xor_b32 v3, s{sTMP+3}, v3")
    a("v_and_b32 v4, 7, v0"); a("v_lshlrev_b32 v4, 1, v4"); a("v_lshl_or_b32 v3, v3, 4, v4")
    a(f"s_lshl_b32 s{sTMP}, s{sBETA}, 13"); a(f"s_add_u32 s{sTMP}, s{sTMP}, {L_X}")
    a(f"v_lshl_add_u32 v2, v2, 10, s{sTMP}"); a(f"v_add_u32 v{SA}, v2, v3")
    for r in range(1, 8): a(f"v_xor_b32 v{SA+r}, {(8*(r>>2)+(r&3))*16}, v{SA}")
    for r in range(16): a(f"ds_read_u16_d16_hi v{XD+r}, v{SA+(r&7)} offset:{(8*(r>>2)+(r&3))*256}")
    a(f"s_mov_b32 s{sTMP+4}, 0x358637bd"); a(f"s_mov_b32 s{sTMP+5}, 0x358637bd")
    for r in range(0, 16, 2): a(f"v_pk_add_f32 {vr(DEN+r,2)}, {vr(DEN+r,2)}, s[{sTMP+4}:{sTMP+5}]")
    for r in range(16): a(f"v_rcp_f32 v{DEN+r}, v{DEN+r}")
    a("v_bfe_u32 v2, v0, 2, 4"); a("v_and_b32 v3, 3, v0"); a(f"v_or_b32 v4, s{sTMP+3}, v3"); a("v_xor_b32 v4, v4, v2")
    a("v_lshlrev_b32 v4, 4, v4"); a("v_lshl_add_u32 v4, v2, 8, v4"); a(f"v_add_u32 v4, s{sTMP}, v4")
    a("v_bfe_u32 v5, v0, 2, 2"); a("v_bfe_u32 v6, v0, 4, 1"); a("v_lshl_or_b32 v5, v6, 3, v5")
    a("v_bfe_u32 v6, v0, 5, 1"); a("v_lshl_or_b32 v5, v6, 2, v5"); a("v_lshlrev_b32 v3, 4, v3"); a("v_lshl_or_b32 v5, v5, 18, v3")
    a(f"s_lshl_b32 s{sTMP}, s{sBETA}, 17"); a(f"s_lshl_b32 s{sTMP+1}, s2, 8"); a(f"s_add_u32 s{sTMP}, s{sTMP}, s{sTMP+1}")
    a(f"s_lshl_b32 s{sTMP+1}, s{sCG}, 6"); a(f"s_add_u32 s{sTMP}, s{sTMP}, s{sTMP+1}"); a(f"s_add_u32 s{sTMP+1}, s{sTMP}, 0x10000")
    UD = G[0]
    for r in range(16):
        a(f"v_and_b32 v{UD+r}, 0xffff0000, v{UP+r//2}" if r & 1 else f"v_lshlrev_b32 v{UD+r}, 16, v{UP+r//2}")
    for r in range(0, 16, 2): a(f"v_pk_fma_f32 {vr(UD+r,2)}, {vr(NUM+r,2)}, {vr(DEN+r,2)}, {vr(UD+r,2)}")
    for r in range(16): a(f"v_max_f32 v{UD+r}, 0, v{UD+r}")
    a("s_waitcnt lgkmcnt(0)")
    for r in range(0, 16, 2): a(f"v_pk_add_f32 {vr(UD+r,2)}, {vr(UD+r,2)}, {vr(XD+r,2)}")
    for j in range(8): a(f"v_cvt_pk_bf16_f32 v{XD+j}, v{UD+2*j}, v{UD+2*j+1}")
    for r in range(16):
        a(f"{'ds_write_b16_d16_hi' if r & 1 else 'ds_write_b16'} v{SA+(r&7)}, v{XD+r//2} offset:{(8*(r>>2)+(r&3))*256}")
    a(f"ds_read_b128 {vr(UD,4)}, v4"); a(f"ds_read_b128 {vr(UD+4,4)}, v4 offset:4096")
    a("s_waitcnt lgkmcnt(1)"); a(f"buffer_store_dwordx4 {vr(UD,4)}, v5, {D(dOUT)}, s{sTMP} offen")
    a("s_waitcnt lgkmcnt(0)"); a(f"buffer_store_dwordx4 {vr(UD+4,4)}, v5, {D(dOUT)}, s{sTMP+1} offen")
    if STAMP:
        a("s_waitcnt vmcnt(0)"); a(f"s_add_u32 s6, s{sL0}, s{sL1}"); a("s_lshr_b32 s6, s6, 1")
    stamp(a, "end"); stamp_out(a, "s6")
    a("F_END:")
    a("s_endpgm")
    a.l += stubs.l
    a("SLOWNEXT:")
    a(f"s_cmp_eq_u32 s{sROUND}, 999"); a("s_cbranch_scc1 EPI")
    a(f"s_add_u32 s{sROUND}, s{sROUND}, 1")
    a("OVF:")
    a(f"s_mov_b32 s{sMODE}, 1")
    a("s_waitcnt vmcnt(0) lgkmcnt(0)"); a("s_barrier"); a("s_branch ROUND")
    a("SLOWSRC:")
    a(f"s_mul_i32 s{sTMP}, s{sROUND}, 1600"); a(f"v_lshlrev_b32 v{LRO}, 2, v0")
    a(f"buffer_load_dword v{LKEY}, v{LRO}, {D(dDST)}, s{sTMP} offen"); a(f"buffer_load_dword v{LOFF}, v{LRO}, {D(dSRC)}, s{sTMP} offen")
    a(f"s_mul_i32 s{sTMP+2}, s{sROUND}, {400*32}")
    a(f"v_lshl_add_u32 v{LTMP}, v0, 5, 1"); a(f"v_mov_b32 v{LCHV}, s{sTMP+2}")
    a("s_waitcnt vmcnt(0) lgkmcnt(0)"); a("s_barrier")
    a(f"v_lshl_or_b32 v{LTMP}, v{LOFF}, 18, v{LTMP}"); a(f"v_lshrrev_b32 v{LTMP+1}, 10, v{LKEY}")
    a(f"v_add_u32 v{RECQ[0]}, v{LTMP+1}, v{LTMP}")
    a(f"v_and_b32 v{LTMP+1}, 255, v{LKEY}"); a(f"v_cmp_eq_u32 vcc, s2, v{LTMP+1}")
    a(f"v_lshrrev_b32 v{LOFF}, 7, v{LOFF}"); a(f"v_and_b32 v{LOFF}, 24, v{LOFF}")
    a(f"v_cndmask_b32_e64 v{LOFF+1}, 0, 1, vcc"); a("v_cmp_gt_u32 vcc, 400, v0")
    a(f"v_bfe_u32 v{LKEY}, v{LKEY}, 8, 2"); a(f"v_lshlrev_b32 v{LOFF+1}, v{LOFF}, v{LOFF+1}"); a(f"v_lshlrev_b32 v{LKEY}, 3, v{LKEY}")
    a(f"v_cndmask_b32 v{LOFF+1}, 0, v{LOFF+1}, vcc")
    a("s_branch ALLOC")
    a("HELP:")
    a("PROUND:")
    a(f"v_and_b32 v15, 3, v{vL}"); a("v_lshlrev_b32 v15, 3, v15")
    a(f"v_lshrrev_b32 v2, 1, v{vL}"); a("v_lshlrev_b32 v2, 2, v2")
    a(f"v_and_b32 v3, 1, v{vL}"); a("v_lshlrev_b32 v3, 4, v3")
    a("v_mov_b32 v5, 1")
    a(f"v_and_b32 v10, 7, v{vL}"); a(f"v_bfe_u32 v11, v{vL}, 3, 1"); a("v_lshlrev_b32 v10, 1, v10")
    a("v_lshl_add_u32 v10, v11, 8, v10"); a(f"v_lshl_add_u32 v10, v{vL}, 4, v10"); a("v_mov_b32 v11, 0x3f80")
    stamp(a, "pre")
    a("s_barrier")
    stamp(a, "go")
    a("s_mov_b64 exec, 0x1fff"); a(f"ds_write_b16 v10, v11 offset:{L_LUT+16}"); a("s_mov_b64 exec, -1")
    a("s_cmp_lg_u32 s3, 8"); a("s_cbranch_scc1 H_G2")
    a(f"s_cmp_lg_u32 s{sMODE}, 0"); a("s_cbranch_scc1 H_G2")
    a(f"v_lshlrev_b32 v14, 7, v{vL}"); a(f"s_lshl_b32 s{sTMP}, s{sU}, 13"); a(f"v_add_u32 v14, s{sTMP}, v14")
    wait_flags(2)
    stamp(a, "go2")
    if PFW: wait_alloc("P", 8)
    for i in range(PF):
        a(f"s_mov_b32 s{sTMP}, {(i>>1)*2097152 + (i&1)*262144:#x}")
        a(f"buffer_load_dword v160, v14, {D(dTAB)}, s{sTMP} offen sc1")
    a("H_G2:")
    a("s_sleep 8")
    wait_alloc("H", 8)
    a(f"ds_read_b64 v[8:9], v15 offset:{L_CNT}")
    a("s_waitcnt lgkmcnt(0)")
    totals(a, 8)
    a("s_cbranch_scc1 POVF")
    a("s_cmp_lg_u32 s3, 8"); a("s_cbranch_scc1 EXP")
    a(f"s_max_u32 s{sTEND}, s{sC+4}, s{sC+5}")
    a(f"s_lshl_b32 s{sTMP+2}, s{sC+4}, 7"); a(f"v_add_u32 v6, s{sTMP+2}, v2")
    a(f"s_mov_b32 s{sT}, 0"); a(f"s_mov_b32 s{sTMP}, {L_EA}"); a(f"s_mov_b32 s{sTMP+3}, {-4*(PK+LEADX)}"); a(f"s_mov_b32 s{sRDY}, 0")
    a(f"s_lshl_b32 s{sTMP+1}, s{sC+4}, 10"); a(f"s_add_u32 s{sTMP+1}, s{sTMP+1}, {L_EA}")
    a(f"s_mov_b32 s{sTMP+6}, -32"); a(f"s_mov_b32 s{sTMP+7}, 0")
    if PPRIO: a(f"s_setprio {PPRIO}")
    a("s_barrier")
    stamp(a, "bar2")
    a(f"ds_read_b32 v10, v2 offset:{L_EOF}"); a(f"ds_read_b32 v11, v6 offset:{L_EOF}")
    a("PSTEP:")
    a(f"s_cmp_ge_u32 s{sT}, s{sTEND}"); a("s_cbranch_scc1 PDRAIN")
    if PACE: a(f"s_cmp_lt_i32 s{sRDY}, s{sTMP+3}"); a("s_cbranch_scc1 PW")
    a("PWD:")
    a(f"s_min_u32 m0, s{sTMP}, {L_EA + NT*1024}")
    a("s_waitcnt lgkmcnt(0)")
    for hb in range(2):
        a(f"v_mov_b32 v{12+hb}, v3" if NOEA else f"v_and_or_b32 v{12+hb}, v{10+hb}, s{sTMP+6}, v3")
    a("v_add_u32 v2, 128, v2"); a("v_add_u32 v6, 128, v6")
    a(f"buffer_load_dwordx4 v12, {D(dEA)}, 0 offen lds")
    a(f"s_min_u32 m0, s{sTMP+1}, {L_EA + NT*1024}")
    a(f"ds_read_b32 v10, v2 offset:{L_EOF}")
    a(f"buffer_load_dwordx4 v13, {D(dEA)}, 0 offen lds")
    a(f"ds_read_b32 v11, v6 offset:{L_EOF}")
    a(f"s_add_u32 s{sTMP}, s{sTMP}, 1024"); a(f"s_add_u32 s{sTMP+1}, s{sTMP+1}, 1024")
    a(f"s_add_i32 s{sTMP+3}, s{sTMP+3}, 4"); a(f"s_add_u32 s{sT}, s{sT}, 1")
    if STAMP and ITS:
        a("s_memtime s[4:5]"); a(f"s_add_u32 m0, s{sT}, 19"); a("s_waitcnt lgkmcnt(0)"); a("v_writelane_b32 v167, s4, m0")
    a(f"s_cmp_le_u32 s{sT}, {PK}"); a("s_cbranch_scc1 PSTEP")
    a(f"s_cmp_lt_u32 s{sTMP+7}, s{sT}"); a("s_cbranch_scc1 PO")
    a("POD:")
    if PPRIO: a("s_setprio 0")
    a("s_mov_b64 exec, 1"); a(f"s_waitcnt vmcnt({2*PK})"); a(f"ds_add_u32 v{vT0}, v5 offset:{L_RDY}"); a("s_mov_b64 exec, -1")
    a("s_branch PSTEP")
    a("PW:")
    a(f"ds_read_b32 v8, v{vT0} offset:{L_PROG}"); a("s_waitcnt lgkmcnt(0)"); a(f"v_readfirstlane_b32 s{sRDY}, v8")
    a(f"s_cmp_ge_i32 s{sRDY}, s{sTMP+3}"); a("s_cbranch_scc1 PWD"); a("s_sleep 2"); a("s_branch PW")
    a("PO:")
    a(f"ds_read_b32 v8, v{vT0} offset:{L_OD}"); a("s_waitcnt lgkmcnt(0)"); a(f"v_readfirstlane_b32 s{sTMP+7}, v8")
    stamp(a, "p_od")
    a(f"s_and_b32 s{sTMP+4}, s{sTMP+7}, 3"); a(f"s_cmp_eq_u32 s{sTMP+4}, 3"); a(f"s_cselect_b32 s{sTMP+4}, {3+PK}, 0")
    a(f"s_cmp_eq_u32 s{sTMP+7}, 15"); a(f"s_cselect_b32 s{sTMP+7}, -1, s{sTMP+4}")
    a(f"s_cmp_ge_u32 s{sTMP+7}, s{sT}"); a("s_cbranch_scc1 POD"); a("s_sleep 1"); a("s_branch PO")
    a("EXP:")
    NE = NT // 3
    a(f"s_sub_u32 s{sT}, s3, 9")
    a(f"s_add_u32 s{sTMP+1}, s{sT}, s{sC+4}"); a(f"s_min_u32 s{sTMP+1}, s{sTMP+1}, {NT-1}")
    a(f"s_lshl_b32 s{sTMP}, s{sT}, 7"); a(f"v_add_u32 v10, s{sTMP}, v2")
    a(f"s_lshl_b32 s{sTMP}, s{sTMP+1}, 7"); a(f"v_add_u32 v11, s{sTMP}, v2")
    a(f"s_lshl_b32 s{sTMP}, s{sT}, 10"); a(f"v_lshl_add_u32 v12, v{vL}, 4, s{sTMP}")
    a(f"s_lshl_b32 s{sTMP}, s{sTMP+1}, 10"); a(f"v_lshl_add_u32 v13, v{vL}, 4, s{sTMP}")
    a("v_mov_b32 v14, 4")
    a(f"s_mul_i32 s{sTMP}, s{sT}, {NE*128}"); a(f"s_add_u32 s{sTMP}, s{sTMP}, {L_EOF}"); a(f"v_add_u32 v2, s{sTMP}, v2")
    a(f"s_mul_i32 s{sTMP}, s{sT}, {NE*1024}"); a(f"s_add_u32 s{sTMP}, s{sTMP}, {L_O}"); a(f"v_lshl_add_u32 v6, v{vL}, 4, s{sTMP}")
    a("v_lshlrev_b32 v3, 4, v3")
    a(f"s_setprio {HPRIO}")
    a("s_barrier")
    EA_, ED_ = 16, 40
    for j in range(2): a(f"ds_read_b32 v{10+j}, v{10+j} offset:{L_EOF}")
    for j in range(2):
        a(f"s_waitcnt lgkmcnt(1)")
        a(f"v_and_b32 v{10+j}, 31, v{10+j}"); a(f"v_lshl_add_u32 v{10+j}, v{10+j}, 4, v3")
        a(f"ds_read_b128 {vr(120+4*j,4)}, v{10+j} offset:{L_LUT}")
    for j in range(2):
        a(f"s_waitcnt lgkmcnt(1)"); a(f"ds_write_b128 v{12+j}, {vr(120+4*j,4)} offset:{L_O}")
    a("s_mov_b64 exec, 1"); a(f"ds_add_u32 v{vT0}, v5 offset:{L_OD}"); a("s_mov_b64 exec, -1")
    a(f"s_setprio {HPRIO2}")
    for i in range(0, NE, 2):
        a(f"ds_read2_b32 {vr(EA_+i,2)}, v2 offset0:{(i%8)*32} offset1:{(i%8)*32+32}")
        if i % 8 == 6: a("v_add_u32 v2, 1024, v2")
    seq = [("E", i) for i in range(0, NE, 2)]
    def wait_for(op):
        a(f"s_waitcnt lgkmcnt({min(len(seq) - 1 - seq.index(op), 15)})")
    LA = 5
    def lut(i):
        if i % 2 == 0: wait_for(("E", i))
        a(f"v_and_b32 v{EA_+i}, 31, v{EA_+i}"); a(f"v_lshl_add_u32 v{EA_+i}, v{EA_+i}, 4, v3")
        a(f"ds_read_b128 {vr(ED_+4*i,4)}, v{EA_+i} offset:{L_LUT}"); seq.append(("L", i))
    for i in range(LA): lut(i)
    for i in range(NE):
        if i + LA < NE: lut(i + LA)
        wait_for(("L", i))
        a(f"ds_write_b128 v6, {vr(ED_+4*i,4)} offset:{1024*i}"); seq.append(("W", i))
    a("EDONE:")
    a("s_mov_b64 exec, 1"); a(f"ds_add_u32 v{vT0}, v14 offset:{L_OD}"); a("s_mov_b64 exec, -1")
    a("s_branch PFIN")
    a("PDRAIN:")
    a(f"ds_read_b32 v8, v{vT0} offset:{L_OD}"); a("s_waitcnt lgkmcnt(0)"); a(f"v_readfirstlane_b32 s{sTMP+7}, v8")
    a(f"s_cmp_lt_u32 s{sTMP+7}, 15"); a("s_cbranch_scc1 PDRAIN")
    a("s_mov_b64 exec, 1")
    for k in range(PK - 1, 0, -1):
        a(f"s_cmp_le_u32 s{sT}, {k}"); a(f"s_cbranch_scc1 PD_{k}")
        a(f"s_waitcnt vmcnt({2*k})"); a(f"ds_add_u32 v{vT0}, v5 offset:{L_RDY}"); a(f"PD_{k}:")
    a("v_mov_b32 v5, 0x7fffffff"); a("s_waitcnt vmcnt(0)"); a(f"ds_write_b32 v{vT0}, v5 offset:{L_RDY}")
    a("s_mov_b64 exec, -1")
    stamp(a, "loopend"); stamp_out(a, "0")
    a("PFIN:")
    a(f"s_cmp_eq_u32 s{sMODE}, 0"); a("s_cbranch_scc1 PEND")
    a(f"s_cmp_eq_u32 s{sROUND}, 999"); a("s_cbranch_scc1 PEND")
    a(f"s_add_u32 s{sROUND}, s{sROUND}, 1")
    a("POVF:")
    a(f"s_mov_b32 s{sMODE}, 1")
    a("s_waitcnt vmcnt(0) lgkmcnt(0)"); a("s_barrier"); a("s_branch PROUND")
    a("PEND:")
    a("s_endpgm")
    a("CODE_END:")

def main(out):
    K = "standalone__edge_featured_mpnn_gatedgcn__graph_kernel"
    head = []
    for line in open("standalone__edge_featured_mpnn_gatedgcn__graph.s.ref").read().split("\n"):
        if not line.startswith(";"): break
        if "@launch" in line or "Override launch" in line or "grid=ceil" in line: continue
        head.append(line)
    a = A(); gen(a, K)
    t = "\n".join(head) + "\n"
    t += (f"; @launch kernel={K} " if LIST else "; @launch ") + f"grid=(256,1,1) block=(768,1,1) lds={L_TOTAL}\n"
    t += '.amdgcn_target "amdgcn-amd-amdhsa--gfx950"\n.text\n'
    t += f".globl {K}\n.p2align 8\n.type {K},@function\n" + a.text()
    t += f'''.section .rodata,"a"
.p2align 6
.amdhsa_kernel {K}
  .amdhsa_next_free_vgpr 168
  .amdhsa_next_free_sgpr 102
  .amdhsa_accum_offset 168
  .amdhsa_group_segment_fixed_size 0
  .amdhsa_kernarg_size 96
  .amdhsa_user_sgpr_count 2
  .amdhsa_user_sgpr_kernarg_segment_ptr 1
  .amdhsa_system_sgpr_workgroup_id_x 1
.end_amdhsa_kernel
'''
    if STAMP: t = "; stamps " + ",".join(NAMES) + "\n" + t
    open(out, "w").write(t)

if __name__ == "__main__":
    main(sys.argv[1] if len(sys.argv) > 1 else "standalone__edge_featured_mpnn_gatedgcn__graph.s")
```

```python
import sys
src=open(sys.argv[1]).read().split("\n")
out=[]
cnt=[0]
def probe(slots, sub, vt, st, tid=0):
    l=[]
    for wg,idx in slots.items():
        cnt[0]+=1; lab=f"DBG_{cnt[0]}"
        l+=[f"    s_cmp_lg_u32 s56, {wg}", f"    s_cbranch_scc1 {lab}",
            f"    s_load_dwordx2 s[{st}:{st+1}], s[0:1], 88", f"    s_memrealtime s[98:99]", f"    s_mov_b32 s{st+2}, 256", f"    s_mov_b32 s{st+3}, 0x20000", "    s_waitcnt lgkmcnt(0)"]
        l+= [f"    s_add_u32 s{st}, s{st}, 0xD00000", f"    s_addc_u32 s{st+1}, s{st+1}, 0"]
        l+= [f"    s_mov_b64 s[100:101], exec", f"    v_mov_b32 v{vt}, s98", f"    v_mov_b32 v{vt+1}, 0",
             f"    v_cmp_eq_u32 vcc, {tid}, v0", "    s_mov_b64 exec, vcc",
             f"    buffer_store_dword v{vt}, v{vt+1}, s[{st}:{st+3}], 0 offen offset:{idx*4}", f"    s_mov_b64 exec, s[100:101]", f"{lab}:"]
    return l
i=0
WA,WB=0,200
while i<len(src):
    l=src[i]
    if l.strip().startswith("s_lshr_b32 s57, s2, 3"):
        out+=probe({5:0,200:1},1,160,4)
    if l.startswith("CORE:") :
        out+=probe({200:2},1,160,4,512)
    if l.startswith("SIG2:"):
        out.append(l); out+=probe({5:3,200:4},1,160,4,512); i+=1; continue
    if l.startswith("AU_G:"):
        out.append(l); out.append(src[i+1]); out+=probe({5:5,200:6},1,160,4); i+=2; continue
    if l.startswith("F_END:"):
        out+=["    s_waitcnt vmcnt(0)"]+probe({5:9,200:10},1,160,4,448)
    if l.strip()==".p2align 6" and src[i+1].startswith("LOOP"):
        out+=["    s_waitcnt lgkmcnt(0)"]+probe({5:7,200:8},1,160,4)
    out.append(l); i+=1
t="\n".join(out).replace("next_free_sgpr 72","next_free_sgpr 88")
I,J,M=int(sys.argv[3]),int(sys.argv[4]),int(sys.argv[5])
z=f""".globl z_kernel
.p2align 8
.type z_kernel,@function
z_kernel:
    s_cmp_lg_u32 s2, 0
    s_cbranch_scc1 Z_END
    s_load_dwordx2 s[4:5], s[0:1], 88
    s_waitcnt lgkmcnt(0)
    s_add_u32 s4, s4, 0xD00000
    s_addc_u32 s5, s5, 0
    s_load_dword s6, s[4:5], {I*4}
    s_load_dword s7, s[4:5], {J*4}
    s_memrealtime s[8:9]
    s_waitcnt lgkmcnt(0)
    s_sub_u32 s6, s7, s6
    s_min_u32 s6, s6, 10000
    s_mul_i32 s6, s6, {M}
Z_L:
    s_memrealtime s[10:11]
    s_waitcnt lgkmcnt(0)
    s_sub_u32 s10, s10, s8
    s_cmp_lt_u32 s10, s6
    s_cbranch_scc1 Z_L
Z_END:
    s_endpgm
"""
kd=""".p2align 6
.amdhsa_kernel z_kernel
  .amdhsa_next_free_vgpr 8
  .amdhsa_next_free_sgpr 16
  .amdhsa_accum_offset 8
  .amdhsa_group_segment_fixed_size 0
  .amdhsa_kernarg_size 96
  .amdhsa_user_sgpr_count 2
  .amdhsa_user_sgpr_kernarg_segment_ptr 1
  .amdhsa_system_sgpr_workgroup_id_x 1
.end_amdhsa_kernel
"""
l2=[x for x in t.split("\n") if "@launch kernel=standalone" in x][0]
t=t.replace(l2,l2+"\n; @launch kernel=z_kernel grid=(1,1,1) block=(64,1,1) lds=0")
t=t.replace('.section .rodata,"a"',z+'.section .rodata,"a"')+kd
open(sys.argv[2],"w").write(t)
```

```python
import sys
src=open(sys.argv[1]).read().split("\n")
out=[]
cnt=[0]
def probe(slots, sub, vt, st, tid=0):
    l=[]
    for wg,idx in slots.items():
        cnt[0]+=1; lab=f"DBG_{cnt[0]}"
        l+=[f"    s_cmp_lg_u32 s56, {wg}", f"    s_cbranch_scc1 {lab}",
            f"    s_load_dwordx2 s[{st}:{st+1}], s[0:1], 88", f"    s_memrealtime s[98:99]", f"    s_mov_b32 s{st+2}, 256", f"    s_mov_b32 s{st+3}, 0x20000", "    s_waitcnt lgkmcnt(0)"]
        l+= [f"    s_add_u32 s{st}, s{st}, 0xD00000", f"    s_addc_u32 s{st+1}, s{st+1}, 0"]
        l+= [f"    s_mov_b64 s[100:101], exec", f"    v_mov_b32 v{vt}, s98", f"    v_mov_b32 v{vt+1}, 0",
             f"    v_cmp_eq_u32 vcc, {tid}, v0", "    s_mov_b64 exec, vcc",
             f"    buffer_store_dword v{vt}, v{vt+1}, s[{st}:{st+3}], 0 offen offset:{idx*4}", f"    s_mov_b64 exec, s[100:101]", f"{lab}:"]
    return l
i=0
WA,WB=0,200
while i<len(src):
    l=src[i]
    if l.strip().startswith("s_lshr_b32 s57, s2, 3"):
        out+=probe({5:0,200:1},1,160,4)
    if l.startswith("CORE:") :
        out+=probe({200:2},1,160,4,512)
    if l.startswith("SIG2:"):
        out.append(l); out+=probe({5:3,200:4},1,160,4,512); i+=1; continue
    if l.startswith("SIGNAL:"):
        out.append(l); out+=probe({5:11,200:12},1,160,4,512); i+=1; continue
    if l.startswith("NC_EA:"):
        out.append(l); out+=probe({5:13,200:14},1,160,4,512); i+=1; continue
    if l.startswith("S_H2:"):
        out.append(l); out+=probe({0:15},1,160,4,576); i+=1; continue
    if l.startswith("AU_G:"):
        out.append(l); out.append(src[i+1]); out+=probe({5:5,200:6},1,160,4); i+=2; continue
    if l.startswith("F_END:"):
        out+=["    s_waitcnt vmcnt(0)"]+probe({5:9,200:10},1,160,4,448)
    if l.strip()==".p2align 6" and src[i+1].startswith("LOOP"):
        out+=["    s_waitcnt lgkmcnt(0)"]+probe({5:7,200:8},1,160,4)
    out.append(l); i+=1
t="\n".join(out).replace("next_free_sgpr 72","next_free_sgpr 88")
I,J,M=int(sys.argv[3]),int(sys.argv[4]),int(sys.argv[5])
z=f""".globl z_kernel
.p2align 8
.type z_kernel,@function
z_kernel:
    s_cmp_lg_u32 s2, 0
    s_cbranch_scc1 Z_END
    s_load_dwordx2 s[4:5], s[0:1], 88
    s_waitcnt lgkmcnt(0)
    s_add_u32 s4, s4, 0xD00000
    s_addc_u32 s5, s5, 0
    s_load_dword s6, s[4:5], {I*4}
    s_load_dword s7, s[4:5], {J*4}
    s_memrealtime s[8:9]
    s_waitcnt lgkmcnt(0)
    s_sub_u32 s6, s7, s6
    s_min_u32 s6, s6, 10000
    s_mul_i32 s6, s6, {M}
Z_L:
    s_memrealtime s[10:11]
    s_waitcnt lgkmcnt(0)
    s_sub_u32 s10, s10, s8
    s_cmp_lt_u32 s10, s6
    s_cbranch_scc1 Z_L
Z_END:
    s_endpgm
"""
kd=""".p2align 6
.amdhsa_kernel z_kernel
  .amdhsa_next_free_vgpr 8
  .amdhsa_next_free_sgpr 16
  .amdhsa_accum_offset 8
  .amdhsa_group_segment_fixed_size 0
  .amdhsa_kernarg_size 96
  .amdhsa_user_sgpr_count 2
  .amdhsa_user_sgpr_kernarg_segment_ptr 1
  .amdhsa_system_sgpr_workgroup_id_x 1
.end_amdhsa_kernel
"""
l2=[x for x in t.split("\n") if "@launch kernel=standalone" in x][0]
t=t.replace(l2,l2+"\n; @launch kernel=z_kernel grid=(1,1,1) block=(64,1,1) lds=0")
t=t.replace('.section .rodata,"a"',z+'.section .rodata,"a"')+kd
open(sys.argv[2],"w").write(t)
```

```python
import sys, os

N, E = 12500, 400000
NS, CH = 125, 3200
NG = 131
WS_TAB, WS_REC, WS_ARR, WS_OFF = 0, 0x620000, 0x7B0000, 0x7D0000
NLOG2E = 0xbfb8aa3b
env = lambda k, d: type(d)(os.environ.get(k, d))
STAMP = env("STAMP", 0); STAMPS = env("STAMPS", "all").split(","); ITS = env("ITS", 0)
PK = env("PK", 1); LEADX = env("LEADX", 4); PRIO = env("PRIO", "3210")
SHL64 = env("SHL64", 1); PF = env("PF", 2); PFW = env("PFW", 0); G1LATE = env("G1LATE", 0); NOEA = env("NOEA", 0)
SDPOL = env("SDPOL", "nt"); SIG = env("SIG", "byte"); SLP = env("SLP", 2); MSLP = env("MSLP", 1)
NCOL = env("NCOL", 8); CODEPF = env("CODEPF", 1); PDEL = env("PDEL", 0); NREP = env("NREP", 16); CDEPTH = env("CDEPTH", 1); HS2 = env("HS2", 0); TLB = env("TLB", 0); TLBSH = env("TLBSH", 18); EPF = env("EPF", 0); HPRIO = env("HPRIO", 3); HOOKK = env("HOOKK", 5); HPLAN = env("HPLAN", "011"); PPRIO = env("PPRIO", 0); HPRIO2 = env("HPRIO2", 3); ETS = env("ETS", 2); ETQ = env("ETQ", 1); PACE = env("PACE", 1); RDYP = env("RDYP", 2); OFFLATE = env("OFFLATE", 0); SPRIO = env("SPRIO", 0); LIST = env("LIST", 0); DBG = env("DBG", "")
SPIN = 0x100000
MF = "v_mfma_f32_32x32x16_bf16"

class A:
    def __init__(self): self.l = []
    def __call__(self, s):
        for line in s.strip("\n").split("\n"):
            line = line.strip()
            if line:
                self.l.append(line if line.endswith(":") else "    " + line)
    def text(self): return "\n".join(self.l) + "\n"
def vr(a, n): return f"v[{a}:{a+n-1}]"

NT = 60
L_CNT, L_RDY, L_PROG, L_AD, L_OD, L_LUT = 64, 96, 100, 104, 108, 272
L_IDX = 6144
L_EOF = L_IDX + NT * 128
L_O = L_EOF + NT * 128
L_EA = L_O + NT * 1024
L_X = L_EA + 65536
L_TOTAL = L_X + 15360
S_CNT = 25600
S_TOT, S_BAD, S_TBL, S_SRT = S_CNT + 4096, S_CNT + 4128, S_CNT + 4352, S_CNT + 12544
L_X96 = L_TOTAL - 24576
L_WBV, L_WAU = 8192, 73728
assert L_WAU + 65536 == L_X96
vIDX, vEA, vOT, vSa, vS0, vS1, vT0 = 1, 2, 3, 4, 5, 6, 7
IX, SA, WC, AP, UP, DEN, NUM = 8, 24, 32, 36, 44, 52, 68
G = [84, 100]
RAW = [116, 132, 148]
LO, vT1 = 164, 166
RECQ = [116, 120, 124, 128]
LOFF, LCHV, LKEY, LRO, LLEN, LC, LADJ, LTOT, LCB, LONE, LQ4, LTMP = 132, 134, 135, 136, 137, 138, 140, 142, 144, 145, 146, 148
sW = 3
dX, dEA, dWS, dTAB, dOUT, dWC, dW0, dW1, dSRC, dDST = 8, 12, 16, 20, 24, 28, 32, 36, 40, 44
dDBG = 48
sCG, sBETA, sMODE, sROUND, sID, sU, sSTAGE = 52, 53, 54, 55, 56, 57, 58
sT, sTEND, sRDY, sF0, sL0, sL1, sG0, sG1 = 60, 61, 62, 63, 64, 65, 66, 67
sC = 68
sTMP = 76
sM0, sM1 = 88, 90
sPA, sPU = 92, 94
sOK = 96

NAMES = []
def stamp(a, nm):
    if STAMP and (STAMPS == ["all"] or nm in STAMPS):
        if nm not in NAMES: NAMES.append(nm)
        a("s_memtime s[4:5]"); a("s_waitcnt lgkmcnt(0)")
        a(f"v_writelane_b32 v167, s4, {NAMES.index(nm)}")
        rt = {"loop0": 59, "loopend": 60, "arrive": 55, "go": 56, "go2": 57, "bar2": 58}
        if nm in rt:
            a("s_memrealtime s[4:5]"); a("s_waitcnt lgkmcnt(0)")
            a(f"v_writelane_b32 v167, s4, {rt[nm]}")
def stamp_out(a, tiles):
    if STAMP:
        a("s_memrealtime s[4:5]"); a("s_waitcnt lgkmcnt(0)"); a("s_mov_b64 exec, -1")
        a("v_writelane_b32 v167, s4, 62"); a(f"v_writelane_b32 v167, {tiles}, 63")
        a("v_and_b32 v3, 63, v0"); a("v_lshlrev_b32 v3, 2, v3")
        a(f"s_mul_i32 s{sTMP}, s{sID}, 9"); a(f"s_add_u32 s{sTMP}, s{sTMP}, s{sW}")
        a(f"s_lshl_b32 s{sTMP}, s{sTMP}, 8"); a(f"s_add_u32 s{sTMP}, s{sTMP}, 0x900000")
        a(f"s_mov_b32 s{dWS+2}, 0x1000000")
        a(f"buffer_store_dword v167, v3, s[{dWS}:{dWS+3}], s{sTMP} offen")
def D(d): return f"s[{d}:{d+3}]"

def idx_reads(a, rel):
    for q in range(2 if "m16" in DBG else 4):
        a(f"ds_read_b128 {vr(IX+4*q,4)}, v{vIDX} offset:{rel*128+32*q}")
def gathers(a, dst):
    if "m16" in DBG:
        for k in range(0, 8, 2):
            a(f"v_lshl_add_u64 {vr(IX+k,2)}, {vr(IX+k,2)}, 4, {vr(LO,2)}")
        for k in range(16):
            a(f"buffer_load_dword v{dst+k}, v{IX+k//2}, {D(dTAB)}, 0 offen offset:{(k&1)*64} sc1")
        return
    for k in range(0, 16, 2):
        a(f"v_lshl_add_u64 {vr(IX+k,2)}, {vr(IX+k,2)}, 4, {vr(LO,2)}")
    for k in range(16):
        a(f"buffer_load_dword v{dst+k}, v{IX+k}, {D(dTAB)}, 0 offen sc1")
M16 = "v_mfma_f32_16x16x32_bf16"
def ms_list(gx):
    if "m16" in DBG:
        return [f"{M16} {vr(DEN+4*i,4)}, {vr(SA,4)}, {vr(gx+4*i,4)}, {vr(DEN+4*i,4)}" for i in range(4)]
    return [f"{MF} {vr(DEN,16)}, {vr(SA,4)}, {vr(gx,4)}, {vr(DEN,16)}",
            f"{MF} {vr(NUM,16)}, {vr(SA,4)}, {vr(gx+8,4)}, {vr(NUM,16)}",
            f"{MF} {vr(DEN,16)}, {vr(SA+4,4)}, {vr(gx+4,4)}, {vr(DEN,16)}",
            f"{MF} {vr(NUM,16)}, {vr(SA+4,4)}, {vr(gx+12,4)}, {vr(NUM,16)}"]
def poll(a, stubs, tag):
    a(f"s_cmp_le_u32 s{sRDY}, s{sT}"); a(f"s_cbranch_scc1 POLL_{tag}"); a(f"POLLED_{tag}:")
    stubs(f"POLL_{tag}:")
    stubs(f"ds_read_b32 v{vT1}, v{vT0} offset:{L_RDY}"); stubs("s_waitcnt lgkmcnt(0)")
    stubs(f"v_readfirstlane_b32 s{sRDY}, v{vT1}")
    stubs(f"s_cmp_gt_u32 s{sRDY}, s{sT}"); stubs(f"s_cbranch_scc1 POLLED_{tag}")
    stubs("s_sleep 1"); stubs(f"s_branch POLL_{tag}")
def publish(a):
    if not PACE: return
    a("s_mov_b64 exec, 1"); a(f"ds_inc_u32 v{vT0}, v{vEA} offset:{L_PROG}"); a("s_mov_b64 exec, -1")
def prio(a, pos):
    if PRIO[pos] != "-": a(f"s_setprio {PRIO[pos]}")
def totals(a, t):
    a(f"v_add_u32 v{t}, v{t}, v{t+1}")
    a(f"v_add_u32_sdwa v{t}, v{t}, v{t} dst_sel:DWORD dst_unused:UNUSED_PAD src0_sel:WORD_0 src1_sel:WORD_1")
    a(f"v_add_u32 v{t}, 31, v{t}"); a(f"v_lshrrev_b32 v{t}, 4, v{t}"); a(f"v_and_b32 v{t}, -2, v{t}")
    a("s_nop 0")
    for k in range(4): a(f"v_readlane_b32 s{sC+k}, v{t}, {k}")
    a(f"s_sub_i32 s{sC+4}, s{sC}, 1"); a(f"s_sub_i32 s{sC+5}, s{sC+2}, 1")
    a(f"s_max_i32 s{sC+4}, s{sC+4}, s{sC+1}"); a(f"s_max_i32 s{sC+5}, s{sC+5}, s{sC+3}")
    a(f"s_add_u32 s{sC+6}, s{sC+4}, s{sC+5}"); a(f"s_cmp_gt_u32 s{sC+6}, {NT}")

vL, vWS, vTR, XAD, SET, AB, AV = 1, 2, 36, 8, [48, 60, 72], 84, 100

def own_x(a):
    a(f"v_lshrrev_b32 v4, 4, v{vL}"); a(f"v_and_b32 v5, 15, v{vL}")
    a("v_xor_b32 v5, v5, v4"); a("v_lshlrev_b32 v5, 4, v5"); a("v_lshl_add_u32 v16, v4, 18, v5")
    for j in range(1, 4): a(f"v_xor_b32 v{16+j}, {64*j}, v16")
    a(f"s_lshl_b32 s{sTMP}, s2, 8"); a(f"s_lshl_b32 s{sTMP+1}, s{sCG}, 16"); a(f"s_add_u32 s{sTMP}, s{sTMP}, s{sTMP+1}")
    a(f"s_lshl_b32 s{sTMP+2}, s{sCG}, 12"); a(f"s_add_u32 s{sTMP+2}, s{sTMP+2}, {L_X}")
    for j in range(4):
        c16 = 8 * (j & 1) + 4 * (j >> 1)
        a(f"s_add_u32 m0, s{sTMP+2}, {j*1024}"); a(f"s_add_u32 s{sTMP+1}, s{sTMP}, {c16*4*65536:#x}")
        a(f"buffer_load_dwordx4 v{16+j}, {D(dX)}, s{sTMP+1} offen lds")
def w_group(a, sreg, lds):
    for d, base in ((dW0, lds), (dW1, lds + 32768)):
        a(f"s_add_u32 m0, s{sreg}, {base}"); a("s_nop 0")
        for i in range(4):
            a(f"buffer_load_dwordx4 v{vWS}, {D(d)}, s{sreg} offen offset:{i*1024} lds")

def gen(a, name):
    stubs = A()
    a(f"{name}:")
    a("s_cmp_ge_u32 s2, 256"); a("s_cbranch_scc1 F_END")
    a(f"s_load_dwordx2 s[{dDST}:{dDST+1}], s[0:1], 24")
    a(f"s_load_dwordx2 s[{dSRC}:{dSRC+1}], s[0:1], 16")
    a(f"s_load_dwordx2 s[{dX}:{dX+1}], s[0:1], 0")
    a(f"s_load_dwordx2 s[{dW0}:{dW0+1}], s[0:1], 40")
    a(f"s_load_dwordx2 s[{dW1}:{dW1+1}], s[0:1], 64")
    a(f"s_load_dwordx2 s[{sPA}:{sPA+1}], s[0:1], 32")
    a(f"s_load_dwordx2 s[{sPU}:{sPU+1}], s[0:1], 56")
    a(f"s_load_dwordx2 s[{dWC}:{dWC+1}], s[0:1], 48")
    a(f"s_load_dwordx2 s[{dWS}:{dWS+1}], s[0:1], 88")
    a(f"v_lshrrev_b32 v{vWS}, 6, v0")
    a(f"v_and_b32 v{vL}, 63, v0")
    a(f"v_readfirstlane_b32 s{sW}, v{vWS}")
    a(f"s_mov_b32 s{sID}, s2")
    a(f"s_lshr_b32 s{sU}, s2, 3"); a("s_and_b32 s2, s2, 7"); a("s_lshl_b32 s2, s2, 5"); a(f"s_or_b32 s2, s2, s{sU}")
    for d, nb in ((dDST, E*4), (dSRC, E*4), (dX, N*256), (dW0, 32768), (dW1, 32768), (dWC, 4096), (dWS, WS_OFF + NS*8192)):
        a(f"s_mov_b32 s{d+2}, {nb:#x}"); a(f"s_mov_b32 s{d+3}, 0x20000")
    a(f"s_and_b32 s{sCG}, s{sW}, 3")
    a(f"v_lshrrev_b32 v4, 4, v{vL}"); a("v_lshlrev_b32 v5, 2, v4"); a(f"v_and_b32 v6, 15, v{vL}")
    a("v_xor_b32 v5, v5, v6"); a("v_lshlrev_b32 v5, 4, v5"); a(f"v_lshl_add_u32 v{vWS}, v4, 8, v5")
    a(f"v_mov_b32 v{vT0}, 0")
    a("v_mov_b32 v32, 0")
    if STAMP:
        a("v_mov_b32 v167, 0"); a("s_memrealtime s[6:7]"); a("s_waitcnt lgkmcnt(0)"); a("v_writelane_b32 v167, s6, 61")
    stamp(a, "start")
    a(f"s_lshl_b32 s{sTMP}, s{sID}, 4"); a(f"s_add_u32 s{sTMP}, s{sTMP}, s3")
    a(f"s_cmp_lg_u32 s{sTMP}, 8"); a("s_cbranch_scc1 NOCLR")
    a(f"v_lshrrev_b32 v12, 2, v{vL}"); a(f"v_and_b32 v13, 3, v{vL}"); a("v_lshlrev_b32 v13, 4, v13")
    a("v_lshl_add_u32 v12, v12, 7, v13"); a(f"v_add_u32 v12, {WS_ARR:#x}, v12")
    a("v_mov_b64 v[8:9], 0"); a("v_mov_b64 v[10:11], 0")
    a(f"s_mov_b32 s{sTMP}, {NREP//2}")
    a("s_waitcnt lgkmcnt(0)")
    a("CLR:")
    a(f"buffer_store_dwordx4 v[8:11], v12, {D(dWS)}, 0 offen sc1")
    a(f"buffer_store_dwordx4 v[8:11], v12, {D(dWS)}, 0 offen offset:2048 sc1")
    a("v_add_u32 v12, 4096, v12")
    a(f"s_sub_u32 s{sTMP}, s{sTMP}, 1"); a(f"s_cmp_lg_u32 s{sTMP}, 0"); a("s_cbranch_scc1 CLR")
    a("NOCLR:")
    if CODEPF:
        a("s_cmp_lg_u32 s3, 0"); a("s_cbranch_scc1 NOCPF")
        a(f"s_getpc_b64 s[{sTMP}:{sTMP+1}]")
        a("PCREF:")
        a(f"s_lshl_b32 s{sTMP+2}, s{sU}, 7")
        a(f"v_lshl_add_u32 v160, v{vL}, 12, s{sTMP+2}")
        a("v_min_u32 v160, CODE_END-PCREF-4, v160")
        a("v_mov_b32 v161, 0")
        a(f"v_lshl_add_u64 v[160:161], v[160:161], 0, s[{sTMP}:{sTMP+1}]")
        a("s_mov_b64 exec, 31")
        a("global_load_dword v162, v[160:161], off")
        a("s_mov_b64 exec, -1")
        a("NOCPF:")
    def late_args():
        a(f"s_load_dwordx2 s[{dTAB}:{dTAB+1}], s[0:1], 88")
        a(f"s_load_dwordx2 s[{dEA}:{dEA+1}], s[0:1], 8")
        a(f"s_load_dwordx2 s[{dOUT}:{dOUT+1}], s[0:1], 72")
        a(f"s_load_dwordx2 s[{dDBG}:{dDBG+1}], s[0:1], 80")
        for d, nb in ((dTAB, N*512), (dEA, E*32), (dOUT, N*256), (dDBG, 256)):
            a(f"s_mov_b32 s{d+2}, {nb:#x}"); a(f"s_mov_b32 s{d+3}, 0x20000")
        a(f"s_mov_b32 s{sMODE}, 0"); a(f"s_mov_b32 s{sROUND}, 0")
        a(f"s_bfe_u32 s{sBETA}, s{sW}, 0x10002")
    def see_clear(tag):
        a(f"s_mov_b32 s{sOK}, 0")
        a("s_cmp_lg_u32 s3, 8"); a(f"s_cbranch_scc1 SC_D{tag}")
        a(f"s_load_dword s{sOK}, s[{dDBG}:{dDBG+1}], 0")
        a(f"SC_D{tag}:")
    def need_clear(tag):
        a("s_waitcnt lgkmcnt(0)")
        a(f"v_mov_b32 v24, s{sOK}")
        a(f"s_mov_b32 s{sTMP+5}, 0")
        a(f"NC_L{tag}:")
        a("v_cmp_eq_u32 vcc, 0, v24"); a(f"s_cbranch_vccz NC_E{tag}")
        a(f"s_add_u32 s{sTMP+5}, s{sTMP+5}, 1"); a(f"s_cmp_gt_u32 s{sTMP+5}, {SPIN:#x}"); a(f"s_cbranch_scc1 NC_E{tag}")
        a(f"buffer_load_dword v24, v{vT0}, {D(dDBG)}, 0 offen sc1")
        a("s_waitcnt vmcnt(0)"); a(f"s_branch NC_L{tag}")
        a(f"NC_E{tag}:")
    def page_touch(tag):
        if not TLB: return
        a(f"s_cmp_lg_u32 s3, {tag[1]}"); a(f"s_cbranch_scc1 PT_{tag[0]}")
        a(f"v_lshlrev_b32 v163, {TLBSH}, v{vL}")
        a("s_waitcnt lgkmcnt(0)")
        a(f"buffer_load_dword v162, v163, {D(dEA)}, 0 offen")
        if TLB > 1:
            a(f"buffer_load_dword v162, v163, {D(dOUT)}, 0 offen")
        a(f"PT_{tag[0]}:")
    def wait_flags(stage):
        a(f"s_mov_b32 s{sTMP+5}, 0")
        if stage == 1:
            a("s_mov_b32 exec_hi, 0")
        for k in range(CDEPTH - 1):
            a(f"buffer_load_dwordx4 {vr(40+4*k,4)}, v32, {D(dWS)}, 0 offen sc1"); a(f"s_sleep {SLP}")
        a(f"WAITF{stage}:")
        for k in range(CDEPTH):
            b = 40 + 4 * k
            a(f"buffer_load_dwordx4 {vr(40+4*((k+CDEPTH-1)%CDEPTH),4)}, v32, {D(dWS)}, 0 offen sc1")
            a(f"s_waitcnt vmcnt({CDEPTH-1})")
            if stage == 1: a(f"v_or_b32 v{b+3}, v{b+3}, v36")
            a(f"v_and_b32 v{b}, v{b}, v{b+1}"); a(f"v_and_b32 v{b+2}, v{b+2}, v{b+3}"); a(f"v_and_b32 v{b}, v{b}, v{b+2}")
            a(f"v_cmpx_ne_u32 vcc, 1, v{b}"); a(f"s_cbranch_execz ALLIN{stage}")
            if SLP: a(f"s_sleep {SLP}")
        a(f"s_add_u32 s{sTMP+5}, s{sTMP+5}, 1"); a(f"s_cmp_lt_u32 s{sTMP+5}, {SPIN:#x}"); a(f"s_cbranch_scc1 WAITF{stage}")
        a(f"ALLIN{stage}:")
        a("s_mov_b64 exec, -1")
    def wait_alloc(tag, tmp):
        a(f"WA_{tag}:")
        a(f"ds_read_b32 v{tmp}, v{vT0} offset:{L_AD}"); a("s_waitcnt lgkmcnt(0)")
        a(f"v_readfirstlane_b32 s{sTMP+4}, v{tmp}"); a(f"s_cmp_lt_u32 s{sTMP+4}, 8"); a(f"s_cbranch_scc1 WA_{tag}")
    WCR = 152
    def wc_loads():
        a(f"v_and_b32 v{LO}, 31, v0"); a(f"v_bfe_u32 v{LO+1}, v0, 5, 1")
        a(f"s_lshl_b32 s{sTMP+10}, s{sCG}, 6")
        a(f"v_lshl_add_u32 v{vT1}, v{LO}, 1, s{sTMP+10}"); a(f"v_lshl_add_u32 v{vT1}, v{LO+1}, 11, v{vT1}")
        for j in range(8): a(f"buffer_load_ushort v{WCR+j}, v{vT1}, {D(dWC)}, 0 offen offset:{j*256}")
    def gemm_addr(xbase_sreg, wbase):
        a(f"v_lshrrev_b32 v5, 5, v{vL}"); a(f"v_bfe_u32 v4, v{vL}, 2, 2")
        a(f"v_lshl_add_u32 v{vTR}, v5, 3, v4"); a(f"v_lshlrev_b32 v{vTR}, 8, v{vTR}")
        a(f"v_xor_b32 v4, s{sCG}, v4"); a(f"v_lshl_add_u32 v{vTR}, v4, 6, v{vTR}")
        a(f"v_bfe_u32 v4, v{vL}, 4, 1"); a(f"v_lshl_add_u32 v{vTR}, v4, 5, v{vTR}")
        a(f"v_and_b32 v4, 3, v{vL}"); a(f"v_lshl_add_u32 v{vTR}, v4, 3, v{vTR}")
        a(f"v_add_u32 v{vTR}, {wbase}, v{vTR}")
        a(f"v_and_b32 v4, 15, v{vL}"); a("v_xor_b32 v4, v4, v5"); a("v_lshlrev_b32 v4, 4, v4")
        a(f"v_and_b32 v6, 31, v{vL}"); a("v_lshl_add_u32 v4, v6, 8, v4")
        a(f"v_add_u32 v{XAD}, s{xbase_sreg}, v4")
        for kk in range(1, 8): a(f"v_xor_b32 v{XAD+kk}, {kk*32}, v{XAD}")
    a(f"s_cmp_lt_u32 s{sID}, {NS}"); a("s_cbranch_scc1 SORT")
    a(f"s_sub_u32 s{sTMP+9}, s{sID}, {NS}")
    a("s_cmp_lt_u32 s3, 4"); a("s_cbranch_scc1 G_XLD")
    a(f"s_sub_u32 s{sTMP+3}, s3, 4"); a(f"s_lshl_b32 s{sTMP+3}, s{sTMP+3}, 12")
    a("s_waitcnt lgkmcnt(0)")
    w_group(a, sTMP + 3, L_WBV)
    late_args()
    a("s_branch G_LDD")
    a("G_XLD:")
    a(f"s_lshl_b32 s{sTMP+1}, s{sCG}, 2")
    a("v_xor_b32 v5, v6, v4"); a(f"v_xor_b32 v5, s{sTMP+1}, v5"); a("v_lshlrev_b32 v5, 4, v5"); a("v_lshl_add_u32 v20, v4, 8, v5")
    a(f"s_mul_i32 s{sTMP}, s{sTMP+9}, {96*256}"); a(f"s_lshl_b32 s{sTMP+1}, s{sCG}, 10")
    a(f"s_add_u32 s{sTMP}, s{sTMP}, s{sTMP+1}"); a(f"s_add_u32 s{sTMP+1}, s{sTMP+1}, {L_X96}")
    a("s_waitcnt lgkmcnt(0)")
    for i in range(6):
        a(f"s_add_u32 m0, s{sTMP+1}, {i*4096}"); a(f"s_add_u32 s{sTMP+2}, s{sTMP}, {i*4096}")
        a(f"buffer_load_dwordx4 v20, {D(dX)}, s{sTMP+2} offen lds")
    late_args()
    a("G_LDD:")
    page_touch(("G", 3))
    a("s_cmp_ge_u32 s3, 8"); a("s_cbranch_scc1 G_NWC")
    wc_loads()
    a("G_NWC:")
    a(f"s_lshr_b32 s{sTMP+4}, s3, 2")
    a(f"s_lshl_b32 s{sTMP+5}, s{sTMP+4}, 13"); a(f"s_add_u32 s{sTMP+5}, s{sTMP+5}, {L_X96}")
    gemm_addr(sTMP + 5, L_WBV)
    a(f"s_mul_i32 s{sTMP+5}, s{sTMP+9}, {96*512}"); a(f"s_lshl_b32 s{sTMP+6}, s{sTMP+4}, 14"); a(f"s_add_u32 s{sTMP+5}, s{sTMP+5}, s{sTMP+6}")
    a(f"s_lshl_b32 s{sTMP+6}, s{sCG}, 7"); a(f"s_add_u32 s{sTMP+5}, s{sTMP+5}, s{sTMP+6}")
    a("v_lshlrev_b32 v20, 2, v6"); a("v_lshl_add_u32 v20, v5, 11, v20"); a(f"v_add_u32 v20, s{sTMP+5}, v20")
    for q in range(1, 4): a(f"v_add_u32 v{20+q}, {4096*q}, v20")
    a(f"s_mov_b32 s{sSTAGE}, 0")
    a("s_waitcnt vmcnt(0) lgkmcnt(0)")
    stamp(a, "p1land")
    a(f"s_mov_b64 s[{dW0}:{dW0+1}], s[{sPA}:{sPA+1}]"); a(f"s_mov_b64 s[{dW1}:{dW1+1}], s[{sPU}:{sPU+1}]")
    a("s_barrier")
    a("s_cmp_lt_u32 s3, 8"); a("s_cbranch_scc1 CORE")
    a(f"s_lshl_b32 s{sTMP+3}, s{sCG}, 13")
    w_group(a, sTMP + 3, L_WAU)
    a(f"s_add_u32 s{sTMP+3}, s{sTMP+3}, 4096")
    w_group(a, sTMP + 3, L_WAU)
    a("CORE:")
    def reads(kk):
        b = SET[kk % 3]
        a(f"ds_read_b128 {vr(b,4)}, v{XAD+kk}")
        for u in range(2): a(f"ds_read_b64_tr_b16 {vr(b+4+2*u,2)}, v{vTR} offset:{kk*4096+u*1024}")
        for u in range(2): a(f"ds_read_b64_tr_b16 {vr(b+8+2*u,2)}, v{vTR} offset:{32768+kk*4096+u*1024}")
    for kk in range(3): reads(kk)
    for kk in range(8):
        b = SET[kk % 3]
        a(f"s_waitcnt lgkmcnt({5*min(7-kk,2)})")
        a(f"{MF} {vr(AV,16)}, {vr(b,4)}, {vr(b+8,4)}, {'0' if kk == 0 else vr(AV,16)}")
        a(f"{MF} {vr(AB,16)}, {vr(b,4)}, {vr(b+4,4)}, {'0' if kk == 0 else vr(AB,16)}")
        if kk + 3 < 8: reads(kk + 3)
        if kk == HOOKK:
            a(f"s_cmp_lg_u32 s{sSTAGE}, 0"); a("s_cbranch_scc1 HOOK"); a("HOOKED:")
    a(f"s_mov_b32 s{sTMP+6}, {NLOG2E:#x}")
    a(f"s_mov_b32 s{sTMP+7}, {NLOG2E:#x}")
    a(f"s_cmp_lg_u32 s{sSTAGE}, 0"); a("s_cbranch_scc1 AU_DONE")
    a(f"s_mov_b32 s{sTMP+5}, 0x7f7e0000")
    a("v_mov_b32 v4, 0x21800000")
    a("s_nop 2")
    stamp(a, "g_core")
    a("s_nop 2")
    VP, VN = 116, 124
    for i in range(8):
        a(f"v_cvt_pk_bf16_f32 v{VP+i}, v{AV+2*i}, v{AV+2*i+1}")
        a(f"v_xor_b32 v{VN+i}, 0x80008000, v{VP+i}")
    for q in range(4):
        R = range(4*q, 4*q+4)
        for r in R: a(f"v_fma_f32 v{AB+r}, v{AB+r}, s{sTMP+6}, v4")
        for r in R: a(f"v_med3_f32 v{AB+r}, v{AB+r}, -s{sTMP+5}, s{sTMP+5}")
        for r in R: a(f"v_sub_u32_sdwa v{AB+r}, v{AB+r}, sext(v{VN+r//2}) dst_sel:DWORD dst_unused:UNUSED_PAD src0_sel:DWORD src1_sel:WORD_{r&1}")
        for r in R: a(f"v_mov_b32_sdwa v{AB+r}, v{VP+r//2} dst_sel:WORD_0 dst_unused:UNUSED_PRESERVE src0_sel:WORD_{r&1}")
        a("s_nop 0")
        for r in R: a(f"buffer_store_dword v{AB+r}, v{20+q}, {D(dTAB)}, 0 offen offset:{(r&3)*512} sc1")
    stamp(a, "p1st")
    a("s_barrier")
    a("s_cmp_lt_u32 s3, 8"); a("s_cbranch_scc1 G_DRAIN")
    own_x(a)
    a("G_DRAIN:")
    a("s_branch ARRIVE")
    a("SORT:")
    if SPRIO: a("s_setprio 2")
    a("s_cmp_ge_u32 s3, 8"); a("s_cbranch_scc1 S_HELP")
    Dd, S, RK, RC, KA, SH = 16, 24, 32, 40, 48, 56
    a("v_lshlrev_b32 v11, 3, v0"); a("v_mov_b64 v[12:13], 0")
    a(f"ds_write_b64 v11, v[12:13] offset:{S_CNT}"); a(f"ds_write_b32 v{vT0}, v12 offset:{S_BAD}")
    a("v_lshlrev_b32 v6, 4, v0")
    a(f"s_mul_i32 s{sTMP}, s{sID}, {CH*4}"); a(f"s_add_u32 s{sTMP+1}, s{sTMP}, 8192")
    a("s_waitcnt lgkmcnt(0)")
    a(f"buffer_load_dwordx4 {vr(Dd,4)}, v6, {D(dDST)}, s{sTMP} offen {SDPOL}")
    a(f"buffer_load_dwordx4 {vr(S,4)}, v6, {D(dSRC)}, s{sTMP} offen {SDPOL}")
    a("s_cmp_ge_u32 s3, 5"); a("s_cbranch_scc1 S_0")
    a(f"buffer_load_dwordx4 {vr(Dd+4,4)}, v6, {D(dDST)}, s{sTMP+1} offen {SDPOL}")
    a(f"buffer_load_dwordx4 {vr(S+4,4)}, v6, {D(dSRC)}, s{sTMP+1} offen {SDPOL}")
    a("S_0:")
    a("s_barrier")
    wc_loads()
    late_args()
    a("v_lshlrev_b32 v5, 7, v0"); a("v_mov_b32 v8, 0")
    a(f"v_cmp_gt_u32 vcc, {(CH-2048)//4}, v0"); a(f"s_mov_b64 s[{sTMP+2}:{sTMP+3}], vcc")
    def keys(lo):
        for i in range(lo, lo + 4):
            a(f"v_lshlrev_b32_sdwa v9, 4, v{Dd+i} dst_sel:DWORD dst_unused:UNUSED_PAD src0_sel:DWORD src1_sel:BYTE_0")
            a(f"v_bfe_u32 v10, v{Dd+i}, 8, 2")
            a(f"v_lshrrev_b32 v{SH+i}, 7, v{S+i}")
            a(f"v_lshl_or_b32 v{KA+i}, v10, 2, v9")
            a(f"v_and_b32 v{SH+i}, 24, v{SH+i}")
            a(f"v_lshlrev_b32_e64 v9, v{SH+i}, 1")
            a(f"ds_add_rtn_u32 v{RK+i}, v{KA+i}, v9 offset:{S_CNT}")
        for i in range(lo, lo + 4):
            a(f"v_lshrrev_b32 v9, 10, v{Dd+i}")
            a(f"v_add_u32 v10, {(((i&3) + (2048 if i >= 4 else 0)) << 5) + 1:#x}, v5")
            a(f"v_lshl_or_b32 v10, v{S+i}, 18, v10")
            a(f"v_add_u32 v{RC+i}, v9, v10")
            a(f"v_lshlrev_b32 v{KA+i}, 1, v{KA+i}")
        for i in range(lo, lo + 4):
            a(f"s_waitcnt lgkmcnt({3-(i-lo)})"); a(f"v_bfe_u32 v{RK+i}, v{RK+i}, v{SH+i}, 8")
        a(f"v_max3_u32 v8, v8, v{RK+lo}, v{RK+lo+1}"); a(f"v_max3_u32 v8, v8, v{RK+lo+2}, v{RK+lo+3}")
    a("s_waitcnt vmcnt(8) lgkmcnt(0)")
    stamp(a, "p1land")
    keys(0)
    a(f"s_mov_b64 exec, s[{sTMP+2}:{sTMP+3}]"); a("s_cbranch_execz S_1")
    keys(4)
    a("S_1:")
    a("s_mov_b64 exec, -1")
    a("v_cmp_lt_u32 vcc, 62, v8"); a("s_cbranch_vccz S_1B")
    a("v_mov_b32 v9, -1"); a(f"ds_write_b32 v{vT0}, v9 offset:{S_BAD}"); a("s_waitcnt lgkmcnt(0)")
    a("S_1B:")
    a(f"v_lshlrev_b32 v9, 4, v{vL}"); a("v_mov_b64 v[92:93], 0")
    stamp(a, "s_keys")
    a("s_barrier")
    stamp(a, "s_b2")
    a(f"ds_read_b64 v[12:13], v11 offset:{S_CNT}")
    for q in range(4): a(f"ds_read_b128 {vr(76+4*q,4)}, v9 offset:{S_CNT+1024*q}")
    a(f"ds_read_b32 v15, v{vT0} offset:{S_BAD}")
    a("s_waitcnt lgkmcnt(5)")
    a("v_sad_u8 v10, v12, 0, 0"); a("v_sad_u8 v8, v13, 0, v10"); a("v_mov_b32 v14, v8")
    for q in range(4):
        a(f"s_cmp_gt_u32 s3, {2*q}"); a("s_cselect_b32 exec_lo, -1, 0")
        a(f"s_cmp_gt_u32 s3, {2*q+1}"); a("s_cselect_b32 exec_hi, -1, 0")
        a(f"s_waitcnt lgkmcnt({4-q})")
        for i in range(4):
            a(f"v_sad_u8 v{92+(i&1)}, v{76+4*q+i}, 0, v{92+(i&1)}")
    a("s_mov_b64 exec, -1")
    a("v_add_u32 v92, v92, v93")
    a("s_nop 1")
    for ctl in ("row_shr:1 row_mask:0xf", "row_shr:2 row_mask:0xf", "row_shr:4 row_mask:0xf", "row_shr:8 row_mask:0xf",
                "row_bcast:15 row_mask:0xa", "row_bcast:31 row_mask:0xc"):
        a(f"v_add_u32_dpp v92, v92, v92 {ctl} bank_mask:0xf"); a(f"v_add_u32_dpp v14, v14, v14 {ctl} bank_mask:0xf"); a("s_nop 0")
    a(f"v_readlane_b32 s{sTMP+5}, v92, 63")
    a("v_sub_u32 v14, v14, v8")
    a("s_waitcnt lgkmcnt(0)")
    a("v_or_b32 v73, v12, v15"); a("v_or_b32 v75, v13, v15")
    a(f"v_add_u32 v14, s{sTMP+5}, v14")
    a("v_mov_b32 v72, v14"); a("v_add_u32 v74, v14, v10")
    a("v_mov_b32 v64, v14"); a("v_mov_b32 v65, v12"); a("v_mov_b32 v66, v74"); a("v_mov_b32 v67, v13")
    a(f"ds_write_b128 v6, v[64:67] offset:{S_TBL}")
    a("s_waitcnt lgkmcnt(0)"); a("s_barrier")
    stamp(a, "s_b4")
    LK = 76
    def lookups(lo):
        for i in range(lo, lo + 4): a(f"ds_read_b64 {vr(LK+2*i,2)}, v{KA+i} offset:{S_TBL}")
    def place(lo, wait):
        for i in range(lo, lo + 4):
            a(f"s_waitcnt lgkmcnt({wait})")
            a(f"v_bfe_u32 v9, v{LK+2*i+1}, 0, v{SH+i}"); a(f"v_sad_u8 v9, v9, 0, v{LK+2*i}")
            a(f"v_add_lshl_u32 v9, v9, v{RK+i}, 2"); a(f"ds_write_b32 v9, v{RC+i} offset:{S_SRT}")
    lookups(0)
    a("s_cmp_ge_u32 s3, 5"); a("s_cbranch_scc1 S_2")
    a(f"s_mov_b64 exec, s[{sTMP+2}:{sTMP+3}]")
    lookups(4)
    a("s_mov_b64 exec, -1")
    place(0, 7)
    a(f"s_mov_b64 exec, s[{sTMP+2}:{sTMP+3}]")
    place(4, 7)
    a("s_branch S_3")
    a("S_2:")
    place(0, 3)
    a("S_3:")
    a("s_mov_b64 exec, -1")
    a(f"s_add_u32 s{sTMP}, s{sTMP}, {WS_REC:#x}"); a(f"s_add_u32 s{sTMP+1}, s{sTMP+1}, {WS_REC:#x}")
    a(f"s_lshl_b32 s{sTMP+4}, s{sID}, 13"); a(f"s_add_u32 s{sTMP+4}, s{sTMP+4}, {WS_OFF:#x}")
    if not OFFLATE:
        a("s_waitcnt vmcnt(0)")
        a(f"buffer_store_dwordx4 v[72:75], v6, {D(dWS)}, s{sTMP+4} offen sc1")
    a("s_waitcnt lgkmcnt(0)"); a("s_barrier")
    stamp(a, "s_b5")
    a(f"ds_read_b128 v[64:67], v6 offset:{S_SRT}"); a(f"ds_read_b128 v[68:71], v6 offset:{S_SRT+8192}")
    if OFFLATE:
        a("s_waitcnt vmcnt(0)")
        a(f"buffer_store_dwordx4 v[72:75], v6, {D(dWS)}, s{sTMP+4} offen sc1")
    a("s_waitcnt lgkmcnt(1)")
    a(f"buffer_store_dwordx4 v[64:67], v6, {D(dWS)}, s{sTMP} offen sc1")
    a("s_waitcnt lgkmcnt(0)")
    a(f"s_mov_b64 exec, s[{sTMP+2}:{sTMP+3}]"); a("s_cbranch_execz S_4")
    a(f"buffer_store_dwordx4 v[68:71], v6, {D(dWS)}, s{sTMP+1} offen sc1")
    a("S_4:")
    a("s_mov_b64 exec, -1")
    stamp(a, "p1st")
    a("s_branch ARRIVE")
    a("S_HELP:")
    if SPRIO: a("s_setprio 0")
    a("s_waitcnt lgkmcnt(0)")
    a(f"s_mov_b64 s[{dW0}:{dW0+1}], s[{sPA}:{sPA+1}]"); a(f"s_mov_b64 s[{dW1}:{dW1+1}], s[{sPU}:{sPU+1}]")
    late_args()
    a("s_barrier")
    a(f"s_lshl_b32 s{sTMP}, s{sID}, 4"); a(f"s_add_u32 s{sTMP}, s{sTMP}, s3")
    a(f"s_cmp_lg_u32 s{sTMP}, 8"); a("s_cbranch_scc1 S_H2")
    a("v_mov_b32 v5, 1")
    a("s_mov_b64 exec, 1")
    a("s_waitcnt vmcnt(0) lgkmcnt(0)")
    a(f"buffer_store_dword v5, v{vT0}, {D(dDBG)}, 0 offen sc1")
    a("s_mov_b64 exec, -1")
    a("S_H2:")
    a("s_waitcnt lgkmcnt(0)")
    page_touch(("S", 10))
    parts = [lambda: (a(f"s_lshl_b32 s{sTMP+3}, s{sCG}, 13"), w_group(a, sTMP + 3, L_WAU)),
             lambda: (a(f"s_add_u32 s{sTMP+3}, s{sTMP+3}, 4096"), w_group(a, sTMP + 3, L_WAU)),
             lambda: own_x(a)]
    for slot in range(3):
        for p, where in zip(parts, HPLAN):
            if int(where) == slot: p()
        if slot == 0: stamp(a, "s_keys")
        a("s_barrier")
    a("ARRIVE:")
    a("s_cmp_lt_u32 s3, 8"); a("s_cbranch_scc1 NODE")
    a("s_cmp_eq_u32 s3, 8"); a("s_cbranch_scc1 SIGNAL")
    a("s_waitcnt vmcnt(0)")
    a("s_barrier")
    a(f"s_cmp_ge_u32 s{sID}, {NS}"); a("s_cbranch_scc1 HELP")
    a("s_barrier")
    a("s_branch HELP")
    a("SIGNAL:")
    a(f"s_load_dword s{sOK}, s[{dDBG}:{dDBG+1}], 0")
    a(f"s_and_b32 s{sTMP}, s{sID}, 7"); a(f"s_lshl_b32 s{sTMP}, s{sTMP}, 7")
    a(f"s_bfe_u32 s{sTMP+1}, s{sID}, 0x40003"); a(f"s_lshl_b32 s{sTMP+1}, s{sTMP+1}, 2")
    a(f"s_add_u32 s{sTMP}, s{sTMP}, s{sTMP+1}")
    a(f"s_lshr_b32 s{sTMP+1}, s{sID}, 7"); a(f"s_lshl_b32 s{sTMP+1}, s{sTMP+1}, 10")
    a(f"s_add_u32 s{sTMP}, s{sTMP}, s{sTMP+1}"); a(f"s_add_u32 s{sTMP}, s{sTMP}, {WS_ARR:#x}")
    a(f"v_lshl_add_u32 v33, v{vL}, 11, s{sTMP}")
    a(f"s_and_b32 s{sTMP}, s{sID}, {NREP-1}"); a(f"s_lshl_b32 s{sTMP}, s{sTMP}, 11"); a(f"s_add_u32 s{sTMP}, s{sTMP}, {WS_ARR:#x}")
    a(f"v_lshrrev_b32 v32, 2, v{vL}"); a(f"v_and_b32 v34, 3, v{vL}"); a("v_lshlrev_b32 v34, 4, v34")
    a("v_lshl_add_u32 v32, v32, 7, v34"); a(f"v_add_u32 v32, s{sTMP}, v32")
    a("v_mov_b32 v35, 1")
    a("s_mov_b32 vcc_lo, 0x88800000"); a("s_mov_b32 vcc_hi, 0")
    a("v_cndmask_b32_e64 v36, 0, 1, vcc")
    a("s_mov_b64 exec, 1")
    need_clear("A")
    a(f"s_mov_b32 exec_lo, {(1 << min(NREP,32)) - 1:#x}"); a(f"s_mov_b32 exec_hi, {(1 << max(NREP-32,0)) - 1:#x}")
    a(f"s_mov_b32 s{sTMP+5}, 0")
    a("s_waitcnt vmcnt(0)")
    a("s_barrier")
    a(f"buffer_store_dword v35, v33, {D(dWS)}, 0 offen sc1")
    a("s_mov_b64 exec, -1")
    stamp(a, "arrive")
    a(f"s_cmp_ge_u32 s{sID}, {NS}"); a("s_cbranch_scc1 SIG2")
    a("s_barrier")
    a("SIG2:")
    wait_flags(1)
    a("s_branch HELP")
    a("NODE:")
    a(f"s_lshl_b32 s{sTMP+5}, s{sBETA}, 13"); a(f"s_add_u32 s{sTMP+5}, s{sTMP+5}, {L_X}")
    gemm_addr(sTMP + 5, L_WAU)
    a(f"s_lshl_b32 s{sTMP+2}, s{sCG}, 7")
    a(f"v_lshl_add_u32 v{LO}, v{LO}, 2, s{sTMP+2}"); a(f"v_mov_b32 v{LO+1}, v{LO}")
    a(f"s_mov_b32 s{sM0}, 0x0000ffff"); a(f"s_mov_b32 s{sM0+1}, 0x0000ffff")
    a(f"s_mov_b32 s{sM1}, 0xffff0000"); a(f"s_mov_b32 s{sM1+1}, 0xffff0000")
    a(f"s_cmp_lt_u32 s{sID}, {NS}")
    a(f"s_cselect_b32 s{sSTAGE}, 2, 1")
    a(f"s_mov_b32 s{sTMP+6}, {NLOG2E:#x}")
    for j in range(8): a(f"v_lshlrev_b32 v{WCR+j}, 16, v{WCR+j}")
    for j in range(8): a(f"v_mul_f32 v{WCR+j}, s{sTMP+6}, v{WCR+j}")
    for j in range(4): a(f"v_cvt_pk_bf16_f32 v{WC+j}, v{WCR+2*j}, v{WCR+2*j+1}")
    a("ROUND:")
    for j in range(0, 8, 2): a(f"v_mov_b64 {vr(SA+j,2)}, 0")
    a(f"v_lshlrev_b32 v{LTMP+2}, 4, v0")
    for k in range(3):
        a(f"ds_write_b128 v{LTMP+2}, {vr(SA,4)} offset:{k*8192}")
    a(f"v_bfe_u32 v{vT1}, v0, 5, 1")
    a(f"v_lshlrev_b32 v{vIDX}, 4, v{vT1}")
    a(f"v_and_b32 v{vOT}, 31, v0"); a(f"v_lshl_add_u32 v{vOT}, v{vOT}, 5, v{vIDX}")
    if "m16" in DBG:
        a(f"v_bfe_u32 v{vS0}, v0, 4, 1"); a(f"v_lshl_add_u32 v{vIDX}, v{vS0}, 6, v{vIDX}")
        a(f"v_and_b32 v{LO}, 0xffffffbf, v{LO}"); a(f"v_mov_b32 v{LO+1}, v{LO}")
    a(f"v_bfe_u32 v{vSa}, v0, 2, 2"); a(f"v_lshl_add_u32 v{vSa}, v{vT1}, 2, v{vSa}"); a(f"v_lshlrev_b32 v{vSa}, 5, v{vSa}")
    a(f"v_and_b32 v{vS0}, 1, v0"); a(f"v_lshl_add_u32 v{vSa}, v{vS0}, 4, v{vSa}")
    a(f"v_bfe_u32 v{vS0}, v0, 1, 1"); a(f"v_lshl_add_u32 v{vSa}, v{vS0}, 3, v{vSa}")
    a(f"v_and_b32 v{LQ4}, 3, v0"); a(f"v_lshlrev_b32 v{LQ4}, 3, v{LQ4}")
    a(f"v_mov_b32 v{LONE}, 48")
    a(f"s_mov_b32 s{sT}, 0"); a(f"s_mov_b32 s{sRDY}, 0")
    a(f"s_mov_b32 s{sTMP+8}, 0x0c010c00"); a(f"s_mov_b32 s{sTMP+9}, 0x0c030c02"); a(f"s_mov_b32 s{sTMP+3}, 0x10001")
    a(f"s_cmp_lg_u32 s{sMODE}, 0"); a("s_cbranch_scc1 SLOWSRC")
    a(f"v_lshrrev_b32 v{LCHV}, 2, v0"); a(f"v_mov_b32 v{LKEY}, v{LQ4}")
    a(f"s_lshl_b32 s{sTMP}, s2, 5"); a(f"s_add_u32 s{sTMP}, s{sTMP}, {WS_OFF:#x}")
    a(f"v_lshl_add_u32 v{LTMP}, v{LCHV}, 13, v{LKEY}"); a(f"v_add_u32 v{LTMP}, s{sTMP}, v{LTMP}")
    a(f"v_mul_u32_u24 v{LRO}, {CH*4}, v{LCHV}"); a(f"v_lshlrev_b32 v{LCHV}, 3, v{LRO}"); a(f"v_add_u32 v{LRO}, {WS_REC:#x}, v{LRO}")
    a("s_waitcnt vmcnt(0) lgkmcnt(0)")
    a("s_barrier")
    stamp(a, "arrive")
    a("s_branch CORE")
    offload = f"buffer_load_dwordx2 {vr(LOFF,2)}, v{LTMP}, {D(dWS)}, 0 offen sc1"
    a("HOOK:")
    a("s_barrier")
    a(f"s_cmp_eq_u32 s{sSTAGE}, 2"); a("s_cbranch_scc1 HOOKED")
    a(offload)
    a("s_branch HOOKED")
    a("AU_DONE:")
    a(f"s_cmp_lg_u32 s{sSTAGE}, 2"); a("s_cbranch_scc1 AU_G")
    def au_pack():
        for j in range(8): a(f"v_cvt_pk_bf16_f32 v{UP+j}, v{AV+2*j}, v{AV+2*j+1}")
        for r in range(0, 16, 2): a(f"v_pk_mul_f32 {vr(AB+r,2)}, {vr(AB+r,2)}, s[{sTMP+6}:{sTMP+7}]")
        for j in range(8): a(f"v_cvt_pk_bf16_f32 v{AP+j}, v{AB+2*j}, v{AB+2*j+1}")
        for r in range(0, 32, 2): a(f"v_mov_b64 {vr(DEN+r,2)}, 0")
    a("s_barrier")
    a(offload)
    a("AU_G:")
    a("s_waitcnt vmcnt(0)")
    stamp(a, "off")
    a(f"v_lshl_add_u32 v{LRO}, v{LOFF}, 2, v{LRO}")
    a(f"v_sad_u8 v{LLEN}, v{LOFF+1}, 0, 0")
    for q in range(4):
        if q: a(f"v_cmpx_lt_u32 vcc, {4*q}, v{LLEN}"); a("s_cbranch_execz RECD")
        a(f"buffer_load_dwordx4 {vr(RECQ[q],4)}, v{LRO}, {D(dWS)}, 0 offen offset:{16*q} sc1")
    a("RECD:")
    a("s_mov_b64 exec, -1")
    a("ALLOC:")
    a(f"v_perm_b32 v{LC}, v{LOFF+1}, v{LOFF+1}, s{sTMP+8}"); a(f"v_perm_b32 v{LC+1}, v{LOFF+1}, v{LOFF+1}, s{sTMP+9}")
    a(f"ds_add_rtn_u64 {vr(LADJ,2)}, v{LKEY}, {vr(LC,2)} offset:{L_CNT}")
    a("s_mov_b64 exec, 1")
    a(f"ds_inc_u32 v{vT0}, v{LONE} offset:{L_AD}")
    a("s_mov_b64 exec, -1")
    a(f"v_sad_u8 v{LLEN}, v{LOFF+1}, 0, 0")
    wait_alloc("C", LTMP)
    stamp(a, "barA")
    a(f"ds_read_b64 {vr(LTMP,2)}, v{LQ4} offset:{L_CNT}"); a(f"ds_read_b64 {vr(LTOT,2)}, v{LKEY} offset:{L_CNT}")
    a(f"v_lshrrev_b32 v{LCB}, 4, v{LKEY}"); a(f"v_bfe_u32 v{LKEY}, v{LKEY}, 3, 1")
    a(f"s_cmp_lg_u32 s{sMODE}, 0"); a("s_cbranch_scc1 NOPACK")
    au_pack()
    a("NOPACK:")
    for r in range(0, 16, 2): a(f"v_mov_b64 {vr(G[1]+r,2)}, 0")
    a("s_waitcnt lgkmcnt(1)")
    totals(a, LTMP)
    a("s_cbranch_scc1 OVF")
    a("s_waitcnt lgkmcnt(0)")
    a(f"v_sub_u32 v{LTOT}, v{LTOT}, v{LC}"); a(f"v_sub_u32 v{LTOT+1}, v{LTOT+1}, v{LC+1}")
    a(f"v_lshl_add_u32 v{LADJ}, v{LTOT}, 16, v{LADJ}"); a(f"v_lshl_add_u32 v{LADJ+1}, v{LTOT+1}, 16, v{LADJ+1}")
    a(f"v_add_u32_sdwa v{LTOT}, v{LTOT}, v{LTOT} dst_sel:DWORD dst_unused:UNUSED_PAD src0_sel:WORD_0 src1_sel:WORD_1")
    a(f"v_mad_u32_u24 v{LCB}, v{LCB}, s{sC+4}, v{LKEY}")
    a(f"v_mad_u32_u24 v{LADJ+1}, v{LTOT}, s{sTMP+3}, v{LADJ+1}")
    a(f"v_lshlrev_b32 v{LCB}, 7, v{LCB}"); a(f"v_lshlrev_b64 {vr(LADJ,2)}, 2, {vr(LADJ,2)}")
    a(f"s_cmp_eq_u32 s{sBETA}, 0")
    a(f"s_cselect_b32 s{sF0}, 0, s{sC+4}"); a(f"s_cselect_b32 s{sL0}, s{sC}, s{sC+2}")
    a(f"s_cselect_b32 s{sL1}, s{sC+1}, s{sC+3}"); a(f"s_cselect_b32 s{sTEND}, s{sC+4}, s{sC+5}")
    a(f"s_sub_u32 s{sG0}, s{sL0}, 1"); a(f"s_sub_u32 s{sG1}, s{sL1}, 1")
    a(f"s_lshl_b32 s{sTMP}, s{sF0}, 7"); a(f"s_add_u32 s{sTMP}, s{sTMP}, {L_IDX}"); a(f"v_add_u32 v{vIDX}, s{sTMP}, v{vIDX}")
    a(f"s_lshl_b32 s{sTMP}, s{sF0}, 10"); a(f"s_add_u32 s{sTMP+1}, s{sTMP}, {L_O}")
    a(f"v_add_u32 v{vOT}, s{sTMP+1}, v{vOT}"); a(f"v_add_u32 v{vSa}, s{sTMP+1}, v{vSa}"); a(f"v_add_u32 v{vEA}, {L_EA-L_O}, v{vOT}")
    a(f"v_cndmask_b32_e64 v{vS0}, 0, v{vSa}, s[{sM0}:{sM0+1}]"); a(f"v_cndmask_b32_e64 v{vS1}, 0, v{vSa}, s[{sM1}:{sM1+1}]")
    a(f"s_mov_b32 s{sTMP}, 0x1ffff"); a(f"s_mov_b32 s{sTMP+1}, 0xff80"); a(f"s_mov_b32 s{sTMP+2}, 0x7ffe0")
    a(f"s_mov_b32 s{sTMP+10}, {ETQ*128}")
    a("PLACE:")
    a("s_waitcnt vmcnt(0)")
    stamp(a, "rec")
    for s in range(16):
        rec = RECQ[s >> 2] + (s & 3); b = LTMP + 6 * (s & 1)
        a(f"v_cmpx_lt_u32 vcc, {s}, v{LLEN}"); a("s_cbranch_execz PLACED")
        a(f"v_and_b32_sdwa v{b+2}, v{rec}, v{LONE} dst_sel:DWORD dst_unused:UNUSED_PAD src0_sel:BYTE_3 src1_sel:DWORD")
        a(f"v_lshrrev_b32 v{b+3}, 13, v{rec}"); a(f"v_and_b32 v{b+4}, s{sTMP}, v{rec}")
        a(f"v_lshrrev_b64 {vr(b,2)}, v{b+2}, {vr(LADJ,2)}")
        a(f"v_and_b32 v{b+3}, s{sTMP+2}, v{b+3}"); a(f"v_add_u16 v{b}, {4*s}, v{b}")
        a(f"v_add_u32 v{b+4}, v{b+4}, v{LCHV}"); a(f"v_and_b32 v{b+1}, s{sTMP+1}, v{b}")
        if s < ETS:
            a(f"v_cmp_gt_u32 vcc, s{sTMP+10}, v{b}")
        a(f"v_add3_u32 v{b}, v{b}, v{b+1}, v{LCB}")
        a(f"ds_write2st64_b32 v{b}, v{b+3}, v{b+4} offset0:{L_IDX//256} offset1:{L_EOF//256}")
        if s < ETS:
            a(f"s_and_saveexec_b64 s[{sTMP+4}:{sTMP+5}], vcc")
            a(f"buffer_load_ubyte v163, v{b+4}, {D(dEA)}, 0 offen")
            a(f"s_mov_b64 exec, s[{sTMP+4}:{sTMP+5}]")
    a(f"v_cmpx_lt_u32 vcc, 16, v{LLEN}"); a("s_cbranch_execz PLACED")
    a(f"v_subrev_u32 v{LLEN}, 16, v{LLEN}"); a(f"v_add_u32 v{LRO}, 64, v{LRO}")
    a(f"v_add_u32 v{LADJ}, 0x00400040, v{LADJ}"); a(f"v_add_u32 v{LADJ+1}, 0x00400040, v{LADJ+1}")
    for q in range(4): a(f"buffer_load_dwordx4 {vr(RECQ[q],4)}, v{LRO}, {D(dWS)}, 0 offen offset:{16*q} sc1")
    a("s_branch PLACE")
    a("PLACED:")
    a("s_mov_b64 exec, -1")
    stamp(a, "placed")
    a("s_waitcnt lgkmcnt(0)"); a("s_barrier")
    stamp(a, "bar2")
    a(f"s_cmp_lt_i32 s{sTEND}, 1"); a("s_cbranch_scc1 RDONE")
    idx_reads(a, 0); a("s_waitcnt lgkmcnt(0)"); gathers(a, RAW[0])
    if not G1LATE:
        idx_reads(a, 1); a("s_waitcnt lgkmcnt(0)"); gathers(a, RAW[1])
    stamp(a, "g01")
    poll(a, stubs, "P")
    stamp(a, "polled")
    a(f"ds_read_b128 {vr(IX,4)}, v{vEA}"); a(f"ds_read_b128 {vr(IX+4,4)}, v{vOT}")
    a(f"s_waitcnt vmcnt({0 if G1LATE else 16}) lgkmcnt(0)")
    a(f"{MF} {vr(G[0],16)}, {vr(IX,4)}, {vr(WC,4)}, {vr(RAW[0],16)}")
    a(f"{MF} {vr(G[0],16)}, {vr(IX+4,4)}, {vr(AP,4)}, {vr(G[0],16)}")
    a("s_nop 3")
    if G1LATE:
        idx_reads(a, 1); a("s_waitcnt lgkmcnt(0)"); gathers(a, RAW[1])
    idx_reads(a, 2)
    stamp(a, "loop0")
    a(".p2align 6")
    a("LOOP:")
    for ph in range(6):
        R0, R1, R2 = RAW[ph % 3], RAW[(ph + 1) % 3], RAW[(ph + 2) % 3]
        Gc, Gn = G[ph % 2], G[(ph + 1) % 2]
        APn = AP + 4 * ((ph + 1) % 2); vS = (vS0, vS1)[ph % 2]
        ms = ms_list(Gn)
        a(f"s_cmp_ge_u32 s{sT}, s{(sL0, sL1)[ph % 2]}"); a(f"s_cbranch_scc1 SKIP_{ph}")
        a(f"s_add_u32 s{sT}, s{sT}, 1")
        prio(a, 0)
        if ITS: a("s_memtime s[4:5]"); a(f"s_add_u32 m0, s{sT}, 19")
        a("s_waitcnt lgkmcnt(0)")
        if ITS: a("v_writelane_b32 v167, s4, m0")
        if ph % RDYP == RDYP - 1 and RDYP < 7: a(f"v_readfirstlane_b32 s{sRDY}, v{vT1}")
        a(f"s_cmp_ge_u32 s{sT}, s{(sG0, sG1)[ph % 2]}"); a(f"s_cbranch_scc1 NOG_{ph}")
        gathers(a, R2)
        a(f"NOGD_{ph}:")
        stubs(f"NOG_{ph}:"); stubs("s_waitcnt vmcnt(0)"); stubs(f"s_branch NOGD_{ph}")
        if ph % 2 == 1: publish(a)
        poll(a, stubs, ph)
        xo = 8 if "m16" in DBG else 0
        a(f"ds_read_b128 {vr(IX+xo,4)}, v{vEA} offset:{(ph+1)*1024}"); a(f"ds_read_b128 {vr(IX+xo+4,4)}, v{vEA if xo else vOT} offset:{(ph+1)*1024}")
        for i in range(16):
            if i % 4 == 0 and not ("ms2" in DBG and i >= 8): a(ms[i // 4])
            if "noexp" not in DBG: a(f"v_exp_f32 v{Gc+i}, v{Gc+i}")
        prio(a, 1)
        if SHL64:
            for i in range(0, 16, 2):
                if "noshl" not in DBG: a(f"v_lshlrev_b64 {vr(R0+i,2)}, 16, {vr(R0+i,2)}")
        else:
            for i in range(16): a(f"v_lshlrev_b32 v{R0+i}, 16, v{R0+i}")
        for i in range(0, 16, 2):
            if "noadd" not in DBG: a(f"v_pk_add_f32 {vr(Gc+i,2)}, {vr(Gc+i,2)}, 1.0 op_sel_hi:[1,0]")
        prio(a, 2)
        for i in range(16):
            if i == 4:
                a("s_waitcnt vmcnt(16) lgkmcnt(0)")
                if "m16" not in DBG: a(f"{MF} {vr(Gn,16)}, {vr(IX,4)}, {vr(WC,4)}, {vr(R1,16)}")
            if "m16" in DBG:
                if i in (4, 6, 8, 10):
                    j = (i - 4) // 2
                    a(f"{M16} {vr(Gn+4*j,4)}, {vr(IX+8+4*(j>>1),4)}, {vr(APn if j & 1 else WC,4)}, {vr(R1+4*j,4)}")
            elif i == 8: a(f"{MF} {vr(Gn,16)}, {vr(IX+4,4)}, {vr(APn,4)}, {vr(Gn,16)}")
            if "norcp" not in DBG: a(f"v_rcp_f32 v{Gc+i}, v{Gc+i}")
            if i == 9:
                for u in range(2 if "m16" in DBG else 4): a(f"ds_read_b64_tr_b16 {vr(SA+2*u,2)}, v{vSa if 'm16' in DBG else vS} offset:{ph*1024+u*256}")
                idx_reads(a, ph + 3)
                if ph % RDYP == RDYP - 2 and RDYP < 7: a(f"ds_read_b32 v{vT1}, v{vT0} offset:{L_RDY}")
        prio(a, 3)
        for i in range(0, 16, 2):
            if "nomul" not in DBG: a(f"v_pk_mul_f32 {vr(R0+i,2)}, {vr(R0+i,2)}, {vr(Gc+i,2)}")
        for i in range(8): a(f"v_cvt_pk_bf16_f32 v{Gc+i}, v{Gc+2*i}, v{Gc+2*i+1}")
        for i in range(8):
            if "nocvt" not in DBG: a(f"v_cvt_pk_bf16_f32 v{Gc+8+i}, v{R0+2*i}, v{R0+2*i+1}")
        a(f"s_cmp_ge_u32 s{sT}, s{sTEND}"); a(f"s_cbranch_scc1 DRAIN_{ph%2}")
        a(f"NEXT_{ph}:")
        stubs(f"SKIP_{ph}:")
        stubs(f"s_add_u32 s{sT}, s{sT}, 1"); stubs("s_waitcnt lgkmcnt(0)")
        st2 = A()
        if ph % 2 == 1: publish(stubs)
        poll(stubs, st2, f"S{ph}")
        stubs(f"ds_read_b128 {vr(IX,4)}, v{vEA} offset:{(ph+1)*1024}"); stubs(f"ds_read_b128 {vr(IX+4,4)}, v{vOT} offset:{(ph+1)*1024}")
        for m in ms: stubs(m)
        for r in range(0, 16, 2): stubs(f"v_mov_b64 {vr(Gc+r,2)}, 0")
        for j in range(0, 8, 2): stubs(f"v_mov_b64 {vr(SA+j,2)}, 0")
        stubs("s_waitcnt vmcnt(0) lgkmcnt(0)")
        stubs(f"{MF} {vr(Gn,16)}, {vr(IX,4)}, {vr(WC,4)}, {vr(R1,16)}")
        stubs(f"{MF} {vr(Gn,16)}, {vr(IX+4,4)}, {vr(APn,4)}, {vr(Gn,16)}")
        stubs("s_nop 3")
        idx_reads(stubs, ph + 3)
        stubs(f"s_branch NEXT_{ph}")
        stubs.l += st2.l
    a(f"v_add_u32 v{vIDX}, {6*128}, v{vIDX}"); a(f"v_add_u32 v{vEA}, {6*1024}, v{vEA}")
    a(f"v_add_u32 v{vOT}, {6*1024}, v{vOT}"); a(f"v_add_u32 v{vSa}, {6*1024}, v{vSa}")
    a(f"v_cndmask_b32_e64 v{vS0}, 0, v{vSa}, s[{sM0}:{sM0+1}]"); a(f"v_cndmask_b32_e64 v{vS1}, 0, v{vSa}, s[{sM1}:{sM1+1}]")
    a("s_branch LOOP")
    for p in range(2):
        a(f"DRAIN_{p}:"); a("s_waitcnt lgkmcnt(0)")
        for m in ms_list(G[p]): a(m)
        if p == 0: a("s_branch RDONE")
    a("RDONE:")
    a(f"v_mov_b32 v{vT1}, 16"); a(f"ds_add_u32 v{vT0}, v{vT1} offset:{L_PROG}")
    a(f"s_cmp_lg_u32 s{sMODE}, 0"); a("s_cbranch_scc1 SLOWNEXT")
    a("EPI:")
    stamp(a, "loopend")
    XD = IX
    for r in range(0, 16, 2): a(f"v_mov_b64 {vr(XD+r,2)}, 0")
    a("v_bfe_u32 v2, v0, 5, 1"); a("v_bfe_u32 v3, v0, 3, 2")
    a(f"s_lshl_b32 s{sTMP+3}, s{sCG}, 2")
    a("v_lshl_or_b32 v3, v2, 2, v3"); a(f"v_xor_b32 v3, s{sTMP+3}, v3")
    a("v_and_b32 v4, 7, v0"); a("v_lshlrev_b32 v4, 1, v4"); a("v_lshl_or_b32 v3, v3, 4, v4")
    a(f"s_lshl_b32 s{sTMP}, s{sBETA}, 13"); a(f"s_add_u32 s{sTMP}, s{sTMP}, {L_X}")
    a(f"v_lshl_add_u32 v2, v2, 10, s{sTMP}"); a(f"v_add_u32 v{SA}, v2, v3")
    for r in range(1, 8): a(f"v_xor_b32 v{SA+r}, {(8*(r>>2)+(r&3))*16}, v{SA}")
    for r in range(16): a(f"ds_read_u16_d16_hi v{XD+r}, v{SA+(r&7)} offset:{(8*(r>>2)+(r&3))*256}")
    a(f"s_mov_b32 s{sTMP+4}, 0x358637bd"); a(f"s_mov_b32 s{sTMP+5}, 0x358637bd")
    for r in range(0, 16, 2): a(f"v_pk_add_f32 {vr(DEN+r,2)}, {vr(DEN+r,2)}, s[{sTMP+4}:{sTMP+5}]")
    for r in range(16): a(f"v_rcp_f32 v{DEN+r}, v{DEN+r}")
    a("v_bfe_u32 v2, v0, 2, 4"); a("v_and_b32 v3, 3, v0"); a(f"v_or_b32 v4, s{sTMP+3}, v3"); a("v_xor_b32 v4, v4, v2")
    a("v_lshlrev_b32 v4, 4, v4"); a("v_lshl_add_u32 v4, v2, 8, v4"); a(f"v_add_u32 v4, s{sTMP}, v4")
    a("v_bfe_u32 v5, v0, 2, 2"); a("v_bfe_u32 v6, v0, 4, 1"); a("v_lshl_or_b32 v5, v6, 3, v5")
    a("v_bfe_u32 v6, v0, 5, 1"); a("v_lshl_or_b32 v5, v6, 2, v5"); a("v_lshlrev_b32 v3, 4, v3"); a("v_lshl_or_b32 v5, v5, 18, v3")
    a(f"s_lshl_b32 s{sTMP}, s{sBETA}, 17"); a(f"s_lshl_b32 s{sTMP+1}, s2, 8"); a(f"s_add_u32 s{sTMP}, s{sTMP}, s{sTMP+1}")
    a(f"s_lshl_b32 s{sTMP+1}, s{sCG}, 6"); a(f"s_add_u32 s{sTMP}, s{sTMP}, s{sTMP+1}"); a(f"s_add_u32 s{sTMP+1}, s{sTMP}, 0x10000")
    UD = G[0]
    for r in range(16):
        a(f"v_and_b32 v{UD+r}, 0xffff0000, v{UP+r//2}" if r & 1 else f"v_lshlrev_b32 v{UD+r}, 16, v{UP+r//2}")
    for r in range(0, 16, 2): a(f"v_pk_fma_f32 {vr(UD+r,2)}, {vr(NUM+r,2)}, {vr(DEN+r,2)}, {vr(UD+r,2)}")
    for r in range(16): a(f"v_max_f32 v{UD+r}, 0, v{UD+r}")
    a("s_waitcnt lgkmcnt(0)")
    for r in range(0, 16, 2): a(f"v_pk_add_f32 {vr(UD+r,2)}, {vr(UD+r,2)}, {vr(XD+r,2)}")
    for j in range(8): a(f"v_cvt_pk_bf16_f32 v{XD+j}, v{UD+2*j}, v{UD+2*j+1}")
    for r in range(16):
        a(f"{'ds_write_b16_d16_hi' if r & 1 else 'ds_write_b16'} v{SA+(r&7)}, v{XD+r//2} offset:{(8*(r>>2)+(r&3))*256}")
    a(f"ds_read_b128 {vr(UD,4)}, v4"); a(f"ds_read_b128 {vr(UD+4,4)}, v4 offset:4096")
    a("s_waitcnt lgkmcnt(1)"); a(f"buffer_store_dwordx4 {vr(UD,4)}, v5, {D(dOUT)}, s{sTMP} offen")
    a("s_waitcnt lgkmcnt(0)"); a(f"buffer_store_dwordx4 {vr(UD+4,4)}, v5, {D(dOUT)}, s{sTMP+1} offen")
    if STAMP:
        a("s_waitcnt vmcnt(0)"); a(f"s_add_u32 s6, s{sL0}, s{sL1}"); a("s_lshr_b32 s6, s6, 1")
    stamp(a, "end"); stamp_out(a, "s6")
    a("F_END:")
    a("s_endpgm")
    a.l += stubs.l
    a("SLOWNEXT:")
    a(f"s_cmp_eq_u32 s{sROUND}, 999"); a("s_cbranch_scc1 EPI")
    a(f"s_add_u32 s{sROUND}, s{sROUND}, 1")
    a("OVF:")
    a(f"s_mov_b32 s{sMODE}, 1")
    a("s_waitcnt vmcnt(0) lgkmcnt(0)"); a("s_barrier"); a("s_branch ROUND")
    a("SLOWSRC:")
    a(f"s_mul_i32 s{sTMP}, s{sROUND}, 1600"); a(f"v_lshlrev_b32 v{LRO}, 2, v0")
    a(f"buffer_load_dword v{LKEY}, v{LRO}, {D(dDST)}, s{sTMP} offen"); a(f"buffer_load_dword v{LOFF}, v{LRO}, {D(dSRC)}, s{sTMP} offen")
    a(f"s_mul_i32 s{sTMP+2}, s{sROUND}, {400*32}")
    a(f"v_lshl_add_u32 v{LTMP}, v0, 5, 1"); a(f"v_mov_b32 v{LCHV}, s{sTMP+2}")
    a("s_waitcnt vmcnt(0) lgkmcnt(0)"); a("s_barrier")
    a(f"v_lshl_or_b32 v{LTMP}, v{LOFF}, 18, v{LTMP}"); a(f"v_lshrrev_b32 v{LTMP+1}, 10, v{LKEY}")
    a(f"v_add_u32 v{RECQ[0]}, v{LTMP+1}, v{LTMP}")
    a(f"v_and_b32 v{LTMP+1}, 255, v{LKEY}"); a(f"v_cmp_eq_u32 vcc, s2, v{LTMP+1}")
    a(f"v_lshrrev_b32 v{LOFF}, 7, v{LOFF}"); a(f"v_and_b32 v{LOFF}, 24, v{LOFF}")
    a(f"v_cndmask_b32_e64 v{LOFF+1}, 0, 1, vcc"); a("v_cmp_gt_u32 vcc, 400, v0")
    a(f"v_bfe_u32 v{LKEY}, v{LKEY}, 8, 2"); a(f"v_lshlrev_b32 v{LOFF+1}, v{LOFF}, v{LOFF+1}"); a(f"v_lshlrev_b32 v{LKEY}, 3, v{LKEY}")
    a(f"v_cndmask_b32 v{LOFF+1}, 0, v{LOFF+1}, vcc")
    a("s_branch ALLOC")
    a("HELP:")
    a("PROUND:")
    a(f"v_and_b32 v15, 3, v{vL}"); a("v_lshlrev_b32 v15, 3, v15")
    a(f"v_lshrrev_b32 v2, 1, v{vL}"); a("v_lshlrev_b32 v2, 2, v2")
    a(f"v_and_b32 v3, 1, v{vL}"); a("v_lshlrev_b32 v3, 4, v3")
    a("v_mov_b32 v5, 1")
    a(f"v_and_b32 v10, 7, v{vL}"); a(f"v_bfe_u32 v11, v{vL}, 3, 1"); a("v_lshlrev_b32 v10, 1, v10")
    a("v_lshl_add_u32 v10, v11, 8, v10"); a(f"v_lshl_add_u32 v10, v{vL}, 4, v10"); a("v_mov_b32 v11, 0x3f80")
    stamp(a, "pre")
    a("s_barrier")
    stamp(a, "go")
    a("s_mov_b64 exec, 0x1fff"); a(f"ds_write_b16 v10, v11 offset:{L_LUT+16}"); a("s_mov_b64 exec, -1")
    a("s_cmp_lg_u32 s3, 8"); a("s_cbranch_scc1 H_G2")
    a(f"s_cmp_lg_u32 s{sMODE}, 0"); a("s_cbranch_scc1 H_G2")
    a(f"v_lshlrev_b32 v14, 7, v{vL}"); a(f"s_lshl_b32 s{sTMP}, s{sU}, 13"); a(f"v_add_u32 v14, s{sTMP}, v14")
    wait_flags(2)
    stamp(a, "go2")
    if PFW: wait_alloc("P", 8)
    for i in range(PF):
        a(f"s_mov_b32 s{sTMP}, {(i>>1)*2097152 + (i&1)*262144:#x}")
        a(f"buffer_load_dword v160, v14, {D(dTAB)}, s{sTMP} offen sc1")
    a("H_G2:")
    a("s_sleep 8")
    wait_alloc("H", 8)
    a(f"ds_read_b64 v[8:9], v15 offset:{L_CNT}")
    a("s_waitcnt lgkmcnt(0)")
    totals(a, 8)
    a("s_cbranch_scc1 POVF")
    a("s_cmp_lg_u32 s3, 8"); a("s_cbranch_scc1 EXP")
    a(f"s_max_u32 s{sTEND}, s{sC+4}, s{sC+5}")
    a(f"s_lshl_b32 s{sTMP+2}, s{sC+4}, 7"); a(f"v_add_u32 v6, s{sTMP+2}, v2")
    a(f"s_mov_b32 s{sT}, 0"); a(f"s_mov_b32 s{sTMP}, {L_EA}"); a(f"s_mov_b32 s{sTMP+3}, {-4*(PK+LEADX)}"); a(f"s_mov_b32 s{sRDY}, 0")
    a(f"s_lshl_b32 s{sTMP+1}, s{sC+4}, 10"); a(f"s_add_u32 s{sTMP+1}, s{sTMP+1}, {L_EA}")
    a(f"s_mov_b32 s{sTMP+6}, -32"); a(f"s_mov_b32 s{sTMP+7}, 0")
    if PPRIO: a(f"s_setprio {PPRIO}")
    a("s_barrier")
    stamp(a, "bar2")
    a(f"ds_read_b32 v10, v2 offset:{L_EOF}"); a(f"ds_read_b32 v11, v6 offset:{L_EOF}")
    a("PSTEP:")
    a(f"s_cmp_ge_u32 s{sT}, s{sTEND}"); a("s_cbranch_scc1 PDRAIN")
    if PACE: a(f"s_cmp_lt_i32 s{sRDY}, s{sTMP+3}"); a("s_cbranch_scc1 PW")
    a("PWD:")
    a(f"s_min_u32 m0, s{sTMP}, {L_EA + NT*1024}")
    a("s_waitcnt lgkmcnt(0)")
    for hb in range(2):
        a(f"v_mov_b32 v{12+hb}, v3" if NOEA else f"v_and_or_b32 v{12+hb}, v{10+hb}, s{sTMP+6}, v3")
    a("v_add_u32 v2, 128, v2"); a("v_add_u32 v6, 128, v6")
    a(f"buffer_load_dwordx4 v12, {D(dEA)}, 0 offen lds")
    a(f"s_min_u32 m0, s{sTMP+1}, {L_EA + NT*1024}")
    a(f"ds_read_b32 v10, v2 offset:{L_EOF}")
    a(f"buffer_load_dwordx4 v13, {D(dEA)}, 0 offen lds")
    a(f"ds_read_b32 v11, v6 offset:{L_EOF}")
    a(f"s_add_u32 s{sTMP}, s{sTMP}, 1024"); a(f"s_add_u32 s{sTMP+1}, s{sTMP+1}, 1024")
    a(f"s_add_i32 s{sTMP+3}, s{sTMP+3}, 4"); a(f"s_add_u32 s{sT}, s{sT}, 1")
    if STAMP and ITS:
        a("s_memtime s[4:5]"); a(f"s_add_u32 m0, s{sT}, 19"); a("s_waitcnt lgkmcnt(0)"); a("v_writelane_b32 v167, s4, m0")
    a(f"s_cmp_le_u32 s{sT}, {PK}"); a("s_cbranch_scc1 PSTEP")
    a(f"s_cmp_lt_u32 s{sTMP+7}, s{sT}"); a("s_cbranch_scc1 PO")
    a("POD:")
    if PPRIO: a("s_setprio 0")
    a("s_mov_b64 exec, 1"); a(f"s_waitcnt vmcnt({2*PK})"); a(f"ds_add_u32 v{vT0}, v5 offset:{L_RDY}"); a("s_mov_b64 exec, -1")
    a("s_branch PSTEP")
    a("PW:")
    a(f"ds_read_b32 v8, v{vT0} offset:{L_PROG}"); a("s_waitcnt lgkmcnt(0)"); a(f"v_readfirstlane_b32 s{sRDY}, v8")
    a(f"s_cmp_ge_i32 s{sRDY}, s{sTMP+3}"); a("s_cbranch_scc1 PWD"); a("s_sleep 2"); a("s_branch PW")
    a("PO:")
    a(f"ds_read_b32 v8, v{vT0} offset:{L_OD}"); a("s_waitcnt lgkmcnt(0)"); a(f"v_readfirstlane_b32 s{sTMP+7}, v8")
    stamp(a, "p_od")
    a(f"s_and_b32 s{sTMP+4}, s{sTMP+7}, 3"); a(f"s_cmp_eq_u32 s{sTMP+4}, 3"); a(f"s_cselect_b32 s{sTMP+4}, {3+PK}, 0")
    a(f"s_cmp_eq_u32 s{sTMP+7}, 15"); a(f"s_cselect_b32 s{sTMP+7}, -1, s{sTMP+4}")
    a(f"s_cmp_ge_u32 s{sTMP+7}, s{sT}"); a("s_cbranch_scc1 POD"); a("s_sleep 1"); a("s_branch PO")
    a("EXP:")
    NE = NT // 3
    a(f"s_sub_u32 s{sT}, s3, 9")
    a(f"s_add_u32 s{sTMP+1}, s{sT}, s{sC+4}"); a(f"s_min_u32 s{sTMP+1}, s{sTMP+1}, {NT-1}")
    a(f"s_lshl_b32 s{sTMP}, s{sT}, 7"); a(f"v_add_u32 v10, s{sTMP}, v2")
    a(f"s_lshl_b32 s{sTMP}, s{sTMP+1}, 7"); a(f"v_add_u32 v11, s{sTMP}, v2")
    a(f"s_lshl_b32 s{sTMP}, s{sT}, 10"); a(f"v_lshl_add_u32 v12, v{vL}, 4, s{sTMP}")
    a(f"s_lshl_b32 s{sTMP}, s{sTMP+1}, 10"); a(f"v_lshl_add_u32 v13, v{vL}, 4, s{sTMP}")
    a("v_mov_b32 v14, 4")
    a(f"s_mul_i32 s{sTMP}, s{sT}, {NE*128}"); a(f"s_add_u32 s{sTMP}, s{sTMP}, {L_EOF}"); a(f"v_add_u32 v2, s{sTMP}, v2")
    a(f"s_mul_i32 s{sTMP}, s{sT}, {NE*1024}"); a(f"s_add_u32 s{sTMP}, s{sTMP}, {L_O}"); a(f"v_lshl_add_u32 v6, v{vL}, 4, s{sTMP}")
    a("v_lshlrev_b32 v3, 4, v3")
    a(f"s_setprio {HPRIO}")
    a("s_barrier")
    EA_, ED_ = 16, 40
    for j in range(2): a(f"ds_read_b32 v{10+j}, v{10+j} offset:{L_EOF}")
    for j in range(2):
        a(f"s_waitcnt lgkmcnt(1)")
        a(f"v_and_b32 v{10+j}, 31, v{10+j}"); a(f"v_lshl_add_u32 v{10+j}, v{10+j}, 4, v3")
        a(f"ds_read_b128 {vr(120+4*j,4)}, v{10+j} offset:{L_LUT}")
    for j in range(2):
        a(f"s_waitcnt lgkmcnt(1)"); a(f"ds_write_b128 v{12+j}, {vr(120+4*j,4)} offset:{L_O}")
    a("s_mov_b64 exec, 1"); a(f"ds_add_u32 v{vT0}, v5 offset:{L_OD}"); a("s_mov_b64 exec, -1")
    a(f"s_setprio {HPRIO2}")
    for i in range(0, NE, 2):
        a(f"ds_read2_b32 {vr(EA_+i,2)}, v2 offset0:{(i%8)*32} offset1:{(i%8)*32+32}")
        if i % 8 == 6: a("v_add_u32 v2, 1024, v2")
    seq = [("E", i) for i in range(0, NE, 2)]
    def wait_for(op):
        a(f"s_waitcnt lgkmcnt({min(len(seq) - 1 - seq.index(op), 15)})")
    LA = 5
    def lut(i):
        if i % 2 == 0: wait_for(("E", i))
        a(f"v_and_b32 v{EA_+i}, 31, v{EA_+i}"); a(f"v_lshl_add_u32 v{EA_+i}, v{EA_+i}, 4, v3")
        a(f"ds_read_b128 {vr(ED_+4*i,4)}, v{EA_+i} offset:{L_LUT}"); seq.append(("L", i))
    for i in range(LA): lut(i)
    for i in range(NE):
        if i + LA < NE: lut(i + LA)
        wait_for(("L", i))
        a(f"ds_write_b128 v6, {vr(ED_+4*i,4)} offset:{1024*i}"); seq.append(("W", i))
    a("EDONE:")
    a("s_mov_b64 exec, 1"); a(f"ds_add_u32 v{vT0}, v14 offset:{L_OD}"); a("s_mov_b64 exec, -1")
    a("s_branch PFIN")
    a("PDRAIN:")
    a(f"ds_read_b32 v8, v{vT0} offset:{L_OD}"); a("s_waitcnt lgkmcnt(0)"); a(f"v_readfirstlane_b32 s{sTMP+7}, v8")
    a(f"s_cmp_lt_u32 s{sTMP+7}, 15"); a("s_cbranch_scc1 PDRAIN")
    a("s_mov_b64 exec, 1")
    for k in range(PK - 1, 0, -1):
        a(f"s_cmp_le_u32 s{sT}, {k}"); a(f"s_cbranch_scc1 PD_{k}")
        a(f"s_waitcnt vmcnt({2*k})"); a(f"ds_add_u32 v{vT0}, v5 offset:{L_RDY}"); a(f"PD_{k}:")
    a("v_mov_b32 v5, 0x7fffffff"); a("s_waitcnt vmcnt(0)"); a(f"ds_write_b32 v{vT0}, v5 offset:{L_RDY}")
    a("s_mov_b64 exec, -1")
    stamp(a, "loopend"); stamp_out(a, "0")
    a("PFIN:")
    a(f"s_cmp_eq_u32 s{sMODE}, 0"); a("s_cbranch_scc1 PEND")
    a(f"s_cmp_eq_u32 s{sROUND}, 999"); a("s_cbranch_scc1 PEND")
    a(f"s_add_u32 s{sROUND}, s{sROUND}, 1")
    a("POVF:")
    a(f"s_mov_b32 s{sMODE}, 1")
    a("s_waitcnt vmcnt(0) lgkmcnt(0)"); a("s_barrier"); a("s_branch PROUND")
    a("PEND:")
    a("s_endpgm")
    a("CODE_END:")

def main(out):
    K = "standalone__edge_featured_mpnn_gatedgcn__graph_kernel"
    head = []
    for line in open("standalone__edge_featured_mpnn_gatedgcn__graph.s.ref").read().split("\n"):
        if not line.startswith(";"): break
        if "@launch" in line or "Override launch" in line or "grid=ceil" in line: continue
        head.append(line)
    a = A(); gen(a, K)
    t = "\n".join(head) + "\n"
    t += (f"; @launch kernel={K} " if LIST else "; @launch ") + f"grid=(256,1,1) block=(768,1,1) lds={L_TOTAL}\n"
    t += '.amdgcn_target "amdgcn-amd-amdhsa--gfx950"\n.text\n'
    t += f".globl {K}\n.p2align 8\n.type {K},@function\n" + a.text()
    t += f'''.section .rodata,"a"
.p2align 6
.amdhsa_kernel {K}
  .amdhsa_next_free_vgpr 168
  .amdhsa_next_free_sgpr 102
  .amdhsa_accum_offset 168
  .amdhsa_group_segment_fixed_size 0
  .amdhsa_kernarg_size 96
  .amdhsa_user_sgpr_count 2
  .amdhsa_user_sgpr_kernarg_segment_ptr 1
  .amdhsa_system_sgpr_workgroup_id_x 1
.end_amdhsa_kernel
'''
    if STAMP: t = "; stamps " + ",".join(NAMES) + "\n" + t
    open(out, "w").write(t)

if __name__ == "__main__":
    main(sys.argv[1] if len(sys.argv) > 1 else "standalone__edge_featured_mpnn_gatedgcn__graph.s")
```

```python
import sys
src=open(sys.argv[1]).read().split("\n")
out=[]
cnt=[0]
def probe(slots, sub, vt, st, tid=0):
    l=[]
    for wg,idx in slots.items():
        cnt[0]+=1; lab=f"DBG_{cnt[0]}"
        l+=[f"    s_cmp_lg_u32 s56, {wg}", f"    s_cbranch_scc1 {lab}",
            f"    s_load_dwordx2 s[{st}:{st+1}], s[0:1], 88", f"    s_memrealtime s[98:99]", f"    s_mov_b32 s{st+2}, 256", f"    s_mov_b32 s{st+3}, 0x20000", "    s_waitcnt lgkmcnt(0)"]
        l+= [f"    s_add_u32 s{st}, s{st}, 0xD00000", f"    s_addc_u32 s{st+1}, s{st+1}, 0"]
        l+= [f"    s_mov_b64 s[100:101], exec", f"    v_mov_b32 v{vt}, s98", f"    v_mov_b32 v{vt+1}, 0",
             f"    v_cmp_eq_u32 vcc, {tid}, v0", "    s_mov_b64 exec, vcc",
             f"    buffer_store_dword v{vt}, v{vt+1}, s[{st}:{st+3}], 0 offen offset:{idx*4}", f"    s_mov_b64 exec, s[100:101]", f"{lab}:"]
    return l
i=0
WA,WB=0,200
while i<len(src):
    l=src[i]
    if l.strip().startswith("s_lshr_b32 s57, s2, 3"):
        out+=probe({200:1},1,160,4)
    if l.strip()=="s_barrier" and src[i-1].strip().startswith("s_mov_b64 s[36:37]") and src[i+2].strip().endswith("CORE"):
        out.append(l); out+=probe({200:2},1,160,4,0); i+=1; continue
    if l.strip()=="v_mov_b32 v4, 0x21800000":
        out+=probe({200:3},1,160,4,0)+probe({200:4},1,160,4,512)
    if l.strip()=="s_barrier" and src[i-1].strip().endswith("offset:1536 sc1"):
        out+=probe({200:5},1,160,4,0)+probe({200:6},1,160,4,512)
    out.append(l); i+=1
t="\n".join(out).replace("next_free_sgpr 72","next_free_sgpr 88")
I,J,M=int(sys.argv[3]),int(sys.argv[4]),int(sys.argv[5])
z=f""".globl z_kernel
.p2align 8
.type z_kernel,@function
z_kernel:
    s_cmp_lg_u32 s2, 0
    s_cbranch_scc1 Z_END
    s_load_dwordx2 s[4:5], s[0:1], 88
    s_waitcnt lgkmcnt(0)
    s_add_u32 s4, s4, 0xD00000
    s_addc_u32 s5, s5, 0
    s_load_dword s6, s[4:5], {I*4}
    s_load_dword s7, s[4:5], {J*4}
    s_memrealtime s[8:9]
    s_waitcnt lgkmcnt(0)
    s_sub_u32 s6, s7, s6
    s_min_u32 s6, s6, 10000
    s_mul_i32 s6, s6, {M}
Z_L:
    s_memrealtime s[10:11]
    s_waitcnt lgkmcnt(0)
    s_sub_u32 s10, s10, s8
    s_cmp_lt_u32 s10, s6
    s_cbranch_scc1 Z_L
Z_END:
    s_endpgm
"""
kd=""".p2align 6
.amdhsa_kernel z_kernel
  .amdhsa_next_free_vgpr 8
  .amdhsa_next_free_sgpr 16
  .amdhsa_accum_offset 8
  .amdhsa_group_segment_fixed_size 0
  .amdhsa_kernarg_size 96
  .amdhsa_user_sgpr_count 2
  .amdhsa_user_sgpr_kernarg_segment_ptr 1
  .amdhsa_system_sgpr_workgroup_id_x 1
.end_amdhsa_kernel
"""
l2=[x for x in t.split("\n") if "@launch kernel=standalone" in x][0]
t=t.replace(l2,l2+"\n; @launch kernel=z_kernel grid=(1,1,1) block=(64,1,1) lds=0")
t=t.replace('.section .rodata,"a"',z+'.section .rodata,"a"')+kd
open(sys.argv[2],"w").write(t)
```

```python
import sys, os

N, E = 12500, 400000
NS, CH = 125, 3200
NG = 131
WS_TAB, WS_REC, WS_ARR, WS_OFF = 0, 0x620000, 0x7B0000, 0x7D0000
NLOG2E = 0xbfb8aa3b
env = lambda k, d: type(d)(os.environ.get(k, d))
STAMP = env("STAMP", 0); STAMPS = env("STAMPS", "all").split(","); ITS = env("ITS", 0)
PK = env("PK", 1); LEADX = env("LEADX", 4); PRIO = env("PRIO", "3210")
SHL64 = env("SHL64", 1); PF = env("PF", 2); PFW = env("PFW", 0); G1LATE = env("G1LATE", 0); NOEA = env("NOEA", 0)
SDPOL = env("SDPOL", "nt"); SIG = env("SIG", "byte"); SLP = env("SLP", 2); MSLP = env("MSLP", 1)
NCOL = env("NCOL", 8); CODEPF = env("CODEPF", 1); PDEL = env("PDEL", 0); NREP = env("NREP", 16); CDEPTH = env("CDEPTH", 1); HS2 = env("HS2", 0); TLB = env("TLB", 0); TLBSH = env("TLBSH", 18); EPF = env("EPF", 0); HPRIO = env("HPRIO", 3); HOOKK = env("HOOKK", 5); HPLAN = env("HPLAN", "011"); PPRIO = env("PPRIO", 0); HPRIO2 = env("HPRIO2", 3); ETS = env("ETS", 2); ETQ = env("ETQ", 1); PACE = env("PACE", 1); RDYP = env("RDYP", 2); OFFLATE = env("OFFLATE", 0); SPRIO = env("SPRIO", 0); WSB = env("WSB", 0); LIST = env("LIST", 0); DBG = env("DBG", "")
SPIN = 0x100000
MF = "v_mfma_f32_32x32x16_bf16"

class A:
    def __init__(self): self.l = []
    def __call__(self, s):
        for line in s.strip("\n").split("\n"):
            line = line.strip()
            if line:
                self.l.append(line if line.endswith(":") else "    " + line)
    def text(self): return "\n".join(self.l) + "\n"
def vr(a, n): return f"v[{a}:{a+n-1}]"

NT = 60
L_CNT, L_RDY, L_PROG, L_AD, L_OD, L_LUT = 64, 96, 100, 104, 108, 272
L_IDX = 6144
L_EOF = L_IDX + NT * 128
L_O = L_EOF + NT * 128
L_EA = L_O + NT * 1024
L_X = L_EA + 65536
L_TOTAL = L_X + 15360
S_CNT = 25600
S_TOT, S_BAD, S_TBL, S_SRT = S_CNT + 4096, S_CNT + 4128, S_CNT + 4352, S_CNT + 12544
L_X96 = L_TOTAL - 24576
L_WBV, L_WAU = 8192, 73728
assert L_WAU + 65536 == L_X96
vIDX, vEA, vOT, vSa, vS0, vS1, vT0 = 1, 2, 3, 4, 5, 6, 7
IX, SA, WC, AP, UP, DEN, NUM = 8, 24, 32, 36, 44, 52, 68
G = [84, 100]
RAW = [116, 132, 148]
LO, vT1 = 164, 166
RECQ = [116, 120, 124, 128]
LOFF, LCHV, LKEY, LRO, LLEN, LC, LADJ, LTOT, LCB, LONE, LQ4, LTMP = 132, 134, 135, 136, 137, 138, 140, 142, 144, 145, 146, 148
sW = 3
dX, dEA, dWS, dTAB, dOUT, dWC, dW0, dW1, dSRC, dDST = 8, 12, 16, 20, 24, 28, 32, 36, 40, 44
dDBG = 48
sCG, sBETA, sMODE, sROUND, sID, sU, sSTAGE = 52, 53, 54, 55, 56, 57, 58
sT, sTEND, sRDY, sF0, sL0, sL1, sG0, sG1 = 60, 61, 62, 63, 64, 65, 66, 67
sC = 68
sTMP = 76
sM0, sM1 = 88, 90
sPA, sPU = 92, 94
sOK = 96

NAMES = []
def stamp(a, nm):
    if STAMP and (STAMPS == ["all"] or nm in STAMPS):
        if nm not in NAMES: NAMES.append(nm)
        a("s_memtime s[4:5]"); a("s_waitcnt lgkmcnt(0)")
        a(f"v_writelane_b32 v167, s4, {NAMES.index(nm)}")
        rt = {"loop0": 59, "loopend": 60, "arrive": 55, "go": 56, "go2": 57, "bar2": 58}
        if nm in rt:
            a("s_memrealtime s[4:5]"); a("s_waitcnt lgkmcnt(0)")
            a(f"v_writelane_b32 v167, s4, {rt[nm]}")
def stamp_out(a, tiles):
    if STAMP:
        a("s_memrealtime s[4:5]"); a("s_waitcnt lgkmcnt(0)"); a("s_mov_b64 exec, -1")
        a("v_writelane_b32 v167, s4, 62"); a(f"v_writelane_b32 v167, {tiles}, 63")
        a("v_and_b32 v3, 63, v0"); a("v_lshlrev_b32 v3, 2, v3")
        a(f"s_mul_i32 s{sTMP}, s{sID}, 9"); a(f"s_add_u32 s{sTMP}, s{sTMP}, s{sW}")
        a(f"s_lshl_b32 s{sTMP}, s{sTMP}, 8"); a(f"s_add_u32 s{sTMP}, s{sTMP}, 0x900000")
        a(f"s_mov_b32 s{dWS+2}, 0x1000000")
        a(f"buffer_store_dword v167, v3, s[{dWS}:{dWS+3}], s{sTMP} offen")
def D(d): return f"s[{d}:{d+3}]"

def idx_reads(a, rel):
    for q in range(2 if "m16" in DBG else 4):
        a(f"ds_read_b128 {vr(IX+4*q,4)}, v{vIDX} offset:{rel*128+32*q}")
def gathers(a, dst):
    if "m16" in DBG:
        for k in range(0, 8, 2):
            a(f"v_lshl_add_u64 {vr(IX+k,2)}, {vr(IX+k,2)}, 4, {vr(LO,2)}")
        for k in range(16):
            a(f"buffer_load_dword v{dst+k}, v{IX+k//2}, {D(dTAB)}, 0 offen offset:{(k&1)*64} sc1")
        return
    for k in range(0, 16, 2):
        a(f"v_lshl_add_u64 {vr(IX+k,2)}, {vr(IX+k,2)}, 4, {vr(LO,2)}")
    for k in range(16):
        a(f"buffer_load_dword v{dst+k}, v{IX+k}, {D(dTAB)}, 0 offen sc1")
M16 = "v_mfma_f32_16x16x32_bf16"
def ms_list(gx):
    if "m16" in DBG:
        return [f"{M16} {vr(DEN+4*i,4)}, {vr(SA,4)}, {vr(gx+4*i,4)}, {vr(DEN+4*i,4)}" for i in range(4)]
    return [f"{MF} {vr(DEN,16)}, {vr(SA,4)}, {vr(gx,4)}, {vr(DEN,16)}",
            f"{MF} {vr(NUM,16)}, {vr(SA,4)}, {vr(gx+8,4)}, {vr(NUM,16)}",
            f"{MF} {vr(DEN,16)}, {vr(SA+4,4)}, {vr(gx+4,4)}, {vr(DEN,16)}",
            f"{MF} {vr(NUM,16)}, {vr(SA+4,4)}, {vr(gx+12,4)}, {vr(NUM,16)}"]
def poll(a, stubs, tag):
    a(f"s_cmp_le_u32 s{sRDY}, s{sT}"); a(f"s_cbranch_scc1 POLL_{tag}"); a(f"POLLED_{tag}:")
    stubs(f"POLL_{tag}:")
    stubs(f"ds_read_b32 v{vT1}, v{vT0} offset:{L_RDY}"); stubs("s_waitcnt lgkmcnt(0)")
    stubs(f"v_readfirstlane_b32 s{sRDY}, v{vT1}")
    stubs(f"s_cmp_gt_u32 s{sRDY}, s{sT}"); stubs(f"s_cbranch_scc1 POLLED_{tag}")
    stubs("s_sleep 1"); stubs(f"s_branch POLL_{tag}")
def publish(a):
    if not PACE: return
    a("s_mov_b64 exec, 1"); a(f"ds_inc_u32 v{vT0}, v{vEA} offset:{L_PROG}"); a("s_mov_b64 exec, -1")
def prio(a, pos):
    if PRIO[pos] != "-": a(f"s_setprio {PRIO[pos]}")
def totals(a, t):
    a(f"v_add_u32 v{t}, v{t}, v{t+1}")
    a(f"v_add_u32_sdwa v{t}, v{t}, v{t} dst_sel:DWORD dst_unused:UNUSED_PAD src0_sel:WORD_0 src1_sel:WORD_1")
    a(f"v_add_u32 v{t}, 31, v{t}"); a(f"v_lshrrev_b32 v{t}, 4, v{t}"); a(f"v_and_b32 v{t}, -2, v{t}")
    a("s_nop 0")
    for k in range(4): a(f"v_readlane_b32 s{sC+k}, v{t}, {k}")
    a(f"s_sub_i32 s{sC+4}, s{sC}, 1"); a(f"s_sub_i32 s{sC+5}, s{sC+2}, 1")
    a(f"s_max_i32 s{sC+4}, s{sC+4}, s{sC+1}"); a(f"s_max_i32 s{sC+5}, s{sC+5}, s{sC+3}")
    a(f"s_add_u32 s{sC+6}, s{sC+4}, s{sC+5}"); a(f"s_cmp_gt_u32 s{sC+6}, {NT}")

vL, vWS, vTR, XAD, SET, AB, AV = 1, 2, 36, 8, [48, 60, 72], 84, 100

def own_x(a):
    a(f"v_lshrrev_b32 v4, 4, v{vL}"); a(f"v_and_b32 v5, 15, v{vL}")
    a("v_xor_b32 v5, v5, v4"); a("v_lshlrev_b32 v5, 4, v5"); a("v_lshl_add_u32 v16, v4, 18, v5")
    for j in range(1, 4): a(f"v_xor_b32 v{16+j}, {64*j}, v16")
    a(f"s_lshl_b32 s{sTMP}, s2, 8"); a(f"s_lshl_b32 s{sTMP+1}, s{sCG}, 16"); a(f"s_add_u32 s{sTMP}, s{sTMP}, s{sTMP+1}")
    a(f"s_lshl_b32 s{sTMP+2}, s{sCG}, 12"); a(f"s_add_u32 s{sTMP+2}, s{sTMP+2}, {L_X}")
    for j in range(4):
        c16 = 8 * (j & 1) + 4 * (j >> 1)
        a(f"s_add_u32 m0, s{sTMP+2}, {j*1024}"); a(f"s_add_u32 s{sTMP+1}, s{sTMP}, {c16*4*65536:#x}")
        a(f"buffer_load_dwordx4 v{16+j}, {D(dX)}, s{sTMP+1} offen lds")
def w_group(a, sreg, lds):
    for d, base in ((dW0, lds), (dW1, lds + 32768)):
        a(f"s_add_u32 m0, s{sreg}, {base}"); a("s_nop 0")
        for i in range(4):
            a(f"buffer_load_dwordx4 v{vWS}, {D(d)}, s{sreg} offen offset:{i*1024} lds")

def gen(a, name):
    stubs = A()
    a(f"{name}:")
    a("s_cmp_ge_u32 s2, 256"); a("s_cbranch_scc1 F_END")
    a(f"s_load_dwordx2 s[{dDST}:{dDST+1}], s[0:1], 24")
    a(f"s_load_dwordx2 s[{dSRC}:{dSRC+1}], s[0:1], 16")
    a(f"s_load_dwordx2 s[{dX}:{dX+1}], s[0:1], 0")
    a(f"s_load_dwordx2 s[{dW0}:{dW0+1}], s[0:1], 40")
    a(f"s_load_dwordx2 s[{dW1}:{dW1+1}], s[0:1], 64")
    a(f"s_load_dwordx2 s[{sPA}:{sPA+1}], s[0:1], 32")
    a(f"s_load_dwordx2 s[{sPU}:{sPU+1}], s[0:1], 56")
    a(f"s_load_dwordx2 s[{dWC}:{dWC+1}], s[0:1], 48")
    a(f"s_load_dwordx2 s[{dWS}:{dWS+1}], s[0:1], 88")
    a(f"v_lshrrev_b32 v{vWS}, 6, v0")
    a(f"v_and_b32 v{vL}, 63, v0")
    a(f"v_readfirstlane_b32 s{sW}, v{vWS}")
    a(f"s_mov_b32 s{sID}, s2")
    a(f"s_lshr_b32 s{sU}, s2, 3"); a("s_and_b32 s2, s2, 7"); a("s_lshl_b32 s2, s2, 5"); a(f"s_or_b32 s2, s2, s{sU}")
    for d, nb in ((dDST, E*4), (dSRC, E*4), (dX, N*256), (dW0, 32768), (dW1, 32768), (dWC, 4096), (dWS, WS_OFF + NS*8192)):
        a(f"s_mov_b32 s{d+2}, {nb:#x}"); a(f"s_mov_b32 s{d+3}, 0x20000")
    a(f"s_and_b32 s{sCG}, s{sW}, 3")
    if WSB:
        a("s_waitcnt lgkmcnt(0)")
        a(f"s_add_u32 s{dWS}, s{dWS}, {WSB << 20:#x}"); a(f"s_addc_u32 s{dWS+1}, s{dWS+1}, 0")
    a(f"v_lshrrev_b32 v4, 4, v{vL}"); a("v_lshlrev_b32 v5, 2, v4"); a(f"v_and_b32 v6, 15, v{vL}")
    a("v_xor_b32 v5, v5, v6"); a("v_lshlrev_b32 v5, 4, v5"); a(f"v_lshl_add_u32 v{vWS}, v4, 8, v5")
    a(f"v_mov_b32 v{vT0}, 0")
    a("v_mov_b32 v32, 0")
    if STAMP:
        a("v_mov_b32 v167, 0"); a("s_memrealtime s[6:7]"); a("s_waitcnt lgkmcnt(0)"); a("v_writelane_b32 v167, s6, 61")
    stamp(a, "start")
    a(f"s_lshl_b32 s{sTMP}, s{sID}, 4"); a(f"s_add_u32 s{sTMP}, s{sTMP}, s3")
    a(f"s_cmp_lg_u32 s{sTMP}, 8"); a("s_cbranch_scc1 NOCLR")
    a(f"v_lshrrev_b32 v12, 2, v{vL}"); a(f"v_and_b32 v13, 3, v{vL}"); a("v_lshlrev_b32 v13, 4, v13")
    a("v_lshl_add_u32 v12, v12, 7, v13"); a(f"v_add_u32 v12, {WS_ARR:#x}, v12")
    a("v_mov_b64 v[8:9], 0"); a("v_mov_b64 v[10:11], 0")
    a(f"s_mov_b32 s{sTMP}, {NREP//2}")
    a("s_waitcnt lgkmcnt(0)")
    a("CLR:")
    a(f"buffer_store_dwordx4 v[8:11], v12, {D(dWS)}, 0 offen sc1")
    a(f"buffer_store_dwordx4 v[8:11], v12, {D(dWS)}, 0 offen offset:2048 sc1")
    a("v_add_u32 v12, 4096, v12")
    a(f"s_sub_u32 s{sTMP}, s{sTMP}, 1"); a(f"s_cmp_lg_u32 s{sTMP}, 0"); a("s_cbranch_scc1 CLR")
    a("NOCLR:")
    if CODEPF:
        a("s_cmp_lg_u32 s3, 0"); a("s_cbranch_scc1 NOCPF")
        a(f"s_getpc_b64 s[{sTMP}:{sTMP+1}]")
        a("PCREF:")
        a(f"s_lshl_b32 s{sTMP+2}, s{sU}, 7")
        a(f"v_lshl_add_u32 v160, v{vL}, 12, s{sTMP+2}")
        a("v_min_u32 v160, CODE_END-PCREF-4, v160")
        a("v_mov_b32 v161, 0")
        a(f"v_lshl_add_u64 v[160:161], v[160:161], 0, s[{sTMP}:{sTMP+1}]")
        a("s_mov_b64 exec, 31")
        a("global_load_dword v162, v[160:161], off")
        a("s_mov_b64 exec, -1")
        a("NOCPF:")
    def late_args():
        a(f"s_mov_b64 s[{dTAB}:{dTAB+1}], s[{dWS}:{dWS+1}]")
        a(f"s_load_dwordx2 s[{dEA}:{dEA+1}], s[0:1], 8")
        a(f"s_load_dwordx2 s[{dOUT}:{dOUT+1}], s[0:1], 72")
        a(f"s_load_dwordx2 s[{dDBG}:{dDBG+1}], s[0:1], 80")
        for d, nb in ((dTAB, N*512), (dEA, E*32), (dOUT, N*256), (dDBG, 256)):
            a(f"s_mov_b32 s{d+2}, {nb:#x}"); a(f"s_mov_b32 s{d+3}, 0x20000")
        a(f"s_mov_b32 s{sMODE}, 0"); a(f"s_mov_b32 s{sROUND}, 0")
        a(f"s_bfe_u32 s{sBETA}, s{sW}, 0x10002")
    def see_clear(tag):
        a(f"s_mov_b32 s{sOK}, 0")
        a("s_cmp_lg_u32 s3, 8"); a(f"s_cbranch_scc1 SC_D{tag}")
        a(f"s_load_dword s{sOK}, s[{dDBG}:{dDBG+1}], 0")
        a(f"SC_D{tag}:")
    def need_clear(tag):
        a("s_waitcnt lgkmcnt(0)")
        a(f"v_mov_b32 v24, s{sOK}")
        a(f"s_mov_b32 s{sTMP+5}, 0")
        a(f"NC_L{tag}:")
        a("v_cmp_eq_u32 vcc, 0, v24"); a(f"s_cbranch_vccz NC_E{tag}")
        a(f"s_add_u32 s{sTMP+5}, s{sTMP+5}, 1"); a(f"s_cmp_gt_u32 s{sTMP+5}, {SPIN:#x}"); a(f"s_cbranch_scc1 NC_E{tag}")
        a(f"buffer_load_dword v24, v{vT0}, {D(dDBG)}, 0 offen sc1")
        a("s_waitcnt vmcnt(0)"); a(f"s_branch NC_L{tag}")
        a(f"NC_E{tag}:")
    def page_touch(tag):
        if not TLB: return
        a(f"s_cmp_lg_u32 s3, {tag[1]}"); a(f"s_cbranch_scc1 PT_{tag[0]}")
        a(f"v_lshlrev_b32 v163, 12, v{vL}")
        if tag[0] == "G":
            a(f"s_mul_i32 s{sTMP+11}, s{sTMP+9}, {96*512}")
            a("s_mov_b64 exec, 0xfff")
            a(f"buffer_load_dword v162, v163, {D(dWS)}, s{sTMP+11} offen sc1")
        else:
            a(f"s_mul_i32 s{sTMP+11}, s{sID}, {CH*4}"); a(f"s_add_u32 s{sTMP+11}, s{sTMP+11}, {WS_REC:#x}")
            a("s_mov_b64 exec, 0xf")
            a(f"buffer_load_dword v162, v163, {D(dWS)}, s{sTMP+11} offen sc1")
            a(f"s_lshl_b32 s{sTMP+11}, s{sID}, 13"); a(f"s_add_u32 s{sTMP+11}, s{sTMP+11}, {WS_OFF:#x}")
            a("s_mov_b64 exec, 0x3")
            a(f"buffer_load_dword v162, v163, {D(dWS)}, s{sTMP+11} offen sc1")
        a("s_mov_b64 exec, -1")
        if TLB > 1:
            a(f"v_lshlrev_b32 v163, 18, v{vL}")
            a("s_waitcnt lgkmcnt(0)")
            a(f"buffer_load_dword v162, v163, {D(dEA)}, 0 offen")
        a(f"PT_{tag[0]}:")
    def wait_flags(stage):
        a(f"s_mov_b32 s{sTMP+5}, 0")
        if stage == 1:
            a("s_mov_b32 exec_hi, 0")
        for k in range(CDEPTH - 1):
            a(f"buffer_load_dwordx4 {vr(40+4*k,4)}, v32, {D(dWS)}, 0 offen sc1"); a(f"s_sleep {SLP}")
        a(f"WAITF{stage}:")
        for k in range(CDEPTH):
            b = 40 + 4 * k
            a(f"buffer_load_dwordx4 {vr(40+4*((k+CDEPTH-1)%CDEPTH),4)}, v32, {D(dWS)}, 0 offen sc1")
            a(f"s_waitcnt vmcnt({CDEPTH-1})")
            if stage == 1: a(f"v_or_b32 v{b+3}, v{b+3}, v36")
            a(f"v_and_b32 v{b}, v{b}, v{b+1}"); a(f"v_and_b32 v{b+2}, v{b+2}, v{b+3}"); a(f"v_and_b32 v{b}, v{b}, v{b+2}")
            a(f"v_cmpx_ne_u32 vcc, 1, v{b}"); a(f"s_cbranch_execz ALLIN{stage}")
            if SLP: a(f"s_sleep {SLP}")
        a(f"s_add_u32 s{sTMP+5}, s{sTMP+5}, 1"); a(f"s_cmp_lt_u32 s{sTMP+5}, {SPIN:#x}"); a(f"s_cbranch_scc1 WAITF{stage}")
        a(f"ALLIN{stage}:")
        a("s_mov_b64 exec, -1")
    def wait_alloc(tag, tmp):
        a(f"WA_{tag}:")
        a(f"ds_read_b32 v{tmp}, v{vT0} offset:{L_AD}"); a("s_waitcnt lgkmcnt(0)")
        a(f"v_readfirstlane_b32 s{sTMP+4}, v{tmp}"); a(f"s_cmp_lt_u32 s{sTMP+4}, 8"); a(f"s_cbranch_scc1 WA_{tag}")
    WCR = 152
    def wc_loads():
        a(f"v_and_b32 v{LO}, 31, v0"); a(f"v_bfe_u32 v{LO+1}, v0, 5, 1")
        a(f"s_lshl_b32 s{sTMP+10}, s{sCG}, 6")
        a(f"v_lshl_add_u32 v{vT1}, v{LO}, 1, s{sTMP+10}"); a(f"v_lshl_add_u32 v{vT1}, v{LO+1}, 11, v{vT1}")
        for j in range(8): a(f"buffer_load_ushort v{WCR+j}, v{vT1}, {D(dWC)}, 0 offen offset:{j*256}")
    def gemm_addr(xbase_sreg, wbase):
        a(f"v_lshrrev_b32 v5, 5, v{vL}"); a(f"v_bfe_u32 v4, v{vL}, 2, 2")
        a(f"v_lshl_add_u32 v{vTR}, v5, 3, v4"); a(f"v_lshlrev_b32 v{vTR}, 8, v{vTR}")
        a(f"v_xor_b32 v4, s{sCG}, v4"); a(f"v_lshl_add_u32 v{vTR}, v4, 6, v{vTR}")
        a(f"v_bfe_u32 v4, v{vL}, 4, 1"); a(f"v_lshl_add_u32 v{vTR}, v4, 5, v{vTR}")
        a(f"v_and_b32 v4, 3, v{vL}"); a(f"v_lshl_add_u32 v{vTR}, v4, 3, v{vTR}")
        a(f"v_add_u32 v{vTR}, {wbase}, v{vTR}")
        a(f"v_and_b32 v4, 15, v{vL}"); a("v_xor_b32 v4, v4, v5"); a("v_lshlrev_b32 v4, 4, v4")
        a(f"v_and_b32 v6, 31, v{vL}"); a("v_lshl_add_u32 v4, v6, 8, v4")
        a(f"v_add_u32 v{XAD}, s{xbase_sreg}, v4")
        for kk in range(1, 8): a(f"v_xor_b32 v{XAD+kk}, {kk*32}, v{XAD}")
    a(f"s_cmp_lt_u32 s{sID}, {NS}"); a("s_cbranch_scc1 SORT")
    a(f"s_sub_u32 s{sTMP+9}, s{sID}, {NS}")
    a("s_cmp_lt_u32 s3, 4"); a("s_cbranch_scc1 G_XLD")
    a(f"s_sub_u32 s{sTMP+3}, s3, 4"); a(f"s_lshl_b32 s{sTMP+3}, s{sTMP+3}, 12")
    a("s_waitcnt lgkmcnt(0)")
    w_group(a, sTMP + 3, L_WBV)
    late_args()
    a("s_branch G_LDD")
    a("G_XLD:")
    a(f"s_lshl_b32 s{sTMP+1}, s{sCG}, 2")
    a("v_xor_b32 v5, v6, v4"); a(f"v_xor_b32 v5, s{sTMP+1}, v5"); a("v_lshlrev_b32 v5, 4, v5"); a("v_lshl_add_u32 v20, v4, 8, v5")
    a(f"s_mul_i32 s{sTMP}, s{sTMP+9}, {96*256}"); a(f"s_lshl_b32 s{sTMP+1}, s{sCG}, 10")
    a(f"s_add_u32 s{sTMP}, s{sTMP}, s{sTMP+1}"); a(f"s_add_u32 s{sTMP+1}, s{sTMP+1}, {L_X96}")
    a("s_waitcnt lgkmcnt(0)")
    for i in range(6):
        a(f"s_add_u32 m0, s{sTMP+1}, {i*4096}"); a(f"s_add_u32 s{sTMP+2}, s{sTMP}, {i*4096}")
        a(f"buffer_load_dwordx4 v20, {D(dX)}, s{sTMP+2} offen lds")
    late_args()
    a("G_LDD:")
    page_touch(("G", 3))
    a("s_cmp_ge_u32 s3, 8"); a("s_cbranch_scc1 G_NWC")
    wc_loads()
    a("G_NWC:")
    a(f"s_lshr_b32 s{sTMP+4}, s3, 2")
    a(f"s_lshl_b32 s{sTMP+5}, s{sTMP+4}, 13"); a(f"s_add_u32 s{sTMP+5}, s{sTMP+5}, {L_X96}")
    gemm_addr(sTMP + 5, L_WBV)
    a(f"s_mul_i32 s{sTMP+5}, s{sTMP+9}, {96*512}"); a(f"s_lshl_b32 s{sTMP+6}, s{sTMP+4}, 14"); a(f"s_add_u32 s{sTMP+5}, s{sTMP+5}, s{sTMP+6}")
    a(f"s_lshl_b32 s{sTMP+6}, s{sCG}, 7"); a(f"s_add_u32 s{sTMP+5}, s{sTMP+5}, s{sTMP+6}")
    a("v_lshlrev_b32 v20, 2, v6"); a("v_lshl_add_u32 v20, v5, 11, v20"); a(f"v_add_u32 v20, s{sTMP+5}, v20")
    for q in range(1, 4): a(f"v_add_u32 v{20+q}, {4096*q}, v20")
    a(f"s_mov_b32 s{sSTAGE}, 0")
    a("s_waitcnt vmcnt(0) lgkmcnt(0)")
    stamp(a, "p1land")
    a(f"s_mov_b64 s[{dW0}:{dW0+1}], s[{sPA}:{sPA+1}]"); a(f"s_mov_b64 s[{dW1}:{dW1+1}], s[{sPU}:{sPU+1}]")
    a("s_barrier")
    a("s_cmp_lt_u32 s3, 8"); a("s_cbranch_scc1 CORE")
    a(f"s_lshl_b32 s{sTMP+3}, s{sCG}, 13")
    w_group(a, sTMP + 3, L_WAU)
    a(f"s_add_u32 s{sTMP+3}, s{sTMP+3}, 4096")
    w_group(a, sTMP + 3, L_WAU)
    a("CORE:")
    def reads(kk):
        b = SET[kk % 3]
        a(f"ds_read_b128 {vr(b,4)}, v{XAD+kk}")
        for u in range(2): a(f"ds_read_b64_tr_b16 {vr(b+4+2*u,2)}, v{vTR} offset:{kk*4096+u*1024}")
        for u in range(2): a(f"ds_read_b64_tr_b16 {vr(b+8+2*u,2)}, v{vTR} offset:{32768+kk*4096+u*1024}")
    for kk in range(3): reads(kk)
    for kk in range(8):
        b = SET[kk % 3]
        a(f"s_waitcnt lgkmcnt({5*min(7-kk,2)})")
        a(f"{MF} {vr(AV,16)}, {vr(b,4)}, {vr(b+8,4)}, {'0' if kk == 0 else vr(AV,16)}")
        a(f"{MF} {vr(AB,16)}, {vr(b,4)}, {vr(b+4,4)}, {'0' if kk == 0 else vr(AB,16)}")
        if kk + 3 < 8: reads(kk + 3)
        if kk == HOOKK:
            a(f"s_cmp_lg_u32 s{sSTAGE}, 0"); a("s_cbranch_scc1 HOOK"); a("HOOKED:")
    a(f"s_mov_b32 s{sTMP+6}, {NLOG2E:#x}")
    a(f"s_mov_b32 s{sTMP+7}, {NLOG2E:#x}")
    a(f"s_cmp_lg_u32 s{sSTAGE}, 0"); a("s_cbranch_scc1 AU_DONE")
    a(f"s_mov_b32 s{sTMP+5}, 0x7f7e0000")
    a("v_mov_b32 v4, 0x21800000")
    a("s_nop 2")
    stamp(a, "g_core")
    a("s_nop 2")
    VP, VN = 116, 124
    for i in range(8):
        a(f"v_cvt_pk_bf16_f32 v{VP+i}, v{AV+2*i}, v{AV+2*i+1}")
        a(f"v_xor_b32 v{VN+i}, 0x80008000, v{VP+i}")
    for q in range(4):
        R = range(4*q, 4*q+4)
        for r in R: a(f"v_fma_f32 v{AB+r}, v{AB+r}, s{sTMP+6}, v4")
        for r in R: a(f"v_med3_f32 v{AB+r}, v{AB+r}, -s{sTMP+5}, s{sTMP+5}")
        for r in R: a(f"v_sub_u32_sdwa v{AB+r}, v{AB+r}, sext(v{VN+r//2}) dst_sel:DWORD dst_unused:UNUSED_PAD src0_sel:DWORD src1_sel:WORD_{r&1}")
        for r in R: a(f"v_mov_b32_sdwa v{AB+r}, v{VP+r//2} dst_sel:WORD_0 dst_unused:UNUSED_PRESERVE src0_sel:WORD_{r&1}")
        a("s_nop 0")
        for r in R: a(f"buffer_store_dword v{AB+r}, v{20+q}, {D(dTAB)}, 0 offen offset:{(r&3)*512} sc1")
    stamp(a, "p1st")
    a("s_barrier")
    a("s_cmp_lt_u32 s3, 8"); a("s_cbranch_scc1 G_DRAIN")
    own_x(a)
    a("G_DRAIN:")
    a("s_branch ARRIVE")
    a("SORT:")
    if SPRIO: a("s_setprio 2")
    a("s_cmp_ge_u32 s3, 8"); a("s_cbranch_scc1 S_HELP")
    Dd, S, RK, RC, KA, SH = 16, 24, 32, 40, 48, 56
    a("v_lshlrev_b32 v11, 3, v0"); a("v_mov_b64 v[12:13], 0")
    a(f"ds_write_b64 v11, v[12:13] offset:{S_CNT}"); a(f"ds_write_b32 v{vT0}, v12 offset:{S_BAD}")
    a("v_lshlrev_b32 v6, 4, v0")
    a(f"s_mul_i32 s{sTMP}, s{sID}, {CH*4}"); a(f"s_add_u32 s{sTMP+1}, s{sTMP}, 8192")
    a("s_waitcnt lgkmcnt(0)")
    a(f"buffer_load_dwordx4 {vr(Dd,4)}, v6, {D(dDST)}, s{sTMP} offen {SDPOL}")
    a(f"buffer_load_dwordx4 {vr(S,4)}, v6, {D(dSRC)}, s{sTMP} offen {SDPOL}")
    a("s_cmp_ge_u32 s3, 5"); a("s_cbranch_scc1 S_0")
    a(f"buffer_load_dwordx4 {vr(Dd+4,4)}, v6, {D(dDST)}, s{sTMP+1} offen {SDPOL}")
    a(f"buffer_load_dwordx4 {vr(S+4,4)}, v6, {D(dSRC)}, s{sTMP+1} offen {SDPOL}")
    a("S_0:")
    a("s_barrier")
    wc_loads()
    late_args()
    a("v_lshlrev_b32 v5, 7, v0"); a("v_mov_b32 v8, 0")
    a(f"v_cmp_gt_u32 vcc, {(CH-2048)//4}, v0"); a(f"s_mov_b64 s[{sTMP+2}:{sTMP+3}], vcc")
    def keys(lo):
        for i in range(lo, lo + 4):
            a(f"v_lshlrev_b32_sdwa v9, 4, v{Dd+i} dst_sel:DWORD dst_unused:UNUSED_PAD src0_sel:DWORD src1_sel:BYTE_0")
            a(f"v_bfe_u32 v10, v{Dd+i}, 8, 2")
            a(f"v_lshrrev_b32 v{SH+i}, 7, v{S+i}")
            a(f"v_lshl_or_b32 v{KA+i}, v10, 2, v9")
            a(f"v_and_b32 v{SH+i}, 24, v{SH+i}")
            a(f"v_lshlrev_b32_e64 v9, v{SH+i}, 1")
            a(f"ds_add_rtn_u32 v{RK+i}, v{KA+i}, v9 offset:{S_CNT}")
        for i in range(lo, lo + 4):
            a(f"v_lshrrev_b32 v9, 10, v{Dd+i}")
            a(f"v_add_u32 v10, {(((i&3) + (2048 if i >= 4 else 0)) << 5) + 1:#x}, v5")
            a(f"v_lshl_or_b32 v10, v{S+i}, 18, v10")
            a(f"v_add_u32 v{RC+i}, v9, v10")
            a(f"v_lshlrev_b32 v{KA+i}, 1, v{KA+i}")
        for i in range(lo, lo + 4):
            a(f"s_waitcnt lgkmcnt({3-(i-lo)})"); a(f"v_bfe_u32 v{RK+i}, v{RK+i}, v{SH+i}, 8")
        a(f"v_max3_u32 v8, v8, v{RK+lo}, v{RK+lo+1}"); a(f"v_max3_u32 v8, v8, v{RK+lo+2}, v{RK+lo+3}")
    a("s_waitcnt vmcnt(8) lgkmcnt(0)")
    stamp(a, "p1land")
    keys(0)
    a(f"s_mov_b64 exec, s[{sTMP+2}:{sTMP+3}]"); a("s_cbranch_execz S_1")
    keys(4)
    a("S_1:")
    a("s_mov_b64 exec, -1")
    a("v_cmp_lt_u32 vcc, 62, v8"); a("s_cbranch_vccz S_1B")
    a("v_mov_b32 v9, -1"); a(f"ds_write_b32 v{vT0}, v9 offset:{S_BAD}"); a("s_waitcnt lgkmcnt(0)")
    a("S_1B:")
    a(f"v_lshlrev_b32 v9, 4, v{vL}"); a("v_mov_b64 v[92:93], 0")
    stamp(a, "s_keys")
    a("s_barrier")
    stamp(a, "s_b2")
    a(f"ds_read_b64 v[12:13], v11 offset:{S_CNT}")
    for q in range(4): a(f"ds_read_b128 {vr(76+4*q,4)}, v9 offset:{S_CNT+1024*q}")
    a(f"ds_read_b32 v15, v{vT0} offset:{S_BAD}")
    a("s_waitcnt lgkmcnt(5)")
    a("v_sad_u8 v10, v12, 0, 0"); a("v_sad_u8 v8, v13, 0, v10"); a("v_mov_b32 v14, v8")
    for q in range(4):
        a(f"s_cmp_gt_u32 s3, {2*q}"); a("s_cselect_b32 exec_lo, -1, 0")
        a(f"s_cmp_gt_u32 s3, {2*q+1}"); a("s_cselect_b32 exec_hi, -1, 0")
        a(f"s_waitcnt lgkmcnt({4-q})")
        for i in range(4):
            a(f"v_sad_u8 v{92+(i&1)}, v{76+4*q+i}, 0, v{92+(i&1)}")
    a("s_mov_b64 exec, -1")
    a("v_add_u32 v92, v92, v93")
    a("s_nop 1")
    for ctl in ("row_shr:1 row_mask:0xf", "row_shr:2 row_mask:0xf", "row_shr:4 row_mask:0xf", "row_shr:8 row_mask:0xf",
                "row_bcast:15 row_mask:0xa", "row_bcast:31 row_mask:0xc"):
        a(f"v_add_u32_dpp v92, v92, v92 {ctl} bank_mask:0xf"); a(f"v_add_u32_dpp v14, v14, v14 {ctl} bank_mask:0xf"); a("s_nop 0")
    a(f"v_readlane_b32 s{sTMP+5}, v92, 63")
    a("v_sub_u32 v14, v14, v8")
    a("s_waitcnt lgkmcnt(0)")
    a("v_or_b32 v73, v12, v15"); a("v_or_b32 v75, v13, v15")
    a(f"v_add_u32 v14, s{sTMP+5}, v14")
    a("v_mov_b32 v72, v14"); a("v_add_u32 v74, v14, v10")
    a("v_mov_b32 v64, v14"); a("v_mov_b32 v65, v12"); a("v_mov_b32 v66, v74"); a("v_mov_b32 v67, v13")
    a(f"ds_write_b128 v6, v[64:67] offset:{S_TBL}")
    a("s_waitcnt lgkmcnt(0)"); a("s_barrier")
    stamp(a, "s_b4")
    LK = 76
    def lookups(lo):
        for i in range(lo, lo + 4): a(f"ds_read_b64 {vr(LK+2*i,2)}, v{KA+i} offset:{S_TBL}")
    def place(lo, wait):
        for i in range(lo, lo + 4):
            a(f"s_waitcnt lgkmcnt({wait})")
            a(f"v_bfe_u32 v9, v{LK+2*i+1}, 0, v{SH+i}"); a(f"v_sad_u8 v9, v9, 0, v{LK+2*i}")
            a(f"v_add_lshl_u32 v9, v9, v{RK+i}, 2"); a(f"ds_write_b32 v9, v{RC+i} offset:{S_SRT}")
    lookups(0)
    a("s_cmp_ge_u32 s3, 5"); a("s_cbranch_scc1 S_2")
    a(f"s_mov_b64 exec, s[{sTMP+2}:{sTMP+3}]")
    lookups(4)
    a("s_mov_b64 exec, -1")
    place(0, 7)
    a(f"s_mov_b64 exec, s[{sTMP+2}:{sTMP+3}]")
    place(4, 7)
    a("s_branch S_3")
    a("S_2:")
    place(0, 3)
    a("S_3:")
    a("s_mov_b64 exec, -1")
    a(f"s_add_u32 s{sTMP}, s{sTMP}, {WS_REC:#x}"); a(f"s_add_u32 s{sTMP+1}, s{sTMP+1}, {WS_REC:#x}")
    a(f"s_lshl_b32 s{sTMP+4}, s{sID}, 13"); a(f"s_add_u32 s{sTMP+4}, s{sTMP+4}, {WS_OFF:#x}")
    if not OFFLATE:
        a("s_waitcnt vmcnt(0)")
        a(f"buffer_store_dwordx4 v[72:75], v6, {D(dWS)}, s{sTMP+4} offen sc1")
    a("s_waitcnt lgkmcnt(0)"); a("s_barrier")
    stamp(a, "s_b5")
    a(f"ds_read_b128 v[64:67], v6 offset:{S_SRT}"); a(f"ds_read_b128 v[68:71], v6 offset:{S_SRT+8192}")
    if OFFLATE:
        a("s_waitcnt vmcnt(0)")
        a(f"buffer_store_dwordx4 v[72:75], v6, {D(dWS)}, s{sTMP+4} offen sc1")
    a("s_waitcnt lgkmcnt(1)")
    a(f"buffer_store_dwordx4 v[64:67], v6, {D(dWS)}, s{sTMP} offen sc1")
    a("s_waitcnt lgkmcnt(0)")
    a(f"s_mov_b64 exec, s[{sTMP+2}:{sTMP+3}]"); a("s_cbranch_execz S_4")
    a(f"buffer_store_dwordx4 v[68:71], v6, {D(dWS)}, s{sTMP+1} offen sc1")
    a("S_4:")
    a("s_mov_b64 exec, -1")
    stamp(a, "p1st")
    a("s_branch ARRIVE")
    a("S_HELP:")
    if SPRIO: a("s_setprio 0")
    a("s_waitcnt lgkmcnt(0)")
    a(f"s_mov_b64 s[{dW0}:{dW0+1}], s[{sPA}:{sPA+1}]"); a(f"s_mov_b64 s[{dW1}:{dW1+1}], s[{sPU}:{sPU+1}]")
    late_args()
    a("s_barrier")
    a(f"s_lshl_b32 s{sTMP}, s{sID}, 4"); a(f"s_add_u32 s{sTMP}, s{sTMP}, s3")
    a(f"s_cmp_lg_u32 s{sTMP}, 8"); a("s_cbranch_scc1 S_H2")
    a("v_mov_b32 v5, 1")
    a("s_mov_b64 exec, 1")
    a("s_waitcnt vmcnt(0) lgkmcnt(0)")
    a(f"buffer_store_dword v5, v{vT0}, {D(dDBG)}, 0 offen sc1")
    a("s_mov_b64 exec, -1")
    a("S_H2:")
    a("s_waitcnt lgkmcnt(0)")
    page_touch(("S", 10))
    parts = [lambda: (a(f"s_lshl_b32 s{sTMP+3}, s{sCG}, 13"), w_group(a, sTMP + 3, L_WAU)),
             lambda: (a(f"s_add_u32 s{sTMP+3}, s{sTMP+3}, 4096"), w_group(a, sTMP + 3, L_WAU)),
             lambda: own_x(a)]
    for slot in range(3):
        for p, where in zip(parts, HPLAN):
            if int(where) == slot: p()
        if slot == 0: stamp(a, "s_keys")
        a("s_barrier")
    a("ARRIVE:")
    a("s_cmp_lt_u32 s3, 8"); a("s_cbranch_scc1 NODE")
    a("s_cmp_eq_u32 s3, 8"); a("s_cbranch_scc1 SIGNAL")
    a("s_waitcnt vmcnt(0)")
    a("s_barrier")
    a(f"s_cmp_ge_u32 s{sID}, {NS}"); a("s_cbranch_scc1 HELP")
    a("s_barrier")
    a("s_branch HELP")
    a("SIGNAL:")
    a(f"s_load_dword s{sOK}, s[{dDBG}:{dDBG+1}], 0")
    a(f"s_and_b32 s{sTMP}, s{sID}, 7"); a(f"s_lshl_b32 s{sTMP}, s{sTMP}, 7")
    a(f"s_bfe_u32 s{sTMP+1}, s{sID}, 0x40003"); a(f"s_lshl_b32 s{sTMP+1}, s{sTMP+1}, 2")
    a(f"s_add_u32 s{sTMP}, s{sTMP}, s{sTMP+1}")
    a(f"s_lshr_b32 s{sTMP+1}, s{sID}, 7"); a(f"s_lshl_b32 s{sTMP+1}, s{sTMP+1}, 10")
    a(f"s_add_u32 s{sTMP}, s{sTMP}, s{sTMP+1}"); a(f"s_add_u32 s{sTMP}, s{sTMP}, {WS_ARR:#x}")
    a(f"v_lshl_add_u32 v33, v{vL}, 11, s{sTMP}")
    a(f"s_and_b32 s{sTMP}, s{sID}, {NREP-1}"); a(f"s_lshl_b32 s{sTMP}, s{sTMP}, 11"); a(f"s_add_u32 s{sTMP}, s{sTMP}, {WS_ARR:#x}")
    a(f"v_lshrrev_b32 v32, 2, v{vL}"); a(f"v_and_b32 v34, 3, v{vL}"); a("v_lshlrev_b32 v34, 4, v34")
    a("v_lshl_add_u32 v32, v32, 7, v34"); a(f"v_add_u32 v32, s{sTMP}, v32")
    a("v_mov_b32 v35, 1")
    a("s_mov_b32 vcc_lo, 0x88800000"); a("s_mov_b32 vcc_hi, 0")
    a("v_cndmask_b32_e64 v36, 0, 1, vcc")
    a("s_mov_b64 exec, 1")
    need_clear("A")
    a(f"s_mov_b32 exec_lo, {(1 << min(NREP,32)) - 1:#x}"); a(f"s_mov_b32 exec_hi, {(1 << max(NREP-32,0)) - 1:#x}")
    a(f"s_mov_b32 s{sTMP+5}, 0")
    a("s_waitcnt vmcnt(0)")
    a("s_barrier")
    a(f"buffer_store_dword v35, v33, {D(dWS)}, 0 offen sc1")
    a("s_mov_b64 exec, -1")
    stamp(a, "arrive")
    a(f"s_cmp_ge_u32 s{sID}, {NS}"); a("s_cbranch_scc1 SIG2")
    a("s_barrier")
    a("SIG2:")
    wait_flags(1)
    a("s_branch HELP")
    a("NODE:")
    a(f"s_lshl_b32 s{sTMP+5}, s{sBETA}, 13"); a(f"s_add_u32 s{sTMP+5}, s{sTMP+5}, {L_X}")
    gemm_addr(sTMP + 5, L_WAU)
    a(f"s_lshl_b32 s{sTMP+2}, s{sCG}, 7")
    a(f"v_lshl_add_u32 v{LO}, v{LO}, 2, s{sTMP+2}"); a(f"v_mov_b32 v{LO+1}, v{LO}")
    a(f"s_mov_b32 s{sM0}, 0x0000ffff"); a(f"s_mov_b32 s{sM0+1}, 0x0000ffff")
    a(f"s_mov_b32 s{sM1}, 0xffff0000"); a(f"s_mov_b32 s{sM1+1}, 0xffff0000")
    a(f"s_cmp_lt_u32 s{sID}, {NS}")
    a(f"s_cselect_b32 s{sSTAGE}, 2, 1")
    a(f"s_mov_b32 s{sTMP+6}, {NLOG2E:#x}")
    for j in range(8): a(f"v_lshlrev_b32 v{WCR+j}, 16, v{WCR+j}")
    for j in range(8): a(f"v_mul_f32 v{WCR+j}, s{sTMP+6}, v{WCR+j}")
    for j in range(4): a(f"v_cvt_pk_bf16_f32 v{WC+j}, v{WCR+2*j}, v{WCR+2*j+1}")
    a("ROUND:")
    for j in range(0, 8, 2): a(f"v_mov_b64 {vr(SA+j,2)}, 0")
    a(f"v_lshlrev_b32 v{LTMP+2}, 4, v0")
    for k in range(3):
        a(f"ds_write_b128 v{LTMP+2}, {vr(SA,4)} offset:{k*8192}")
    a(f"v_bfe_u32 v{vT1}, v0, 5, 1")
    a(f"v_lshlrev_b32 v{vIDX}, 4, v{vT1}")
    a(f"v_and_b32 v{vOT}, 31, v0"); a(f"v_lshl_add_u32 v{vOT}, v{vOT}, 5, v{vIDX}")
    if "m16" in DBG:
        a(f"v_bfe_u32 v{vS0}, v0, 4, 1"); a(f"v_lshl_add_u32 v{vIDX}, v{vS0}, 6, v{vIDX}")
        a(f"v_and_b32 v{LO}, 0xffffffbf, v{LO}"); a(f"v_mov_b32 v{LO+1}, v{LO}")
    a(f"v_bfe_u32 v{vSa}, v0, 2, 2"); a(f"v_lshl_add_u32 v{vSa}, v{vT1}, 2, v{vSa}"); a(f"v_lshlrev_b32 v{vSa}, 5, v{vSa}")
    a(f"v_and_b32 v{vS0}, 1, v0"); a(f"v_lshl_add_u32 v{vSa}, v{vS0}, 4, v{vSa}")
    a(f"v_bfe_u32 v{vS0}, v0, 1, 1"); a(f"v_lshl_add_u32 v{vSa}, v{vS0}, 3, v{vSa}")
    a(f"v_and_b32 v{LQ4}, 3, v0"); a(f"v_lshlrev_b32 v{LQ4}, 3, v{LQ4}")
    a(f"v_mov_b32 v{LONE}, 48")
    a(f"s_mov_b32 s{sT}, 0"); a(f"s_mov_b32 s{sRDY}, 0")
    a(f"s_mov_b32 s{sTMP+8}, 0x0c010c00"); a(f"s_mov_b32 s{sTMP+9}, 0x0c030c02"); a(f"s_mov_b32 s{sTMP+3}, 0x10001")
    a(f"s_cmp_lg_u32 s{sMODE}, 0"); a("s_cbranch_scc1 SLOWSRC")
    a(f"v_lshrrev_b32 v{LCHV}, 2, v0"); a(f"v_mov_b32 v{LKEY}, v{LQ4}")
    a(f"s_lshl_b32 s{sTMP}, s2, 5"); a(f"s_add_u32 s{sTMP}, s{sTMP}, {WS_OFF:#x}")
    a(f"v_lshl_add_u32 v{LTMP}, v{LCHV}, 13, v{LKEY}"); a(f"v_add_u32 v{LTMP}, s{sTMP}, v{LTMP}")
    a(f"v_mul_u32_u24 v{LRO}, {CH*4}, v{LCHV}"); a(f"v_lshlrev_b32 v{LCHV}, 3, v{LRO}"); a(f"v_add_u32 v{LRO}, {WS_REC:#x}, v{LRO}")
    a("s_waitcnt vmcnt(0) lgkmcnt(0)")
    a("s_barrier")
    stamp(a, "arrive")
    a("s_branch CORE")
    offload = f"buffer_load_dwordx2 {vr(LOFF,2)}, v{LTMP}, {D(dWS)}, 0 offen sc1"
    a("HOOK:")
    a("s_barrier")
    a(f"s_cmp_eq_u32 s{sSTAGE}, 2"); a("s_cbranch_scc1 HOOKED")
    a(offload)
    a("s_branch HOOKED")
    a("AU_DONE:")
    a(f"s_cmp_lg_u32 s{sSTAGE}, 2"); a("s_cbranch_scc1 AU_G")
    def au_pack():
        for j in range(8): a(f"v_cvt_pk_bf16_f32 v{UP+j}, v{AV+2*j}, v{AV+2*j+1}")
        for r in range(0, 16, 2): a(f"v_pk_mul_f32 {vr(AB+r,2)}, {vr(AB+r,2)}, s[{sTMP+6}:{sTMP+7}]")
        for j in range(8): a(f"v_cvt_pk_bf16_f32 v{AP+j}, v{AB+2*j}, v{AB+2*j+1}")
        for r in range(0, 32, 2): a(f"v_mov_b64 {vr(DEN+r,2)}, 0")
    a("s_barrier")
    a(offload)
    a("AU_G:")
    a("s_waitcnt vmcnt(0)")
    stamp(a, "off")
    a(f"v_lshl_add_u32 v{LRO}, v{LOFF}, 2, v{LRO}")
    a(f"v_sad_u8 v{LLEN}, v{LOFF+1}, 0, 0")
    for q in range(4):
        if q: a(f"v_cmpx_lt_u32 vcc, {4*q}, v{LLEN}"); a("s_cbranch_execz RECD")
        a(f"buffer_load_dwordx4 {vr(RECQ[q],4)}, v{LRO}, {D(dWS)}, 0 offen offset:{16*q} sc1")
    a("RECD:")
    a("s_mov_b64 exec, -1")
    a("ALLOC:")
    a(f"v_perm_b32 v{LC}, v{LOFF+1}, v{LOFF+1}, s{sTMP+8}"); a(f"v_perm_b32 v{LC+1}, v{LOFF+1}, v{LOFF+1}, s{sTMP+9}")
    a(f"ds_add_rtn_u64 {vr(LADJ,2)}, v{LKEY}, {vr(LC,2)} offset:{L_CNT}")
    a("s_mov_b64 exec, 1")
    a(f"ds_inc_u32 v{vT0}, v{LONE} offset:{L_AD}")
    a("s_mov_b64 exec, -1")
    a(f"v_sad_u8 v{LLEN}, v{LOFF+1}, 0, 0")
    wait_alloc("C", LTMP)
    stamp(a, "barA")
    a(f"ds_read_b64 {vr(LTMP,2)}, v{LQ4} offset:{L_CNT}"); a(f"ds_read_b64 {vr(LTOT,2)}, v{LKEY} offset:{L_CNT}")
    a(f"v_lshrrev_b32 v{LCB}, 4, v{LKEY}"); a(f"v_bfe_u32 v{LKEY}, v{LKEY}, 3, 1")
    a(f"s_cmp_lg_u32 s{sMODE}, 0"); a("s_cbranch_scc1 NOPACK")
    au_pack()
    a("NOPACK:")
    for r in range(0, 16, 2): a(f"v_mov_b64 {vr(G[1]+r,2)}, 0")
    a("s_waitcnt lgkmcnt(1)")
    totals(a, LTMP)
    a("s_cbranch_scc1 OVF")
    a("s_waitcnt lgkmcnt(0)")
    a(f"v_sub_u32 v{LTOT}, v{LTOT}, v{LC}"); a(f"v_sub_u32 v{LTOT+1}, v{LTOT+1}, v{LC+1}")
    a(f"v_lshl_add_u32 v{LADJ}, v{LTOT}, 16, v{LADJ}"); a(f"v_lshl_add_u32 v{LADJ+1}, v{LTOT+1}, 16, v{LADJ+1}")
    a(f"v_add_u32_sdwa v{LTOT}, v{LTOT}, v{LTOT} dst_sel:DWORD dst_unused:UNUSED_PAD src0_sel:WORD_0 src1_sel:WORD_1")
    a(f"v_mad_u32_u24 v{LCB}, v{LCB}, s{sC+4}, v{LKEY}")
    a(f"v_mad_u32_u24 v{LADJ+1}, v{LTOT}, s{sTMP+3}, v{LADJ+1}")
    a(f"v_lshlrev_b32 v{LCB}, 7, v{LCB}"); a(f"v_lshlrev_b64 {vr(LADJ,2)}, 2, {vr(LADJ,2)}")
    a(f"s_cmp_eq_u32 s{sBETA}, 0")
    a(f"s_cselect_b32 s{sF0}, 0, s{sC+4}"); a(f"s_cselect_b32 s{sL0}, s{sC}, s{sC+2}")
    a(f"s_cselect_b32 s{sL1}, s{sC+1}, s{sC+3}"); a(f"s_cselect_b32 s{sTEND}, s{sC+4}, s{sC+5}")
    a(f"s_sub_u32 s{sG0}, s{sL0}, 1"); a(f"s_sub_u32 s{sG1}, s{sL1}, 1")
    a(f"s_lshl_b32 s{sTMP}, s{sF0}, 7"); a(f"s_add_u32 s{sTMP}, s{sTMP}, {L_IDX}"); a(f"v_add_u32 v{vIDX}, s{sTMP}, v{vIDX}")
    a(f"s_lshl_b32 s{sTMP}, s{sF0}, 10"); a(f"s_add_u32 s{sTMP+1}, s{sTMP}, {L_O}")
    a(f"v_add_u32 v{vOT}, s{sTMP+1}, v{vOT}"); a(f"v_add_u32 v{vSa}, s{sTMP+1}, v{vSa}"); a(f"v_add_u32 v{vEA}, {L_EA-L_O}, v{vOT}")
    a(f"v_cndmask_b32_e64 v{vS0}, 0, v{vSa}, s[{sM0}:{sM0+1}]"); a(f"v_cndmask_b32_e64 v{vS1}, 0, v{vSa}, s[{sM1}:{sM1+1}]")
    a(f"s_mov_b32 s{sTMP}, 0x1ffff"); a(f"s_mov_b32 s{sTMP+1}, 0xff80"); a(f"s_mov_b32 s{sTMP+2}, 0x7ffe0")
    a(f"s_mov_b32 s{sTMP+10}, {ETQ*128}")
    a("PLACE:")
    a("s_waitcnt vmcnt(0)")
    stamp(a, "rec")
    for s in range(16):
        rec = RECQ[s >> 2] + (s & 3); b = LTMP + 6 * (s & 1)
        a(f"v_cmpx_lt_u32 vcc, {s}, v{LLEN}"); a("s_cbranch_execz PLACED")
        a(f"v_and_b32_sdwa v{b+2}, v{rec}, v{LONE} dst_sel:DWORD dst_unused:UNUSED_PAD src0_sel:BYTE_3 src1_sel:DWORD")
        a(f"v_lshrrev_b32 v{b+3}, 13, v{rec}"); a(f"v_and_b32 v{b+4}, s{sTMP}, v{rec}")
        a(f"v_lshrrev_b64 {vr(b,2)}, v{b+2}, {vr(LADJ,2)}")
        a(f"v_and_b32 v{b+3}, s{sTMP+2}, v{b+3}"); a(f"v_add_u16 v{b}, {4*s}, v{b}")
        a(f"v_add_u32 v{b+4}, v{b+4}, v{LCHV}"); a(f"v_and_b32 v{b+1}, s{sTMP+1}, v{b}")
        if s < ETS:
            a(f"v_cmp_gt_u32 vcc, s{sTMP+10}, v{b}")
        a(f"v_add3_u32 v{b}, v{b}, v{b+1}, v{LCB}")
        a(f"ds_write2st64_b32 v{b}, v{b+3}, v{b+4} offset0:{L_IDX//256} offset1:{L_EOF//256}")
        if s < ETS:
            a(f"s_and_saveexec_b64 s[{sTMP+4}:{sTMP+5}], vcc")
            a(f"buffer_load_ubyte v163, v{b+4}, {D(dEA)}, 0 offen")
            a(f"s_mov_b64 exec, s[{sTMP+4}:{sTMP+5}]")
    a(f"v_cmpx_lt_u32 vcc, 16, v{LLEN}"); a("s_cbranch_execz PLACED")
    a(f"v_subrev_u32 v{LLEN}, 16, v{LLEN}"); a(f"v_add_u32 v{LRO}, 64, v{LRO}")
    a(f"v_add_u32 v{LADJ}, 0x00400040, v{LADJ}"); a(f"v_add_u32 v{LADJ+1}, 0x00400040, v{LADJ+1}")
    for q in range(4): a(f"buffer_load_dwordx4 {vr(RECQ[q],4)}, v{LRO}, {D(dWS)}, 0 offen offset:{16*q} sc1")
    a("s_branch PLACE")
    a("PLACED:")
    a("s_mov_b64 exec, -1")
    stamp(a, "placed")
    a("s_waitcnt lgkmcnt(0)"); a("s_barrier")
    stamp(a, "bar2")
    a(f"s_cmp_lt_i32 s{sTEND}, 1"); a("s_cbranch_scc1 RDONE")
    idx_reads(a, 0); a("s_waitcnt lgkmcnt(0)"); gathers(a, RAW[0])
    if not G1LATE:
        idx_reads(a, 1); a("s_waitcnt lgkmcnt(0)"); gathers(a, RAW[1])
    stamp(a, "g01")
    poll(a, stubs, "P")
    stamp(a, "polled")
    a(f"ds_read_b128 {vr(IX,4)}, v{vEA}"); a(f"ds_read_b128 {vr(IX+4,4)}, v{vOT}")
    a(f"s_waitcnt vmcnt({0 if G1LATE else 16}) lgkmcnt(0)")
    a(f"{MF} {vr(G[0],16)}, {vr(IX,4)}, {vr(WC,4)}, {vr(RAW[0],16)}")
    a(f"{MF} {vr(G[0],16)}, {vr(IX+4,4)}, {vr(AP,4)}, {vr(G[0],16)}")
    a("s_nop 3")
    if G1LATE:
        idx_reads(a, 1); a("s_waitcnt lgkmcnt(0)"); gathers(a, RAW[1])
    idx_reads(a, 2)
    stamp(a, "loop0")
    a(".p2align 6")
    a("LOOP:")
    for ph in range(6):
        R0, R1, R2 = RAW[ph % 3], RAW[(ph + 1) % 3], RAW[(ph + 2) % 3]
        Gc, Gn = G[ph % 2], G[(ph + 1) % 2]
        APn = AP + 4 * ((ph + 1) % 2); vS = (vS0, vS1)[ph % 2]
        ms = ms_list(Gn)
        a(f"s_cmp_ge_u32 s{sT}, s{(sL0, sL1)[ph % 2]}"); a(f"s_cbranch_scc1 SKIP_{ph}")
        a(f"s_add_u32 s{sT}, s{sT}, 1")
        prio(a, 0)
        if ITS: a("s_memtime s[4:5]"); a(f"s_add_u32 m0, s{sT}, 19")
        a("s_waitcnt lgkmcnt(0)")
        if ITS: a("v_writelane_b32 v167, s4, m0")
        if ph % RDYP == RDYP - 1 and RDYP < 7: a(f"v_readfirstlane_b32 s{sRDY}, v{vT1}")
        a(f"s_cmp_ge_u32 s{sT}, s{(sG0, sG1)[ph % 2]}"); a(f"s_cbranch_scc1 NOG_{ph}")
        gathers(a, R2)
        a(f"NOGD_{ph}:")
        stubs(f"NOG_{ph}:"); stubs("s_waitcnt vmcnt(0)"); stubs(f"s_branch NOGD_{ph}")
        if ph % 2 == 1: publish(a)
        poll(a, stubs, ph)
        xo = 8 if "m16" in DBG else 0
        a(f"ds_read_b128 {vr(IX+xo,4)}, v{vEA} offset:{(ph+1)*1024}"); a(f"ds_read_b128 {vr(IX+xo+4,4)}, v{vEA if xo else vOT} offset:{(ph+1)*1024}")
        for i in range(16):
            if i % 4 == 0 and not ("ms2" in DBG and i >= 8): a(ms[i // 4])
            if "noexp" not in DBG: a(f"v_exp_f32 v{Gc+i}, v{Gc+i}")
        prio(a, 1)
        if SHL64:
            for i in range(0, 16, 2):
                if "noshl" not in DBG: a(f"v_lshlrev_b64 {vr(R0+i,2)}, 16, {vr(R0+i,2)}")
        else:
            for i in range(16): a(f"v_lshlrev_b32 v{R0+i}, 16, v{R0+i}")
        for i in range(0, 16, 2):
            if "noadd" not in DBG: a(f"v_pk_add_f32 {vr(Gc+i,2)}, {vr(Gc+i,2)}, 1.0 op_sel_hi:[1,0]")
        prio(a, 2)
        for i in range(16):
            if i == 4:
                a("s_waitcnt vmcnt(16) lgkmcnt(0)")
                if "m16" not in DBG: a(f"{MF} {vr(Gn,16)}, {vr(IX,4)}, {vr(WC,4)}, {vr(R1,16)}")
            if "m16" in DBG:
                if i in (4, 6, 8, 10):
                    j = (i - 4) // 2
                    a(f"{M16} {vr(Gn+4*j,4)}, {vr(IX+8+4*(j>>1),4)}, {vr(APn if j & 1 else WC,4)}, {vr(R1+4*j,4)}")
            elif i == 8: a(f"{MF} {vr(Gn,16)}, {vr(IX+4,4)}, {vr(APn,4)}, {vr(Gn,16)}")
            if "norcp" not in DBG: a(f"v_rcp_f32 v{Gc+i}, v{Gc+i}")
            if i == 9:
                for u in range(2 if "m16" in DBG else 4): a(f"ds_read_b64_tr_b16 {vr(SA+2*u,2)}, v{vSa if 'm16' in DBG else vS} offset:{ph*1024+u*256}")
                idx_reads(a, ph + 3)
                if ph % RDYP == RDYP - 2 and RDYP < 7: a(f"ds_read_b32 v{vT1}, v{vT0} offset:{L_RDY}")
        prio(a, 3)
        for i in range(0, 16, 2):
            if "nomul" not in DBG: a(f"v_pk_mul_f32 {vr(R0+i,2)}, {vr(R0+i,2)}, {vr(Gc+i,2)}")
        for i in range(8): a(f"v_cvt_pk_bf16_f32 v{Gc+i}, v{Gc+2*i}, v{Gc+2*i+1}")
        for i in range(8):
            if "nocvt" not in DBG: a(f"v_cvt_pk_bf16_f32 v{Gc+8+i}, v{R0+2*i}, v{R0+2*i+1}")
        a(f"s_cmp_ge_u32 s{sT}, s{sTEND}"); a(f"s_cbranch_scc1 DRAIN_{ph%2}")
        a(f"NEXT_{ph}:")
        stubs(f"SKIP_{ph}:")
        stubs(f"s_add_u32 s{sT}, s{sT}, 1"); stubs("s_waitcnt lgkmcnt(0)")
        st2 = A()
        if ph % 2 == 1: publish(stubs)
        poll(stubs, st2, f"S{ph}")
        stubs(f"ds_read_b128 {vr(IX,4)}, v{vEA} offset:{(ph+1)*1024}"); stubs(f"ds_read_b128 {vr(IX+4,4)}, v{vOT} offset:{(ph+1)*1024}")
        for m in ms: stubs(m)
        for r in range(0, 16, 2): stubs(f"v_mov_b64 {vr(Gc+r,2)}, 0")
        for j in range(0, 8, 2): stubs(f"v_mov_b64 {vr(SA+j,2)}, 0")
        stubs("s_waitcnt vmcnt(0) lgkmcnt(0)")
        stubs(f"{MF} {vr(Gn,16)}, {vr(IX,4)}, {vr(WC,4)}, {vr(R1,16)}")
        stubs(f"{MF} {vr(Gn,16)}, {vr(IX+4,4)}, {vr(APn,4)}, {vr(Gn,16)}")
        stubs("s_nop 3")
        idx_reads(stubs, ph + 3)
        stubs(f"s_branch NEXT_{ph}")
        stubs.l += st2.l
    a(f"v_add_u32 v{vIDX}, {6*128}, v{vIDX}"); a(f"v_add_u32 v{vEA}, {6*1024}, v{vEA}")
    a(f"v_add_u32 v{vOT}, {6*1024}, v{vOT}"); a(f"v_add_u32 v{vSa}, {6*1024}, v{vSa}")
    a(f"v_cndmask_b32_e64 v{vS0}, 0, v{vSa}, s[{sM0}:{sM0+1}]"); a(f"v_cndmask_b32_e64 v{vS1}, 0, v{vSa}, s[{sM1}:{sM1+1}]")
    a("s_branch LOOP")
    for p in range(2):
        a(f"DRAIN_{p}:"); a("s_waitcnt lgkmcnt(0)")
        for m in ms_list(G[p]): a(m)
        if p == 0: a("s_branch RDONE")
    a("RDONE:")
    a(f"v_mov_b32 v{vT1}, 16"); a(f"ds_add_u32 v{vT0}, v{vT1} offset:{L_PROG}")
    a(f"s_cmp_lg_u32 s{sMODE}, 0"); a("s_cbranch_scc1 SLOWNEXT")
    a("EPI:")
    stamp(a, "loopend")
    XD = IX
    for r in range(0, 16, 2): a(f"v_mov_b64 {vr(XD+r,2)}, 0")
    a("v_bfe_u32 v2, v0, 5, 1"); a("v_bfe_u32 v3, v0, 3, 2")
    a(f"s_lshl_b32 s{sTMP+3}, s{sCG}, 2")
    a("v_lshl_or_b32 v3, v2, 2, v3"); a(f"v_xor_b32 v3, s{sTMP+3}, v3")
    a("v_and_b32 v4, 7, v0"); a("v_lshlrev_b32 v4, 1, v4"); a("v_lshl_or_b32 v3, v3, 4, v4")
    a(f"s_lshl_b32 s{sTMP}, s{sBETA}, 13"); a(f"s_add_u32 s{sTMP}, s{sTMP}, {L_X}")
    a(f"v_lshl_add_u32 v2, v2, 10, s{sTMP}"); a(f"v_add_u32 v{SA}, v2, v3")
    for r in range(1, 8): a(f"v_xor_b32 v{SA+r}, {(8*(r>>2)+(r&3))*16}, v{SA}")
    for r in range(16): a(f"ds_read_u16_d16_hi v{XD+r}, v{SA+(r&7)} offset:{(8*(r>>2)+(r&3))*256}")
    a(f"s_mov_b32 s{sTMP+4}, 0x358637bd"); a(f"s_mov_b32 s{sTMP+5}, 0x358637bd")
    for r in range(0, 16, 2): a(f"v_pk_add_f32 {vr(DEN+r,2)}, {vr(DEN+r,2)}, s[{sTMP+4}:{sTMP+5}]")
    for r in range(16): a(f"v_rcp_f32 v{DEN+r}, v{DEN+r}")
    a("v_bfe_u32 v2, v0, 2, 4"); a("v_and_b32 v3, 3, v0"); a(f"v_or_b32 v4, s{sTMP+3}, v3"); a("v_xor_b32 v4, v4, v2")
    a("v_lshlrev_b32 v4, 4, v4"); a("v_lshl_add_u32 v4, v2, 8, v4"); a(f"v_add_u32 v4, s{sTMP}, v4")
    a("v_bfe_u32 v5, v0, 2, 2"); a("v_bfe_u32 v6, v0, 4, 1"); a("v_lshl_or_b32 v5, v6, 3, v5")
    a("v_bfe_u32 v6, v0, 5, 1"); a("v_lshl_or_b32 v5, v6, 2, v5"); a("v_lshlrev_b32 v3, 4, v3"); a("v_lshl_or_b32 v5, v5, 18, v3")
    a(f"s_lshl_b32 s{sTMP}, s{sBETA}, 17"); a(f"s_lshl_b32 s{sTMP+1}, s2, 8"); a(f"s_add_u32 s{sTMP}, s{sTMP}, s{sTMP+1}")
    a(f"s_lshl_b32 s{sTMP+1}, s{sCG}, 6"); a(f"s_add_u32 s{sTMP}, s{sTMP}, s{sTMP+1}"); a(f"s_add_u32 s{sTMP+1}, s{sTMP}, 0x10000")
    UD = G[0]
    for r in range(16):
        a(f"v_and_b32 v{UD+r}, 0xffff0000, v{UP+r//2}" if r & 1 else f"v_lshlrev_b32 v{UD+r}, 16, v{UP+r//2}")
    for r in range(0, 16, 2): a(f"v_pk_fma_f32 {vr(UD+r,2)}, {vr(NUM+r,2)}, {vr(DEN+r,2)}, {vr(UD+r,2)}")
    for r in range(16): a(f"v_max_f32 v{UD+r}, 0, v{UD+r}")
    a("s_waitcnt lgkmcnt(0)")
    for r in range(0, 16, 2): a(f"v_pk_add_f32 {vr(UD+r,2)}, {vr(UD+r,2)}, {vr(XD+r,2)}")
    for j in range(8): a(f"v_cvt_pk_bf16_f32 v{XD+j}, v{UD+2*j}, v{UD+2*j+1}")
    for r in range(16):
        a(f"{'ds_write_b16_d16_hi' if r & 1 else 'ds_write_b16'} v{SA+(r&7)}, v{XD+r//2} offset:{(8*(r>>2)+(r&3))*256}")
    a(f"ds_read_b128 {vr(UD,4)}, v4"); a(f"ds_read_b128 {vr(UD+4,4)}, v4 offset:4096")
    a("s_waitcnt lgkmcnt(1)"); a(f"buffer_store_dwordx4 {vr(UD,4)}, v5, {D(dOUT)}, s{sTMP} offen")
    a("s_waitcnt lgkmcnt(0)"); a(f"buffer_store_dwordx4 {vr(UD+4,4)}, v5, {D(dOUT)}, s{sTMP+1} offen")
    if STAMP:
        a("s_waitcnt vmcnt(0)"); a(f"s_add_u32 s6, s{sL0}, s{sL1}"); a("s_lshr_b32 s6, s6, 1")
    stamp(a, "end"); stamp_out(a, "s6")
    a("F_END:")
    a("s_endpgm")
    a.l += stubs.l
    a("SLOWNEXT:")
    a(f"s_cmp_eq_u32 s{sROUND}, 999"); a("s_cbranch_scc1 EPI")
    a(f"s_add_u32 s{sROUND}, s{sROUND}, 1")
    a("OVF:")
    a(f"s_mov_b32 s{sMODE}, 1")
    a("s_waitcnt vmcnt(0) lgkmcnt(0)"); a("s_barrier"); a("s_branch ROUND")
    a("SLOWSRC:")
    a(f"s_mul_i32 s{sTMP}, s{sROUND}, 1600"); a(f"v_lshlrev_b32 v{LRO}, 2, v0")
    a(f"buffer_load_dword v{LKEY}, v{LRO}, {D(dDST)}, s{sTMP} offen"); a(f"buffer_load_dword v{LOFF}, v{LRO}, {D(dSRC)}, s{sTMP} offen")
    a(f"s_mul_i32 s{sTMP+2}, s{sROUND}, {400*32}")
    a(f"v_lshl_add_u32 v{LTMP}, v0, 5, 1"); a(f"v_mov_b32 v{LCHV}, s{sTMP+2}")
    a("s_waitcnt vmcnt(0) lgkmcnt(0)"); a("s_barrier")
    a(f"v_lshl_or_b32 v{LTMP}, v{LOFF}, 18, v{LTMP}"); a(f"v_lshrrev_b32 v{LTMP+1}, 10, v{LKEY}")
    a(f"v_add_u32 v{RECQ[0]}, v{LTMP+1}, v{LTMP}")
    a(f"v_and_b32 v{LTMP+1}, 255, v{LKEY}"); a(f"v_cmp_eq_u32 vcc, s2, v{LTMP+1}")
    a(f"v_lshrrev_b32 v{LOFF}, 7, v{LOFF}"); a(f"v_and_b32 v{LOFF}, 24, v{LOFF}")
    a(f"v_cndmask_b32_e64 v{LOFF+1}, 0, 1, vcc"); a("v_cmp_gt_u32 vcc, 400, v0")
    a(f"v_bfe_u32 v{LKEY}, v{LKEY}, 8, 2"); a(f"v_lshlrev_b32 v{LOFF+1}, v{LOFF}, v{LOFF+1}"); a(f"v_lshlrev_b32 v{LKEY}, 3, v{LKEY}")
    a(f"v_cndmask_b32 v{LOFF+1}, 0, v{LOFF+1}, vcc")
    a("s_branch ALLOC")
    a("HELP:")
    a("PROUND:")
    a(f"v_and_b32 v15, 3, v{vL}"); a("v_lshlrev_b32 v15, 3, v15")
    a(f"v_lshrrev_b32 v2, 1, v{vL}"); a("v_lshlrev_b32 v2, 2, v2")
    a(f"v_and_b32 v3, 1, v{vL}"); a("v_lshlrev_b32 v3, 4, v3")
    a("v_mov_b32 v5, 1")
    a(f"v_and_b32 v10, 7, v{vL}"); a(f"v_bfe_u32 v11, v{vL}, 3, 1"); a("v_lshlrev_b32 v10, 1, v10")
    a("v_lshl_add_u32 v10, v11, 8, v10"); a(f"v_lshl_add_u32 v10, v{vL}, 4, v10"); a("v_mov_b32 v11, 0x3f80")
    stamp(a, "pre")
    a("s_barrier")
    stamp(a, "go")
    a("s_mov_b64 exec, 0x1fff"); a(f"ds_write_b16 v10, v11 offset:{L_LUT+16}"); a("s_mov_b64 exec, -1")
    a("s_cmp_lg_u32 s3, 8"); a("s_cbranch_scc1 H_G2")
    a(f"s_cmp_lg_u32 s{sMODE}, 0"); a("s_cbranch_scc1 H_G2")
    a(f"v_lshlrev_b32 v14, 7, v{vL}"); a(f"s_lshl_b32 s{sTMP}, s{sU}, 13"); a(f"v_add_u32 v14, s{sTMP}, v14")
    wait_flags(2)
    stamp(a, "go2")
    if PFW: wait_alloc("P", 8)
    for i in range(PF):
        a(f"s_mov_b32 s{sTMP}, {(i>>1)*2097152 + (i&1)*262144:#x}")
        a(f"buffer_load_dword v160, v14, {D(dTAB)}, s{sTMP} offen sc1")
    a("H_G2:")
    a("s_sleep 8")
    wait_alloc("H", 8)
    a(f"ds_read_b64 v[8:9], v15 offset:{L_CNT}")
    a("s_waitcnt lgkmcnt(0)")
    totals(a, 8)
    a("s_cbranch_scc1 POVF")
    a("s_cmp_lg_u32 s3, 8"); a("s_cbranch_scc1 EXP")
    a(f"s_max_u32 s{sTEND}, s{sC+4}, s{sC+5}")
    a(f"s_lshl_b32 s{sTMP+2}, s{sC+4}, 7"); a(f"v_add_u32 v6, s{sTMP+2}, v2")
    a(f"s_mov_b32 s{sT}, 0"); a(f"s_mov_b32 s{sTMP}, {L_EA}"); a(f"s_mov_b32 s{sTMP+3}, {-4*(PK+LEADX)}"); a(f"s_mov_b32 s{sRDY}, 0")
    a(f"s_lshl_b32 s{sTMP+1}, s{sC+4}, 10"); a(f"s_add_u32 s{sTMP+1}, s{sTMP+1}, {L_EA}")
    a(f"s_mov_b32 s{sTMP+6}, -32"); a(f"s_mov_b32 s{sTMP+7}, 0")
    if PPRIO: a(f"s_setprio {PPRIO}")
    a("s_barrier")
    stamp(a, "bar2")
    a(f"ds_read_b32 v10, v2 offset:{L_EOF}"); a(f"ds_read_b32 v11, v6 offset:{L_EOF}")
    a("PSTEP:")
    a(f"s_cmp_ge_u32 s{sT}, s{sTEND}"); a("s_cbranch_scc1 PDRAIN")
    if PACE: a(f"s_cmp_lt_i32 s{sRDY}, s{sTMP+3}"); a("s_cbranch_scc1 PW")
    a("PWD:")
    a(f"s_min_u32 m0, s{sTMP}, {L_EA + NT*1024}")
    a("s_waitcnt lgkmcnt(0)")
    for hb in range(2):
        a(f"v_mov_b32 v{12+hb}, v3" if NOEA else f"v_and_or_b32 v{12+hb}, v{10+hb}, s{sTMP+6}, v3")
    a("v_add_u32 v2, 128, v2"); a("v_add_u32 v6, 128, v6")
    a(f"buffer_load_dwordx4 v12, {D(dEA)}, 0 offen lds")
    a(f"s_min_u32 m0, s{sTMP+1}, {L_EA + NT*1024}")
    a(f"ds_read_b32 v10, v2 offset:{L_EOF}")
    a(f"buffer_load_dwordx4 v13, {D(dEA)}, 0 offen lds")
    a(f"ds_read_b32 v11, v6 offset:{L_EOF}")
    a(f"s_add_u32 s{sTMP}, s{sTMP}, 1024"); a(f"s_add_u32 s{sTMP+1}, s{sTMP+1}, 1024")
    a(f"s_add_i32 s{sTMP+3}, s{sTMP+3}, 4"); a(f"s_add_u32 s{sT}, s{sT}, 1")
    if STAMP and ITS:
        a("s_memtime s[4:5]"); a(f"s_add_u32 m0, s{sT}, 19"); a("s_waitcnt lgkmcnt(0)"); a("v_writelane_b32 v167, s4, m0")
    a(f"s_cmp_le_u32 s{sT}, {PK}"); a("s_cbranch_scc1 PSTEP")
    a(f"s_cmp_lt_u32 s{sTMP+7}, s{sT}"); a("s_cbranch_scc1 PO")
    a("POD:")
    if PPRIO: a("s_setprio 0")
    a("s_mov_b64 exec, 1"); a(f"s_waitcnt vmcnt({2*PK})"); a(f"ds_add_u32 v{vT0}, v5 offset:{L_RDY}"); a("s_mov_b64 exec, -1")
    a("s_branch PSTEP")
    a("PW:")
    a(f"ds_read_b32 v8, v{vT0} offset:{L_PROG}"); a("s_waitcnt lgkmcnt(0)"); a(f"v_readfirstlane_b32 s{sRDY}, v8")
    a(f"s_cmp_ge_i32 s{sRDY}, s{sTMP+3}"); a("s_cbranch_scc1 PWD"); a("s_sleep 2"); a("s_branch PW")
    a("PO:")
    a(f"ds_read_b32 v8, v{vT0} offset:{L_OD}"); a("s_waitcnt lgkmcnt(0)"); a(f"v_readfirstlane_b32 s{sTMP+7}, v8")
    stamp(a, "p_od")
    a(f"s_and_b32 s{sTMP+4}, s{sTMP+7}, 3"); a(f"s_cmp_eq_u32 s{sTMP+4}, 3"); a(f"s_cselect_b32 s{sTMP+4}, {3+PK}, 0")
    a(f"s_cmp_eq_u32 s{sTMP+7}, 15"); a(f"s_cselect_b32 s{sTMP+7}, -1, s{sTMP+4}")
    a(f"s_cmp_ge_u32 s{sTMP+7}, s{sT}"); a("s_cbranch_scc1 POD"); a("s_sleep 1"); a("s_branch PO")
    a("EXP:")
    NE = NT // 3
    a(f"s_sub_u32 s{sT}, s3, 9")
    a(f"s_add_u32 s{sTMP+1}, s{sT}, s{sC+4}"); a(f"s_min_u32 s{sTMP+1}, s{sTMP+1}, {NT-1}")
    a(f"s_lshl_b32 s{sTMP}, s{sT}, 7"); a(f"v_add_u32 v10, s{sTMP}, v2")
    a(f"s_lshl_b32 s{sTMP}, s{sTMP+1}, 7"); a(f"v_add_u32 v11, s{sTMP}, v2")
    a(f"s_lshl_b32 s{sTMP}, s{sT}, 10"); a(f"v_lshl_add_u32 v12, v{vL}, 4, s{sTMP}")
    a(f"s_lshl_b32 s{sTMP}, s{sTMP+1}, 10"); a(f"v_lshl_add_u32 v13, v{vL}, 4, s{sTMP}")
    a("v_mov_b32 v14, 4")
    a(f"s_mul_i32 s{sTMP}, s{sT}, {NE*128}"); a(f"s_add_u32 s{sTMP}, s{sTMP}, {L_EOF}"); a(f"v_add_u32 v2, s{sTMP}, v2")
    a(f"s_mul_i32 s{sTMP}, s{sT}, {NE*1024}"); a(f"s_add_u32 s{sTMP}, s{sTMP}, {L_O}"); a(f"v_lshl_add_u32 v6, v{vL}, 4, s{sTMP}")
    a("v_lshlrev_b32 v3, 4, v3")
    a(f"s_setprio {HPRIO}")
    a("s_barrier")
    EA_, ED_ = 16, 40
    for j in range(2): a(f"ds_read_b32 v{10+j}, v{10+j} offset:{L_EOF}")
    for j in range(2):
        a(f"s_waitcnt lgkmcnt(1)")
        a(f"v_and_b32 v{10+j}, 31, v{10+j}"); a(f"v_lshl_add_u32 v{10+j}, v{10+j}, 4, v3")
        a(f"ds_read_b128 {vr(120+4*j,4)}, v{10+j} offset:{L_LUT}")
    for j in range(2):
        a(f"s_waitcnt lgkmcnt(1)"); a(f"ds_write_b128 v{12+j}, {vr(120+4*j,4)} offset:{L_O}")
    a("s_mov_b64 exec, 1"); a(f"ds_add_u32 v{vT0}, v5 offset:{L_OD}"); a("s_mov_b64 exec, -1")
    a(f"s_setprio {HPRIO2}")
    for i in range(0, NE, 2):
        a(f"ds_read2_b32 {vr(EA_+i,2)}, v2 offset0:{(i%8)*32} offset1:{(i%8)*32+32}")
        if i % 8 == 6: a("v_add_u32 v2, 1024, v2")
    seq = [("E", i) for i in range(0, NE, 2)]
    def wait_for(op):
        a(f"s_waitcnt lgkmcnt({min(len(seq) - 1 - seq.index(op), 15)})")
    LA = 5
    def lut(i):
        if i % 2 == 0: wait_for(("E", i))
        a(f"v_and_b32 v{EA_+i}, 31, v{EA_+i}"); a(f"v_lshl_add_u32 v{EA_+i}, v{EA_+i}, 4, v3")
        a(f"ds_read_b128 {vr(ED_+4*i,4)}, v{EA_+i} offset:{L_LUT}"); seq.append(("L", i))
    for i in range(LA): lut(i)
    for i in range(NE):
        if i + LA < NE: lut(i + LA)
        wait_for(("L", i))
        a(f"ds_write_b128 v6, {vr(ED_+4*i,4)} offset:{1024*i}"); seq.append(("W", i))
    a("EDONE:")
    a("s_mov_b64 exec, 1"); a(f"ds_add_u32 v{vT0}, v14 offset:{L_OD}"); a("s_mov_b64 exec, -1")
    a("s_branch PFIN")
    a("PDRAIN:")
    a(f"ds_read_b32 v8, v{vT0} offset:{L_OD}"); a("s_waitcnt lgkmcnt(0)"); a(f"v_readfirstlane_b32 s{sTMP+7}, v8")
    a(f"s_cmp_lt_u32 s{sTMP+7}, 15"); a("s_cbranch_scc1 PDRAIN")
    a("s_mov_b64 exec, 1")
    for k in range(PK - 1, 0, -1):
        a(f"s_cmp_le_u32 s{sT}, {k}"); a(f"s_cbranch_scc1 PD_{k}")
        a(f"s_waitcnt vmcnt({2*k})"); a(f"ds_add_u32 v{vT0}, v5 offset:{L_RDY}"); a(f"PD_{k}:")
    a("v_mov_b32 v5, 0x7fffffff"); a("s_waitcnt vmcnt(0)"); a(f"ds_write_b32 v{vT0}, v5 offset:{L_RDY}")
    a("s_mov_b64 exec, -1")
    stamp(a, "loopend"); stamp_out(a, "0")
    a("PFIN:")
    a(f"s_cmp_eq_u32 s{sMODE}, 0"); a("s_cbranch_scc1 PEND")
    a(f"s_cmp_eq_u32 s{sROUND}, 999"); a("s_cbranch_scc1 PEND")
    a(f"s_add_u32 s{sROUND}, s{sROUND}, 1")
    a("POVF:")
    a(f"s_mov_b32 s{sMODE}, 1")
    a("s_waitcnt vmcnt(0) lgkmcnt(0)"); a("s_barrier"); a("s_branch PROUND")
    a("PEND:")
    a("s_endpgm")
    a("CODE_END:")

def main(out):
    K = "standalone__edge_featured_mpnn_gatedgcn__graph_kernel"
    head = []
    for line in open("standalone__edge_featured_mpnn_gatedgcn__graph.s.ref").read().split("\n"):
        if not line.startswith(";"): break
        if "@launch" in line or "Override launch" in line or "grid=ceil" in line: continue
        head.append(line)
    a = A(); gen(a, K)
    t = "\n".join(head) + "\n"
    t += (f"; @launch kernel={K} " if LIST else "; @launch ") + f"grid=(256,1,1) block=(768,1,1) lds={L_TOTAL}\n"
    t += '.amdgcn_target "amdgcn-amd-amdhsa--gfx950"\n.text\n'
    t += f".globl {K}\n.p2align 8\n.type {K},@function\n" + a.text()
    t += f'''.section .rodata,"a"
.p2align 6
.amdhsa_kernel {K}
  .amdhsa_next_free_vgpr 168
  .amdhsa_next_free_sgpr 102
  .amdhsa_accum_offset 168
  .amdhsa_group_segment_fixed_size 0
  .amdhsa_kernarg_size 96
  .amdhsa_user_sgpr_count 2
  .amdhsa_user_sgpr_kernarg_segment_ptr 1
  .amdhsa_system_sgpr_workgroup_id_x 1
.end_amdhsa_kernel
'''
    if STAMP: t = "; stamps " + ",".join(NAMES) + "\n" + t
    open(out, "w").write(t)

if __name__ == "__main__":
    main(sys.argv[1] if len(sys.argv) > 1 else "standalone__edge_featured_mpnn_gatedgcn__graph.s")
```

```python
import sys
src=open(sys.argv[1]).read().split("\n")
out=[]
cnt=[0]
def probe(slots, sub, vt, st, tid=0):
    l=[]
    for wg,idx in slots.items():
        cnt[0]+=1; lab=f"DBG_{cnt[0]}"
        l+=[f"    s_cmp_lg_u32 s56, {wg}", f"    s_cbranch_scc1 {lab}",
            f"    s_load_dwordx2 s[{st}:{st+1}], s[0:1], 88", f"    s_memrealtime s[98:99]", f"    s_mov_b32 s{st+2}, 256", f"    s_mov_b32 s{st+3}, 0x20000", "    s_waitcnt lgkmcnt(0)"]
        l+= [f"    s_add_u32 s{st}, s{st}, 0xD00000", f"    s_addc_u32 s{st+1}, s{st+1}, 0"]
        l+= [f"    s_mov_b64 s[100:101], exec", f"    v_mov_b32 v{vt}, s98", f"    v_mov_b32 v{vt+1}, 0",
             f"    v_cmp_eq_u32 vcc, {tid}, v0", "    s_mov_b64 exec, vcc",
             f"    buffer_store_dword v{vt}, v{vt+1}, s[{st}:{st+3}], 0 offen offset:{idx*4}", f"    s_mov_b64 exec, s[100:101]", f"{lab}:"]
    return l
i=0
WA,WB=0,200
while i<len(src):
    l=src[i]
    if l.strip().startswith("s_lshr_b32 s57, s2, 3"):
        out+=probe({5:0,200:1,0:12,123:13,255:14,66:15},1,160,4)
    if l.strip().startswith("buffer_store_dword v35, v33"):
        out.append(l); out.append(src[i+1]); out+=probe({5:2,200:3},1,160,4,512); i+=2; continue
    if l.startswith("ALLIN1:"):
        out.append(l); out.append(src[i+1]); out+=probe({5:4,200:5},1,160,4,512); i+=2; continue
    if l.startswith("ALLIN2:"):
        out.append(l); out.append(src[i+1]); out+=probe({5:6,200:7},1,160,4,512); i+=2; continue
    if l.startswith("PLACED:"):
        out.append(l); out.append(src[i+1]); out+=["    s_waitcnt lgkmcnt(0)"]+probe({5:8,200:9},1,160,4,0); i+=2; continue
    if l.strip()==".p2align 6" and src[i+1].startswith("LOOP"):
        out+=["    s_waitcnt lgkmcnt(0)"]+probe({5:10,200:11},1,160,4)
    out.append(l); i+=1
t="\n".join(out).replace("next_free_sgpr 72","next_free_sgpr 88")
I,J,M=int(sys.argv[3]),int(sys.argv[4]),int(sys.argv[5])
z=f""".globl z_kernel
.p2align 8
.type z_kernel,@function
z_kernel:
    s_cmp_lg_u32 s2, 0
    s_cbranch_scc1 Z_END
    s_load_dwordx2 s[4:5], s[0:1], 88
    s_waitcnt lgkmcnt(0)
    s_add_u32 s4, s4, 0xD00000
    s_addc_u32 s5, s5, 0
    s_load_dword s6, s[4:5], {I*4}
    s_load_dword s7, s[4:5], {J*4}
    s_memrealtime s[8:9]
    s_waitcnt lgkmcnt(0)
    s_sub_u32 s6, s7, s6
    s_min_u32 s6, s6, 10000
    s_mul_i32 s6, s6, {M}
Z_L:
    s_memrealtime s[10:11]
    s_waitcnt lgkmcnt(0)
    s_sub_u32 s10, s10, s8
    s_cmp_lt_u32 s10, s6
    s_cbranch_scc1 Z_L
Z_END:
    s_endpgm
"""
kd=""".p2align 6
.amdhsa_kernel z_kernel
  .amdhsa_next_free_vgpr 8
  .amdhsa_next_free_sgpr 16
  .amdhsa_accum_offset 8
  .amdhsa_group_segment_fixed_size 0
  .amdhsa_kernarg_size 96
  .amdhsa_user_sgpr_count 2
  .amdhsa_user_sgpr_kernarg_segment_ptr 1
  .amdhsa_system_sgpr_workgroup_id_x 1
.end_amdhsa_kernel
"""
l2=[x for x in t.split("\n") if "@launch kernel=standalone" in x][0]
t=t.replace(l2,l2+"\n; @launch kernel=z_kernel grid=(1,1,1) block=(64,1,1) lds=0")
t=t.replace('.section .rodata,"a"',z+'.section .rodata,"a"')+kd
open(sys.argv[2],"w").write(t)
```

```python
import sys, os

N, E = 12500, 400000
NS, CH = 125, 3200
NG = 131
WS_TAB, WS_REC, WS_ARR, WS_OFF = 0, 0x620000, 0x7B0000, 0x7D0000
NLOG2E = 0xbfb8aa3b
env = lambda k, d: type(d)(os.environ.get(k, d))
STAMP = env("STAMP", 0); STAMPS = env("STAMPS", "all").split(","); ITS = env("ITS", 0)
PK = env("PK", 1); LEADX = env("LEADX", 4); PRIO = env("PRIO", "3210")
SHL64 = env("SHL64", 1); PF = env("PF", 2); PFW = env("PFW", 0); G1LATE = env("G1LATE", 0); NOEA = env("NOEA", 0)
SDPOL = env("SDPOL", "nt"); SIG = env("SIG", "byte"); SLP = env("SLP", 2); MSLP = env("MSLP", 1)
NCOL = env("NCOL", 8); CODEPF = env("CODEPF", 1); PDEL = env("PDEL", 0); NREP = env("NREP", 16); CDEPTH = env("CDEPTH", 1); HS2 = env("HS2", 0); TLB = env("TLB", 0); TLBSH = env("TLBSH", 18); EPF = env("EPF", 0); HPRIO = env("HPRIO", 3); HOOKK = env("HOOKK", 5); HPLAN = env("HPLAN", "011"); PPRIO = env("PPRIO", 0); HPRIO2 = env("HPRIO2", 3); ETS = env("ETS", 2); ETQ = env("ETQ", 1); PACE = env("PACE", 1); RDYP = env("RDYP", 2); OFFLATE = env("OFFLATE", 0); SPRIO = env("SPRIO", 0); WSB = env("WSB", 0); MSPOS = [int(x) for x in env("MSPOS", "2,8").split(",")]; SCHED = env("SCHED", "eDeDee1LaaGss2HrIrm3rNrmN"); LIST = env("LIST", 0); DBG = env("DBG", "")
SPIN = 0x100000
MF = "v_mfma_f32_32x32x16_bf16"

class A:
    def __init__(self): self.l = []
    def __call__(self, s):
        for line in s.strip("\n").split("\n"):
            line = line.strip()
            if line:
                self.l.append(line if line.endswith(":") else "    " + line)
    def text(self): return "\n".join(self.l) + "\n"
def vr(a, n): return f"v[{a}:{a+n-1}]"

NT = 60
L_CNT, L_RDY, L_PROG, L_AD, L_OD, L_LUT = 64, 96, 100, 104, 108, 256
LUT_H = 9
L_IDX = 6144
L_EOF = L_IDX + NT * 128
L_O = L_EOF + NT * 128
L_EA = L_O + NT * 1024
L_X = L_EA + 65536
L_TOTAL = L_X + 15360
S_CNT = 25600
S_TOT, S_BAD, S_TBL, S_SRT = S_CNT + 4096, S_CNT + 4128, S_CNT + 4352, S_CNT + 12544
L_X96 = L_TOTAL - 24576
L_WBV, L_WAU = 8192, 73728
assert L_WAU + 65536 == L_X96
vIDX, vEA, vOT, vSa, vS0, vS1, vT0 = 1, 2, 3, 4, 5, 6, 7
IX, SA, WC, AP, UP, DEN, NUM = 8, 24, 32, 36, 44, 52, 68
G = [84, 100]
RAW = [116, 132, 148]
LO, vT1 = 164, 166
RECQ = [116, 120, 124, 128]
LOFF, LCHV, LKEY, LRO, LLEN, LC, LADJ, LTOT, LCB, LONE, LQ4, LTMP = 132, 134, 135, 136, 137, 138, 140, 142, 144, 145, 146, 148
sW = 3
dX, dEA, dWS, dTAB, dOUT, dWC, dW0, dW1, dSRC, dDST = 8, 12, 16, 20, 24, 28, 32, 36, 40, 44
dDBG = 48
sCG, sBETA, sMODE, sROUND, sID, sU, sSTAGE = 52, 53, 54, 55, 56, 57, 58
sT, sTEND, sRDY, sF0, sL0, sL1, sG0, sG1 = 60, 61, 62, 63, 64, 65, 66, 67
sC = 68
sTMP = 76
sM0, sM1 = 88, 90
sPA, sPU = 92, 94
sOK = 96

NAMES = []
def stamp(a, nm):
    if STAMP and (STAMPS == ["all"] or nm in STAMPS):
        if nm not in NAMES: NAMES.append(nm)
        a("s_memtime s[4:5]"); a("s_waitcnt lgkmcnt(0)")
        a(f"v_writelane_b32 v167, s4, {NAMES.index(nm)}")
        rt = {"loop0": 59, "loopend": 60, "arrive": 55, "go": 56, "go2": 57, "bar2": 58}
        if nm in rt:
            a("s_memrealtime s[4:5]"); a("s_waitcnt lgkmcnt(0)")
            a(f"v_writelane_b32 v167, s4, {rt[nm]}")
def stamp_out(a, tiles):
    if STAMP:
        a("s_memrealtime s[4:5]"); a("s_waitcnt lgkmcnt(0)"); a("s_mov_b64 exec, -1")
        a("v_writelane_b32 v167, s4, 62"); a(f"v_writelane_b32 v167, {tiles}, 63")
        a("v_and_b32 v3, 63, v0"); a("v_lshlrev_b32 v3, 2, v3")
        a(f"s_mul_i32 s{sTMP}, s{sID}, 9"); a(f"s_add_u32 s{sTMP}, s{sTMP}, s{sW}")
        a(f"s_lshl_b32 s{sTMP}, s{sTMP}, 8"); a(f"s_add_u32 s{sTMP}, s{sTMP}, 0x900000")
        a(f"s_mov_b32 s{dWS+2}, 0x1000000")
        a(f"buffer_store_dword v167, v3, s[{dWS}:{dWS+3}], s{sTMP} offen")
def D(d): return f"s[{d}:{d+3}]"

def idx_reads(a, rel):
    for q in range(2 if "m16" in DBG else 4):
        a(f"ds_read_b128 {vr(IX+4*q,4)}, v{vIDX} offset:{rel*128+32*q}")
def gathers(a, dst):
    if "m16" in DBG:
        for k in range(0, 8, 2):
            a(f"v_lshl_add_u64 {vr(IX+k,2)}, {vr(IX+k,2)}, 4, {vr(LO,2)}")
        for k in range(16):
            a(f"buffer_load_dword v{dst+k}, v{IX+k//2}, {D(dTAB)}, 0 offen offset:{(k&1)*64} sc1")
        return
    for k in range(0, 16, 2):
        a(f"v_lshl_add_u64 {vr(IX+k,2)}, {vr(IX+k,2)}, 4, {vr(LO,2)}")
    for k in range(16):
        a(f"buffer_load_dword v{dst+k}, v{IX+k}, {D(dTAB)}, 0 offen sc1")
SMF = "v_smfmac_f32_32x32x32_bf16"
vSX = vSa
def smf(acc, src, t):
    return f"{SMF} {vr(acc,16)}, {vr(SA+4*t,4)}, {vr(src+8*t,8)}, v{vSX}"
def ms_list(gx):
    return [smf(DEN, gx, 0), smf(DEN, gx, 1)]
def poll(a, stubs, tag):
    a(f"s_cmp_le_u32 s{sRDY}, s{sT}"); a(f"s_cbranch_scc1 POLL_{tag}"); a(f"POLLED_{tag}:")
    stubs(f"POLL_{tag}:")
    stubs(f"ds_read_b32 v{vT1}, v{vT0} offset:{L_RDY}"); stubs("s_waitcnt lgkmcnt(0)")
    stubs(f"v_readfirstlane_b32 s{sRDY}, v{vT1}")
    stubs(f"s_cmp_gt_u32 s{sRDY}, s{sT}"); stubs(f"s_cbranch_scc1 POLLED_{tag}")
    stubs("s_sleep 1"); stubs(f"s_branch POLL_{tag}")
def publish(a):
    if not PACE: return
    a("s_mov_b64 exec, 1"); a(f"ds_inc_u32 v{vT0}, v{vEA} offset:{L_PROG}"); a("s_mov_b64 exec, -1")
def prio(a, pos):
    if PRIO[pos] != "-": a(f"s_setprio {PRIO[pos]}")
def totals(a, t):
    a(f"v_add_u32 v{t}, v{t}, v{t+1}")
    a(f"v_add_u32_sdwa v{t}, v{t}, v{t} dst_sel:DWORD dst_unused:UNUSED_PAD src0_sel:WORD_0 src1_sel:WORD_1")
    a(f"v_add_u32 v{t}, 31, v{t}"); a(f"v_lshrrev_b32 v{t}, 4, v{t}"); a(f"v_and_b32 v{t}, -2, v{t}")
    a("s_nop 0")
    for k in range(4): a(f"v_readlane_b32 s{sC+k}, v{t}, {k}")
    a(f"s_sub_i32 s{sC+4}, s{sC}, 1"); a(f"s_sub_i32 s{sC+5}, s{sC+2}, 1")
    a(f"s_max_i32 s{sC+4}, s{sC+4}, s{sC+1}"); a(f"s_max_i32 s{sC+5}, s{sC+5}, s{sC+3}")
    a(f"s_add_u32 s{sC+6}, s{sC+4}, s{sC+5}"); a(f"s_cmp_gt_u32 s{sC+6}, {NT}")

vL, vWS, vTR, XAD, SET, AB, AV = 1, 2, 36, 8, [48, 60, 72], 84, 100

def own_x(a):
    a(f"v_lshrrev_b32 v4, 4, v{vL}"); a(f"v_and_b32 v5, 15, v{vL}")
    a("v_xor_b32 v5, v5, v4"); a("v_lshlrev_b32 v5, 4, v5"); a("v_lshl_add_u32 v16, v4, 18, v5")
    for j in range(1, 4): a(f"v_xor_b32 v{16+j}, {64*j}, v16")
    a(f"s_lshl_b32 s{sTMP}, s2, 8"); a(f"s_lshl_b32 s{sTMP+1}, s{sCG}, 16"); a(f"s_add_u32 s{sTMP}, s{sTMP}, s{sTMP+1}")
    a(f"s_lshl_b32 s{sTMP+2}, s{sCG}, 12"); a(f"s_add_u32 s{sTMP+2}, s{sTMP+2}, {L_X}")
    for j in range(4):
        c16 = 8 * (j & 1) + 4 * (j >> 1)
        a(f"s_add_u32 m0, s{sTMP+2}, {j*1024}"); a(f"s_add_u32 s{sTMP+1}, s{sTMP}, {c16*4*65536:#x}")
        a(f"buffer_load_dwordx4 v{16+j}, {D(dX)}, s{sTMP+1} offen lds")
def w_group(a, sreg, lds):
    for d, base in ((dW0, lds), (dW1, lds + 32768)):
        a(f"s_add_u32 m0, s{sreg}, {base}"); a("s_nop 0")
        for i in range(4):
            a(f"buffer_load_dwordx4 v{vWS}, {D(d)}, s{sreg} offen offset:{i*1024} lds")

def gen(a, name):
    stubs = A()
    a(f"{name}:")
    a("s_cmp_ge_u32 s2, 256"); a("s_cbranch_scc1 F_END")
    a(f"s_load_dwordx2 s[{dDST}:{dDST+1}], s[0:1], 24")
    a(f"s_load_dwordx2 s[{dSRC}:{dSRC+1}], s[0:1], 16")
    a(f"s_load_dwordx2 s[{dX}:{dX+1}], s[0:1], 0")
    a(f"s_load_dwordx2 s[{dW0}:{dW0+1}], s[0:1], 40")
    a(f"s_load_dwordx2 s[{dW1}:{dW1+1}], s[0:1], 64")
    a(f"s_load_dwordx2 s[{sPA}:{sPA+1}], s[0:1], 32")
    a(f"s_load_dwordx2 s[{sPU}:{sPU+1}], s[0:1], 56")
    a(f"s_load_dwordx2 s[{dWC}:{dWC+1}], s[0:1], 48")
    a(f"s_load_dwordx2 s[{dWS}:{dWS+1}], s[0:1], 88")
    a(f"v_lshrrev_b32 v{vWS}, 6, v0")
    a(f"v_and_b32 v{vL}, 63, v0")
    a(f"v_readfirstlane_b32 s{sW}, v{vWS}")
    a(f"s_mov_b32 s{sID}, s2")
    a(f"s_lshr_b32 s{sU}, s2, 3"); a("s_and_b32 s2, s2, 7"); a("s_lshl_b32 s2, s2, 5"); a(f"s_or_b32 s2, s2, s{sU}")
    for d, nb in ((dDST, E*4), (dSRC, E*4), (dX, N*256), (dW0, 32768), (dW1, 32768), (dWC, 4096), (dWS, WS_OFF + NS*8192)):
        a(f"s_mov_b32 s{d+2}, {nb:#x}"); a(f"s_mov_b32 s{d+3}, 0x20000")
    a(f"s_and_b32 s{sCG}, s{sW}, 3")
    if WSB:
        a("s_waitcnt lgkmcnt(0)")
        a(f"s_add_u32 s{dWS}, s{dWS}, {WSB << 20:#x}"); a(f"s_addc_u32 s{dWS+1}, s{dWS+1}, 0")
    a(f"v_lshrrev_b32 v4, 4, v{vL}"); a("v_lshlrev_b32 v5, 2, v4"); a(f"v_and_b32 v6, 15, v{vL}")
    a("v_xor_b32 v5, v5, v6"); a("v_lshlrev_b32 v5, 4, v5"); a(f"v_lshl_add_u32 v{vWS}, v4, 8, v5")
    a(f"v_mov_b32 v{vT0}, 0")
    a("v_mov_b32 v32, 0")
    if STAMP:
        a("v_mov_b32 v167, 0"); a("s_memrealtime s[6:7]"); a("s_waitcnt lgkmcnt(0)"); a("v_writelane_b32 v167, s6, 61")
    stamp(a, "start")
    a(f"s_lshl_b32 s{sTMP}, s{sID}, 4"); a(f"s_add_u32 s{sTMP}, s{sTMP}, s3")
    a(f"s_cmp_lg_u32 s{sTMP}, 8"); a("s_cbranch_scc1 NOCLR")
    a(f"v_lshrrev_b32 v12, 2, v{vL}"); a(f"v_and_b32 v13, 3, v{vL}"); a("v_lshlrev_b32 v13, 4, v13")
    a("v_lshl_add_u32 v12, v12, 7, v13"); a(f"v_add_u32 v12, {WS_ARR:#x}, v12")
    a("v_mov_b64 v[8:9], 0"); a("v_mov_b64 v[10:11], 0")
    a(f"s_mov_b32 s{sTMP}, {NREP//2}")
    a("s_waitcnt lgkmcnt(0)")
    a("CLR:")
    a(f"buffer_store_dwordx4 v[8:11], v12, {D(dWS)}, 0 offen sc1")
    a(f"buffer_store_dwordx4 v[8:11], v12, {D(dWS)}, 0 offen offset:2048 sc1")
    a("v_add_u32 v12, 4096, v12")
    a(f"s_sub_u32 s{sTMP}, s{sTMP}, 1"); a(f"s_cmp_lg_u32 s{sTMP}, 0"); a("s_cbranch_scc1 CLR")
    a("NOCLR:")
    if CODEPF:
        a("s_cmp_lg_u32 s3, 0"); a("s_cbranch_scc1 NOCPF")
        a(f"s_getpc_b64 s[{sTMP}:{sTMP+1}]")
        a("PCREF:")
        a(f"s_lshl_b32 s{sTMP+2}, s{sU}, 7")
        a(f"v_lshl_add_u32 v160, v{vL}, 12, s{sTMP+2}")
        a("v_min_u32 v160, CODE_END-PCREF-4, v160")
        a("v_mov_b32 v161, 0")
        a(f"v_lshl_add_u64 v[160:161], v[160:161], 0, s[{sTMP}:{sTMP+1}]")
        a("s_mov_b64 exec, 31")
        a("global_load_dword v162, v[160:161], off")
        a("s_mov_b64 exec, -1")
        a("NOCPF:")
    def late_args():
        a(f"s_mov_b64 s[{dTAB}:{dTAB+1}], s[{dWS}:{dWS+1}]")
        a(f"s_load_dwordx2 s[{dEA}:{dEA+1}], s[0:1], 8")
        a(f"s_load_dwordx2 s[{dOUT}:{dOUT+1}], s[0:1], 72")
        a(f"s_load_dwordx2 s[{dDBG}:{dDBG+1}], s[0:1], 80")
        for d, nb in ((dTAB, N*512), (dEA, E*32), (dOUT, N*256), (dDBG, 256)):
            a(f"s_mov_b32 s{d+2}, {nb:#x}"); a(f"s_mov_b32 s{d+3}, 0x20000")
        a(f"s_mov_b32 s{sMODE}, 0"); a(f"s_mov_b32 s{sROUND}, 0")
        a(f"s_bfe_u32 s{sBETA}, s{sW}, 0x10002")
    def see_clear(tag):
        a(f"s_mov_b32 s{sOK}, 0")
        a("s_cmp_lg_u32 s3, 8"); a(f"s_cbranch_scc1 SC_D{tag}")
        a(f"s_load_dword s{sOK}, s[{dDBG}:{dDBG+1}], 0")
        a(f"SC_D{tag}:")
    def need_clear(tag):
        a("s_waitcnt lgkmcnt(0)")
        a(f"v_mov_b32 v24, s{sOK}")
        a(f"s_mov_b32 s{sTMP+5}, 0")
        a(f"NC_L{tag}:")
        a("v_cmp_eq_u32 vcc, 0, v24"); a(f"s_cbranch_vccz NC_E{tag}")
        a(f"s_add_u32 s{sTMP+5}, s{sTMP+5}, 1"); a(f"s_cmp_gt_u32 s{sTMP+5}, {SPIN:#x}"); a(f"s_cbranch_scc1 NC_E{tag}")
        a(f"buffer_load_dword v24, v{vT0}, {D(dDBG)}, 0 offen sc1")
        a("s_waitcnt vmcnt(0)"); a(f"s_branch NC_L{tag}")
        a(f"NC_E{tag}:")
    def page_touch(tag):
        if not TLB: return
        a(f"s_cmp_lg_u32 s3, {tag[1]}"); a(f"s_cbranch_scc1 PT_{tag[0]}")
        a(f"v_lshlrev_b32 v163, 12, v{vL}")
        if tag[0] == "G":
            a(f"s_mul_i32 s{sTMP+11}, s{sTMP+9}, {96*512}")
            a("s_mov_b64 exec, 0xfff")
            a(f"buffer_load_dword v162, v163, {D(dWS)}, s{sTMP+11} offen sc1")
        else:
            a(f"s_mul_i32 s{sTMP+11}, s{sID}, {CH*4}"); a(f"s_add_u32 s{sTMP+11}, s{sTMP+11}, {WS_REC:#x}")
            a("s_mov_b64 exec, 0xf")
            a(f"buffer_load_dword v162, v163, {D(dWS)}, s{sTMP+11} offen sc1")
            a(f"s_lshl_b32 s{sTMP+11}, s{sID}, 13"); a(f"s_add_u32 s{sTMP+11}, s{sTMP+11}, {WS_OFF:#x}")
            a("s_mov_b64 exec, 0x3")
            a(f"buffer_load_dword v162, v163, {D(dWS)}, s{sTMP+11} offen sc1")
        a("s_mov_b64 exec, -1")
        if TLB > 1:
            a(f"v_lshlrev_b32 v163, 18, v{vL}")
            a("s_waitcnt lgkmcnt(0)")
            a(f"buffer_load_dword v162, v163, {D(dEA)}, 0 offen")
        a(f"PT_{tag[0]}:")
    def wait_flags(stage):
        a(f"s_mov_b32 s{sTMP+5}, 0")
        if stage == 1:
            a("s_mov_b32 exec_hi, 0")
        for k in range(CDEPTH - 1):
            a(f"buffer_load_dwordx4 {vr(40+4*k,4)}, v32, {D(dWS)}, 0 offen sc1"); a(f"s_sleep {SLP}")
        a(f"WAITF{stage}:")
        for k in range(CDEPTH):
            b = 40 + 4 * k
            a(f"buffer_load_dwordx4 {vr(40+4*((k+CDEPTH-1)%CDEPTH),4)}, v32, {D(dWS)}, 0 offen sc1")
            a(f"s_waitcnt vmcnt({CDEPTH-1})")
            if stage == 1: a(f"v_or_b32 v{b+3}, v{b+3}, v36")
            a(f"v_and_b32 v{b}, v{b}, v{b+1}"); a(f"v_and_b32 v{b+2}, v{b+2}, v{b+3}"); a(f"v_and_b32 v{b}, v{b}, v{b+2}")
            a(f"v_cmpx_ne_u32 vcc, 1, v{b}"); a(f"s_cbranch_execz ALLIN{stage}")
            if SLP: a(f"s_sleep {SLP}")
        a(f"s_add_u32 s{sTMP+5}, s{sTMP+5}, 1"); a(f"s_cmp_lt_u32 s{sTMP+5}, {SPIN:#x}"); a(f"s_cbranch_scc1 WAITF{stage}")
        a(f"ALLIN{stage}:")
        a("s_mov_b64 exec, -1")
    def wait_alloc(tag, tmp):
        a(f"WA_{tag}:")
        a(f"ds_read_b32 v{tmp}, v{vT0} offset:{L_AD}"); a("s_waitcnt lgkmcnt(0)")
        a(f"v_readfirstlane_b32 s{sTMP+4}, v{tmp}"); a(f"s_cmp_lt_u32 s{sTMP+4}, 8"); a(f"s_cbranch_scc1 WA_{tag}")
    WCR = 152
    def wc_loads():
        a(f"v_and_b32 v{LO}, 31, v0"); a(f"v_bfe_u32 v{LO+1}, v0, 5, 1")
        a(f"s_lshl_b32 s{sTMP+10}, s{sCG}, 6")
        a(f"v_lshl_add_u32 v{vT1}, v{LO}, 1, s{sTMP+10}"); a(f"v_lshl_add_u32 v{vT1}, v{LO+1}, 11, v{vT1}")
        for j in range(8): a(f"buffer_load_ushort v{WCR+j}, v{vT1}, {D(dWC)}, 0 offen offset:{j*256}")
    def gemm_addr(xbase_sreg, wbase):
        a(f"v_lshrrev_b32 v5, 5, v{vL}"); a(f"v_bfe_u32 v4, v{vL}, 2, 2")
        a(f"v_lshl_add_u32 v{vTR}, v5, 3, v4"); a(f"v_lshlrev_b32 v{vTR}, 8, v{vTR}")
        a(f"v_xor_b32 v4, s{sCG}, v4"); a(f"v_lshl_add_u32 v{vTR}, v4, 6, v{vTR}")
        a(f"v_bfe_u32 v4, v{vL}, 4, 1"); a(f"v_lshl_add_u32 v{vTR}, v4, 5, v{vTR}")
        a(f"v_and_b32 v4, 3, v{vL}"); a(f"v_lshl_add_u32 v{vTR}, v4, 3, v{vTR}")
        a(f"v_add_u32 v{vTR}, {wbase}, v{vTR}")
        a(f"v_and_b32 v4, 15, v{vL}"); a("v_xor_b32 v4, v4, v5"); a("v_lshlrev_b32 v4, 4, v4")
        a(f"v_and_b32 v6, 31, v{vL}"); a("v_lshl_add_u32 v4, v6, 8, v4")
        a(f"v_add_u32 v{XAD}, s{xbase_sreg}, v4")
        for kk in range(1, 8): a(f"v_xor_b32 v{XAD+kk}, {kk*32}, v{XAD}")
    a(f"s_cmp_lt_u32 s{sID}, {NS}"); a("s_cbranch_scc1 SORT")
    a(f"s_sub_u32 s{sTMP+9}, s{sID}, {NS}")
    a("s_cmp_lt_u32 s3, 4"); a("s_cbranch_scc1 G_XLD")
    a(f"s_sub_u32 s{sTMP+3}, s3, 4"); a(f"s_lshl_b32 s{sTMP+3}, s{sTMP+3}, 12")
    a("s_waitcnt lgkmcnt(0)")
    w_group(a, sTMP + 3, L_WBV)
    late_args()
    a("s_branch G_LDD")
    a("G_XLD:")
    a(f"s_lshl_b32 s{sTMP+1}, s{sCG}, 2")
    a("v_xor_b32 v5, v6, v4"); a(f"v_xor_b32 v5, s{sTMP+1}, v5"); a("v_lshlrev_b32 v5, 4, v5"); a("v_lshl_add_u32 v20, v4, 8, v5")
    a(f"s_mul_i32 s{sTMP}, s{sTMP+9}, {96*256}"); a(f"s_lshl_b32 s{sTMP+1}, s{sCG}, 10")
    a(f"s_add_u32 s{sTMP}, s{sTMP}, s{sTMP+1}"); a(f"s_add_u32 s{sTMP+1}, s{sTMP+1}, {L_X96}")
    a("s_waitcnt lgkmcnt(0)")
    for i in range(6):
        a(f"s_add_u32 m0, s{sTMP+1}, {i*4096}"); a(f"s_add_u32 s{sTMP+2}, s{sTMP}, {i*4096}")
        a(f"buffer_load_dwordx4 v20, {D(dX)}, s{sTMP+2} offen lds")
    late_args()
    a("G_LDD:")
    page_touch(("G", 3))
    a("s_cmp_ge_u32 s3, 8"); a("s_cbranch_scc1 G_NWC")
    wc_loads()
    a("G_NWC:")
    a(f"s_lshr_b32 s{sTMP+4}, s3, 2")
    a(f"s_lshl_b32 s{sTMP+5}, s{sTMP+4}, 13"); a(f"s_add_u32 s{sTMP+5}, s{sTMP+5}, {L_X96}")
    gemm_addr(sTMP + 5, L_WBV)
    a(f"s_mul_i32 s{sTMP+5}, s{sTMP+9}, {96*512}"); a(f"s_lshl_b32 s{sTMP+6}, s{sTMP+4}, 14"); a(f"s_add_u32 s{sTMP+5}, s{sTMP+5}, s{sTMP+6}")
    a(f"s_lshl_b32 s{sTMP+6}, s{sCG}, 7"); a(f"s_add_u32 s{sTMP+5}, s{sTMP+5}, s{sTMP+6}")
    a("v_lshlrev_b32 v20, 2, v6"); a("v_lshl_add_u32 v20, v5, 11, v20"); a(f"v_add_u32 v20, s{sTMP+5}, v20")
    for q in range(1, 4): a(f"v_add_u32 v{20+q}, {4096*q}, v20")
    a(f"s_mov_b32 s{sSTAGE}, 0")
    a("s_waitcnt vmcnt(0) lgkmcnt(0)")
    stamp(a, "p1land")
    a(f"s_mov_b64 s[{dW0}:{dW0+1}], s[{sPA}:{sPA+1}]"); a(f"s_mov_b64 s[{dW1}:{dW1+1}], s[{sPU}:{sPU+1}]")
    a("s_barrier")
    a("s_cmp_lt_u32 s3, 8"); a("s_cbranch_scc1 CORE")
    a(f"s_lshl_b32 s{sTMP+3}, s{sCG}, 13")
    w_group(a, sTMP + 3, L_WAU)
    a(f"s_add_u32 s{sTMP+3}, s{sTMP+3}, 4096")
    w_group(a, sTMP + 3, L_WAU)
    a("CORE:")
    def reads(kk):
        b = SET[kk % 3]
        a(f"ds_read_b128 {vr(b,4)}, v{XAD+kk}")
        for u in range(2): a(f"ds_read_b64_tr_b16 {vr(b+4+2*u,2)}, v{vTR} offset:{kk*4096+u*1024}")
        for u in range(2): a(f"ds_read_b64_tr_b16 {vr(b+8+2*u,2)}, v{vTR} offset:{32768+kk*4096+u*1024}")
    for kk in range(3): reads(kk)
    for kk in range(8):
        b = SET[kk % 3]
        a(f"s_waitcnt lgkmcnt({5*min(7-kk,2)})")
        a(f"{MF} {vr(AV,16)}, {vr(b,4)}, {vr(b+8,4)}, {'0' if kk == 0 else vr(AV,16)}")
        a(f"{MF} {vr(AB,16)}, {vr(b,4)}, {vr(b+4,4)}, {'0' if kk == 0 else vr(AB,16)}")
        if kk + 3 < 8: reads(kk + 3)
        if kk == HOOKK:
            a(f"s_cmp_lg_u32 s{sSTAGE}, 0"); a("s_cbranch_scc1 HOOK"); a("HOOKED:")
    a(f"s_mov_b32 s{sTMP+6}, {NLOG2E:#x}")
    a(f"s_mov_b32 s{sTMP+7}, {NLOG2E:#x}")
    a(f"s_cmp_lg_u32 s{sSTAGE}, 0"); a("s_cbranch_scc1 AU_DONE")
    a(f"s_mov_b32 s{sTMP+5}, 0x7f7e0000")
    a("v_mov_b32 v4, 0x21800000")
    a("s_nop 2")
    stamp(a, "g_core")
    a("s_nop 2")
    VP, VN = 116, 124
    for i in range(8):
        a(f"v_cvt_pk_bf16_f32 v{VP+i}, v{AV+2*i}, v{AV+2*i+1}")
        a(f"v_xor_b32 v{VN+i}, 0x80008000, v{VP+i}")
    for q in range(4):
        R = range(4*q, 4*q+4)
        for r in R: a(f"v_fma_f32 v{AB+r}, v{AB+r}, s{sTMP+6}, v4")
        for r in R: a(f"v_med3_f32 v{AB+r}, v{AB+r}, -s{sTMP+5}, s{sTMP+5}")
        for r in R: a(f"v_sub_u32_sdwa v{AB+r}, v{AB+r}, sext(v{VN+r//2}) dst_sel:DWORD dst_unused:UNUSED_PAD src0_sel:DWORD src1_sel:WORD_{r&1}")
        for r in R: a(f"v_mov_b32_sdwa v{AB+r}, v{VP+r//2} dst_sel:WORD_0 dst_unused:UNUSED_PRESERVE src0_sel:WORD_{r&1}")
        a("s_nop 0")
        for r in R: a(f"buffer_store_dword v{AB+r}, v{20+q}, {D(dTAB)}, 0 offen offset:{(r&3)*512} sc1")
    stamp(a, "p1st")
    a("s_barrier")
    a("s_cmp_lt_u32 s3, 8"); a("s_cbranch_scc1 G_DRAIN")
    own_x(a)
    a("G_DRAIN:")
    a("s_branch ARRIVE")
    a("SORT:")
    if SPRIO: a("s_setprio 2")
    a("s_cmp_ge_u32 s3, 8"); a("s_cbranch_scc1 S_HELP")
    Dd, S, RK, RC, KA, SH = 16, 24, 32, 40, 48, 56
    a("v_lshlrev_b32 v11, 3, v0"); a("v_mov_b64 v[12:13], 0")
    a(f"ds_write_b64 v11, v[12:13] offset:{S_CNT}"); a(f"ds_write_b32 v{vT0}, v12 offset:{S_BAD}")
    a("v_lshlrev_b32 v6, 4, v0")
    a(f"s_mul_i32 s{sTMP}, s{sID}, {CH*4}"); a(f"s_add_u32 s{sTMP+1}, s{sTMP}, 8192")
    a("s_waitcnt lgkmcnt(0)")
    a(f"buffer_load_dwordx4 {vr(Dd,4)}, v6, {D(dDST)}, s{sTMP} offen {SDPOL}")
    a(f"buffer_load_dwordx4 {vr(S,4)}, v6, {D(dSRC)}, s{sTMP} offen {SDPOL}")
    a("s_cmp_ge_u32 s3, 5"); a("s_cbranch_scc1 S_0")
    a(f"buffer_load_dwordx4 {vr(Dd+4,4)}, v6, {D(dDST)}, s{sTMP+1} offen {SDPOL}")
    a(f"buffer_load_dwordx4 {vr(S+4,4)}, v6, {D(dSRC)}, s{sTMP+1} offen {SDPOL}")
    a("S_0:")
    a("s_barrier")
    wc_loads()
    late_args()
    a("v_lshlrev_b32 v5, 7, v0"); a("v_mov_b32 v8, 0")
    a(f"v_cmp_gt_u32 vcc, {(CH-2048)//4}, v0"); a(f"s_mov_b64 s[{sTMP+2}:{sTMP+3}], vcc")
    def keys(lo):
        for i in range(lo, lo + 4):
            a(f"v_lshlrev_b32_sdwa v9, 4, v{Dd+i} dst_sel:DWORD dst_unused:UNUSED_PAD src0_sel:DWORD src1_sel:BYTE_0")
            a(f"v_bfe_u32 v10, v{Dd+i}, 8, 2")
            a(f"v_lshrrev_b32 v{SH+i}, 7, v{S+i}")
            a(f"v_lshl_or_b32 v{KA+i}, v10, 2, v9")
            a(f"v_and_b32 v{SH+i}, 24, v{SH+i}")
            a(f"v_lshlrev_b32_e64 v9, v{SH+i}, 1")
            a(f"ds_add_rtn_u32 v{RK+i}, v{KA+i}, v9 offset:{S_CNT}")
        for i in range(lo, lo + 4):
            a(f"v_lshrrev_b32 v9, 10, v{Dd+i}")
            a(f"v_add_u32 v10, {(((i&3) + (2048 if i >= 4 else 0)) << 5) + 1:#x}, v5")
            a(f"v_lshl_or_b32 v10, v{S+i}, 18, v10")
            a(f"v_add_u32 v{RC+i}, v9, v10")
            a(f"v_lshlrev_b32 v{KA+i}, 1, v{KA+i}")
        for i in range(lo, lo + 4):
            a(f"s_waitcnt lgkmcnt({3-(i-lo)})"); a(f"v_bfe_u32 v{RK+i}, v{RK+i}, v{SH+i}, 8")
        a(f"v_max3_u32 v8, v8, v{RK+lo}, v{RK+lo+1}"); a(f"v_max3_u32 v8, v8, v{RK+lo+2}, v{RK+lo+3}")
    a("s_waitcnt vmcnt(8) lgkmcnt(0)")
    stamp(a, "p1land")
    keys(0)
    a(f"s_mov_b64 exec, s[{sTMP+2}:{sTMP+3}]"); a("s_cbranch_execz S_1")
    keys(4)
    a("S_1:")
    a("s_mov_b64 exec, -1")
    a("v_cmp_lt_u32 vcc, 62, v8"); a("s_cbranch_vccz S_1B")
    a("v_mov_b32 v9, -1"); a(f"ds_write_b32 v{vT0}, v9 offset:{S_BAD}"); a("s_waitcnt lgkmcnt(0)")
    a("S_1B:")
    a(f"v_lshlrev_b32 v9, 4, v{vL}"); a("v_mov_b64 v[92:93], 0")
    stamp(a, "s_keys")
    a("s_barrier")
    stamp(a, "s_b2")
    a(f"ds_read_b64 v[12:13], v11 offset:{S_CNT}")
    for q in range(4): a(f"ds_read_b128 {vr(76+4*q,4)}, v9 offset:{S_CNT+1024*q}")
    a(f"ds_read_b32 v15, v{vT0} offset:{S_BAD}")
    a("s_waitcnt lgkmcnt(5)")
    a("v_sad_u8 v10, v12, 0, 0"); a("v_sad_u8 v8, v13, 0, v10"); a("v_mov_b32 v14, v8")
    for q in range(4):
        a(f"s_cmp_gt_u32 s3, {2*q}"); a("s_cselect_b32 exec_lo, -1, 0")
        a(f"s_cmp_gt_u32 s3, {2*q+1}"); a("s_cselect_b32 exec_hi, -1, 0")
        a(f"s_waitcnt lgkmcnt({4-q})")
        for i in range(4):
            a(f"v_sad_u8 v{92+(i&1)}, v{76+4*q+i}, 0, v{92+(i&1)}")
    a("s_mov_b64 exec, -1")
    a("v_add_u32 v92, v92, v93")
    a("s_nop 1")
    for ctl in ("row_shr:1 row_mask:0xf", "row_shr:2 row_mask:0xf", "row_shr:4 row_mask:0xf", "row_shr:8 row_mask:0xf",
                "row_bcast:15 row_mask:0xa", "row_bcast:31 row_mask:0xc"):
        a(f"v_add_u32_dpp v92, v92, v92 {ctl} bank_mask:0xf"); a(f"v_add_u32_dpp v14, v14, v14 {ctl} bank_mask:0xf"); a("s_nop 0")
    a(f"v_readlane_b32 s{sTMP+5}, v92, 63")
    a("v_sub_u32 v14, v14, v8")
    a("s_waitcnt lgkmcnt(0)")
    a("v_or_b32 v73, v12, v15"); a("v_or_b32 v75, v13, v15")
    a(f"v_add_u32 v14, s{sTMP+5}, v14")
    a("v_mov_b32 v72, v14"); a("v_add_u32 v74, v14, v10")
    a("v_mov_b32 v64, v14"); a("v_mov_b32 v65, v12"); a("v_mov_b32 v66, v74"); a("v_mov_b32 v67, v13")
    a(f"ds_write_b128 v6, v[64:67] offset:{S_TBL}")
    a("s_waitcnt lgkmcnt(0)"); a("s_barrier")
    stamp(a, "s_b4")
    LK = 76
    def lookups(lo):
        for i in range(lo, lo + 4): a(f"ds_read_b64 {vr(LK+2*i,2)}, v{KA+i} offset:{S_TBL}")
    def place(lo, wait):
        for i in range(lo, lo + 4):
            a(f"s_waitcnt lgkmcnt({wait})")
            a(f"v_bfe_u32 v9, v{LK+2*i+1}, 0, v{SH+i}"); a(f"v_sad_u8 v9, v9, 0, v{LK+2*i}")
            a(f"v_add_lshl_u32 v9, v9, v{RK+i}, 2"); a(f"ds_write_b32 v9, v{RC+i} offset:{S_SRT}")
    lookups(0)
    a("s_cmp_ge_u32 s3, 5"); a("s_cbranch_scc1 S_2")
    a(f"s_mov_b64 exec, s[{sTMP+2}:{sTMP+3}]")
    lookups(4)
    a("s_mov_b64 exec, -1")
    place(0, 7)
    a(f"s_mov_b64 exec, s[{sTMP+2}:{sTMP+3}]")
    place(4, 7)
    a("s_branch S_3")
    a("S_2:")
    place(0, 3)
    a("S_3:")
    a("s_mov_b64 exec, -1")
    a(f"s_add_u32 s{sTMP}, s{sTMP}, {WS_REC:#x}"); a(f"s_add_u32 s{sTMP+1}, s{sTMP+1}, {WS_REC:#x}")
    a(f"s_lshl_b32 s{sTMP+4}, s{sID}, 13"); a(f"s_add_u32 s{sTMP+4}, s{sTMP+4}, {WS_OFF:#x}")
    if not OFFLATE:
        a("s_waitcnt vmcnt(0)")
        a(f"buffer_store_dwordx4 v[72:75], v6, {D(dWS)}, s{sTMP+4} offen sc1")
    a("s_waitcnt lgkmcnt(0)"); a("s_barrier")
    stamp(a, "s_b5")
    a(f"ds_read_b128 v[64:67], v6 offset:{S_SRT}"); a(f"ds_read_b128 v[68:71], v6 offset:{S_SRT+8192}")
    if OFFLATE:
        a("s_waitcnt vmcnt(0)")
        a(f"buffer_store_dwordx4 v[72:75], v6, {D(dWS)}, s{sTMP+4} offen sc1")
    a("s_waitcnt lgkmcnt(1)")
    a(f"buffer_store_dwordx4 v[64:67], v6, {D(dWS)}, s{sTMP} offen sc1")
    a("s_waitcnt lgkmcnt(0)")
    a(f"s_mov_b64 exec, s[{sTMP+2}:{sTMP+3}]"); a("s_cbranch_execz S_4")
    a(f"buffer_store_dwordx4 v[68:71], v6, {D(dWS)}, s{sTMP+1} offen sc1")
    a("S_4:")
    a("s_mov_b64 exec, -1")
    stamp(a, "p1st")
    a("s_branch ARRIVE")
    a("S_HELP:")
    if SPRIO: a("s_setprio 0")
    a("s_waitcnt lgkmcnt(0)")
    a(f"s_mov_b64 s[{dW0}:{dW0+1}], s[{sPA}:{sPA+1}]"); a(f"s_mov_b64 s[{dW1}:{dW1+1}], s[{sPU}:{sPU+1}]")
    late_args()
    a("s_barrier")
    a(f"s_lshl_b32 s{sTMP}, s{sID}, 4"); a(f"s_add_u32 s{sTMP}, s{sTMP}, s3")
    a(f"s_cmp_lg_u32 s{sTMP}, 8"); a("s_cbranch_scc1 S_H2")
    a("v_mov_b32 v5, 1")
    a("s_mov_b64 exec, 1")
    a("s_waitcnt vmcnt(0) lgkmcnt(0)")
    a(f"buffer_store_dword v5, v{vT0}, {D(dDBG)}, 0 offen sc1")
    a("s_mov_b64 exec, -1")
    a("S_H2:")
    a("s_waitcnt lgkmcnt(0)")
    page_touch(("S", 10))
    parts = [lambda: (a(f"s_lshl_b32 s{sTMP+3}, s{sCG}, 13"), w_group(a, sTMP + 3, L_WAU)),
             lambda: (a(f"s_add_u32 s{sTMP+3}, s{sTMP+3}, 4096"), w_group(a, sTMP + 3, L_WAU)),
             lambda: own_x(a)]
    for slot in range(3):
        for p, where in zip(parts, HPLAN):
            if int(where) == slot: p()
        if slot == 0: stamp(a, "s_keys")
        a("s_barrier")
    a("ARRIVE:")
    a("s_cmp_lt_u32 s3, 8"); a("s_cbranch_scc1 NODE")
    a("s_cmp_eq_u32 s3, 8"); a("s_cbranch_scc1 SIGNAL")
    a("s_waitcnt vmcnt(0)")
    a("s_barrier")
    a(f"s_cmp_ge_u32 s{sID}, {NS}"); a("s_cbranch_scc1 HELP")
    a("s_barrier")
    a("s_branch HELP")
    a("SIGNAL:")
    a(f"s_load_dword s{sOK}, s[{dDBG}:{dDBG+1}], 0")
    a(f"s_and_b32 s{sTMP}, s{sID}, 7"); a(f"s_lshl_b32 s{sTMP}, s{sTMP}, 7")
    a(f"s_bfe_u32 s{sTMP+1}, s{sID}, 0x40003"); a(f"s_lshl_b32 s{sTMP+1}, s{sTMP+1}, 2")
    a(f"s_add_u32 s{sTMP}, s{sTMP}, s{sTMP+1}")
    a(f"s_lshr_b32 s{sTMP+1}, s{sID}, 7"); a(f"s_lshl_b32 s{sTMP+1}, s{sTMP+1}, 10")
    a(f"s_add_u32 s{sTMP}, s{sTMP}, s{sTMP+1}"); a(f"s_add_u32 s{sTMP}, s{sTMP}, {WS_ARR:#x}")
    a(f"v_lshl_add_u32 v33, v{vL}, 11, s{sTMP}")
    a(f"s_and_b32 s{sTMP}, s{sID}, {NREP-1}"); a(f"s_lshl_b32 s{sTMP}, s{sTMP}, 11"); a(f"s_add_u32 s{sTMP}, s{sTMP}, {WS_ARR:#x}")
    a(f"v_lshrrev_b32 v32, 2, v{vL}"); a(f"v_and_b32 v34, 3, v{vL}"); a("v_lshlrev_b32 v34, 4, v34")
    a("v_lshl_add_u32 v32, v32, 7, v34"); a(f"v_add_u32 v32, s{sTMP}, v32")
    a("v_mov_b32 v35, 1")
    a("s_mov_b32 vcc_lo, 0x88800000"); a("s_mov_b32 vcc_hi, 0")
    a("v_cndmask_b32_e64 v36, 0, 1, vcc")
    a("s_mov_b64 exec, 1")
    need_clear("A")
    a(f"s_mov_b32 exec_lo, {(1 << min(NREP,32)) - 1:#x}"); a(f"s_mov_b32 exec_hi, {(1 << max(NREP-32,0)) - 1:#x}")
    a(f"s_mov_b32 s{sTMP+5}, 0")
    a("s_waitcnt vmcnt(0)")
    a("s_barrier")
    a(f"buffer_store_dword v35, v33, {D(dWS)}, 0 offen sc1")
    a("s_mov_b64 exec, -1")
    stamp(a, "arrive")
    a(f"s_cmp_ge_u32 s{sID}, {NS}"); a("s_cbranch_scc1 SIG2")
    a("s_barrier")
    a("SIG2:")
    wait_flags(1)
    a("s_branch HELP")
    a("NODE:")
    a(f"s_lshl_b32 s{sTMP+5}, s{sBETA}, 13"); a(f"s_add_u32 s{sTMP+5}, s{sTMP+5}, {L_X}")
    gemm_addr(sTMP + 5, L_WAU)
    a(f"s_lshl_b32 s{sTMP+2}, s{sCG}, 7")
    a(f"v_lshl_add_u32 v{LO}, v{LO}, 2, s{sTMP+2}"); a(f"v_mov_b32 v{LO+1}, v{LO}")
    a(f"s_mov_b32 s{sM0}, 0x0000ffff"); a(f"s_mov_b32 s{sM0+1}, 0x0000ffff")
    a(f"s_mov_b32 s{sM1}, 0xffff0000"); a(f"s_mov_b32 s{sM1+1}, 0xffff0000")
    a(f"s_cmp_lt_u32 s{sID}, {NS}")
    a(f"s_cselect_b32 s{sSTAGE}, 2, 1")
    a(f"s_mov_b32 s{sTMP+6}, {NLOG2E:#x}")
    for j in range(8): a(f"v_lshlrev_b32 v{WCR+j}, 16, v{WCR+j}")
    for j in range(8): a(f"v_mul_f32 v{WCR+j}, s{sTMP+6}, v{WCR+j}")
    for j in range(4): a(f"v_cvt_pk_bf16_f32 v{WC+j}, v{WCR+2*j}, v{WCR+2*j+1}")
    a("ROUND:")
    for j in range(0, 8, 2): a(f"v_mov_b64 {vr(SA+j,2)}, 0")
    a(f"v_lshlrev_b32 v{LTMP+2}, 4, v0")
    for k in range(3):
        a(f"ds_write_b128 v{LTMP+2}, {vr(SA,4)} offset:{k*8192}")
    a(f"v_bfe_u32 v{vT1}, v0, 5, 1")
    a(f"v_lshlrev_b32 v{vIDX}, 4, v{vT1}")
    a(f"v_and_b32 v{vOT}, 31, v0"); a(f"v_lshl_add_u32 v{vOT}, v{vOT}, 5, v{vIDX}")
    if "m16" in DBG:
        a(f"v_bfe_u32 v{vS0}, v0, 4, 1"); a(f"v_lshl_add_u32 v{vIDX}, v{vS0}, 6, v{vIDX}")
        a(f"v_and_b32 v{LO}, 0xffffffbf, v{LO}"); a(f"v_mov_b32 v{LO+1}, v{LO}")
    a(f"v_bfe_u32 v{vSa}, v0, 2, 2"); a(f"v_lshl_add_u32 v{vSa}, v{vT1}, 3, v{vSa}"); a(f"v_lshlrev_b32 v{vSa}, 5, v{vSa}")
    a(f"v_and_b32 v{vS0}, 1, v0"); a(f"v_lshl_add_u32 v{vSa}, v{vS0}, 4, v{vSa}")
    a(f"v_bfe_u32 v{vS0}, v0, 1, 1"); a(f"v_lshl_add_u32 v{vSa}, v{vS0}, 3, v{vSa}")
    a(f"v_and_b32 v{LQ4}, 3, v0"); a(f"v_lshlrev_b32 v{LQ4}, 3, v{LQ4}")
    a(f"v_mov_b32 v{LONE}, 48")
    a(f"s_mov_b32 s{sT}, 0"); a(f"s_mov_b32 s{sRDY}, 0")
    a(f"s_mov_b32 s{sTMP+8}, 0x0c010c00"); a(f"s_mov_b32 s{sTMP+9}, 0x0c030c02"); a(f"s_mov_b32 s{sTMP+3}, 0x10001")
    a(f"s_cmp_lg_u32 s{sMODE}, 0"); a("s_cbranch_scc1 SLOWSRC")
    a(f"v_lshrrev_b32 v{LCHV}, 2, v0"); a(f"v_mov_b32 v{LKEY}, v{LQ4}")
    a(f"s_lshl_b32 s{sTMP}, s2, 5"); a(f"s_add_u32 s{sTMP}, s{sTMP}, {WS_OFF:#x}")
    a(f"v_lshl_add_u32 v{LTMP}, v{LCHV}, 13, v{LKEY}"); a(f"v_add_u32 v{LTMP}, s{sTMP}, v{LTMP}")
    a(f"v_mul_u32_u24 v{LRO}, {CH*4}, v{LCHV}"); a(f"v_lshlrev_b32 v{LCHV}, 3, v{LRO}"); a(f"v_add_u32 v{LRO}, {WS_REC:#x}, v{LRO}")
    a("s_waitcnt vmcnt(0) lgkmcnt(0)")
    a("s_barrier")
    stamp(a, "arrive")
    a("s_branch CORE")
    offload = f"buffer_load_dwordx2 {vr(LOFF,2)}, v{LTMP}, {D(dWS)}, 0 offen sc1"
    a("HOOK:")
    a("s_barrier")
    a(f"s_cmp_eq_u32 s{sSTAGE}, 2"); a("s_cbranch_scc1 HOOKED")
    a(offload)
    a("s_branch HOOKED")
    a("AU_DONE:")
    a(f"s_cmp_lg_u32 s{sSTAGE}, 2"); a("s_cbranch_scc1 AU_G")
    def au_pack():
        for j in range(8): a(f"v_cvt_pk_bf16_f32 v{UP+j}, v{AV+2*j}, v{AV+2*j+1}")
        for r in range(0, 16, 2): a(f"v_pk_mul_f32 {vr(AB+r,2)}, {vr(AB+r,2)}, s[{sTMP+6}:{sTMP+7}]")
        for j in range(8): a(f"v_cvt_pk_bf16_f32 v{AP+j}, v{AB+2*j}, v{AB+2*j+1}")
        for r in range(0, 32, 2): a(f"v_mov_b64 {vr(DEN+r,2)}, 0")
    a("s_barrier")
    a(offload)
    a("AU_G:")
    a("s_waitcnt vmcnt(0)")
    stamp(a, "off")
    a(f"v_lshl_add_u32 v{LRO}, v{LOFF}, 2, v{LRO}")
    a(f"v_sad_u8 v{LLEN}, v{LOFF+1}, 0, 0")
    for q in range(4):
        if q: a(f"v_cmpx_lt_u32 vcc, {4*q}, v{LLEN}"); a("s_cbranch_execz RECD")
        a(f"buffer_load_dwordx4 {vr(RECQ[q],4)}, v{LRO}, {D(dWS)}, 0 offen offset:{16*q} sc1")
    a("RECD:")
    a("s_mov_b64 exec, -1")
    a("ALLOC:")
    a(f"v_perm_b32 v{LC}, v{LOFF+1}, v{LOFF+1}, s{sTMP+8}"); a(f"v_perm_b32 v{LC+1}, v{LOFF+1}, v{LOFF+1}, s{sTMP+9}")
    a(f"ds_add_rtn_u64 {vr(LADJ,2)}, v{LKEY}, {vr(LC,2)} offset:{L_CNT}")
    a("s_mov_b64 exec, 1")
    a(f"ds_inc_u32 v{vT0}, v{LONE} offset:{L_AD}")
    a("s_mov_b64 exec, -1")
    a(f"v_sad_u8 v{LLEN}, v{LOFF+1}, 0, 0")
    wait_alloc("C", LTMP)
    stamp(a, "barA")
    a(f"ds_read_b64 {vr(LTMP,2)}, v{LQ4} offset:{L_CNT}"); a(f"ds_read_b64 {vr(LTOT,2)}, v{LKEY} offset:{L_CNT}")
    a(f"v_lshrrev_b32 v{LCB}, 4, v{LKEY}"); a(f"v_bfe_u32 v{LKEY}, v{LKEY}, 3, 1")
    a(f"s_cmp_lg_u32 s{sMODE}, 0"); a("s_cbranch_scc1 NOPACK")
    au_pack()
    a("NOPACK:")
    for r in range(0, 16, 2): a(f"v_mov_b64 {vr(G[1]+r,2)}, 0")
    a("s_waitcnt lgkmcnt(1)")
    totals(a, LTMP)
    a("s_cbranch_scc1 OVF")
    a("s_waitcnt lgkmcnt(0)")
    a(f"v_sub_u32 v{LTOT}, v{LTOT}, v{LC}"); a(f"v_sub_u32 v{LTOT+1}, v{LTOT+1}, v{LC+1}")
    a(f"v_lshl_add_u32 v{LADJ}, v{LTOT}, 16, v{LADJ}"); a(f"v_lshl_add_u32 v{LADJ+1}, v{LTOT+1}, 16, v{LADJ+1}")
    a(f"v_add_u32_sdwa v{LTOT}, v{LTOT}, v{LTOT} dst_sel:DWORD dst_unused:UNUSED_PAD src0_sel:WORD_0 src1_sel:WORD_1")
    a(f"v_mad_u32_u24 v{LCB}, v{LCB}, s{sC+4}, v{LKEY}")
    a(f"v_mad_u32_u24 v{LADJ+1}, v{LTOT}, s{sTMP+3}, v{LADJ+1}")
    a(f"v_lshlrev_b32 v{LCB}, 7, v{LCB}"); a(f"v_lshlrev_b64 {vr(LADJ,2)}, 2, {vr(LADJ,2)}")
    a(f"s_cmp_eq_u32 s{sBETA}, 0")
    a(f"s_cselect_b32 s{sF0}, 0, s{sC+4}"); a(f"s_cselect_b32 s{sL0}, s{sC}, s{sC+2}")
    a(f"s_cselect_b32 s{sL1}, s{sC+1}, s{sC+3}"); a(f"s_cselect_b32 s{sTEND}, s{sC+4}, s{sC+5}")
    a(f"s_sub_u32 s{sG0}, s{sL0}, 1"); a(f"s_sub_u32 s{sG1}, s{sL1}, 1")
    a(f"s_lshl_b32 s{sTMP}, s{sF0}, 7"); a(f"s_add_u32 s{sTMP}, s{sTMP}, {L_IDX}"); a(f"v_add_u32 v{vIDX}, s{sTMP}, v{vIDX}")
    a(f"s_lshl_b32 s{sTMP}, s{sF0}, 10"); a(f"s_add_u32 s{sTMP+1}, s{sTMP}, {L_O}")
    a(f"v_add_u32 v{vOT}, s{sTMP+1}, v{vOT}"); a(f"v_add_u32 v{vSa}, s{sTMP+1}, v{vSa}"); a(f"v_add_u32 v{vEA}, {L_EA-L_O}, v{vOT}")
    a(f"v_cndmask_b32_e64 v{vS0}, 0, v{vSa}, s[{sM0}:{sM0+1}]"); a(f"v_cndmask_b32_e64 v{vS1}, 0, v{vSa}, s[{sM1}:{sM1+1}]")
    a(f"v_mov_b32 v{vSX}, 0xdddd")
    a(f"s_mov_b32 s{sTMP}, 0x1ffff"); a(f"s_mov_b32 s{sTMP+1}, 0xff80"); a(f"s_mov_b32 s{sTMP+2}, 0x7ffe0")
    a(f"s_mov_b32 s{sTMP+10}, {ETQ*128}")
    a("PLACE:")
    a("s_waitcnt vmcnt(0)")
    stamp(a, "rec")
    for s in range(16):
        rec = RECQ[s >> 2] + (s & 3); b = LTMP + 6 * (s & 1)
        a(f"v_cmpx_lt_u32 vcc, {s}, v{LLEN}"); a("s_cbranch_execz PLACED")
        a(f"v_and_b32_sdwa v{b+2}, v{rec}, v{LONE} dst_sel:DWORD dst_unused:UNUSED_PAD src0_sel:BYTE_3 src1_sel:DWORD")
        a(f"v_lshrrev_b32 v{b+3}, 13, v{rec}"); a(f"v_and_b32 v{b+4}, s{sTMP}, v{rec}")
        a(f"v_lshrrev_b64 {vr(b,2)}, v{b+2}, {vr(LADJ,2)}")
        a(f"v_and_b32 v{b+3}, s{sTMP+2}, v{b+3}"); a(f"v_add_u16 v{b}, {4*s}, v{b}")
        a(f"v_add_u32 v{b+4}, v{b+4}, v{LCHV}"); a(f"v_and_b32 v{b+1}, s{sTMP+1}, v{b}")
        if s < ETS:
            a(f"v_cmp_gt_u32 vcc, s{sTMP+10}, v{b}")
        a(f"v_add3_u32 v{b}, v{b}, v{b+1}, v{LCB}")
        a(f"ds_write2st64_b32 v{b}, v{b+3}, v{b+4} offset0:{L_IDX//256} offset1:{L_EOF//256}")
        if s < ETS:
            a(f"s_and_saveexec_b64 s[{sTMP+4}:{sTMP+5}], vcc")
            a(f"buffer_load_ubyte v163, v{b+4}, {D(dEA)}, 0 offen")
            a(f"s_mov_b64 exec, s[{sTMP+4}:{sTMP+5}]")
    a(f"v_cmpx_lt_u32 vcc, 16, v{LLEN}"); a("s_cbranch_execz PLACED")
    a(f"v_subrev_u32 v{LLEN}, 16, v{LLEN}"); a(f"v_add_u32 v{LRO}, 64, v{LRO}")
    a(f"v_add_u32 v{LADJ}, 0x00400040, v{LADJ}"); a(f"v_add_u32 v{LADJ+1}, 0x00400040, v{LADJ+1}")
    for q in range(4): a(f"buffer_load_dwordx4 {vr(RECQ[q],4)}, v{LRO}, {D(dWS)}, 0 offen offset:{16*q} sc1")
    a("s_branch PLACE")
    a("PLACED:")
    a("s_mov_b64 exec, -1")
    stamp(a, "placed")
    a("s_waitcnt lgkmcnt(0)"); a("s_barrier")
    stamp(a, "bar2")
    a(f"s_cmp_lt_i32 s{sTEND}, 1"); a("s_cbranch_scc1 RDONE")
    idx_reads(a, 0); a("s_waitcnt lgkmcnt(0)"); gathers(a, RAW[0])
    if not G1LATE:
        idx_reads(a, 1); a("s_waitcnt lgkmcnt(0)"); gathers(a, RAW[1])
    stamp(a, "g01")
    poll(a, stubs, "P")
    stamp(a, "polled")
    a(f"ds_read_b128 {vr(IX,4)}, v{vEA}"); a(f"ds_read_b128 {vr(IX+4,4)}, v{vOT}")
    a(f"s_waitcnt vmcnt({0 if G1LATE else 16}) lgkmcnt(0)")
    a(f"{MF} {vr(G[0],16)}, {vr(IX,4)}, {vr(WC,4)}, {vr(RAW[0],16)}")
    a(f"{MF} {vr(G[0],16)}, {vr(IX+4,4)}, {vr(AP,4)}, {vr(G[0],16)}")
    a("s_nop 3")
    if G1LATE:
        idx_reads(a, 1); a("s_waitcnt lgkmcnt(0)"); gathers(a, RAW[1])
    idx_reads(a, 2)
    stamp(a, "loop0")
    a(".p2align 6")
    a("LOOP:")
    for ph in range(6):
        R0, R1, R2 = RAW[ph % 3], RAW[(ph + 1) % 3], RAW[(ph + 2) % 3]
        Gc, Gn = G[ph % 2], G[(ph + 1) % 2]
        APn = AP + 4 * ((ph + 1) % 2); vS = (vS0, vS1)[ph % 2]
        ms = ms_list(Gn)
        a(f"s_cmp_ge_u32 s{sT}, s{(sL0, sL1)[ph % 2]}"); a(f"s_cbranch_scc1 SKIP_{ph}")
        a(f"s_add_u32 s{sT}, s{sT}, 1")
        prio(a, 0)
        if ITS: a("s_memtime s[4:5]"); a(f"s_add_u32 m0, s{sT}, 19")
        a("s_waitcnt lgkmcnt(0)")
        if ITS: a("v_writelane_b32 v167, s4, m0")
        if ph % RDYP == RDYP - 1 and RDYP < 7: a(f"v_readfirstlane_b32 s{sRDY}, v{vT1}")
        a(f"s_cmp_ge_u32 s{sT}, s{(sG0, sG1)[ph % 2]}"); a(f"s_cbranch_scc1 NOG_{ph}")
        gathers(a, R2)
        a(f"NOGD_{ph}:")
        stubs(f"NOG_{ph}:"); stubs("s_waitcnt vmcnt(0)"); stubs(f"s_branch NOGD_{ph}")
        if ph % 2 == 1: publish(a)
        poll(a, stubs, ph)
        a(f"ds_read_b128 {vr(IX,4)}, v{vEA} offset:{(ph+1)*1024}"); a(f"ds_read_b128 {vr(IX+4,4)}, v{vOT} offset:{(ph+1)*1024}")
        cnt = {k: 0 for k in "erasmDN"}
        rdy = ph % RDYP == RDYP - 2
        lg = ["A", "A"]
        def need(tag):
            last = max(i for i, t in enumerate(lg) if t == tag)
            return len(lg) - 1 - last
        sseen = False
        for tk in SCHED:
            if tk in "er":
                for i in range(4*cnt[tk], 4*cnt[tk]+4): a(f"v_{'exp' if tk == 'e' else 'rcp'}_f32 v{Gc+i}, v{Gc+i}")
            elif tk == "a":
                for i in range(8*cnt[tk], 8*cnt[tk]+8, 2): a(f"v_pk_add_f32 {vr(Gc+i,2)}, {vr(Gc+i,2)}, 1.0 op_sel_hi:[1,0]")
            elif tk == "s":
                if SHL64:
                    for i in range(8*cnt[tk], 8*cnt[tk]+8, 2): a(f"v_lshlrev_b64 {vr(R0+i,2)}, 16, {vr(R0+i,2)}")
                else:
                    for i in range(8*cnt[tk], 8*cnt[tk]+8): a(f"v_lshlrev_b32 v{R0+i}, 16, v{R0+i}")
            elif tk == "m":
                for i in range(8*cnt[tk], 8*cnt[tk]+8, 2): a(f"v_pk_mul_f32 {vr(R0+i,2)}, {vr(R0+i,2)}, {vr(Gc+i,2)}")
            elif tk == "D":
                a(ms[cnt[tk]])
            elif tk == "N":
                if not sseen: a(f"s_waitcnt lgkmcnt({need('L')})"); sseen = True
                else: a("s_nop 0")
                if cnt[tk] == 1: a(f"s_cmp_ge_u32 s{sT}, s{sTEND}")
                elif a.l[-2].strip().startswith("v_pk_mul"): a("s_nop 0")
                a(smf(NUM, R0, cnt[tk]))
            elif tk == "G":
                a(f"s_waitcnt vmcnt(16) lgkmcnt({need('A')})")
                a(f"{MF} {vr(Gn,16)}, {vr(IX,4)}, {vr(WC,4)}, {vr(R1,16)}")
            elif tk == "H":
                a(f"{MF} {vr(Gn,16)}, {vr(IX+4,4)}, {vr(APn,4)}, {vr(Gn,16)}")
            elif tk == "L":
                for u in range(4): a(f"ds_read_b64_tr_b16 {vr(SA+2*u,2)}, v{vS} offset:{ph*1024+(u>>1)*512+(u&1)*128}")
                lg += ["L"] * 4
            elif tk == "I":
                idx_reads(a, ph + 3); lg += ["I"] * 4
                if rdy: a(f"ds_read_b32 v{vT1}, v{vT0} offset:{L_RDY}"); lg.append("I")
            else:
                prio(a, int(tk))
            if tk in cnt: cnt[tk] += 1
        assert cnt == dict(e=4, r=4, a=2, s=2, m=2, D=2, N=2) and SCHED.endswith("mN")
        a(f"s_cbranch_scc1 DRAIN_{ph%2}")
        a(f"NEXT_{ph}:")
        stubs(f"SKIP_{ph}:")
        stubs(f"s_add_u32 s{sT}, s{sT}, 1"); stubs("s_waitcnt lgkmcnt(0)")
        st2 = A()
        if ph % 2 == 1: publish(stubs)
        poll(stubs, st2, f"S{ph}")
        stubs(f"ds_read_b128 {vr(IX,4)}, v{vEA} offset:{(ph+1)*1024}"); stubs(f"ds_read_b128 {vr(IX+4,4)}, v{vOT} offset:{(ph+1)*1024}")
        for m in ms: stubs(m)
        for r in range(0, 16, 2): stubs(f"v_mov_b64 {vr(Gc+r,2)}, 0")
        for j in range(0, 8, 2): stubs(f"v_mov_b64 {vr(SA+j,2)}, 0")
        stubs("s_waitcnt vmcnt(0) lgkmcnt(0)")
        stubs(f"{MF} {vr(Gn,16)}, {vr(IX,4)}, {vr(WC,4)}, {vr(R1,16)}")
        stubs(f"{MF} {vr(Gn,16)}, {vr(IX+4,4)}, {vr(APn,4)}, {vr(Gn,16)}")
        stubs("s_nop 3")
        idx_reads(stubs, ph + 3)
        stubs(f"s_branch NEXT_{ph}")
        stubs.l += st2.l
    a(f"v_add_u32 v{vIDX}, {6*128}, v{vIDX}"); a(f"v_add_u32 v{vEA}, {6*1024}, v{vEA}")
    a(f"v_add_u32 v{vOT}, {6*1024}, v{vOT}")
    a(f"s_mov_b64 exec, s[{sM0}:{sM0+1}]"); a(f"v_add_u32 v{vS0}, {6*1024}, v{vS0}")
    a(f"s_mov_b64 exec, s[{sM1}:{sM1+1}]"); a(f"v_add_u32 v{vS1}, {6*1024}, v{vS1}")
    a("s_mov_b64 exec, -1")
    a("s_branch LOOP")
    for p in range(2):
        a(f"DRAIN_{p}:"); a("s_waitcnt lgkmcnt(0)")
        for m in ms_list(G[p]): a(m)
        if p == 0: a("s_branch RDONE")
    a("RDONE:")
    a(f"v_mov_b32 v{vT1}, 16"); a(f"ds_add_u32 v{vT0}, v{vT1} offset:{L_PROG}")
    a(f"s_cmp_lg_u32 s{sMODE}, 0"); a("s_cbranch_scc1 SLOWNEXT")
    a("EPI:")
    stamp(a, "loopend")
    XD = IX
    for r in range(0, 16, 2): a(f"v_mov_b64 {vr(XD+r,2)}, 0")
    a("v_bfe_u32 v2, v0, 5, 1"); a("v_bfe_u32 v3, v0, 3, 2")
    a(f"s_lshl_b32 s{sTMP+3}, s{sCG}, 2")
    a("v_lshl_or_b32 v3, v2, 2, v3"); a(f"v_xor_b32 v3, s{sTMP+3}, v3")
    a("v_and_b32 v4, 7, v0"); a("v_lshlrev_b32 v4, 1, v4"); a("v_lshl_or_b32 v3, v3, 4, v4")
    a(f"s_lshl_b32 s{sTMP}, s{sBETA}, 13"); a(f"s_add_u32 s{sTMP}, s{sTMP}, {L_X}")
    a(f"v_lshl_add_u32 v2, v2, 10, s{sTMP}"); a(f"v_add_u32 v{SA}, v2, v3")
    for r in range(1, 8): a(f"v_xor_b32 v{SA+r}, {(8*(r>>2)+(r&3))*16}, v{SA}")
    for r in range(16): a(f"ds_read_u16_d16_hi v{XD+r}, v{SA+(r&7)} offset:{(8*(r>>2)+(r&3))*256}")
    a(f"s_mov_b32 s{sTMP+4}, 0x358637bd"); a(f"s_mov_b32 s{sTMP+5}, 0x358637bd")
    for r in range(0, 16, 2): a(f"v_pk_add_f32 {vr(DEN+r,2)}, {vr(DEN+r,2)}, s[{sTMP+4}:{sTMP+5}]")
    for r in range(16): a(f"v_rcp_f32 v{DEN+r}, v{DEN+r}")
    a("v_bfe_u32 v2, v0, 2, 4"); a("v_and_b32 v3, 3, v0"); a(f"v_or_b32 v4, s{sTMP+3}, v3"); a("v_xor_b32 v4, v4, v2")
    a("v_lshlrev_b32 v4, 4, v4"); a("v_lshl_add_u32 v4, v2, 8, v4"); a(f"v_add_u32 v4, s{sTMP}, v4")
    a("v_bfe_u32 v5, v0, 2, 2"); a("v_bfe_u32 v6, v0, 4, 1"); a("v_lshl_or_b32 v5, v6, 3, v5")
    a("v_bfe_u32 v6, v0, 5, 1"); a("v_lshl_or_b32 v5, v6, 2, v5"); a("v_lshlrev_b32 v3, 4, v3"); a("v_lshl_or_b32 v5, v5, 18, v3")
    a(f"s_lshl_b32 s{sTMP}, s{sBETA}, 17"); a(f"s_lshl_b32 s{sTMP+1}, s2, 8"); a(f"s_add_u32 s{sTMP}, s{sTMP}, s{sTMP+1}")
    a(f"s_lshl_b32 s{sTMP+1}, s{sCG}, 6"); a(f"s_add_u32 s{sTMP}, s{sTMP}, s{sTMP+1}"); a(f"s_add_u32 s{sTMP+1}, s{sTMP}, 0x10000")
    UD = G[0]
    for r in range(16):
        a(f"v_and_b32 v{UD+r}, 0xffff0000, v{UP+r//2}" if r & 1 else f"v_lshlrev_b32 v{UD+r}, 16, v{UP+r//2}")
    for r in range(0, 16, 2): a(f"v_pk_fma_f32 {vr(UD+r,2)}, {vr(NUM+r,2)}, {vr(DEN+r,2)}, {vr(UD+r,2)}")
    for r in range(16): a(f"v_max_f32 v{UD+r}, 0, v{UD+r}")
    a("s_waitcnt lgkmcnt(0)")
    for r in range(0, 16, 2): a(f"v_pk_add_f32 {vr(UD+r,2)}, {vr(UD+r,2)}, {vr(XD+r,2)}")
    for j in range(8): a(f"v_cvt_pk_bf16_f32 v{XD+j}, v{UD+2*j}, v{UD+2*j+1}")
    for r in range(16):
        a(f"{'ds_write_b16_d16_hi' if r & 1 else 'ds_write_b16'} v{SA+(r&7)}, v{XD+r//2} offset:{(8*(r>>2)+(r&3))*256}")
    a(f"ds_read_b128 {vr(UD,4)}, v4"); a(f"ds_read_b128 {vr(UD+4,4)}, v4 offset:4096")
    a("s_waitcnt lgkmcnt(1)"); a(f"buffer_store_dwordx4 {vr(UD,4)}, v5, {D(dOUT)}, s{sTMP} offen")
    a("s_waitcnt lgkmcnt(0)"); a(f"buffer_store_dwordx4 {vr(UD+4,4)}, v5, {D(dOUT)}, s{sTMP+1} offen")
    if STAMP:
        a("s_waitcnt vmcnt(0)"); a(f"s_add_u32 s6, s{sL0}, s{sL1}"); a("s_lshr_b32 s6, s6, 1")
    stamp(a, "end"); stamp_out(a, "s6")
    a("F_END:")
    a("s_endpgm")
    a.l += stubs.l
    a("SLOWNEXT:")
    a(f"s_cmp_eq_u32 s{sROUND}, 999"); a("s_cbranch_scc1 EPI")
    a(f"s_add_u32 s{sROUND}, s{sROUND}, 1")
    a("OVF:")
    a(f"s_mov_b32 s{sMODE}, 1")
    a("s_waitcnt vmcnt(0) lgkmcnt(0)"); a("s_barrier"); a("s_branch ROUND")
    a("SLOWSRC:")
    a(f"s_mul_i32 s{sTMP}, s{sROUND}, 1600"); a(f"v_lshlrev_b32 v{LRO}, 2, v0")
    a(f"buffer_load_dword v{LKEY}, v{LRO}, {D(dDST)}, s{sTMP} offen"); a(f"buffer_load_dword v{LOFF}, v{LRO}, {D(dSRC)}, s{sTMP} offen")
    a(f"s_mul_i32 s{sTMP+2}, s{sROUND}, {400*32}")
    a(f"v_lshl_add_u32 v{LTMP}, v0, 5, 1"); a(f"v_mov_b32 v{LCHV}, s{sTMP+2}")
    a("s_waitcnt vmcnt(0) lgkmcnt(0)"); a("s_barrier")
    a(f"v_lshl_or_b32 v{LTMP}, v{LOFF}, 18, v{LTMP}"); a(f"v_lshrrev_b32 v{LTMP+1}, 10, v{LKEY}")
    a(f"v_add_u32 v{RECQ[0]}, v{LTMP+1}, v{LTMP}")
    a(f"v_and_b32 v{LTMP+1}, 255, v{LKEY}"); a(f"v_cmp_eq_u32 vcc, s2, v{LTMP+1}")
    a(f"v_lshrrev_b32 v{LOFF}, 7, v{LOFF}"); a(f"v_and_b32 v{LOFF}, 24, v{LOFF}")
    a(f"v_cndmask_b32_e64 v{LOFF+1}, 0, 1, vcc"); a("v_cmp_gt_u32 vcc, 400, v0")
    a(f"v_bfe_u32 v{LKEY}, v{LKEY}, 8, 2"); a(f"v_lshlrev_b32 v{LOFF+1}, v{LOFF}, v{LOFF+1}"); a(f"v_lshlrev_b32 v{LKEY}, 3, v{LKEY}")
    a(f"v_cndmask_b32 v{LOFF+1}, 0, v{LOFF+1}, vcc")
    a("s_branch ALLOC")
    a("HELP:")
    a("PROUND:")
    a(f"v_and_b32 v15, 3, v{vL}"); a("v_lshlrev_b32 v15, 3, v15")
    a(f"v_lshrrev_b32 v2, 1, v{vL}"); a("v_lshlrev_b32 v2, 2, v2")
    a(f"v_and_b32 v3, 1, v{vL}"); a("v_lshlrev_b32 v3, 4, v3")
    a("v_mov_b32 v5, 1")
    a(f"v_and_b32 v10, 7, v{vL}"); a(f"v_bfe_u32 v11, v{vL}, 3, 1"); a("v_lshlrev_b32 v10, 1, v10")
    a(f"v_lshl_add_u32 v10, v11, {LUT_H}, v10"); a(f"v_lshl_add_u32 v10, v{vL}, 4, v10"); a("v_mov_b32 v11, 0x3f80")
    stamp(a, "pre")
    a("s_barrier")
    stamp(a, "go")
    a("s_mov_b64 exec, 0x1fff"); a(f"ds_write_b16 v10, v11 offset:{L_LUT+16}"); a("s_mov_b64 exec, -1")
    a("s_cmp_lg_u32 s3, 8"); a("s_cbranch_scc1 H_G2")
    a(f"s_cmp_lg_u32 s{sMODE}, 0"); a("s_cbranch_scc1 H_G2")
    a(f"v_lshlrev_b32 v14, 7, v{vL}"); a(f"s_lshl_b32 s{sTMP}, s{sU}, 13"); a(f"v_add_u32 v14, s{sTMP}, v14")
    wait_flags(2)
    stamp(a, "go2")
    if PFW: wait_alloc("P", 8)
    for i in range(PF):
        a(f"s_mov_b32 s{sTMP}, {(i>>1)*2097152 + (i&1)*262144:#x}")
        a(f"buffer_load_dword v160, v14, {D(dTAB)}, s{sTMP} offen sc1")
    a("H_G2:")
    a("s_sleep 8")
    wait_alloc("H", 8)
    a(f"ds_read_b64 v[8:9], v15 offset:{L_CNT}")
    a("s_waitcnt lgkmcnt(0)")
    totals(a, 8)
    a("s_cbranch_scc1 POVF")
    a("s_cmp_lg_u32 s3, 8"); a("s_cbranch_scc1 EXP")
    a(f"s_max_u32 s{sTEND}, s{sC+4}, s{sC+5}")
    a(f"s_lshl_b32 s{sTMP+2}, s{sC+4}, 7"); a(f"v_add_u32 v6, s{sTMP+2}, v2")
    a(f"s_mov_b32 s{sT}, 0"); a(f"s_mov_b32 s{sTMP}, {L_EA}"); a(f"s_mov_b32 s{sTMP+3}, {-4*(PK+LEADX)}"); a(f"s_mov_b32 s{sRDY}, 0")
    a(f"s_lshl_b32 s{sTMP+1}, s{sC+4}, 10"); a(f"s_add_u32 s{sTMP+1}, s{sTMP+1}, {L_EA}")
    a(f"s_mov_b32 s{sTMP+6}, -32"); a(f"s_mov_b32 s{sTMP+7}, 0")
    if PPRIO: a(f"s_setprio {PPRIO}")
    a("s_barrier")
    stamp(a, "bar2")
    a(f"ds_read_b32 v10, v2 offset:{L_EOF}"); a(f"ds_read_b32 v11, v6 offset:{L_EOF}")
    a("PSTEP:")
    a(f"s_cmp_ge_u32 s{sT}, s{sTEND}"); a("s_cbranch_scc1 PDRAIN")
    if PACE: a(f"s_cmp_lt_i32 s{sRDY}, s{sTMP+3}"); a("s_cbranch_scc1 PW")
    a("PWD:")
    a(f"s_min_u32 m0, s{sTMP}, {L_EA + NT*1024}")
    a("s_waitcnt lgkmcnt(0)")
    for hb in range(2):
        a(f"v_mov_b32 v{12+hb}, v3" if NOEA else f"v_and_or_b32 v{12+hb}, v{10+hb}, s{sTMP+6}, v3")
    a("v_add_u32 v2, 128, v2"); a("v_add_u32 v6, 128, v6")
    a(f"buffer_load_dwordx4 v12, {D(dEA)}, 0 offen lds")
    a(f"s_min_u32 m0, s{sTMP+1}, {L_EA + NT*1024}")
    a(f"ds_read_b32 v10, v2 offset:{L_EOF}")
    a(f"buffer_load_dwordx4 v13, {D(dEA)}, 0 offen lds")
    a(f"ds_read_b32 v11, v6 offset:{L_EOF}")
    a(f"s_add_u32 s{sTMP}, s{sTMP}, 1024"); a(f"s_add_u32 s{sTMP+1}, s{sTMP+1}, 1024")
    a(f"s_add_i32 s{sTMP+3}, s{sTMP+3}, 4"); a(f"s_add_u32 s{sT}, s{sT}, 1")
    if STAMP and ITS:
        a("s_memtime s[4:5]"); a(f"s_add_u32 m0, s{sT}, 19"); a("s_waitcnt lgkmcnt(0)"); a("v_writelane_b32 v167, s4, m0")
    a(f"s_cmp_le_u32 s{sT}, {PK}"); a("s_cbranch_scc1 PSTEP")
    a(f"s_cmp_lt_u32 s{sTMP+7}, s{sT}"); a("s_cbranch_scc1 PO")
    a("POD:")
    if PPRIO: a("s_setprio 0")
    a("s_mov_b64 exec, 1"); a(f"s_waitcnt vmcnt({2*PK})"); a(f"ds_add_u32 v{vT0}, v5 offset:{L_RDY}"); a("s_mov_b64 exec, -1")
    a("s_branch PSTEP")
    a("PW:")
    a(f"ds_read_b32 v8, v{vT0} offset:{L_PROG}"); a("s_waitcnt lgkmcnt(0)"); a(f"v_readfirstlane_b32 s{sRDY}, v8")
    a(f"s_cmp_ge_i32 s{sRDY}, s{sTMP+3}"); a("s_cbranch_scc1 PWD"); a("s_sleep 2"); a("s_branch PW")
    a("PO:")
    a(f"ds_read_b32 v8, v{vT0} offset:{L_OD}"); a("s_waitcnt lgkmcnt(0)"); a(f"v_readfirstlane_b32 s{sTMP+7}, v8")
    stamp(a, "p_od")
    a(f"s_and_b32 s{sTMP+4}, s{sTMP+7}, 3"); a(f"s_cmp_eq_u32 s{sTMP+4}, 3"); a(f"s_cselect_b32 s{sTMP+4}, {3+PK}, 0")
    a(f"s_cmp_eq_u32 s{sTMP+7}, 15"); a(f"s_cselect_b32 s{sTMP+7}, -1, s{sTMP+4}")
    a(f"s_cmp_ge_u32 s{sTMP+7}, s{sT}"); a("s_cbranch_scc1 POD"); a("s_sleep 1"); a("s_branch PO")
    a("EXP:")
    NE = NT // 3
    a(f"s_sub_u32 s{sT}, s3, 9")
    a(f"s_add_u32 s{sTMP+1}, s{sT}, s{sC+4}"); a(f"s_min_u32 s{sTMP+1}, s{sTMP+1}, {NT-1}")
    a(f"s_lshl_b32 s{sTMP}, s{sT}, 7"); a(f"v_add_u32 v10, s{sTMP}, v2")
    a(f"s_lshl_b32 s{sTMP}, s{sTMP+1}, 7"); a(f"v_add_u32 v11, s{sTMP}, v2")
    a(f"s_lshl_b32 s{sTMP}, s{sT}, 10"); a(f"v_lshl_add_u32 v12, v{vL}, 4, s{sTMP}")
    a(f"s_lshl_b32 s{sTMP}, s{sTMP+1}, 10"); a(f"v_lshl_add_u32 v13, v{vL}, 4, s{sTMP}")
    a("v_mov_b32 v14, 4")
    a(f"s_mul_i32 s{sTMP}, s{sT}, {NE*128}"); a(f"s_add_u32 s{sTMP}, s{sTMP}, {L_EOF}"); a(f"v_add_u32 v2, s{sTMP}, v2")
    a(f"s_mul_i32 s{sTMP}, s{sT}, {NE*1024}"); a(f"s_add_u32 s{sTMP}, s{sTMP}, {L_O}"); a(f"v_lshl_add_u32 v6, v{vL}, 4, s{sTMP}")
    a(f"v_lshlrev_b32 v3, {LUT_H-4}, v3")
    a(f"s_setprio {HPRIO}")
    a("s_barrier")
    EA_, ED_ = 16, 40
    for j in range(2): a(f"ds_read_b32 v{10+j}, v{10+j} offset:{L_EOF}")
    for j in range(2):
        a(f"s_waitcnt lgkmcnt(1)")
        a(f"v_and_b32 v{10+j}, 31, v{10+j}"); a(f"v_lshl_add_u32 v{10+j}, v{10+j}, 4, v3")
        a(f"ds_read_b128 {vr(120+4*j,4)}, v{10+j} offset:{L_LUT}")
    for j in range(2):
        a(f"s_waitcnt lgkmcnt(1)"); a(f"ds_write_b128 v{12+j}, {vr(120+4*j,4)} offset:{L_O}")
    a("s_mov_b64 exec, 1"); a(f"ds_add_u32 v{vT0}, v5 offset:{L_OD}"); a("s_mov_b64 exec, -1")
    a(f"s_setprio {HPRIO2}")
    for i in range(0, NE, 2):
        a(f"ds_read2_b32 {vr(EA_+i,2)}, v2 offset0:{(i%8)*32} offset1:{(i%8)*32+32}")
        if i % 8 == 6: a("v_add_u32 v2, 1024, v2")
    seq = [("E", i) for i in range(0, NE, 2)]
    def wait_for(op):
        a(f"s_waitcnt lgkmcnt({min(len(seq) - 1 - seq.index(op), 15)})")
    LA = 5
    def lut(i):
        if i % 2 == 0: wait_for(("E", i))
        a(f"v_and_b32 v{EA_+i}, 31, v{EA_+i}"); a(f"v_lshl_add_u32 v{EA_+i}, v{EA_+i}, 4, v3")
        a(f"ds_read_b128 {vr(ED_+4*i,4)}, v{EA_+i} offset:{L_LUT}"); seq.append(("L", i))
    for i in range(LA): lut(i)
    for i in range(NE):
        if i + LA < NE: lut(i + LA)
        wait_for(("L", i))
        a(f"ds_write_b128 v6, {vr(ED_+4*i,4)} offset:{1024*i}"); seq.append(("W", i))
    a("EDONE:")
    a("s_mov_b64 exec, 1"); a(f"ds_add_u32 v{vT0}, v14 offset:{L_OD}"); a("s_mov_b64 exec, -1")
    a("s_branch PFIN")
    a("PDRAIN:")
    a(f"ds_read_b32 v8, v{vT0} offset:{L_OD}"); a("s_waitcnt lgkmcnt(0)"); a(f"v_readfirstlane_b32 s{sTMP+7}, v8")
    a(f"s_cmp_lt_u32 s{sTMP+7}, 15"); a("s_cbranch_scc1 PDRAIN")
    a("s_mov_b64 exec, 1")
    for k in range(PK - 1, 0, -1):
        a(f"s_cmp_le_u32 s{sT}, {k}"); a(f"s_cbranch_scc1 PD_{k}")
        a(f"s_waitcnt vmcnt({2*k})"); a(f"ds_add_u32 v{vT0}, v5 offset:{L_RDY}"); a(f"PD_{k}:")
    a("v_mov_b32 v5, 0x7fffffff"); a("s_waitcnt vmcnt(0)"); a(f"ds_write_b32 v{vT0}, v5 offset:{L_RDY}")
    a("s_mov_b64 exec, -1")
    stamp(a, "loopend"); stamp_out(a, "0")
    a("PFIN:")
    a(f"s_cmp_eq_u32 s{sMODE}, 0"); a("s_cbranch_scc1 PEND")
    a(f"s_cmp_eq_u32 s{sROUND}, 999"); a("s_cbranch_scc1 PEND")
    a(f"s_add_u32 s{sROUND}, s{sROUND}, 1")
    a("POVF:")
    a(f"s_mov_b32 s{sMODE}, 1")
    a("s_waitcnt vmcnt(0) lgkmcnt(0)"); a("s_barrier"); a("s_branch PROUND")
    a("PEND:")
    a("s_endpgm")
    a("CODE_END:")

def main(out):
    K = "standalone__edge_featured_mpnn_gatedgcn__graph_kernel"
    head = []
    for line in open("standalone__edge_featured_mpnn_gatedgcn__graph.s.ref").read().split("\n"):
        if not line.startswith(";"): break
        if "@launch" in line or "Override launch" in line or "grid=ceil" in line: continue
        head.append(line)
    a = A(); gen(a, K)
    t = "\n".join(head) + "\n"
    t += (f"; @launch kernel={K} " if LIST else "; @launch ") + f"grid=(256,1,1) block=(768,1,1) lds={L_TOTAL}\n"
    t += '.amdgcn_target "amdgcn-amd-amdhsa--gfx950"\n.text\n'
    t += f".globl {K}\n.p2align 8\n.type {K},@function\n" + a.text()
    t += f'''.section .rodata,"a"
.p2align 6
.amdhsa_kernel {K}
  .amdhsa_next_free_vgpr 168
  .amdhsa_next_free_sgpr 102
  .amdhsa_accum_offset 168
  .amdhsa_group_segment_fixed_size 0
  .amdhsa_kernarg_size 96
  .amdhsa_user_sgpr_count 2
  .amdhsa_user_sgpr_kernarg_segment_ptr 1
  .amdhsa_system_sgpr_workgroup_id_x 1
.end_amdhsa_kernel
'''
    if STAMP: t = "; stamps " + ",".join(NAMES) + "\n" + t
    open(out, "w").write(t)

if __name__ == "__main__":
    main(sys.argv[1] if len(sys.argv) > 1 else "standalone__edge_featured_mpnn_gatedgcn__graph.s")
```

```python
import sys, os

N, E = 12500, 400000
NS, CH = 125, 3200
NG = 131
WS_TAB, WS_REC, WS_ARR, WS_OFF = 0, 0x620000, 0x7B0000, 0x7D0000
NLOG2E = 0xbfb8aa3b
env = lambda k, d: type(d)(os.environ.get(k, d))
STAMP = env("STAMP", 0); STAMPS = env("STAMPS", "all").split(","); ITS = env("ITS", 0)
PK = env("PK", 1); LEADX = env("LEADX", 4); PRIO = env("PRIO", "3210")
SHL64 = env("SHL64", 1); PF = env("PF", 0); PFW = env("PFW", 0); G1LATE = env("G1LATE", 0); NOEA = env("NOEA", 0)
SDPOL = env("SDPOL", "nt"); SIG = env("SIG", "byte"); SLP = env("SLP", 2); MSLP = env("MSLP", 1)
NCOL = env("NCOL", 8); CODEPF = env("CODEPF", 1); PDEL = env("PDEL", 0); NREP = env("NREP", 16); CDEPTH = env("CDEPTH", 1); HS2 = env("HS2", 0); TLB = env("TLB", 0); TLBSH = env("TLBSH", 18); EPF = env("EPF", 0); HPRIO = env("HPRIO", 3); HOOKK = env("HOOKK", 5); HPLAN = env("HPLAN", "011"); PPRIO = env("PPRIO", 0); HPRIO2 = env("HPRIO2", 3); ETS = env("ETS", 2); ETQ = env("ETQ", 1); PACE = env("PACE", 1); RDYP = env("RDYP", 2); OFFLATE = env("OFFLATE", 0); SPRIO = env("SPRIO", 0); WSB = env("WSB", 0); MSPOS = [int(x) for x in env("MSPOS", "2,8").split(",")]; SCHED = env("SCHED", "eDeDee1LaaGss2HrIrm3rNrmN"); SPLIT = env("SPLIT", 0); PUBP = env("PUBP", 2); RPF = env("RPF", 0); OPOL = env("OPOL", ""); LIST = env("LIST", 0); DBG = env("DBG", "")
SPIN = 0x100000
MF = "v_mfma_f32_32x32x16_bf16"

class A:
    def __init__(self): self.l = []
    def __call__(self, s):
        for line in s.strip("\n").split("\n"):
            line = line.strip()
            if line:
                self.l.append(line if line.endswith(":") else "    " + line)
    def text(self): return "\n".join(self.l) + "\n"
def vr(a, n): return f"v[{a}:{a+n-1}]"

NT = 60
L_CNT, L_RDY, L_PROG, L_AD, L_OD, L_LUT = 64, 96, 100, 104, 108, 256
LUT_H = 9
L_IDX = 6144
L_EOF = L_IDX + NT * 128
L_O = L_EOF + NT * 128
L_EA = L_O + NT * 1024
L_X = L_EA + 65536
L_TOTAL = L_X + 15360
S_CNT = 25600
S_TOT, S_BAD, S_TBL, S_SRT = S_CNT + 4096, S_CNT + 4128, S_CNT + 4352, S_CNT + 12544
L_X96 = L_TOTAL - 24576
L_WBV, L_WAU = 8192, 73728
assert L_WAU + 65536 == L_X96
vIDX, vEA, vOT, vSa, vS0, vS1, vT0 = 1, 2, 3, 4, 5, 6, 7
IX, SA, WC, AP, UP, DEN, NUM = 8, 24, 32, 36, 44, 52, 68
G = [84, 100]
RAW = [116, 132, 148]
LO, vT1 = 164, 166
RECQ = [116, 120, 124, 128]
LOFF, LCHV, LKEY, LRO, LLEN, LC, LADJ, LTOT, LCB, LONE, LQ4, LTMP = 132, 134, 135, 136, 137, 138, 140, 142, 144, 145, 146, 148
sW = 3
dX, dEA, dWS, dTAB, dOUT, dWC, dW0, dW1, dSRC, dDST = 8, 12, 16, 20, 24, 28, 32, 36, 40, 44
dDBG = 48
sCG, sBETA, sMODE, sROUND, sID, sU, sSTAGE = 52, 53, 54, 55, 56, 57, 58
sT, sTEND, sRDY, sF0, sL0, sL1, sG0, sG1 = 60, 61, 62, 63, 64, 65, 66, 67
sC = 68
sTMP = 76
sM0, sM1 = 88, 90
sPA, sPU = 92, 94
sOK = 96

NAMES = []
def stamp(a, nm):
    if STAMP and (STAMPS == ["all"] or nm in STAMPS):
        if nm not in NAMES: NAMES.append(nm)
        a("s_memtime s[4:5]"); a("s_waitcnt lgkmcnt(0)")
        a(f"v_writelane_b32 v167, s4, {NAMES.index(nm)}")
        rt = {"loop0": 59, "loopend": 60, "arrive": 55, "go": 56, "go2": 57, "bar2": 58}
        if nm in rt:
            a("s_memrealtime s[4:5]"); a("s_waitcnt lgkmcnt(0)")
            a(f"v_writelane_b32 v167, s4, {rt[nm]}")
def stamp_out(a, tiles):
    if STAMP:
        a("s_memrealtime s[4:5]"); a("s_waitcnt lgkmcnt(0)"); a("s_mov_b64 exec, -1")
        a("v_writelane_b32 v167, s4, 62"); a(f"v_writelane_b32 v167, {tiles}, 63")
        a("v_and_b32 v3, 63, v0"); a("v_lshlrev_b32 v3, 2, v3")
        a(f"s_mul_i32 s{sTMP}, s{sID}, 9"); a(f"s_add_u32 s{sTMP}, s{sTMP}, s{sW}")
        a(f"s_lshl_b32 s{sTMP}, s{sTMP}, 8"); a(f"s_add_u32 s{sTMP}, s{sTMP}, 0x900000")
        a(f"s_mov_b32 s{dWS+2}, 0x1000000")
        a(f"buffer_store_dword v167, v3, s[{dWS}:{dWS+3}], s{sTMP} offen")
def D(d): return f"s[{d}:{d+3}]"

def idx_reads(a, rel):
    for q in range(2 if "m16" in DBG else 4):
        a(f"ds_read_b128 {vr(IX+4*q,4)}, v{vIDX} offset:{rel*128+32*q}")
def gathers(a, dst):
    if "m16" in DBG:
        for k in range(0, 8, 2):
            a(f"v_lshl_add_u64 {vr(IX+k,2)}, {vr(IX+k,2)}, 4, {vr(LO,2)}")
        for k in range(16):
            a(f"buffer_load_dword v{dst+k}, v{IX+k//2}, {D(dTAB)}, 0 offen offset:{(k&1)*64} sc1")
        return
    for k in range(0, 16, 2):
        a(f"v_lshl_add_u64 {vr(IX+k,2)}, {vr(IX+k,2)}, 4, {vr(LO,2)}")
    for k in range(16):
        a(f"buffer_load_dword v{dst+k}, v{IX+k}, {D(dTAB)}, 0 offen sc1")
SMF = "v_smfmac_f32_32x32x32_bf16"
vSX = vSa
def smf(acc, src, t):
    return f"{SMF} {vr(acc,16)}, {vr(SA+4*t,4)}, {vr(src+8*t,8)}, v{vSX}"
def ms_list(gx):
    return [smf(DEN, gx, 0), smf(DEN, gx, 1)]
def poll(a, stubs, tag):
    a(f"s_cmp_le_u32 s{sRDY}, s{sT}"); a(f"s_cbranch_scc1 POLL_{tag}"); a(f"POLLED_{tag}:")
    stubs(f"POLL_{tag}:")
    stubs(f"ds_read_b32 v{vT1}, v{vT0} offset:{L_RDY}"); stubs("s_waitcnt lgkmcnt(0)")
    stubs(f"v_readfirstlane_b32 s{sRDY}, v{vT1}")
    stubs(f"s_cmp_gt_u32 s{sRDY}, s{sT}"); stubs(f"s_cbranch_scc1 POLLED_{tag}")
    stubs("s_sleep 1"); stubs(f"s_branch POLL_{tag}")
def publish(a):
    if not PACE: return
    a("s_mov_b64 exec, 1"); a(f"ds_inc_u32 v{vT0}, v{vEA} offset:{L_PROG}"); a("s_mov_b64 exec, -1")
def prio(a, pos):
    if PRIO[pos] != "-": a(f"s_setprio {PRIO[pos]}")
def totals(a, t):
    a(f"v_add_u32 v{t}, v{t}, v{t+1}")
    a(f"v_add_u32_sdwa v{t}, v{t}, v{t} dst_sel:DWORD dst_unused:UNUSED_PAD src0_sel:WORD_0 src1_sel:WORD_1")
    a(f"v_add_u32 v{t}, 31, v{t}"); a(f"v_lshrrev_b32 v{t}, 4, v{t}"); a(f"v_and_b32 v{t}, -2, v{t}")
    a("s_nop 0")
    for k in range(4): a(f"v_readlane_b32 s{sC+k}, v{t}, {k}")
    a(f"s_sub_i32 s{sC+4}, s{sC}, 1"); a(f"s_sub_i32 s{sC+5}, s{sC+2}, 1")
    a(f"s_max_i32 s{sC+4}, s{sC+4}, s{sC+1}"); a(f"s_max_i32 s{sC+5}, s{sC+5}, s{sC+3}")
    a(f"s_add_u32 s{sC+6}, s{sC+4}, s{sC+5}"); a(f"s_cmp_gt_u32 s{sC+6}, {NT}")

vL, vWS, vTR, XAD, SET, AB, AV = 1, 2, 36, 8, [48, 60, 72], 84, 100

def own_x(a):
    a(f"v_lshrrev_b32 v4, 4, v{vL}"); a(f"v_and_b32 v5, 15, v{vL}")
    a("v_xor_b32 v5, v5, v4"); a("v_lshlrev_b32 v5, 4, v5"); a("v_lshl_add_u32 v16, v4, 18, v5")
    for j in range(1, 4): a(f"v_xor_b32 v{16+j}, {64*j}, v16")
    a(f"s_lshl_b32 s{sTMP}, s2, 8"); a(f"s_lshl_b32 s{sTMP+1}, s{sCG}, 16"); a(f"s_add_u32 s{sTMP}, s{sTMP}, s{sTMP+1}")
    a(f"s_lshl_b32 s{sTMP+2}, s{sCG}, 12"); a(f"s_add_u32 s{sTMP+2}, s{sTMP+2}, {L_X}")
    for j in range(4):
        c16 = 8 * (j & 1) + 4 * (j >> 1)
        a(f"s_add_u32 m0, s{sTMP+2}, {j*1024}"); a(f"s_add_u32 s{sTMP+1}, s{sTMP}, {c16*4*65536:#x}")
        a(f"buffer_load_dwordx4 v{16+j}, {D(dX)}, s{sTMP+1} offen lds")
def w_group(a, sreg, lds):
    for d, base in ((dW0, lds), (dW1, lds + 32768)):
        a(f"s_add_u32 m0, s{sreg}, {base}"); a("s_nop 0")
        for i in range(4):
            a(f"buffer_load_dwordx4 v{vWS}, {D(d)}, s{sreg} offen offset:{i*1024} lds")

def gen(a, name):
    stubs = A()
    a(f"{name}:")
    a("s_cmp_ge_u32 s2, 256"); a("s_cbranch_scc1 F_END")
    a(f"s_load_dwordx2 s[{dDST}:{dDST+1}], s[0:1], 24")
    a(f"s_load_dwordx2 s[{dSRC}:{dSRC+1}], s[0:1], 16")
    a(f"s_load_dwordx2 s[{dX}:{dX+1}], s[0:1], 0")
    a(f"s_load_dwordx2 s[{dW0}:{dW0+1}], s[0:1], 40")
    a(f"s_load_dwordx2 s[{dW1}:{dW1+1}], s[0:1], 64")
    a(f"s_load_dwordx2 s[{sPA}:{sPA+1}], s[0:1], 32")
    a(f"s_load_dwordx2 s[{sPU}:{sPU+1}], s[0:1], 56")
    a(f"s_load_dwordx2 s[{dWC}:{dWC+1}], s[0:1], 48")
    a(f"s_load_dwordx2 s[{dWS}:{dWS+1}], s[0:1], 88")
    a(f"v_lshrrev_b32 v{vWS}, 6, v0")
    a(f"v_and_b32 v{vL}, 63, v0")
    a(f"v_readfirstlane_b32 s{sW}, v{vWS}")
    a(f"s_mov_b32 s{sID}, s2")
    a(f"s_lshr_b32 s{sU}, s2, 3"); a("s_and_b32 s2, s2, 7"); a("s_lshl_b32 s2, s2, 5"); a(f"s_or_b32 s2, s2, s{sU}")
    for d, nb in ((dDST, E*4), (dSRC, E*4), (dX, N*256), (dW0, 32768), (dW1, 32768), (dWC, 4096), (dWS, WS_OFF + NS*8192)):
        a(f"s_mov_b32 s{d+2}, {nb:#x}"); a(f"s_mov_b32 s{d+3}, 0x20000")
    a(f"s_and_b32 s{sCG}, s{sW}, 3")
    if WSB:
        a("s_waitcnt lgkmcnt(0)")
        a(f"s_add_u32 s{dWS}, s{dWS}, {WSB << 20:#x}"); a(f"s_addc_u32 s{dWS+1}, s{dWS+1}, 0")
    a(f"v_lshrrev_b32 v4, 4, v{vL}"); a("v_lshlrev_b32 v5, 2, v4"); a(f"v_and_b32 v6, 15, v{vL}")
    a("v_xor_b32 v5, v5, v6"); a("v_lshlrev_b32 v5, 4, v5"); a(f"v_lshl_add_u32 v{vWS}, v4, 8, v5")
    a(f"v_mov_b32 v{vT0}, 0")
    a("v_mov_b32 v32, 0")
    if STAMP:
        a("v_mov_b32 v167, 0"); a("s_memrealtime s[6:7]"); a("s_waitcnt lgkmcnt(0)"); a("v_writelane_b32 v167, s6, 61")
    stamp(a, "start")
    a(f"s_lshl_b32 s{sTMP}, s{sID}, 4"); a(f"s_add_u32 s{sTMP}, s{sTMP}, s3")
    a(f"s_cmp_lg_u32 s{sTMP}, 8"); a("s_cbranch_scc1 NOCLR")
    a(f"v_lshrrev_b32 v12, 2, v{vL}"); a(f"v_and_b32 v13, 3, v{vL}"); a("v_lshlrev_b32 v13, 4, v13")
    a("v_lshl_add_u32 v12, v12, 7, v13"); a(f"v_add_u32 v12, {WS_ARR:#x}, v12")
    a("v_mov_b64 v[8:9], 0"); a("v_mov_b64 v[10:11], 0")
    a(f"s_mov_b32 s{sTMP}, {NREP//2}")
    a("s_waitcnt lgkmcnt(0)")
    a("CLR:")
    a(f"buffer_store_dwordx4 v[8:11], v12, {D(dWS)}, 0 offen sc1")
    a(f"buffer_store_dwordx4 v[8:11], v12, {D(dWS)}, 0 offen offset:2048 sc1")
    a("v_add_u32 v12, 4096, v12")
    a(f"s_sub_u32 s{sTMP}, s{sTMP}, 1"); a(f"s_cmp_lg_u32 s{sTMP}, 0"); a("s_cbranch_scc1 CLR")
    a("NOCLR:")
    if CODEPF:
        a("s_cmp_lg_u32 s3, 0"); a("s_cbranch_scc1 NOCPF")
        a(f"s_getpc_b64 s[{sTMP}:{sTMP+1}]")
        a("PCREF:")
        a(f"s_lshl_b32 s{sTMP+2}, s{sU}, 7")
        a(f"v_lshl_add_u32 v160, v{vL}, 12, s{sTMP+2}")
        a("v_min_u32 v160, CODE_END-PCREF-4, v160")
        a("v_mov_b32 v161, 0")
        a(f"v_lshl_add_u64 v[160:161], v[160:161], 0, s[{sTMP}:{sTMP+1}]")
        a("s_mov_b64 exec, 31")
        a("global_load_dword v162, v[160:161], off")
        a("s_mov_b64 exec, -1")
        a("NOCPF:")
    def late_args():
        a(f"s_mov_b64 s[{dTAB}:{dTAB+1}], s[{dWS}:{dWS+1}]")
        a(f"s_load_dwordx2 s[{dEA}:{dEA+1}], s[0:1], 8")
        a(f"s_load_dwordx2 s[{dOUT}:{dOUT+1}], s[0:1], 72")
        a(f"s_load_dwordx2 s[{dDBG}:{dDBG+1}], s[0:1], 80")
        for d, nb in ((dTAB, N*512), (dEA, E*32), (dOUT, N*256), (dDBG, 256)):
            a(f"s_mov_b32 s{d+2}, {nb:#x}"); a(f"s_mov_b32 s{d+3}, 0x20000")
        a(f"s_mov_b32 s{sMODE}, 0"); a(f"s_mov_b32 s{sROUND}, 0")
        a(f"s_bfe_u32 s{sBETA}, s{sW}, 0x10002")
    def see_clear(tag):
        a(f"s_mov_b32 s{sOK}, 0")
        a("s_cmp_lg_u32 s3, 8"); a(f"s_cbranch_scc1 SC_D{tag}")
        a(f"s_load_dword s{sOK}, s[{dDBG}:{dDBG+1}], 0")
        a(f"SC_D{tag}:")
    def need_clear(tag):
        a("s_waitcnt lgkmcnt(0)")
        a(f"v_mov_b32 v24, s{sOK}")
        a(f"s_mov_b32 s{sTMP+5}, 0")
        a(f"NC_L{tag}:")
        a("v_cmp_eq_u32 vcc, 0, v24"); a(f"s_cbranch_vccz NC_E{tag}")
        a(f"s_add_u32 s{sTMP+5}, s{sTMP+5}, 1"); a(f"s_cmp_gt_u32 s{sTMP+5}, {SPIN:#x}"); a(f"s_cbranch_scc1 NC_E{tag}")
        a(f"buffer_load_dword v24, v{vT0}, {D(dDBG)}, 0 offen sc1")
        a("s_waitcnt vmcnt(0)"); a(f"s_branch NC_L{tag}")
        a(f"NC_E{tag}:")
    def page_touch(tag):
        if not TLB: return
        a(f"s_cmp_lg_u32 s3, {tag[1]}"); a(f"s_cbranch_scc1 PT_{tag[0]}")
        a(f"v_lshlrev_b32 v163, 12, v{vL}")
        if tag[0] == "G":
            a(f"s_mul_i32 s{sTMP+11}, s{sTMP+9}, {96*512}")
            a("s_mov_b64 exec, 0xfff")
            a(f"buffer_load_dword v162, v163, {D(dWS)}, s{sTMP+11} offen sc1")
        else:
            a(f"s_mul_i32 s{sTMP+11}, s{sID}, {CH*4}"); a(f"s_add_u32 s{sTMP+11}, s{sTMP+11}, {WS_REC:#x}")
            a("s_mov_b64 exec, 0xf")
            a(f"buffer_load_dword v162, v163, {D(dWS)}, s{sTMP+11} offen sc1")
            a(f"s_lshl_b32 s{sTMP+11}, s{sID}, 13"); a(f"s_add_u32 s{sTMP+11}, s{sTMP+11}, {WS_OFF:#x}")
            a("s_mov_b64 exec, 0x3")
            a(f"buffer_load_dword v162, v163, {D(dWS)}, s{sTMP+11} offen sc1")
        a("s_mov_b64 exec, -1")
        if TLB > 1:
            a(f"v_lshlrev_b32 v163, 18, v{vL}")
            a("s_waitcnt lgkmcnt(0)")
            a(f"buffer_load_dword v162, v163, {D(dEA)}, 0 offen")
        a(f"PT_{tag[0]}:")
    def wait_flags(stage):
        a(f"s_mov_b32 s{sTMP+5}, 0")
        if stage == 1:
            a("s_mov_b32 exec_hi, 0")
        for k in range(CDEPTH - 1):
            a(f"buffer_load_dwordx4 {vr(40+4*k,4)}, v32, {D(dWS)}, 0 offen sc1"); a(f"s_sleep {SLP}")
        a(f"WAITF{stage}:")
        for k in range(CDEPTH):
            b = 40 + 4 * k
            a(f"buffer_load_dwordx4 {vr(40+4*((k+CDEPTH-1)%CDEPTH),4)}, v32, {D(dWS)}, 0 offen sc1")
            a(f"s_waitcnt vmcnt({CDEPTH-1})")
            if stage == 1: a(f"v_or_b32 v{b+3}, v{b+3}, v36")
            a(f"v_and_b32 v{b}, v{b}, v{b+1}"); a(f"v_and_b32 v{b+2}, v{b+2}, v{b+3}"); a(f"v_and_b32 v{b}, v{b}, v{b+2}")
            a(f"v_cmpx_ne_u32 vcc, 1, v{b}"); a(f"s_cbranch_execz ALLIN{stage}")
            if SLP: a(f"s_sleep {SLP}")
        a(f"s_add_u32 s{sTMP+5}, s{sTMP+5}, 1"); a(f"s_cmp_lt_u32 s{sTMP+5}, {SPIN:#x}"); a(f"s_cbranch_scc1 WAITF{stage}")
        a(f"ALLIN{stage}:")
        a("s_mov_b64 exec, -1")
    def wait_alloc(tag, tmp):
        a(f"WA_{tag}:")
        a(f"ds_read_b32 v{tmp}, v{vT0} offset:{L_AD}"); a("s_waitcnt lgkmcnt(0)")
        a(f"v_readfirstlane_b32 s{sTMP+4}, v{tmp}"); a(f"s_cmp_lt_u32 s{sTMP+4}, 8"); a(f"s_cbranch_scc1 WA_{tag}")
    WCR = 152
    def wc_loads():
        a(f"v_and_b32 v{LO}, 31, v0"); a(f"v_bfe_u32 v{LO+1}, v0, 5, 1")
        a(f"s_lshl_b32 s{sTMP+10}, s{sCG}, 6")
        a(f"v_lshl_add_u32 v{vT1}, v{LO}, 1, s{sTMP+10}"); a(f"v_lshl_add_u32 v{vT1}, v{LO+1}, 11, v{vT1}")
        for j in range(8): a(f"buffer_load_ushort v{WCR+j}, v{vT1}, {D(dWC)}, 0 offen offset:{j*256}")
    def gemm_addr(xbase_sreg, wbase):
        a(f"v_lshrrev_b32 v5, 5, v{vL}"); a(f"v_bfe_u32 v4, v{vL}, 2, 2")
        a(f"v_lshl_add_u32 v{vTR}, v5, 3, v4"); a(f"v_lshlrev_b32 v{vTR}, 8, v{vTR}")
        a(f"v_xor_b32 v4, s{sCG}, v4"); a(f"v_lshl_add_u32 v{vTR}, v4, 6, v{vTR}")
        a(f"v_bfe_u32 v4, v{vL}, 4, 1"); a(f"v_lshl_add_u32 v{vTR}, v4, 5, v{vTR}")
        a(f"v_and_b32 v4, 3, v{vL}"); a(f"v_lshl_add_u32 v{vTR}, v4, 3, v{vTR}")
        a(f"v_add_u32 v{vTR}, {wbase}, v{vTR}")
        a(f"v_and_b32 v4, 15, v{vL}"); a("v_xor_b32 v4, v4, v5"); a("v_lshlrev_b32 v4, 4, v4")
        a(f"v_and_b32 v6, 31, v{vL}"); a("v_lshl_add_u32 v4, v6, 8, v4")
        a(f"v_add_u32 v{XAD}, s{xbase_sreg}, v4")
        for kk in range(1, 8): a(f"v_xor_b32 v{XAD+kk}, {kk*32}, v{XAD}")
    a(f"s_cmp_lt_u32 s{sID}, {NS}"); a("s_cbranch_scc1 SORT")
    a(f"s_sub_u32 s{sTMP+9}, s{sID}, {NS}")
    a("s_cmp_lt_u32 s3, 4"); a("s_cbranch_scc1 G_XLD")
    a(f"s_sub_u32 s{sTMP+3}, s3, 4"); a(f"s_lshl_b32 s{sTMP+3}, s{sTMP+3}, 12")
    a("s_waitcnt lgkmcnt(0)")
    w_group(a, sTMP + 3, L_WBV)
    late_args()
    a("s_branch G_LDD")
    a("G_XLD:")
    a(f"s_lshl_b32 s{sTMP+1}, s{sCG}, 2")
    a("v_xor_b32 v5, v6, v4"); a(f"v_xor_b32 v5, s{sTMP+1}, v5"); a("v_lshlrev_b32 v5, 4, v5"); a("v_lshl_add_u32 v20, v4, 8, v5")
    a(f"s_mul_i32 s{sTMP}, s{sTMP+9}, {96*256}"); a(f"s_lshl_b32 s{sTMP+1}, s{sCG}, 10")
    a(f"s_add_u32 s{sTMP}, s{sTMP}, s{sTMP+1}"); a(f"s_add_u32 s{sTMP+1}, s{sTMP+1}, {L_X96}")
    a("s_waitcnt lgkmcnt(0)")
    for i in range(6):
        a(f"s_add_u32 m0, s{sTMP+1}, {i*4096}"); a(f"s_add_u32 s{sTMP+2}, s{sTMP}, {i*4096}")
        a(f"buffer_load_dwordx4 v20, {D(dX)}, s{sTMP+2} offen lds")
    late_args()
    a("G_LDD:")
    page_touch(("G", 3))
    a("s_cmp_ge_u32 s3, 8"); a("s_cbranch_scc1 G_NWC")
    wc_loads()
    a("G_NWC:")
    a(f"s_lshr_b32 s{sTMP+4}, s3, 2")
    a(f"s_lshl_b32 s{sTMP+5}, s{sTMP+4}, 13"); a(f"s_add_u32 s{sTMP+5}, s{sTMP+5}, {L_X96}")
    gemm_addr(sTMP + 5, L_WBV)
    a(f"s_mul_i32 s{sTMP+5}, s{sTMP+9}, {96*512}"); a(f"s_lshl_b32 s{sTMP+6}, s{sTMP+4}, 14"); a(f"s_add_u32 s{sTMP+5}, s{sTMP+5}, s{sTMP+6}")
    a(f"s_lshl_b32 s{sTMP+6}, s{sCG}, 7"); a(f"s_add_u32 s{sTMP+5}, s{sTMP+5}, s{sTMP+6}")
    a("v_lshlrev_b32 v20, 2, v6"); a("v_lshl_add_u32 v20, v5, 11, v20"); a(f"v_add_u32 v20, s{sTMP+5}, v20")
    for q in range(1, 4): a(f"v_add_u32 v{20+q}, {4096*q}, v20")
    a(f"s_mov_b32 s{sSTAGE}, 0")
    a("s_waitcnt vmcnt(0) lgkmcnt(0)")
    stamp(a, "p1land")
    a(f"s_mov_b64 s[{dW0}:{dW0+1}], s[{sPA}:{sPA+1}]"); a(f"s_mov_b64 s[{dW1}:{dW1+1}], s[{sPU}:{sPU+1}]")
    a("s_barrier")
    a("s_cmp_lt_u32 s3, 8"); a("s_cbranch_scc1 CORE")
    a(f"s_lshl_b32 s{sTMP+3}, s{sCG}, 13")
    w_group(a, sTMP + 3, L_WAU)
    a(f"s_add_u32 s{sTMP+3}, s{sTMP+3}, 4096")
    w_group(a, sTMP + 3, L_WAU)
    a("CORE:")
    def reads(kk):
        b = SET[kk % 3]
        a(f"ds_read_b128 {vr(b,4)}, v{XAD+kk}")
        for u in range(2): a(f"ds_read_b64_tr_b16 {vr(b+4+2*u,2)}, v{vTR} offset:{kk*4096+u*1024}")
        for u in range(2): a(f"ds_read_b64_tr_b16 {vr(b+8+2*u,2)}, v{vTR} offset:{32768+kk*4096+u*1024}")
    for kk in range(3): reads(kk)
    for kk in range(8):
        b = SET[kk % 3]
        a(f"s_waitcnt lgkmcnt({5*min(7-kk,2)})")
        a(f"{MF} {vr(AV,16)}, {vr(b,4)}, {vr(b+8,4)}, {'0' if kk == 0 else vr(AV,16)}")
        a(f"{MF} {vr(AB,16)}, {vr(b,4)}, {vr(b+4,4)}, {'0' if kk == 0 else vr(AB,16)}")
        if kk + 3 < 8: reads(kk + 3)
        if kk == HOOKK:
            a(f"s_cmp_lg_u32 s{sSTAGE}, 0"); a("s_cbranch_scc1 HOOK"); a("HOOKED:")
    a(f"s_mov_b32 s{sTMP+6}, {NLOG2E:#x}")
    a(f"s_mov_b32 s{sTMP+7}, {NLOG2E:#x}")
    a(f"s_cmp_lg_u32 s{sSTAGE}, 0"); a("s_cbranch_scc1 AU_DONE")
    a(f"s_mov_b32 s{sTMP+5}, 0x7f7e0000")
    a("v_mov_b32 v4, 0x21800000")
    a("s_nop 2")
    stamp(a, "g_core")
    a("s_nop 2")
    VP, VN = 116, 124
    for i in range(8):
        a(f"v_cvt_pk_bf16_f32 v{VP+i}, v{AV+2*i}, v{AV+2*i+1}")
        a(f"v_xor_b32 v{VN+i}, 0x80008000, v{VP+i}")
    for q in range(4):
        R = range(4*q, 4*q+4)
        for r in R: a(f"v_fma_f32 v{AB+r}, v{AB+r}, s{sTMP+6}, v4")
        for r in R: a(f"v_med3_f32 v{AB+r}, v{AB+r}, -s{sTMP+5}, s{sTMP+5}")
        for r in R: a(f"v_sub_u32_sdwa v{AB+r}, v{AB+r}, sext(v{VN+r//2}) dst_sel:DWORD dst_unused:UNUSED_PAD src0_sel:DWORD src1_sel:WORD_{r&1}")
        for r in R: a(f"v_mov_b32_sdwa v{AB+r}, v{VP+r//2} dst_sel:WORD_0 dst_unused:UNUSED_PRESERVE src0_sel:WORD_{r&1}")
        a("s_nop 0")
        for r in R: a(f"buffer_store_dword v{AB+r}, v{20+q}, {D(dTAB)}, 0 offen offset:{(r&3)*512} sc1")
    stamp(a, "p1st")
    a("s_barrier")
    a("s_cmp_lt_u32 s3, 8"); a("s_cbranch_scc1 G_DRAIN")
    own_x(a)
    a("G_DRAIN:")
    a("s_branch ARRIVE")
    a("SORT:")
    if SPRIO: a("s_setprio 2")
    a("s_cmp_ge_u32 s3, 8"); a("s_cbranch_scc1 S_HELP")
    Dd, S, RK, RC, KA, SH = 16, 24, 32, 40, 48, 56
    a("v_lshlrev_b32 v11, 3, v0"); a("v_mov_b64 v[12:13], 0")
    a(f"ds_write_b64 v11, v[12:13] offset:{S_CNT}"); a(f"ds_write_b32 v{vT0}, v12 offset:{S_BAD}")
    a("v_lshlrev_b32 v6, 4, v0")
    a(f"s_mul_i32 s{sTMP}, s{sID}, {CH*4}"); a(f"s_add_u32 s{sTMP+1}, s{sTMP}, 8192")
    a("s_waitcnt lgkmcnt(0)")
    a(f"buffer_load_dwordx4 {vr(Dd,4)}, v6, {D(dDST)}, s{sTMP} offen {SDPOL}")
    a(f"buffer_load_dwordx4 {vr(S,4)}, v6, {D(dSRC)}, s{sTMP} offen {SDPOL}")
    a("s_cmp_ge_u32 s3, 5"); a("s_cbranch_scc1 S_0")
    a(f"buffer_load_dwordx4 {vr(Dd+4,4)}, v6, {D(dDST)}, s{sTMP+1} offen {SDPOL}")
    a(f"buffer_load_dwordx4 {vr(S+4,4)}, v6, {D(dSRC)}, s{sTMP+1} offen {SDPOL}")
    a("S_0:")
    a("s_barrier")
    wc_loads()
    late_args()
    a("v_lshlrev_b32 v5, 7, v0"); a("v_mov_b32 v8, 0")
    a(f"v_cmp_gt_u32 vcc, {(CH-2048)//4}, v0"); a(f"s_mov_b64 s[{sTMP+2}:{sTMP+3}], vcc")
    def keys(lo):
        for i in range(lo, lo + 4):
            a(f"v_lshlrev_b32_sdwa v9, 4, v{Dd+i} dst_sel:DWORD dst_unused:UNUSED_PAD src0_sel:DWORD src1_sel:BYTE_0")
            a(f"v_bfe_u32 v10, v{Dd+i}, 8, 2")
            a(f"v_lshrrev_b32 v{SH+i}, 7, v{S+i}")
            a(f"v_lshl_or_b32 v{KA+i}, v10, 2, v9")
            a(f"v_and_b32 v{SH+i}, 24, v{SH+i}")
            a(f"v_lshlrev_b32_e64 v9, v{SH+i}, 1")
            a(f"ds_add_rtn_u32 v{RK+i}, v{KA+i}, v9 offset:{S_CNT}")
        for i in range(lo, lo + 4):
            a(f"v_lshrrev_b32 v9, 10, v{Dd+i}")
            a(f"v_add_u32 v10, {(((i&3) + (2048 if i >= 4 else 0)) << 5) + 1:#x}, v5")
            a(f"v_lshl_or_b32 v10, v{S+i}, 18, v10")
            a(f"v_add_u32 v{RC+i}, v9, v10")
            a(f"v_lshlrev_b32 v{KA+i}, 1, v{KA+i}")
        for i in range(lo, lo + 4):
            a(f"s_waitcnt lgkmcnt({3-(i-lo)})"); a(f"v_bfe_u32 v{RK+i}, v{RK+i}, v{SH+i}, 8")
        a(f"v_max3_u32 v8, v8, v{RK+lo}, v{RK+lo+1}"); a(f"v_max3_u32 v8, v8, v{RK+lo+2}, v{RK+lo+3}")
    a("s_waitcnt vmcnt(8) lgkmcnt(0)")
    stamp(a, "p1land")
    keys(0)
    a(f"s_mov_b64 exec, s[{sTMP+2}:{sTMP+3}]"); a("s_cbranch_execz S_1")
    keys(4)
    a("S_1:")
    a("s_mov_b64 exec, -1")
    a("v_cmp_lt_u32 vcc, 62, v8"); a("s_cbranch_vccz S_1B")
    a("v_mov_b32 v9, -1"); a(f"ds_write_b32 v{vT0}, v9 offset:{S_BAD}"); a("s_waitcnt lgkmcnt(0)")
    a("S_1B:")
    a(f"v_lshlrev_b32 v9, 4, v{vL}"); a("v_mov_b64 v[92:93], 0")
    stamp(a, "s_keys")
    a("s_barrier")
    stamp(a, "s_b2")
    a(f"ds_read_b64 v[12:13], v11 offset:{S_CNT}")
    for q in range(4): a(f"ds_read_b128 {vr(76+4*q,4)}, v9 offset:{S_CNT+1024*q}")
    a(f"ds_read_b32 v15, v{vT0} offset:{S_BAD}")
    a("s_waitcnt lgkmcnt(5)")
    a("v_sad_u8 v10, v12, 0, 0"); a("v_sad_u8 v8, v13, 0, v10"); a("v_mov_b32 v14, v8")
    for q in range(4):
        a(f"s_cmp_gt_u32 s3, {2*q}"); a("s_cselect_b32 exec_lo, -1, 0")
        a(f"s_cmp_gt_u32 s3, {2*q+1}"); a("s_cselect_b32 exec_hi, -1, 0")
        a(f"s_waitcnt lgkmcnt({4-q})")
        for i in range(4):
            a(f"v_sad_u8 v{92+(i&1)}, v{76+4*q+i}, 0, v{92+(i&1)}")
    a("s_mov_b64 exec, -1")
    a("v_add_u32 v92, v92, v93")
    a("s_nop 1")
    for ctl in ("row_shr:1 row_mask:0xf", "row_shr:2 row_mask:0xf", "row_shr:4 row_mask:0xf", "row_shr:8 row_mask:0xf",
                "row_bcast:15 row_mask:0xa", "row_bcast:31 row_mask:0xc"):
        a(f"v_add_u32_dpp v92, v92, v92 {ctl} bank_mask:0xf"); a(f"v_add_u32_dpp v14, v14, v14 {ctl} bank_mask:0xf"); a("s_nop 0")
    a(f"v_readlane_b32 s{sTMP+5}, v92, 63")
    a("v_sub_u32 v14, v14, v8")
    a("s_waitcnt lgkmcnt(0)")
    a("v_or_b32 v73, v12, v15"); a("v_or_b32 v75, v13, v15")
    a(f"v_add_u32 v14, s{sTMP+5}, v14")
    a("v_mov_b32 v72, v14"); a("v_add_u32 v74, v14, v10")
    a("v_mov_b32 v64, v14"); a("v_mov_b32 v65, v12"); a("v_mov_b32 v66, v74"); a("v_mov_b32 v67, v13")
    a(f"ds_write_b128 v6, v[64:67] offset:{S_TBL}")
    a("s_waitcnt lgkmcnt(0)"); a("s_barrier")
    stamp(a, "s_b4")
    LK = 76
    def lookups(lo):
        for i in range(lo, lo + 4): a(f"ds_read_b64 {vr(LK+2*i,2)}, v{KA+i} offset:{S_TBL}")
    def place(lo, wait):
        for i in range(lo, lo + 4):
            a(f"s_waitcnt lgkmcnt({wait})")
            a(f"v_bfe_u32 v9, v{LK+2*i+1}, 0, v{SH+i}"); a(f"v_sad_u8 v9, v9, 0, v{LK+2*i}")
            a(f"v_add_lshl_u32 v9, v9, v{RK+i}, 2"); a(f"ds_write_b32 v9, v{RC+i} offset:{S_SRT}")
    lookups(0)
    a("s_cmp_ge_u32 s3, 5"); a("s_cbranch_scc1 S_2")
    a(f"s_mov_b64 exec, s[{sTMP+2}:{sTMP+3}]")
    lookups(4)
    a("s_mov_b64 exec, -1")
    place(0, 7)
    a(f"s_mov_b64 exec, s[{sTMP+2}:{sTMP+3}]")
    place(4, 7)
    a("s_branch S_3")
    a("S_2:")
    place(0, 3)
    a("S_3:")
    a("s_mov_b64 exec, -1")
    a(f"s_add_u32 s{sTMP}, s{sTMP}, {WS_REC:#x}"); a(f"s_add_u32 s{sTMP+1}, s{sTMP+1}, {WS_REC:#x}")
    a(f"s_lshl_b32 s{sTMP+4}, s{sID}, 13"); a(f"s_add_u32 s{sTMP+4}, s{sTMP+4}, {WS_OFF:#x}")
    if not OFFLATE:
        a("s_waitcnt vmcnt(0)")
        a(f"buffer_store_dwordx4 v[72:75], v6, {D(dWS)}, s{sTMP+4} offen sc1")
    a("s_waitcnt lgkmcnt(0)"); a("s_barrier")
    stamp(a, "s_b5")
    a(f"ds_read_b128 v[64:67], v6 offset:{S_SRT}"); a(f"ds_read_b128 v[68:71], v6 offset:{S_SRT+8192}")
    if OFFLATE:
        a("s_waitcnt vmcnt(0)")
        a(f"buffer_store_dwordx4 v[72:75], v6, {D(dWS)}, s{sTMP+4} offen sc1")
    a("s_waitcnt lgkmcnt(1)")
    a(f"buffer_store_dwordx4 v[64:67], v6, {D(dWS)}, s{sTMP} offen sc1")
    a("s_waitcnt lgkmcnt(0)")
    a(f"s_mov_b64 exec, s[{sTMP+2}:{sTMP+3}]"); a("s_cbranch_execz S_4")
    a(f"buffer_store_dwordx4 v[68:71], v6, {D(dWS)}, s{sTMP+1} offen sc1")
    a("S_4:")
    a("s_mov_b64 exec, -1")
    stamp(a, "p1st")
    a("s_branch ARRIVE")
    a("S_HELP:")
    if SPRIO: a("s_setprio 0")
    a("s_waitcnt lgkmcnt(0)")
    a(f"s_mov_b64 s[{dW0}:{dW0+1}], s[{sPA}:{sPA+1}]"); a(f"s_mov_b64 s[{dW1}:{dW1+1}], s[{sPU}:{sPU+1}]")
    late_args()
    a("s_barrier")
    a(f"s_lshl_b32 s{sTMP}, s{sID}, 4"); a(f"s_add_u32 s{sTMP}, s{sTMP}, s3")
    a(f"s_cmp_lg_u32 s{sTMP}, 8"); a("s_cbranch_scc1 S_H2")
    a("v_mov_b32 v5, 1")
    a("s_mov_b64 exec, 1")
    a("s_waitcnt vmcnt(0) lgkmcnt(0)")
    a(f"buffer_store_dword v5, v{vT0}, {D(dDBG)}, 0 offen sc1")
    a("s_mov_b64 exec, -1")
    a("S_H2:")
    a("s_waitcnt lgkmcnt(0)")
    page_touch(("S", 10))
    parts = [lambda: (a(f"s_lshl_b32 s{sTMP+3}, s{sCG}, 13"), w_group(a, sTMP + 3, L_WAU)),
             lambda: (a(f"s_add_u32 s{sTMP+3}, s{sTMP+3}, 4096"), w_group(a, sTMP + 3, L_WAU)),
             lambda: own_x(a)]
    for slot in range(3):
        for p, where in zip(parts, HPLAN):
            if int(where) == slot: p()
        if slot == 0: stamp(a, "s_keys")
        a("s_barrier")
    a("ARRIVE:")
    a("s_cmp_lt_u32 s3, 8"); a("s_cbranch_scc1 NODE")
    a("s_cmp_eq_u32 s3, 8"); a("s_cbranch_scc1 SIGNAL")
    a("s_waitcnt vmcnt(0)")
    a("s_barrier")
    a(f"s_cmp_ge_u32 s{sID}, {NS}"); a("s_cbranch_scc1 HELP")
    a("s_barrier")
    a("s_branch HELP")
    a("SIGNAL:")
    a(f"s_load_dword s{sOK}, s[{dDBG}:{dDBG+1}], 0")
    a(f"s_and_b32 s{sTMP}, s{sID}, 7"); a(f"s_lshl_b32 s{sTMP}, s{sTMP}, 7")
    a(f"s_bfe_u32 s{sTMP+1}, s{sID}, 0x40003"); a(f"s_lshl_b32 s{sTMP+1}, s{sTMP+1}, 2")
    a(f"s_add_u32 s{sTMP}, s{sTMP}, s{sTMP+1}")
    a(f"s_lshr_b32 s{sTMP+1}, s{sID}, 7"); a(f"s_lshl_b32 s{sTMP+1}, s{sTMP+1}, 10")
    a(f"s_add_u32 s{sTMP}, s{sTMP}, s{sTMP+1}"); a(f"s_add_u32 s{sTMP}, s{sTMP}, {WS_ARR:#x}")
    a(f"v_lshl_add_u32 v33, v{vL}, 11, s{sTMP}")
    a(f"s_and_b32 s{sTMP}, s{sID}, {NREP-1}"); a(f"s_lshl_b32 s{sTMP}, s{sTMP}, 11"); a(f"s_add_u32 s{sTMP}, s{sTMP}, {WS_ARR:#x}")
    a(f"v_lshrrev_b32 v32, 2, v{vL}"); a(f"v_and_b32 v34, 3, v{vL}"); a("v_lshlrev_b32 v34, 4, v34")
    a("v_lshl_add_u32 v32, v32, 7, v34"); a(f"v_add_u32 v32, s{sTMP}, v32")
    a("v_mov_b32 v35, 1")
    a("s_mov_b32 vcc_lo, 0x88800000"); a("s_mov_b32 vcc_hi, 0")
    a("v_cndmask_b32_e64 v36, 0, 1, vcc")
    a("s_mov_b64 exec, 1")
    need_clear("A")
    a(f"s_mov_b32 exec_lo, {(1 << min(NREP,32)) - 1:#x}"); a(f"s_mov_b32 exec_hi, {(1 << max(NREP-32,0)) - 1:#x}")
    a(f"s_mov_b32 s{sTMP+5}, 0")
    a("s_waitcnt vmcnt(0)")
    a("s_barrier")
    a(f"buffer_store_dword v35, v33, {D(dWS)}, 0 offen sc1")
    a("s_mov_b64 exec, -1")
    stamp(a, "arrive")
    a(f"s_cmp_ge_u32 s{sID}, {NS}"); a("s_cbranch_scc1 SIG2")
    a("s_barrier")
    a("SIG2:")
    wait_flags(1)
    a("s_branch HELP")
    a("NODE:")
    a(f"s_lshl_b32 s{sTMP+5}, s{sBETA}, 13"); a(f"s_add_u32 s{sTMP+5}, s{sTMP+5}, {L_X}")
    gemm_addr(sTMP + 5, L_WAU)
    a(f"s_lshl_b32 s{sTMP+2}, s{sCG}, 7")
    a(f"v_lshl_add_u32 v{LO}, v{LO}, 2, s{sTMP+2}"); a(f"v_mov_b32 v{LO+1}, v{LO}")
    a(f"s_mov_b32 s{sM0}, 0x0000ffff"); a(f"s_mov_b32 s{sM0+1}, 0x0000ffff")
    a(f"s_mov_b32 s{sM1}, 0xffff0000"); a(f"s_mov_b32 s{sM1+1}, 0xffff0000")
    a(f"s_cmp_lt_u32 s{sID}, {NS}")
    a(f"s_cselect_b32 s{sSTAGE}, 2, 1")
    a(f"s_mov_b32 s{sTMP+6}, {NLOG2E:#x}")
    for j in range(8): a(f"v_lshlrev_b32 v{WCR+j}, 16, v{WCR+j}")
    for j in range(8): a(f"v_mul_f32 v{WCR+j}, s{sTMP+6}, v{WCR+j}")
    for j in range(4): a(f"v_cvt_pk_bf16_f32 v{WC+j}, v{WCR+2*j}, v{WCR+2*j+1}")
    a("ROUND:")
    for j in range(0, 8, 2): a(f"v_mov_b64 {vr(SA+j,2)}, 0")
    a(f"v_lshlrev_b32 v{LTMP+2}, 4, v0")
    for k in range(3):
        a(f"ds_write_b128 v{LTMP+2}, {vr(SA,4)} offset:{k*8192}")
    a(f"v_bfe_u32 v{vT1}, v0, 5, 1")
    a(f"v_lshlrev_b32 v{vIDX}, 4, v{vT1}")
    a(f"v_and_b32 v{vOT}, 31, v0"); a(f"v_lshl_add_u32 v{vOT}, v{vOT}, 5, v{vIDX}")
    if "m16" in DBG:
        a(f"v_bfe_u32 v{vS0}, v0, 4, 1"); a(f"v_lshl_add_u32 v{vIDX}, v{vS0}, 6, v{vIDX}")
        a(f"v_and_b32 v{LO}, 0xffffffbf, v{LO}"); a(f"v_mov_b32 v{LO+1}, v{LO}")
    a(f"v_bfe_u32 v{vSa}, v0, 2, 2"); a(f"v_lshl_add_u32 v{vSa}, v{vT1}, 3, v{vSa}"); a(f"v_lshlrev_b32 v{vSa}, 5, v{vSa}")
    a(f"v_and_b32 v{vS0}, 1, v0"); a(f"v_lshl_add_u32 v{vSa}, v{vS0}, 4, v{vSa}")
    a(f"v_bfe_u32 v{vS0}, v0, 1, 1"); a(f"v_lshl_add_u32 v{vSa}, v{vS0}, 3, v{vSa}")
    a(f"v_and_b32 v{LQ4}, 3, v0"); a(f"v_lshlrev_b32 v{LQ4}, 3, v{LQ4}")
    a(f"v_mov_b32 v{LONE}, 48")
    a(f"s_mov_b32 s{sT}, 0"); a(f"s_mov_b32 s{sRDY}, 0")
    a(f"s_mov_b32 s{sTMP+8}, 0x0c010c00"); a(f"s_mov_b32 s{sTMP+9}, 0x0c030c02"); a(f"s_mov_b32 s{sTMP+3}, 0x10001")
    a(f"s_cmp_lg_u32 s{sMODE}, 0"); a("s_cbranch_scc1 SLOWSRC")
    a(f"v_lshrrev_b32 v{LCHV}, 2, v0"); a(f"v_mov_b32 v{LKEY}, v{LQ4}")
    a(f"s_lshl_b32 s{sTMP}, s2, 5"); a(f"s_add_u32 s{sTMP}, s{sTMP}, {WS_OFF:#x}")
    a(f"v_lshl_add_u32 v{LTMP}, v{LCHV}, 13, v{LKEY}"); a(f"v_add_u32 v{LTMP}, s{sTMP}, v{LTMP}")
    a(f"v_mul_u32_u24 v{LRO}, {CH*4}, v{LCHV}"); a(f"v_lshlrev_b32 v{LCHV}, 3, v{LRO}"); a(f"v_add_u32 v{LRO}, {WS_REC:#x}, v{LRO}")
    a("s_waitcnt vmcnt(0) lgkmcnt(0)")
    a("s_barrier")
    stamp(a, "arrive")
    a("s_branch CORE")
    offload = f"buffer_load_dwordx2 {vr(LOFF,2)}, v{LTMP}, {D(dWS)}, 0 offen sc1"
    a("HOOK:")
    a("s_barrier")
    a(f"s_cmp_eq_u32 s{sSTAGE}, 2"); a("s_cbranch_scc1 HOOKED")
    a(offload)
    a("s_branch HOOKED")
    a("AU_DONE:")
    a(f"s_cmp_lg_u32 s{sSTAGE}, 2"); a("s_cbranch_scc1 AU_G")
    def au_pack():
        for j in range(8): a(f"v_cvt_pk_bf16_f32 v{UP+j}, v{AV+2*j}, v{AV+2*j+1}")
        for r in range(0, 16, 2): a(f"v_pk_mul_f32 {vr(AB+r,2)}, {vr(AB+r,2)}, s[{sTMP+6}:{sTMP+7}]")
        for j in range(8): a(f"v_cvt_pk_bf16_f32 v{AP+j}, v{AB+2*j}, v{AB+2*j+1}")
        for r in range(0, 32, 2): a(f"v_mov_b64 {vr(DEN+r,2)}, 0")
    a("s_barrier")
    a(offload)
    a("AU_G:")
    a("s_waitcnt vmcnt(0)")
    stamp(a, "off")
    a(f"v_lshl_add_u32 v{LRO}, v{LOFF}, 2, v{LRO}")
    a(f"v_sad_u8 v{LLEN}, v{LOFF+1}, 0, 0")
    for q in range(4):
        if q: a(f"v_cmpx_lt_u32 vcc, {4*q}, v{LLEN}"); a("s_cbranch_execz RECD")
        a(f"buffer_load_dwordx4 {vr(RECQ[q],4)}, v{LRO}, {D(dWS)}, 0 offen offset:{16*q} sc1")
    a("RECD:")
    a("s_mov_b64 exec, -1")
    a("ALLOC:")
    a(f"v_perm_b32 v{LC}, v{LOFF+1}, v{LOFF+1}, s{sTMP+8}"); a(f"v_perm_b32 v{LC+1}, v{LOFF+1}, v{LOFF+1}, s{sTMP+9}")
    a(f"ds_add_rtn_u64 {vr(LADJ,2)}, v{LKEY}, {vr(LC,2)} offset:{L_CNT}")
    a("s_mov_b64 exec, 1")
    a(f"ds_inc_u32 v{vT0}, v{LONE} offset:{L_AD}")
    a("s_mov_b64 exec, -1")
    a(f"v_sad_u8 v{LLEN}, v{LOFF+1}, 0, 0")
    wait_alloc("C", LTMP)
    stamp(a, "barA")
    a(f"ds_read_b64 {vr(LTMP,2)}, v{LQ4} offset:{L_CNT}"); a(f"ds_read_b64 {vr(LTOT,2)}, v{LKEY} offset:{L_CNT}")
    a(f"v_lshrrev_b32 v{LCB}, 4, v{LKEY}"); a(f"v_bfe_u32 v{LKEY}, v{LKEY}, 3, 1")
    a("s_waitcnt lgkmcnt(1)")
    totals(a, LTMP)
    a("s_cbranch_scc1 OVF")
    a("s_waitcnt lgkmcnt(0)")
    a(f"v_sub_u32 v{LTOT}, v{LTOT}, v{LC}"); a(f"v_sub_u32 v{LTOT+1}, v{LTOT+1}, v{LC+1}")
    a(f"v_lshl_add_u32 v{LADJ}, v{LTOT}, 16, v{LADJ}"); a(f"v_lshl_add_u32 v{LADJ+1}, v{LTOT+1}, 16, v{LADJ+1}")
    a(f"v_add_u32_sdwa v{LTOT}, v{LTOT}, v{LTOT} dst_sel:DWORD dst_unused:UNUSED_PAD src0_sel:WORD_0 src1_sel:WORD_1")
    a(f"v_mad_u32_u24 v{LCB}, v{LCB}, s{sC+4}, v{LKEY}")
    a(f"v_mad_u32_u24 v{LADJ+1}, v{LTOT}, s{sTMP+3}, v{LADJ+1}")
    a(f"v_lshlrev_b32 v{LCB}, 7, v{LCB}"); a(f"v_lshlrev_b64 {vr(LADJ,2)}, 2, {vr(LADJ,2)}")
    a(f"s_cmp_eq_u32 s{sBETA}, 0")
    a(f"s_cselect_b32 s{sF0}, 0, s{sC+4}"); a(f"s_cselect_b32 s{sL0}, s{sC}, s{sC+2}")
    a(f"s_cselect_b32 s{sL1}, s{sC+1}, s{sC+3}"); a(f"s_cselect_b32 s{sTEND}, s{sC+4}, s{sC+5}")
    a(f"s_sub_u32 s{sG0}, s{sL0}, 1"); a(f"s_sub_u32 s{sG1}, s{sL1}, 1")
    a(f"s_lshl_b32 s{sTMP}, s{sF0}, 7"); a(f"s_add_u32 s{sTMP}, s{sTMP}, {L_IDX}"); a(f"v_add_u32 v{vIDX}, s{sTMP}, v{vIDX}")
    a(f"s_lshl_b32 s{sTMP}, s{sF0}, 10"); a(f"s_add_u32 s{sTMP+1}, s{sTMP}, {L_O}")
    a(f"v_add_u32 v{vOT}, s{sTMP+1}, v{vOT}"); a(f"v_add_u32 v{vSa}, s{sTMP+1}, v{vSa}"); a(f"v_add_u32 v{vEA}, {L_EA-L_O}, v{vOT}")
    a(f"v_cndmask_b32_e64 v{vS0}, 0, v{vSa}, s[{sM0}:{sM0+1}]"); a(f"v_cndmask_b32_e64 v{vS1}, 0, v{vSa}, s[{sM1}:{sM1+1}]")
    a(f"v_mov_b32 v{vSX}, 0xdddd")
    a(f"s_mov_b32 s{sTMP}, 0x1ffff"); a(f"s_mov_b32 s{sTMP+1}, 0xff80"); a(f"s_mov_b32 s{sTMP+2}, 0x7ffe0")
    a(f"s_mov_b32 s{sTMP+10}, {ETQ*128}")
    stamp(a, "adj")
    a("PLACE:")
    a("s_waitcnt vmcnt(0)")
    stamp(a, "rec")
    for s in range(16):
        rec = RECQ[s >> 2] + (s & 3); b = LTMP + 6 * (s & 1)
        a(f"v_cmpx_lt_u32 vcc, {s}, v{LLEN}"); a("s_cbranch_execz PLACED")
        a(f"v_and_b32_sdwa v{b+2}, v{rec}, v{LONE} dst_sel:DWORD dst_unused:UNUSED_PAD src0_sel:BYTE_3 src1_sel:DWORD")
        a(f"v_lshrrev_b32 v{b+3}, 13, v{rec}"); a(f"v_and_b32 v{b+4}, s{sTMP}, v{rec}")
        a(f"v_lshrrev_b64 {vr(b,2)}, v{b+2}, {vr(LADJ,2)}")
        a(f"v_and_b32 v{b+3}, s{sTMP+2}, v{b+3}"); a(f"v_add_u16 v{b}, {4*s}, v{b}")
        a(f"v_add_u32 v{b+4}, v{b+4}, v{LCHV}"); a(f"v_and_b32 v{b+1}, s{sTMP+1}, v{b}")
        if s < ETS:
            a(f"v_cmp_gt_u32 vcc, s{sTMP+10}, v{b}")
        a(f"v_add3_u32 v{b}, v{b}, v{b+1}, v{LCB}")
        a(f"ds_write2st64_b32 v{b}, v{b+3}, v{b+4} offset0:{L_IDX//256} offset1:{L_EOF//256}")
        if s < ETS:
            a(f"s_and_saveexec_b64 s[{sTMP+4}:{sTMP+5}], vcc")
            a(f"buffer_load_ubyte v163, v{b+4}, {D(dEA)}, 0 offen")
            a(f"s_mov_b64 exec, s[{sTMP+4}:{sTMP+5}]")
    a(f"v_cmpx_lt_u32 vcc, 16, v{LLEN}"); a("s_cbranch_execz PLACED")
    a(f"v_subrev_u32 v{LLEN}, 16, v{LLEN}"); a(f"v_add_u32 v{LRO}, 64, v{LRO}")
    a(f"v_add_u32 v{LADJ}, 0x00400040, v{LADJ}"); a(f"v_add_u32 v{LADJ+1}, 0x00400040, v{LADJ+1}")
    for q in range(4): a(f"buffer_load_dwordx4 {vr(RECQ[q],4)}, v{LRO}, {D(dWS)}, 0 offen offset:{16*q} sc1")
    a("s_branch PLACE")
    a("PLACED:")
    a("s_mov_b64 exec, -1")
    stamp(a, "placed")
    a("s_waitcnt lgkmcnt(0)"); a("s_barrier")
    stamp(a, "bar2")
    a(f"s_cmp_lt_i32 s{sTEND}, 1"); a("s_cbranch_scc1 NOTILE")
    idx_reads(a, 0); a("s_waitcnt lgkmcnt(0)"); gathers(a, RAW[0])
    if not G1LATE:
        idx_reads(a, 1); a("s_waitcnt lgkmcnt(0)"); gathers(a, RAW[1])
    stamp(a, "g01")
    a("NOTILE:")
    a(f"s_cmp_eq_u32 s{sSTAGE}, 0"); a("s_cbranch_scc1 NOPACK")
    a(f"s_mov_b32 s{sTMP+6}, {NLOG2E:#x}"); a(f"s_mov_b32 s{sTMP+7}, {NLOG2E:#x}")
    au_pack()
    a(f"s_mov_b32 s{sSTAGE}, 0")
    a("NOPACK:")
    a(f"s_cmp_lt_i32 s{sTEND}, 1"); a("s_cbranch_scc1 RDONE")
    for r in range(0, 16, 2): a(f"v_mov_b64 {vr(G[1]+r,2)}, 0")
    poll(a, stubs, "P")
    stamp(a, "polled")
    a(f"ds_read_b128 {vr(IX,4)}, v{vEA}"); a(f"ds_read_b128 {vr(IX+4,4)}, v{vOT}")
    a(f"s_waitcnt vmcnt({0 if G1LATE else 16}) lgkmcnt(0)")
    a(f"{MF} {vr(G[0],16)}, {vr(IX,4)}, {vr(WC,4)}, {vr(RAW[0],16)}")
    a(f"{MF} {vr(G[0],16)}, {vr(IX+4,4)}, {vr(AP,4)}, {vr(G[0],16)}")
    a("s_nop 3")
    if G1LATE:
        idx_reads(a, 1); a("s_waitcnt lgkmcnt(0)"); gathers(a, RAW[1])
    idx_reads(a, 2)
    stamp(a, "loop0")
    a(".p2align 6")
    a("LOOP:")
    for ph in range(6):
        R0, R1, R2 = RAW[ph % 3], RAW[(ph + 1) % 3], RAW[(ph + 2) % 3]
        Gc, Gn = G[ph % 2], G[(ph + 1) % 2]
        APn = AP + 4 * ((ph + 1) % 2); vS = (vS0, vS1)[ph % 2]
        ms = ms_list(Gn)
        a(f"s_cmp_ge_u32 s{sT}, s{(sL0, sL1)[ph % 2]}"); a(f"s_cbranch_scc1 SKIP_{ph}")
        a(f"s_add_u32 s{sT}, s{sT}, 1")
        prio(a, 0)
        if ITS: a("s_memtime s[4:5]"); a(f"s_add_u32 m0, s{sT}, 19")
        a("s_waitcnt lgkmcnt(0)")
        if ITS: a("v_writelane_b32 v167, s4, m0")
        if ph % RDYP == RDYP - 1 and RDYP < 7: a(f"v_readfirstlane_b32 s{sRDY}, v{vT1}")
        a(f"s_cmp_ge_u32 s{sT}, s{(sG0, sG1)[ph % 2]}"); a(f"s_cbranch_scc1 NOG_{ph}")
        gathers(a, R2)
        a(f"NOGD_{ph}:")
        stubs(f"NOG_{ph}:"); stubs("s_waitcnt vmcnt(0)"); stubs(f"s_branch NOGD_{ph}")
        if ph % 2 == 1: publish(a)
        poll(a, stubs, ph)
        a(f"ds_read_b128 {vr(IX,4)}, v{vEA} offset:{(ph+1)*1024}"); a(f"ds_read_b128 {vr(IX+4,4)}, v{vOT} offset:{(ph+1)*1024}")
        cnt = {k: 0 for k in "erasmDN"}
        rdy = ph % RDYP == RDYP - 2
        lg = ["A", "A"]
        def need(tag):
            last = max(i for i, t in enumerate(lg) if t == tag)
            return len(lg) - 1 - last
        sseen = False
        for tk in SCHED:
            if tk in "er":
                for i in range(4*cnt[tk], 4*cnt[tk]+4): a(f"v_{'exp' if tk == 'e' else 'rcp'}_f32 v{Gc+i}, v{Gc+i}")
            elif tk == "a":
                for i in range(8*cnt[tk], 8*cnt[tk]+8, 2): a(f"v_pk_add_f32 {vr(Gc+i,2)}, {vr(Gc+i,2)}, 1.0 op_sel_hi:[1,0]")
            elif tk == "s":
                if SHL64:
                    for i in range(8*cnt[tk], 8*cnt[tk]+8, 2): a(f"v_lshlrev_b64 {vr(R0+i,2)}, 16, {vr(R0+i,2)}")
                else:
                    for i in range(8*cnt[tk], 8*cnt[tk]+8): a(f"v_lshlrev_b32 v{R0+i}, 16, v{R0+i}")
            elif tk == "m":
                for i in range(8*cnt[tk], 8*cnt[tk]+8, 2): a(f"v_pk_mul_f32 {vr(R0+i,2)}, {vr(R0+i,2)}, {vr(Gc+i,2)}")
            elif tk == "D":
                a(ms[cnt[tk]])
            elif tk == "N":
                if not sseen: a(f"s_waitcnt lgkmcnt({need('L')})"); sseen = True
                else: a("s_nop 0")
                if cnt[tk] == 1: a(f"s_cmp_ge_u32 s{sT}, s{sTEND}")
                elif a.l[-2].strip().startswith("v_pk_mul"): a("s_nop 0")
                a(smf(NUM, R0, cnt[tk]))
            elif tk == "G":
                a(f"s_waitcnt vmcnt(16) lgkmcnt({need('A')})")
                a(f"{MF} {vr(Gn,16)}, {vr(IX,4)}, {vr(WC,4)}, {vr(R1,16)}")
            elif tk == "H":
                a(f"{MF} {vr(Gn,16)}, {vr(IX+4,4)}, {vr(APn,4)}, {vr(Gn,16)}")
            elif tk == "L":
                for u in range(4): a(f"ds_read_b64_tr_b16 {vr(SA+2*u,2)}, v{vS} offset:{ph*1024+(u>>1)*512+(u&1)*128}")
                lg += ["L"] * 4
            elif tk == "I":
                idx_reads(a, ph + 3); lg += ["I"] * 4
                if rdy: a(f"ds_read_b32 v{vT1}, v{vT0} offset:{L_RDY}"); lg.append("I")
            else:
                prio(a, int(tk))
            if tk in cnt: cnt[tk] += 1
        assert cnt == dict(e=4, r=4, a=2, s=2, m=2, D=2, N=2) and SCHED.endswith("mN")
        a(f"s_cbranch_scc1 DRAIN_{ph%2}")
        a(f"NEXT_{ph}:")
        stubs(f"SKIP_{ph}:")
        stubs(f"s_add_u32 s{sT}, s{sT}, 1"); stubs("s_waitcnt lgkmcnt(0)")
        st2 = A()
        if ph % 2 == 1: publish(stubs)
        poll(stubs, st2, f"S{ph}")
        stubs(f"ds_read_b128 {vr(IX,4)}, v{vEA} offset:{(ph+1)*1024}"); stubs(f"ds_read_b128 {vr(IX+4,4)}, v{vOT} offset:{(ph+1)*1024}")
        for m in ms: stubs(m)
        for r in range(0, 16, 2): stubs(f"v_mov_b64 {vr(Gc+r,2)}, 0")
        for j in range(0, 8, 2): stubs(f"v_mov_b64 {vr(SA+j,2)}, 0")
        stubs("s_waitcnt vmcnt(0) lgkmcnt(0)")
        stubs(f"{MF} {vr(Gn,16)}, {vr(IX,4)}, {vr(WC,4)}, {vr(R1,16)}")
        stubs(f"{MF} {vr(Gn,16)}, {vr(IX+4,4)}, {vr(APn,4)}, {vr(Gn,16)}")
        stubs("s_nop 3")
        idx_reads(stubs, ph + 3)
        stubs(f"s_branch NEXT_{ph}")
        stubs.l += st2.l
    a(f"v_add_u32 v{vIDX}, {6*128}, v{vIDX}"); a(f"v_add_u32 v{vEA}, {6*1024}, v{vEA}")
    a(f"v_add_u32 v{vOT}, {6*1024}, v{vOT}")
    a(f"s_mov_b64 exec, s[{sM0}:{sM0+1}]"); a(f"v_add_u32 v{vS0}, {6*1024}, v{vS0}")
    a(f"s_mov_b64 exec, s[{sM1}:{sM1+1}]"); a(f"v_add_u32 v{vS1}, {6*1024}, v{vS1}")
    a("s_mov_b64 exec, -1")
    a("s_branch LOOP")
    for p in range(2):
        a(f"DRAIN_{p}:"); a("s_waitcnt lgkmcnt(0)")
        for m in ms_list(G[p]): a(m)
        if p == 0: a("s_branch RDONE")
    a("RDONE:")
    a(f"v_mov_b32 v{vT1}, 16"); a(f"ds_add_u32 v{vT0}, v{vT1} offset:{L_PROG}")
    a(f"s_cmp_lg_u32 s{sMODE}, 0"); a("s_cbranch_scc1 SLOWNEXT")
    a("EPI:")
    stamp(a, "loopend")
    XD = IX
    for r in range(0, 16, 2): a(f"v_mov_b64 {vr(XD+r,2)}, 0")
    a("v_bfe_u32 v2, v0, 5, 1"); a("v_bfe_u32 v3, v0, 3, 2")
    a(f"s_lshl_b32 s{sTMP+3}, s{sCG}, 2")
    a("v_lshl_or_b32 v3, v2, 2, v3"); a(f"v_xor_b32 v3, s{sTMP+3}, v3")
    a("v_and_b32 v4, 7, v0"); a("v_lshlrev_b32 v4, 1, v4"); a("v_lshl_or_b32 v3, v3, 4, v4")
    a(f"s_lshl_b32 s{sTMP}, s{sBETA}, 13"); a(f"s_add_u32 s{sTMP}, s{sTMP}, {L_X}")
    a(f"v_lshl_add_u32 v2, v2, 10, s{sTMP}"); a(f"v_add_u32 v{SA}, v2, v3")
    for r in range(1, 8): a(f"v_xor_b32 v{SA+r}, {(8*(r>>2)+(r&3))*16}, v{SA}")
    for r in range(16): a(f"ds_read_u16_d16_hi v{XD+r}, v{SA+(r&7)} offset:{(8*(r>>2)+(r&3))*256}")
    a(f"s_mov_b32 s{sTMP+4}, 0x358637bd"); a(f"s_mov_b32 s{sTMP+5}, 0x358637bd")
    for r in range(0, 16, 2): a(f"v_pk_add_f32 {vr(DEN+r,2)}, {vr(DEN+r,2)}, s[{sTMP+4}:{sTMP+5}]")
    for r in range(16): a(f"v_rcp_f32 v{DEN+r}, v{DEN+r}")
    a("v_bfe_u32 v2, v0, 2, 4"); a("v_and_b32 v3, 3, v0"); a(f"v_or_b32 v4, s{sTMP+3}, v3"); a("v_xor_b32 v4, v4, v2")
    a("v_lshlrev_b32 v4, 4, v4"); a("v_lshl_add_u32 v4, v2, 8, v4"); a(f"v_add_u32 v4, s{sTMP}, v4")
    a("v_bfe_u32 v5, v0, 2, 2"); a("v_bfe_u32 v6, v0, 4, 1"); a("v_lshl_or_b32 v5, v6, 3, v5")
    a("v_bfe_u32 v6, v0, 5, 1"); a("v_lshl_or_b32 v5, v6, 2, v5"); a("v_lshlrev_b32 v3, 4, v3"); a("v_lshl_or_b32 v5, v5, 18, v3")
    a(f"s_lshl_b32 s{sTMP}, s{sBETA}, 17"); a(f"s_lshl_b32 s{sTMP+1}, s2, 8"); a(f"s_add_u32 s{sTMP}, s{sTMP}, s{sTMP+1}")
    a(f"s_lshl_b32 s{sTMP+1}, s{sCG}, 6"); a(f"s_add_u32 s{sTMP}, s{sTMP}, s{sTMP+1}"); a(f"s_add_u32 s{sTMP+1}, s{sTMP}, 0x10000")
    UD = G[0]
    for r in range(16):
        a(f"v_and_b32 v{UD+r}, 0xffff0000, v{UP+r//2}" if r & 1 else f"v_lshlrev_b32 v{UD+r}, 16, v{UP+r//2}")
    for r in range(0, 16, 2): a(f"v_pk_fma_f32 {vr(UD+r,2)}, {vr(NUM+r,2)}, {vr(DEN+r,2)}, {vr(UD+r,2)}")
    for r in range(16): a(f"v_max_f32 v{UD+r}, 0, v{UD+r}")
    a("s_waitcnt lgkmcnt(0)")
    for r in range(0, 16, 2): a(f"v_pk_add_f32 {vr(UD+r,2)}, {vr(UD+r,2)}, {vr(XD+r,2)}")
    for j in range(8): a(f"v_cvt_pk_bf16_f32 v{XD+j}, v{UD+2*j}, v{UD+2*j+1}")
    for r in range(16):
        a(f"{'ds_write_b16_d16_hi' if r & 1 else 'ds_write_b16'} v{SA+(r&7)}, v{XD+r//2} offset:{(8*(r>>2)+(r&3))*256}")
    a(f"ds_read_b128 {vr(UD,4)}, v4"); a(f"ds_read_b128 {vr(UD+4,4)}, v4 offset:4096")
    a("s_waitcnt lgkmcnt(1)"); a(f"buffer_store_dwordx4 {vr(UD,4)}, v5, {D(dOUT)}, s{sTMP} offen {OPOL}")
    a("s_waitcnt lgkmcnt(0)"); a(f"buffer_store_dwordx4 {vr(UD+4,4)}, v5, {D(dOUT)}, s{sTMP+1} offen {OPOL}")
    if STAMP:
        a("s_waitcnt vmcnt(0)"); a(f"s_add_u32 s6, s{sL0}, s{sL1}"); a("s_lshr_b32 s6, s6, 1")
    stamp(a, "end"); stamp_out(a, "s6")
    a("F_END:")
    a("s_endpgm")
    a.l += stubs.l
    a("SLOWNEXT:")
    a(f"s_cmp_eq_u32 s{sROUND}, 999"); a("s_cbranch_scc1 EPI")
    a(f"s_add_u32 s{sROUND}, s{sROUND}, 1")
    a("OVF:")
    a(f"s_mov_b32 s{sMODE}, 1")
    a("s_waitcnt vmcnt(0) lgkmcnt(0)"); a("s_barrier"); a("s_branch ROUND")
    a("SLOWSRC:")
    a(f"s_mul_i32 s{sTMP}, s{sROUND}, 1600"); a(f"v_lshlrev_b32 v{LRO}, 2, v0")
    a(f"buffer_load_dword v{LKEY}, v{LRO}, {D(dDST)}, s{sTMP} offen"); a(f"buffer_load_dword v{LOFF}, v{LRO}, {D(dSRC)}, s{sTMP} offen")
    a(f"s_mul_i32 s{sTMP+2}, s{sROUND}, {400*32}")
    a(f"v_lshl_add_u32 v{LTMP}, v0, 5, 1"); a(f"v_mov_b32 v{LCHV}, s{sTMP+2}")
    a("s_waitcnt vmcnt(0) lgkmcnt(0)"); a("s_barrier")
    a(f"v_lshl_or_b32 v{LTMP}, v{LOFF}, 18, v{LTMP}"); a(f"v_lshrrev_b32 v{LTMP+1}, 10, v{LKEY}")
    a(f"v_add_u32 v{RECQ[0]}, v{LTMP+1}, v{LTMP}")
    a(f"v_and_b32 v{LTMP+1}, 255, v{LKEY}"); a(f"v_cmp_eq_u32 vcc, s2, v{LTMP+1}")
    a(f"v_lshrrev_b32 v{LOFF}, 7, v{LOFF}"); a(f"v_and_b32 v{LOFF}, 24, v{LOFF}")
    a(f"v_cndmask_b32_e64 v{LOFF+1}, 0, 1, vcc"); a("v_cmp_gt_u32 vcc, 400, v0")
    a(f"v_bfe_u32 v{LKEY}, v{LKEY}, 8, 2"); a(f"v_lshlrev_b32 v{LOFF+1}, v{LOFF}, v{LOFF+1}"); a(f"v_lshlrev_b32 v{LKEY}, 3, v{LKEY}")
    a(f"v_cndmask_b32 v{LOFF+1}, 0, v{LOFF+1}, vcc")
    a("s_branch ALLOC")
    a("HELP:")
    a("PROUND:")
    a(f"v_and_b32 v15, 3, v{vL}"); a("v_lshlrev_b32 v15, 3, v15")
    a(f"v_lshrrev_b32 v2, 1, v{vL}"); a("v_lshlrev_b32 v2, 2, v2")
    a(f"v_and_b32 v3, 1, v{vL}"); a("v_lshlrev_b32 v3, 4, v3")
    a("v_mov_b32 v5, 1")
    a(f"v_and_b32 v10, 7, v{vL}"); a(f"v_bfe_u32 v11, v{vL}, 3, 1"); a("v_lshlrev_b32 v10, 1, v10")
    a(f"v_lshl_add_u32 v10, v11, {LUT_H}, v10"); a(f"v_lshl_add_u32 v10, v{vL}, 4, v10"); a("v_mov_b32 v11, 0x3f80")
    if RPF:
        a(f"v_lshrrev_b32 v12, 4, v{vL}"); a(f"v_mul_u32_u24 v12, {32*CH*4}, v12")
        a(f"v_and_b32 v13, 15, v{vL}"); a("v_lshl_add_u32 v12, v13, 7, v12")
        a(f"s_mul_i32 s{sTMP}, s{sU}, {CH*4}"); a(f"s_lshr_b32 s{sTMP+1}, s2, 5"); a(f"s_mul_i32 s{sTMP+1}, s{sTMP+1}, 1604")
        a(f"s_add_u32 s{sTMP}, s{sTMP}, s{sTMP+1}"); a(f"s_add_u32 s{sTMP}, s{sTMP}, {WS_REC - 192:#x}")
        a(f"v_add_u32 v12, s{sTMP}, v12"); a(f"v_min_u32 v12, {WS_REC + NS*CH*4 - 4:#x}, v12"); a(f"v_max_u32 v12, {WS_REC:#x}, v12")
    stamp(a, "pre")
    a("s_barrier")
    stamp(a, "go")
    if RPF:
        a("s_cmp_lg_u32 s3, 9"); a("s_cbranch_scc1 H_R")
        a(f"s_cmp_lg_u32 s{sMODE}, 0"); a("s_cbranch_scc1 H_R")
        a(f"buffer_load_dword v161, v12, {D(dWS)}, 0 offen sc1")
        a("H_R:")
    a("s_mov_b64 exec, 0x1fff"); a(f"ds_write_b16 v10, v11 offset:{L_LUT+16}"); a("s_mov_b64 exec, -1")
    a("s_cmp_lg_u32 s3, 8"); a("s_cbranch_scc1 H_G2")
    a(f"s_cmp_lg_u32 s{sMODE}, 0"); a("s_cbranch_scc1 H_G2")
    a(f"v_lshlrev_b32 v14, 7, v{vL}"); a(f"s_lshl_b32 s{sTMP}, s{sU}, 13"); a(f"v_add_u32 v14, s{sTMP}, v14")
    wait_flags(2)
    stamp(a, "go2")
    if PFW: wait_alloc("P", 8)
    for i in range(PF):
        a(f"s_mov_b32 s{sTMP}, {(i>>1)*2097152 + (i&1)*262144:#x}")
        a(f"buffer_load_dword v160, v14, {D(dTAB)}, s{sTMP} offen sc1")
    a("H_G2:")
    a("s_sleep 8")
    wait_alloc("H", 8)
    a(f"ds_read_b64 v[8:9], v15 offset:{L_CNT}")
    a("s_waitcnt lgkmcnt(0)")
    totals(a, 8)
    a("s_cbranch_scc1 POVF")
    a("s_cmp_lg_u32 s3, 8"); a("s_cbranch_scc1 EXP")
    a(f"s_max_u32 s{sTEND}, s{sC+4}, s{sC+5}")
    a(f"s_lshl_b32 s{sTMP+2}, s{sC+4}, 7"); a(f"v_add_u32 v6, s{sTMP+2}, v2")
    a(f"s_mov_b32 s{sT}, 0"); a(f"s_mov_b32 s{sTMP}, {L_EA}"); a(f"s_mov_b32 s{sTMP+3}, {-4*(PK+LEADX)}"); a(f"s_mov_b32 s{sRDY}, 0")
    a(f"s_lshl_b32 s{sTMP+1}, s{sC+4}, 10"); a(f"s_add_u32 s{sTMP+1}, s{sTMP+1}, {L_EA}")
    a(f"s_mov_b32 s{sTMP+6}, -32"); a(f"s_mov_b32 s{sTMP+7}, 0")
    if PPRIO: a(f"s_setprio {PPRIO}")
    a("s_barrier")
    stamp(a, "bar2")
    a(f"ds_read_b32 v10, v2 offset:{L_EOF}"); a(f"ds_read_b32 v11, v6 offset:{L_EOF}")
    a("PSTEP:")
    a(f"s_cmp_ge_u32 s{sT}, s{sTEND}"); a("s_cbranch_scc1 PDRAIN")
    if PACE: a(f"s_cmp_lt_i32 s{sRDY}, s{sTMP+3}"); a("s_cbranch_scc1 PW")
    a("PWD:")
    a(f"s_min_u32 m0, s{sTMP}, {L_EA + NT*1024}")
    a("s_waitcnt lgkmcnt(0)")
    for hb in range(2):
        a(f"v_mov_b32 v{12+hb}, v3" if NOEA else f"v_and_or_b32 v{12+hb}, v{10+hb}, s{sTMP+6}, v3")
    a("v_add_u32 v2, 128, v2"); a("v_add_u32 v6, 128, v6")
    a(f"buffer_load_dwordx4 v12, {D(dEA)}, 0 offen lds")
    a(f"s_min_u32 m0, s{sTMP+1}, {L_EA + NT*1024}")
    a(f"ds_read_b32 v10, v2 offset:{L_EOF}")
    if SPLIT:
        a(f"s_add_i32 s{sTMP+8}, s{sTMP+3}, 2")
        a(f"s_cmp_lt_i32 s{sRDY}, s{sTMP+8}"); a("s_cbranch_scc1 PW2")
        a("PWD2:")
    a(f"buffer_load_dwordx4 v13, {D(dEA)}, 0 offen lds")
    a(f"ds_read_b32 v11, v6 offset:{L_EOF}")
    a(f"s_add_u32 s{sTMP}, s{sTMP}, 1024"); a(f"s_add_u32 s{sTMP+1}, s{sTMP+1}, 1024")
    a(f"s_add_i32 s{sTMP+3}, s{sTMP+3}, 4"); a(f"s_add_u32 s{sT}, s{sT}, 1")
    if STAMP and ITS:
        a("s_memtime s[4:5]"); a(f"s_add_u32 m0, s{sT}, 19"); a("s_waitcnt lgkmcnt(0)"); a("v_writelane_b32 v167, s4, m0")
    a(f"s_cmp_le_u32 s{sT}, {PK}"); a("s_cbranch_scc1 PSTEP")
    a(f"s_cmp_lt_u32 s{sTMP+7}, s{sT}"); a("s_cbranch_scc1 PO")
    a("POD:")
    if PPRIO: a("s_setprio 0")
    a("s_mov_b64 exec, 1"); a(f"s_waitcnt vmcnt({2*PK})"); a(f"ds_add_u32 v{vT0}, v5 offset:{L_RDY}"); a("s_mov_b64 exec, -1")
    a("s_branch PSTEP")
    a("PW:")
    a(f"ds_read_b32 v8, v{vT0} offset:{L_PROG}"); a("s_waitcnt lgkmcnt(0)"); a(f"v_readfirstlane_b32 s{sRDY}, v8")
    a(f"s_cmp_ge_i32 s{sRDY}, s{sTMP+3}"); a("s_cbranch_scc1 PWD"); a("s_sleep 2"); a("s_branch PW")
    if SPLIT:
        a("PW2:")
        a(f"ds_read_b32 v8, v{vT0} offset:{L_PROG}"); a("s_waitcnt lgkmcnt(0)"); a(f"v_readfirstlane_b32 s{sRDY}, v8")
        a(f"s_cmp_ge_i32 s{sRDY}, s{sTMP+8}"); a("s_cbranch_scc1 PWD2"); a("s_sleep 2"); a("s_branch PW2")
    a("PO:")
    a(f"ds_read_b32 v8, v{vT0} offset:{L_OD}"); a("s_waitcnt lgkmcnt(0)"); a(f"v_readfirstlane_b32 s{sTMP+7}, v8")
    stamp(a, "p_od")
    a(f"s_and_b32 s{sTMP+4}, s{sTMP+7}, 3"); a(f"s_cmp_eq_u32 s{sTMP+4}, 3"); a(f"s_cselect_b32 s{sTMP+4}, {3+PK}, 0")
    a(f"s_cmp_eq_u32 s{sTMP+7}, 15"); a(f"s_cselect_b32 s{sTMP+7}, -1, s{sTMP+4}")
    a(f"s_cmp_ge_u32 s{sTMP+7}, s{sT}"); a("s_cbranch_scc1 POD"); a("s_sleep 1"); a("s_branch PO")
    a("EXP:")
    NE = NT // 3
    a(f"s_sub_u32 s{sT}, s3, 9")
    a(f"s_add_u32 s{sTMP+1}, s{sT}, s{sC+4}"); a(f"s_min_u32 s{sTMP+1}, s{sTMP+1}, {NT-1}")
    a(f"s_lshl_b32 s{sTMP}, s{sT}, 7"); a(f"v_add_u32 v10, s{sTMP}, v2")
    a(f"s_lshl_b32 s{sTMP}, s{sTMP+1}, 7"); a(f"v_add_u32 v11, s{sTMP}, v2")
    a(f"s_lshl_b32 s{sTMP}, s{sT}, 10"); a(f"v_lshl_add_u32 v12, v{vL}, 4, s{sTMP}")
    a(f"s_lshl_b32 s{sTMP}, s{sTMP+1}, 10"); a(f"v_lshl_add_u32 v13, v{vL}, 4, s{sTMP}")
    a("v_mov_b32 v14, 4")
    a(f"s_mul_i32 s{sTMP}, s{sT}, {NE*128}"); a(f"s_add_u32 s{sTMP}, s{sTMP}, {L_EOF}"); a(f"v_add_u32 v2, s{sTMP}, v2")
    a(f"s_mul_i32 s{sTMP}, s{sT}, {NE*1024}"); a(f"s_add_u32 s{sTMP}, s{sTMP}, {L_O}"); a(f"v_lshl_add_u32 v6, v{vL}, 4, s{sTMP}")
    a(f"v_lshlrev_b32 v3, {LUT_H-4}, v3")
    a(f"s_setprio {HPRIO}")
    a("s_barrier")
    EA_, ED_ = 16, 40
    for j in range(2): a(f"ds_read_b32 v{10+j}, v{10+j} offset:{L_EOF}")
    for j in range(2):
        a(f"s_waitcnt lgkmcnt(1)")
        a(f"v_and_b32 v{10+j}, 31, v{10+j}"); a(f"v_lshl_add_u32 v{10+j}, v{10+j}, 4, v3")
        a(f"ds_read_b128 {vr(120+4*j,4)}, v{10+j} offset:{L_LUT}")
    for j in range(2):
        a(f"s_waitcnt lgkmcnt(1)"); a(f"ds_write_b128 v{12+j}, {vr(120+4*j,4)} offset:{L_O}")
    a("s_mov_b64 exec, 1"); a(f"ds_add_u32 v{vT0}, v5 offset:{L_OD}"); a("s_mov_b64 exec, -1")
    a(f"s_setprio {HPRIO2}")
    for i in range(0, NE, 2):
        a(f"ds_read2_b32 {vr(EA_+i,2)}, v2 offset0:{(i%8)*32} offset1:{(i%8)*32+32}")
        if i % 8 == 6: a("v_add_u32 v2, 1024, v2")
    seq = [("E", i) for i in range(0, NE, 2)]
    def wait_for(op):
        a(f"s_waitcnt lgkmcnt({min(len(seq) - 1 - seq.index(op), 15)})")
    LA = 5
    def lut(i):
        if i % 2 == 0: wait_for(("E", i))
        a(f"v_and_b32 v{EA_+i}, 31, v{EA_+i}"); a(f"v_lshl_add_u32 v{EA_+i}, v{EA_+i}, 4, v3")
        a(f"ds_read_b128 {vr(ED_+4*i,4)}, v{EA_+i} offset:{L_LUT}"); seq.append(("L", i))
    for i in range(LA): lut(i)
    for i in range(NE):
        if i + LA < NE: lut(i + LA)
        wait_for(("L", i))
        a(f"ds_write_b128 v6, {vr(ED_+4*i,4)} offset:{1024*i}"); seq.append(("W", i))
    a("EDONE:")
    a("s_mov_b64 exec, 1"); a(f"ds_add_u32 v{vT0}, v14 offset:{L_OD}"); a("s_mov_b64 exec, -1")
    a("s_branch PFIN")
    a("PDRAIN:")
    a(f"ds_read_b32 v8, v{vT0} offset:{L_OD}"); a("s_waitcnt lgkmcnt(0)"); a(f"v_readfirstlane_b32 s{sTMP+7}, v8")
    a(f"s_cmp_lt_u32 s{sTMP+7}, 15"); a("s_cbranch_scc1 PDRAIN")
    a("s_mov_b64 exec, 1")
    for k in range(PK - 1, 0, -1):
        a(f"s_cmp_le_u32 s{sT}, {k}"); a(f"s_cbranch_scc1 PD_{k}")
        a(f"s_waitcnt vmcnt({2*k})"); a(f"ds_add_u32 v{vT0}, v5 offset:{L_RDY}"); a(f"PD_{k}:")
    a("v_mov_b32 v5, 0x7fffffff"); a("s_waitcnt vmcnt(0)"); a(f"ds_write_b32 v{vT0}, v5 offset:{L_RDY}")
    a("s_mov_b64 exec, -1")
    stamp(a, "loopend"); stamp_out(a, "0")
    a("PFIN:")
    a(f"s_cmp_eq_u32 s{sMODE}, 0"); a("s_cbranch_scc1 PEND")
    a(f"s_cmp_eq_u32 s{sROUND}, 999"); a("s_cbranch_scc1 PEND")
    a(f"s_add_u32 s{sROUND}, s{sROUND}, 1")
    a("POVF:")
    a(f"s_mov_b32 s{sMODE}, 1")
    a("s_waitcnt vmcnt(0) lgkmcnt(0)"); a("s_barrier"); a("s_branch PROUND")
    a("PEND:")
    a("s_endpgm")
    a("CODE_END:")

def main(out):
    K = "standalone__edge_featured_mpnn_gatedgcn__graph_kernel"
    head = []
    for line in open("standalone__edge_featured_mpnn_gatedgcn__graph.s.ref").read().split("\n"):
        if not line.startswith(";"): break
        if "@launch" in line or "Override launch" in line or "grid=ceil" in line: continue
        head.append(line)
    a = A(); gen(a, K)
    t = "\n".join(head) + "\n"
    t += (f"; @launch kernel={K} " if LIST else "; @launch ") + f"grid=(256,1,1) block=(768,1,1) lds={L_TOTAL}\n"
    t += '.amdgcn_target "amdgcn-amd-amdhsa--gfx950"\n.text\n'
    t += f".globl {K}\n.p2align 8\n.type {K},@function\n" + a.text()
    t += f'''.section .rodata,"a"
.p2align 6
.amdhsa_kernel {K}
  .amdhsa_next_free_vgpr 168
  .amdhsa_next_free_sgpr 102
  .amdhsa_accum_offset 168
  .amdhsa_group_segment_fixed_size 0
  .amdhsa_kernarg_size 96
  .amdhsa_user_sgpr_count 2
  .amdhsa_user_sgpr_kernarg_segment_ptr 1
  .amdhsa_system_sgpr_workgroup_id_x 1
.end_amdhsa_kernel
'''
    if STAMP: t = "; stamps " + ",".join(NAMES) + "\n" + t
    open(out, "w").write(t)

if __name__ == "__main__":
    main(sys.argv[1] if len(sys.argv) > 1 else "standalone__edge_featured_mpnn_gatedgcn__graph.s")
```

```python
import sys, os

N, E = 12500, 400000
NS, CH = 125, 3200
NG = 131
TABO = 0x0C010000
WS_TAB, WS_REC, WS_ARR, WS_OFF = 0, 0x620000, 0x7B0000, 0x7D0000
NLOG2E = 0xbfb8aa3b
env = lambda k, d: type(d)(os.environ.get(k, d))
STAMP = env("STAMP", 0); STAMPS = env("STAMPS", "all").split(","); ITS = env("ITS", 0)
PK = env("PK", 1); LEADX = env("LEADX", 4); PRIO = env("PRIO", "3210")
SHL64 = env("SHL64", 1); PF = env("PF", 0); PFW = env("PFW", 0); G1LATE = env("G1LATE", 0); NOEA = env("NOEA", 0)
SDPOL = env("SDPOL", "nt"); SIG = env("SIG", "byte"); SLP = env("SLP", 2); MSLP = env("MSLP", 1)
NCOL = env("NCOL", 8); CODEPF = env("CODEPF", 1); PDEL = env("PDEL", 0); NREP = env("NREP", 16); CDEPTH = env("CDEPTH", 1); HS2 = env("HS2", 0); TLB = env("TLB", 0); TLBSH = env("TLBSH", 18); EPF = env("EPF", 0); HPRIO = env("HPRIO", 3); HOOKK = env("HOOKK", 5); HPLAN = env("HPLAN", "001"); PPRIO = env("PPRIO", 0); HPRIO2 = env("HPRIO2", 3); ETS = env("ETS", 2); ETQ = env("ETQ", 1); PACE = env("PACE", 1); RDYP = env("RDYP", 2); OFFLATE = env("OFFLATE", 0); SPRIO = env("SPRIO", 0); WSB = env("WSB", 0); MSPOS = [int(x) for x in env("MSPOS", "2,8").split(",")]; SCHED = env("SCHED", "eAeDeDeV1Laass2rGrmH3rNrmN"); SPLIT = env("SPLIT", 0); PUBP = env("PUBP", 2); RPF = env("RPF", 0); OPOL = env("OPOL", ""); XPOL = env("XPOL", ""); LIST = env("LIST", 0); DBG = env("DBG", "")
SPIN = 0x100000
MF = "v_mfma_f32_32x32x16_bf16"

class A:
    def __init__(self): self.l = []
    def __call__(self, s):
        for line in s.strip("\n").split("\n"):
            line = line.strip()
            if line:
                self.l.append(line if line.endswith(":") else "    " + line)
    def text(self): return "\n".join(self.l) + "\n"
def vr(a, n): return f"v[{a}:{a+n-1}]"

NT = 63
L_CNT, L_RDY, L_PROG, L_AD, L_OD, L_LUT = 64, 96, 100, 104, 108, 256
LUT_H = 9
L_IDX = 1024
L_EOF = L_IDX + 8192
L_O = L_EOF + 8192
L_EA = L_O + NT * 1024
L_X = 148480
assert L_EA + (NT + 1) * 1024 <= L_X
L_TOTAL = L_X + 15360
S_CNT = 25600
S_TOT, S_BAD, S_TBL, S_SRT = S_CNT + 4096, S_CNT + 4128, S_CNT + 4352, S_CNT + 12544
L_X96 = L_TOTAL - 24576
L_WBV, L_WAU = 8192, 73728
assert L_WAU + 65536 == L_X96
vIDX, vEA, vOT, vSa, vS0, vS1, vT0 = 1, 2, 3, 4, 5, 6, 7
IX, SA, WC, AP, UP, DEN, NUM = 8, 24, 32, 36, 44, 52, 68
G = [84, 100]
RAW = [116, 132, 148]
LO, vT1 = 164, 166
RECQ = [116, 120, 124, 128]
LOFF, LCHV, LKEY, LRO, LLEN, LC, LADJ, LTOT, LCB, LONE, LQ4, LPAT, LTMP = 132, 134, 135, 136, 137, 138, 140, 142, 144, 145, 146, 147, 148
sW = 3
dX, dEA, dWS, dTAB, dOUT, dWC, dW0, dW1, dSRC, dDST = 8, 12, 16, 20, 24, 28, 32, 36, 40, 44
dDBG = 48
sCG, sBETA, sMODE, sROUND, sID, sU, sSTAGE = 52, 53, 54, 55, 56, 57, 58
sT, sTEND, sRDY, sF0, sL0, sL1, sG0, sG1 = 60, 61, 62, 63, 64, 65, 66, 67
sC = 68
sTMP = 76
sM0, sM1 = 88, 90
sPA, sPU = 92, 94
sOK = 96

NAMES = []
def stamp(a, nm):
    if STAMP and (STAMPS == ["all"] or nm in STAMPS):
        if nm not in NAMES: NAMES.append(nm)
        a("s_memtime s[4:5]"); a("s_waitcnt lgkmcnt(0)")
        a(f"v_writelane_b32 v167, s4, {NAMES.index(nm)}")
        rt = {"loop0": 59, "loopend": 60, "arrive": 55, "go": 56, "go2": 57, "bar2": 58}
        if nm in rt:
            a("s_memrealtime s[4:5]"); a("s_waitcnt lgkmcnt(0)")
            a(f"v_writelane_b32 v167, s4, {rt[nm]}")
def stamp_out(a, tiles):
    if STAMP:
        a("s_memrealtime s[4:5]"); a("s_waitcnt lgkmcnt(0)"); a("s_mov_b64 exec, -1")
        a("v_writelane_b32 v167, s4, 62"); a(f"v_writelane_b32 v167, {tiles}, 63")
        a("v_and_b32 v3, 63, v0"); a("v_lshlrev_b32 v3, 2, v3")
        a(f"s_mul_i32 s{sTMP}, s{sID}, 9"); a(f"s_add_u32 s{sTMP}, s{sTMP}, s{sW}")
        a(f"s_lshl_b32 s{sTMP}, s{sTMP}, 8"); a(f"s_add_u32 s{sTMP}, s{sTMP}, 0x900000")
        a(f"s_mov_b32 s{dWS+2}, 0x1000000")
        a(f"buffer_store_dword v167, v3, s[{dWS}:{dWS+3}], s{sTMP} offen")
def D(d): return f"s[{d}:{d+3}]"

vEX = 20
IA = 16
def idx_reads(a, rel, dst=IA):
    a(f"ds_read_b32 v{dst}, v{vIDX} offset:{rel*128}")
def addr_mm(dst, src=IA):
    return f"v_mfma_f32_32x32x8_bf16 {vr(dst,16)}, {vr(src,2)}, {vr(LO,2)}, 0"
def gathers(a, dst):
    for k in range(16):
        a(f"buffer_load_dword v{dst+k}, v{dst+k}, {D(dTAB)}, 0 offen sc1")
SMF = "v_smfmac_f32_32x32x32_bf16"
vSX = vSa
def smf(acc, src, t):
    return f"{SMF} {vr(acc,16)}, {vr(SA+4*t,4)}, {vr(src+8*t,8)}, v{vSX}"
def ms_list(gx):
    return [smf(DEN, gx, 0), smf(DEN, gx, 1)]
def poll(a, stubs, tag):
    a(f"s_cmp_le_u32 s{sRDY}, s{sT}"); a(f"s_cbranch_scc1 POLL_{tag}"); a(f"POLLED_{tag}:")
    stubs(f"POLL_{tag}:")
    stubs(f"ds_read_b32 v{vT1}, v{vT0} offset:{L_RDY}"); stubs("s_waitcnt lgkmcnt(0)")
    stubs(f"v_readfirstlane_b32 s{sRDY}, v{vT1}")
    stubs(f"s_cmp_gt_u32 s{sRDY}, s{sT}"); stubs(f"s_cbranch_scc1 POLLED_{tag}")
    stubs("s_sleep 1"); stubs(f"s_branch POLL_{tag}")
def publish(a):
    if not PACE: return
    a("s_mov_b64 exec, 1"); a(f"ds_inc_u32 v{vT0}, v{vEA} offset:{L_PROG}"); a("s_mov_b64 exec, -1")
def prio(a, pos):
    if PRIO[pos] != "-": a(f"s_setprio {PRIO[pos]}")
def totals(a, t):
    a(f"v_add_u32 v{t}, v{t}, v{t+1}")
    a(f"v_add_u32_sdwa v{t}, v{t}, v{t} dst_sel:DWORD dst_unused:UNUSED_PAD src0_sel:WORD_0 src1_sel:WORD_1")
    a(f"v_add_u32 v{t}, 31, v{t}"); a(f"v_lshrrev_b32 v{t}, 4, v{t}"); a(f"v_and_b32 v{t}, -2, v{t}")
    a("s_nop 0")
    for k in range(4): a(f"v_readlane_b32 s{sC+k}, v{t}, {k}")
    a(f"s_sub_i32 s{sC+4}, s{sC}, 1"); a(f"s_sub_i32 s{sC+5}, s{sC+2}, 1")
    a(f"s_max_i32 s{sC+4}, s{sC+4}, s{sC+1}"); a(f"s_max_i32 s{sC+5}, s{sC+5}, s{sC+3}")
    a(f"s_add_u32 s{sC+6}, s{sC+4}, s{sC+5}"); a(f"s_cmp_gt_u32 s{sC+6}, {NT-1}")

vL, vWS, vTR, XAD, SET, AB, AV = 1, 2, 36, 8, [48, 60, 72], 84, 100

def own_x(a):
    a(f"v_lshrrev_b32 v4, 4, v{vL}"); a(f"v_and_b32 v5, 15, v{vL}")
    a("v_xor_b32 v5, v5, v4"); a("v_lshlrev_b32 v5, 4, v5"); a("v_lshl_add_u32 v16, v4, 18, v5")
    for j in range(1, 4): a(f"v_xor_b32 v{16+j}, {64*j}, v16")
    a(f"s_lshl_b32 s{sTMP}, s2, 8"); a(f"s_lshl_b32 s{sTMP+1}, s{sCG}, 16"); a(f"s_add_u32 s{sTMP}, s{sTMP}, s{sTMP+1}")
    a(f"s_lshl_b32 s{sTMP+2}, s{sCG}, 12"); a(f"s_add_u32 s{sTMP+2}, s{sTMP+2}, {L_X}")
    for j in range(4):
        c16 = 8 * (j & 1) + 4 * (j >> 1)
        a(f"s_add_u32 m0, s{sTMP+2}, {j*1024}"); a(f"s_add_u32 s{sTMP+1}, s{sTMP}, {c16*4*65536:#x}")
        a(f"buffer_load_dwordx4 v{16+j}, {D(dX)}, s{sTMP+1} offen lds")
def w_group(a, sreg, lds):
    for d, base in ((dW0, lds), (dW1, lds + 32768)):
        a(f"s_add_u32 m0, s{sreg}, {base}"); a("s_nop 0")
        for i in range(4):
            a(f"buffer_load_dwordx4 v{vWS}, {D(d)}, s{sreg} offen offset:{i*1024} lds")

def gen(a, name):
    stubs = A()
    a(f"{name}:")
    a("s_cmp_ge_u32 s2, 256"); a("s_cbranch_scc1 F_END")
    a(f"s_load_dwordx2 s[{dDST}:{dDST+1}], s[0:1], 24")
    a(f"s_load_dwordx2 s[{dSRC}:{dSRC+1}], s[0:1], 16")
    a(f"s_load_dwordx2 s[{dX}:{dX+1}], s[0:1], 0")
    a(f"s_load_dwordx2 s[{dW0}:{dW0+1}], s[0:1], 40")
    a(f"s_load_dwordx2 s[{dW1}:{dW1+1}], s[0:1], 64")
    a(f"s_load_dwordx2 s[{sPA}:{sPA+1}], s[0:1], 32")
    a(f"s_load_dwordx2 s[{sPU}:{sPU+1}], s[0:1], 56")
    a(f"s_load_dwordx2 s[{dWC}:{dWC+1}], s[0:1], 48")
    a(f"s_load_dwordx2 s[{dWS}:{dWS+1}], s[0:1], 88")
    a(f"v_lshrrev_b32 v{vWS}, 6, v0")
    a(f"v_and_b32 v{vL}, 63, v0")
    a(f"v_readfirstlane_b32 s{sW}, v{vWS}")
    a(f"s_mov_b32 s{sID}, s2")
    a(f"s_lshr_b32 s{sU}, s2, 3"); a("s_and_b32 s2, s2, 7"); a("s_lshl_b32 s2, s2, 5"); a(f"s_or_b32 s2, s2, s{sU}")
    for d, nb in ((dDST, E*4), (dSRC, E*4), (dX, N*256), (dW0, 32768), (dW1, 32768), (dWC, 4096), (dWS, WS_OFF + NS*8192)):
        a(f"s_mov_b32 s{d+2}, {nb:#x}"); a(f"s_mov_b32 s{d+3}, 0x20000")
    a(f"s_and_b32 s{sCG}, s{sW}, 3")
    if WSB:
        a("s_waitcnt lgkmcnt(0)")
        a(f"s_add_u32 s{dWS}, s{dWS}, {WSB << 20:#x}"); a(f"s_addc_u32 s{dWS+1}, s{dWS+1}, 0")
    a(f"v_lshrrev_b32 v4, 4, v{vL}"); a("v_lshlrev_b32 v5, 2, v4"); a(f"v_and_b32 v6, 15, v{vL}")
    a("v_xor_b32 v5, v5, v6"); a("v_lshlrev_b32 v5, 4, v5"); a(f"v_lshl_add_u32 v{vWS}, v4, 8, v5")
    a(f"v_mov_b32 v{vT0}, 0")
    a("v_mov_b32 v32, 0")
    if STAMP:
        a("v_mov_b32 v167, 0"); a("s_memrealtime s[6:7]"); a("s_waitcnt lgkmcnt(0)"); a("v_writelane_b32 v167, s6, 61")
    stamp(a, "start")
    a(f"s_lshl_b32 s{sTMP}, s{sID}, 4"); a(f"s_add_u32 s{sTMP}, s{sTMP}, s3")
    a(f"s_cmp_lg_u32 s{sTMP}, 8"); a("s_cbranch_scc1 NOCLR")
    a(f"v_lshrrev_b32 v12, 2, v{vL}"); a(f"v_and_b32 v13, 3, v{vL}"); a("v_lshlrev_b32 v13, 4, v13")
    a("v_lshl_add_u32 v12, v12, 7, v13"); a(f"v_add_u32 v12, {WS_ARR:#x}, v12")
    a("v_mov_b64 v[8:9], 0"); a("v_mov_b64 v[10:11], 0")
    a(f"s_mov_b32 s{sTMP}, {NREP//2}")
    a("s_waitcnt lgkmcnt(0)")
    a("CLR:")
    a(f"buffer_store_dwordx4 v[8:11], v12, {D(dWS)}, 0 offen sc1")
    a(f"buffer_store_dwordx4 v[8:11], v12, {D(dWS)}, 0 offen offset:2048 sc1")
    a("v_add_u32 v12, 4096, v12")
    a(f"s_sub_u32 s{sTMP}, s{sTMP}, 1"); a(f"s_cmp_lg_u32 s{sTMP}, 0"); a("s_cbranch_scc1 CLR")
    a("NOCLR:")
    if CODEPF:
        a("s_cmp_lg_u32 s3, 0"); a("s_cbranch_scc1 NOCPF")
        a(f"s_getpc_b64 s[{sTMP}:{sTMP+1}]")
        a("PCREF:")
        a(f"s_lshl_b32 s{sTMP+2}, s{sU}, 7")
        a(f"v_lshl_add_u32 v160, v{vL}, 12, s{sTMP+2}")
        a("v_min_u32 v160, CODE_END-PCREF-4, v160")
        a("v_mov_b32 v161, 0")
        a(f"v_lshl_add_u64 v[160:161], v[160:161], 0, s[{sTMP}:{sTMP+1}]")
        a("s_mov_b64 exec, 31")
        a("global_load_dword v162, v[160:161], off")
        a("s_mov_b64 exec, -1")
        a("NOCPF:")
    def late_args():
        a(f"s_mov_b64 s[{dTAB}:{dTAB+1}], s[{dWS}:{dWS+1}]")
        a(f"s_load_dwordx2 s[{dEA}:{dEA+1}], s[0:1], 8")
        a(f"s_load_dwordx2 s[{dOUT}:{dOUT+1}], s[0:1], 72")
        a(f"s_load_dwordx2 s[{dDBG}:{dDBG+1}], s[0:1], 80")
        for d, nb in ((dTAB, TABO + N*512), (dEA, E*32), (dOUT, N*256), (dDBG, 256)):
            a(f"s_mov_b32 s{d+2}, {nb:#x}"); a(f"s_mov_b32 s{d+3}, 0x20000")
        a(f"s_mov_b32 s{sMODE}, 0"); a(f"s_mov_b32 s{sROUND}, 0")
        a(f"s_bfe_u32 s{sBETA}, s{sW}, 0x10002")
    def see_clear(tag):
        a(f"s_mov_b32 s{sOK}, 0")
        a("s_cmp_lg_u32 s3, 8"); a(f"s_cbranch_scc1 SC_D{tag}")
        a(f"s_load_dword s{sOK}, s[{dDBG}:{dDBG+1}], 0")
        a(f"SC_D{tag}:")
    def need_clear(tag):
        a("s_waitcnt lgkmcnt(0)")
        a(f"v_mov_b32 v24, s{sOK}")
        a(f"s_mov_b32 s{sTMP+5}, 0")
        a(f"NC_L{tag}:")
        a("v_cmp_eq_u32 vcc, 0, v24"); a(f"s_cbranch_vccz NC_E{tag}")
        a(f"s_add_u32 s{sTMP+5}, s{sTMP+5}, 1"); a(f"s_cmp_gt_u32 s{sTMP+5}, {SPIN:#x}"); a(f"s_cbranch_scc1 NC_E{tag}")
        a(f"buffer_load_dword v24, v{vT0}, {D(dDBG)}, 0 offen sc1")
        a("s_waitcnt vmcnt(0)"); a(f"s_branch NC_L{tag}")
        a(f"NC_E{tag}:")
    def page_touch(tag):
        if not TLB: return
        a(f"s_cmp_lg_u32 s3, {tag[1]}"); a(f"s_cbranch_scc1 PT_{tag[0]}")
        a(f"v_lshlrev_b32 v163, 12, v{vL}")
        if tag[0] == "G":
            a(f"s_mul_i32 s{sTMP+11}, s{sTMP+9}, {96*512}")
            a("s_mov_b64 exec, 0xfff")
            a(f"buffer_load_dword v162, v163, {D(dWS)}, s{sTMP+11} offen sc1")
        else:
            a(f"s_mul_i32 s{sTMP+11}, s{sID}, {CH*4}"); a(f"s_add_u32 s{sTMP+11}, s{sTMP+11}, {WS_REC:#x}")
            a("s_mov_b64 exec, 0xf")
            a(f"buffer_load_dword v162, v163, {D(dWS)}, s{sTMP+11} offen sc1")
            a(f"s_lshl_b32 s{sTMP+11}, s{sID}, 13"); a(f"s_add_u32 s{sTMP+11}, s{sTMP+11}, {WS_OFF:#x}")
            a("s_mov_b64 exec, 0x3")
            a(f"buffer_load_dword v162, v163, {D(dWS)}, s{sTMP+11} offen sc1")
        a("s_mov_b64 exec, -1")
        if TLB > 1:
            a(f"v_lshlrev_b32 v163, 18, v{vL}")
            a("s_waitcnt lgkmcnt(0)")
            a(f"buffer_load_dword v162, v163, {D(dEA)}, 0 offen")
        a(f"PT_{tag[0]}:")
    def wait_flags(stage):
        a(f"s_mov_b32 s{sTMP+5}, 0")
        if stage == 1:
            a("s_mov_b32 exec_hi, 0")
        for k in range(CDEPTH - 1):
            a(f"buffer_load_dwordx4 {vr(40+4*k,4)}, v32, {D(dWS)}, 0 offen sc1"); a(f"s_sleep {SLP}")
        a(f"WAITF{stage}:")
        for k in range(CDEPTH):
            b = 40 + 4 * k
            a(f"buffer_load_dwordx4 {vr(40+4*((k+CDEPTH-1)%CDEPTH),4)}, v32, {D(dWS)}, 0 offen sc1")
            a(f"s_waitcnt vmcnt({CDEPTH-1})")
            if stage == 1: a(f"v_or_b32 v{b+3}, v{b+3}, v36")
            a(f"v_and_b32 v{b}, v{b}, v{b+1}"); a(f"v_and_b32 v{b+2}, v{b+2}, v{b+3}"); a(f"v_and_b32 v{b}, v{b}, v{b+2}")
            a(f"v_cmpx_ne_u32 vcc, 1, v{b}"); a(f"s_cbranch_execz ALLIN{stage}")
            if SLP: a(f"s_sleep {SLP}")
        a(f"s_add_u32 s{sTMP+5}, s{sTMP+5}, 1"); a(f"s_cmp_lt_u32 s{sTMP+5}, {SPIN:#x}"); a(f"s_cbranch_scc1 WAITF{stage}")
        a(f"ALLIN{stage}:")
        a("s_mov_b64 exec, -1")
    def wait_alloc(tag, tmp):
        a(f"WA_{tag}:")
        a(f"ds_read_b32 v{tmp}, v{vT0} offset:{L_AD}"); a("s_waitcnt lgkmcnt(0)")
        a(f"v_readfirstlane_b32 s{sTMP+4}, v{tmp}"); a(f"s_cmp_lt_u32 s{sTMP+4}, 8"); a(f"s_cbranch_scc1 WA_{tag}")
    WCR = 152
    def wc_loads():
        a(f"v_and_b32 v{LO}, 31, v0"); a(f"v_bfe_u32 v{LO+1}, v0, 5, 1")
        a(f"s_lshl_b32 s{sTMP+10}, s{sCG}, 6")
        a(f"v_lshl_add_u32 v{vT1}, v{LO}, 1, s{sTMP+10}"); a(f"v_lshl_add_u32 v{vT1}, v{LO+1}, 11, v{vT1}")
        for j in range(8): a(f"buffer_load_ushort v{WCR+j}, v{vT1}, {D(dWC)}, 0 offen offset:{j*256}")
    def gemm_addr(xbase_sreg, wbase):
        a(f"v_lshrrev_b32 v5, 5, v{vL}"); a(f"v_bfe_u32 v4, v{vL}, 2, 2")
        a(f"v_lshl_add_u32 v{vTR}, v5, 3, v4"); a(f"v_lshlrev_b32 v{vTR}, 8, v{vTR}")
        a(f"v_xor_b32 v4, s{sCG}, v4"); a(f"v_lshl_add_u32 v{vTR}, v4, 6, v{vTR}")
        a(f"v_bfe_u32 v4, v{vL}, 4, 1"); a(f"v_lshl_add_u32 v{vTR}, v4, 5, v{vTR}")
        a(f"v_and_b32 v4, 3, v{vL}"); a(f"v_lshl_add_u32 v{vTR}, v4, 3, v{vTR}")
        a(f"v_add_u32 v{vTR}, {wbase}, v{vTR}")
        a(f"v_and_b32 v4, 15, v{vL}"); a("v_xor_b32 v4, v4, v5"); a("v_lshlrev_b32 v4, 4, v4")
        a(f"v_and_b32 v6, 31, v{vL}"); a("v_lshl_add_u32 v4, v6, 8, v4")
        a(f"v_add_u32 v{XAD}, s{xbase_sreg}, v4")
        for kk in range(1, 8): a(f"v_xor_b32 v{XAD+kk}, {kk*32}, v{XAD}")
    a(f"s_cmp_lt_u32 s{sID}, {NS}"); a("s_cbranch_scc1 SORT")
    a(f"s_sub_u32 s{sTMP+9}, s{sID}, {NS}")
    a("s_cmp_lt_u32 s3, 4"); a("s_cbranch_scc1 G_XLD")
    a(f"s_sub_u32 s{sTMP+3}, s3, 4"); a(f"s_lshl_b32 s{sTMP+3}, s{sTMP+3}, 12")
    a("s_waitcnt lgkmcnt(0)")
    w_group(a, sTMP + 3, L_WBV)
    late_args()
    a("s_branch G_LDD")
    a("G_XLD:")
    a(f"s_lshl_b32 s{sTMP+1}, s{sCG}, 2")
    a("v_xor_b32 v5, v6, v4"); a(f"v_xor_b32 v5, s{sTMP+1}, v5"); a("v_lshlrev_b32 v5, 4, v5"); a("v_lshl_add_u32 v20, v4, 8, v5")
    a(f"s_mul_i32 s{sTMP}, s{sTMP+9}, {96*256}"); a(f"s_lshl_b32 s{sTMP+1}, s{sCG}, 10")
    a(f"s_add_u32 s{sTMP}, s{sTMP}, s{sTMP+1}"); a(f"s_add_u32 s{sTMP+1}, s{sTMP+1}, {L_X96}")
    a("s_waitcnt lgkmcnt(0)")
    for i in range(6):
        a(f"s_add_u32 m0, s{sTMP+1}, {i*4096}"); a(f"s_add_u32 s{sTMP+2}, s{sTMP}, {i*4096}")
        a(f"buffer_load_dwordx4 v20, {D(dX)}, s{sTMP+2} offen {XPOL} lds")
    late_args()
    a("G_LDD:")
    page_touch(("G", 3))
    a("s_cmp_ge_u32 s3, 8"); a("s_cbranch_scc1 G_NWC")
    wc_loads()
    a("G_NWC:")
    a(f"s_lshr_b32 s{sTMP+4}, s3, 2")
    a(f"s_lshl_b32 s{sTMP+5}, s{sTMP+4}, 13"); a(f"s_add_u32 s{sTMP+5}, s{sTMP+5}, {L_X96}")
    gemm_addr(sTMP + 5, L_WBV)
    a(f"s_mul_i32 s{sTMP+5}, s{sTMP+9}, {96*512}"); a(f"s_lshl_b32 s{sTMP+6}, s{sTMP+4}, 14"); a(f"s_add_u32 s{sTMP+5}, s{sTMP+5}, s{sTMP+6}")
    a(f"s_lshl_b32 s{sTMP+6}, s{sCG}, 7"); a(f"s_add_u32 s{sTMP+5}, s{sTMP+5}, s{sTMP+6}")
    a(f"s_add_u32 s{sTMP+5}, s{sTMP+5}, {TABO:#x}")
    a("v_lshlrev_b32 v20, 2, v6"); a("v_lshl_add_u32 v20, v5, 11, v20"); a(f"v_add_u32 v20, s{sTMP+5}, v20")
    for q in range(1, 4): a(f"v_add_u32 v{20+q}, {4096*q}, v20")
    a(f"s_mov_b32 s{sSTAGE}, 0")
    a("s_waitcnt vmcnt(0) lgkmcnt(0)")
    stamp(a, "p1land")
    a(f"s_mov_b64 s[{dW0}:{dW0+1}], s[{sPA}:{sPA+1}]"); a(f"s_mov_b64 s[{dW1}:{dW1+1}], s[{sPU}:{sPU+1}]")
    a("s_barrier")
    a("s_cmp_lt_u32 s3, 8"); a("s_cbranch_scc1 CORE")
    a(f"s_lshl_b32 s{sTMP+3}, s{sCG}, 13")
    w_group(a, sTMP + 3, L_WAU)
    a(f"s_add_u32 s{sTMP+3}, s{sTMP+3}, 4096")
    w_group(a, sTMP + 3, L_WAU)
    a("CORE:")
    def reads(kk):
        b = SET[kk % 3]
        a(f"ds_read_b128 {vr(b,4)}, v{XAD+kk}")
        for u in range(2): a(f"ds_read_b64_tr_b16 {vr(b+4+2*u,2)}, v{vTR} offset:{kk*4096+u*1024}")
        for u in range(2): a(f"ds_read_b64_tr_b16 {vr(b+8+2*u,2)}, v{vTR} offset:{32768+kk*4096+u*1024}")
    for kk in range(3): reads(kk)
    for kk in range(8):
        b = SET[kk % 3]
        a(f"s_waitcnt lgkmcnt({5*min(7-kk,2)})")
        a(f"{MF} {vr(AV,16)}, {vr(b,4)}, {vr(b+8,4)}, {'0' if kk == 0 else vr(AV,16)}")
        a(f"{MF} {vr(AB,16)}, {vr(b,4)}, {vr(b+4,4)}, {'0' if kk == 0 else vr(AB,16)}")
        if kk + 3 < 8: reads(kk + 3)
        if kk == HOOKK:
            a(f"s_cmp_lg_u32 s{sSTAGE}, 0"); a("s_cbranch_scc1 HOOK"); a("HOOKED:")
    a(f"s_mov_b32 s{sTMP+6}, {NLOG2E:#x}")
    a(f"s_mov_b32 s{sTMP+7}, {NLOG2E:#x}")
    a(f"s_cmp_lg_u32 s{sSTAGE}, 0"); a("s_cbranch_scc1 AU_DONE")
    a(f"s_mov_b32 s{sTMP+5}, 0x7f7e0000")
    a("v_mov_b32 v4, 0x21800000")
    a("s_nop 2")
    stamp(a, "g_core")
    a("s_nop 2")
    VP, VN = 116, 124
    for i in range(8):
        a(f"v_cvt_pk_bf16_f32 v{VP+i}, v{AV+2*i}, v{AV+2*i+1}")
        a(f"v_xor_b32 v{VN+i}, 0x80008000, v{VP+i}")
    for q in range(4):
        R = range(4*q, 4*q+4)
        for r in R: a(f"v_fma_f32 v{AB+r}, v{AB+r}, s{sTMP+6}, v4")
        for r in R: a(f"v_med3_f32 v{AB+r}, v{AB+r}, -s{sTMP+5}, s{sTMP+5}")
        for r in R: a(f"v_sub_u32_sdwa v{AB+r}, v{AB+r}, sext(v{VN+r//2}) dst_sel:DWORD dst_unused:UNUSED_PAD src0_sel:DWORD src1_sel:WORD_{r&1}")
        for r in R: a(f"v_mov_b32_sdwa v{AB+r}, v{VP+r//2} dst_sel:WORD_0 dst_unused:UNUSED_PRESERVE src0_sel:WORD_{r&1}")
        a("s_nop 0")
        for r in R: a(f"buffer_store_dword v{AB+r}, v{20+q}, {D(dTAB)}, 0 offen offset:{(r&3)*512} sc1")
    stamp(a, "p1st")
    a("s_barrier")
    a("s_cmp_lt_u32 s3, 8"); a("s_cbranch_scc1 G_DRAIN")
    own_x(a)
    a("G_DRAIN:")
    a("s_branch ARRIVE")
    a("SORT:")
    if SPRIO: a("s_setprio 2")
    a("s_cmp_ge_u32 s3, 8"); a("s_cbranch_scc1 S_HELP")
    Dd, S, RK, RC, KA, SH = 16, 24, 32, 40, 48, 56
    a("v_lshlrev_b32 v11, 3, v0"); a("v_mov_b64 v[12:13], 0")
    a(f"ds_write_b64 v11, v[12:13] offset:{S_CNT}"); a(f"ds_write_b32 v{vT0}, v12 offset:{S_BAD}")
    a("v_lshlrev_b32 v6, 4, v0")
    a(f"s_mul_i32 s{sTMP}, s{sID}, {CH*4}"); a(f"s_add_u32 s{sTMP+1}, s{sTMP}, 8192")
    a("s_waitcnt lgkmcnt(0)")
    a(f"buffer_load_dwordx4 {vr(Dd,4)}, v6, {D(dDST)}, s{sTMP} offen {SDPOL}")
    a(f"buffer_load_dwordx4 {vr(S,4)}, v6, {D(dSRC)}, s{sTMP} offen {SDPOL}")
    a("s_cmp_ge_u32 s3, 5"); a("s_cbranch_scc1 S_0")
    a(f"buffer_load_dwordx4 {vr(Dd+4,4)}, v6, {D(dDST)}, s{sTMP+1} offen {SDPOL}")
    a(f"buffer_load_dwordx4 {vr(S+4,4)}, v6, {D(dSRC)}, s{sTMP+1} offen {SDPOL}")
    a("S_0:")
    a("s_barrier")
    wc_loads()
    late_args()
    a("v_lshlrev_b32 v5, 7, v0"); a("v_mov_b32 v8, 0")
    a(f"v_cmp_gt_u32 vcc, {(CH-2048)//4}, v0"); a(f"s_mov_b64 s[{sTMP+2}:{sTMP+3}], vcc")
    def keys(lo):
        for i in range(lo, lo + 4):
            a(f"v_lshlrev_b32_sdwa v9, 4, v{Dd+i} dst_sel:DWORD dst_unused:UNUSED_PAD src0_sel:DWORD src1_sel:BYTE_0")
            a(f"v_bfe_u32 v10, v{Dd+i}, 8, 2")
            a(f"v_lshrrev_b32 v{SH+i}, 7, v{S+i}")
            a(f"v_lshl_or_b32 v{KA+i}, v10, 2, v9")
            a(f"v_and_b32 v{SH+i}, 24, v{SH+i}")
            a(f"v_lshlrev_b32_e64 v9, v{SH+i}, 1")
            a(f"ds_add_rtn_u32 v{RK+i}, v{KA+i}, v9 offset:{S_CNT}")
        for i in range(lo, lo + 4):
            a(f"v_lshrrev_b32 v9, 10, v{Dd+i}")
            a(f"v_add_u32 v10, {(((i&3) + (2048 if i >= 4 else 0)) << 5) + 1:#x}, v5")
            a(f"v_lshl_or_b32 v10, v{S+i}, 18, v10")
            a(f"v_add_u32 v{RC+i}, v9, v10")
            a(f"v_lshlrev_b32 v{KA+i}, 1, v{KA+i}")
        for i in range(lo, lo + 4):
            a(f"s_waitcnt lgkmcnt({3-(i-lo)})"); a(f"v_bfe_u32 v{RK+i}, v{RK+i}, v{SH+i}, 8")
        a(f"v_max3_u32 v8, v8, v{RK+lo}, v{RK+lo+1}"); a(f"v_max3_u32 v8, v8, v{RK+lo+2}, v{RK+lo+3}")
    a("s_waitcnt vmcnt(8) lgkmcnt(0)")
    stamp(a, "p1land")
    keys(0)
    a(f"s_mov_b64 exec, s[{sTMP+2}:{sTMP+3}]"); a("s_cbranch_execz S_1")
    keys(4)
    a("S_1:")
    a("s_mov_b64 exec, -1")
    a("v_cmp_lt_u32 vcc, 62, v8"); a("s_cbranch_vccz S_1B")
    a("v_mov_b32 v9, -1"); a(f"ds_write_b32 v{vT0}, v9 offset:{S_BAD}"); a("s_waitcnt lgkmcnt(0)")
    a("S_1B:")
    a(f"v_lshlrev_b32 v9, 4, v{vL}"); a("v_mov_b64 v[92:93], 0")
    stamp(a, "s_keys")
    a("s_barrier")
    stamp(a, "s_b2")
    a(f"ds_read_b64 v[12:13], v11 offset:{S_CNT}")
    for q in range(4): a(f"ds_read_b128 {vr(76+4*q,4)}, v9 offset:{S_CNT+1024*q}")
    a(f"ds_read_b32 v15, v{vT0} offset:{S_BAD}")
    a("s_waitcnt lgkmcnt(5)")
    a("v_sad_u8 v10, v12, 0, 0"); a("v_sad_u8 v8, v13, 0, v10"); a("v_mov_b32 v14, v8")
    for q in range(4):
        a(f"s_cmp_gt_u32 s3, {2*q}"); a("s_cselect_b32 exec_lo, -1, 0")
        a(f"s_cmp_gt_u32 s3, {2*q+1}"); a("s_cselect_b32 exec_hi, -1, 0")
        a(f"s_waitcnt lgkmcnt({4-q})")
        for i in range(4):
            a(f"v_sad_u8 v{92+(i&1)}, v{76+4*q+i}, 0, v{92+(i&1)}")
    a("s_mov_b64 exec, -1")
    a("v_add_u32 v92, v92, v93")
    a("s_nop 1")
    for ctl in ("row_shr:1 row_mask:0xf", "row_shr:2 row_mask:0xf", "row_shr:4 row_mask:0xf", "row_shr:8 row_mask:0xf",
                "row_bcast:15 row_mask:0xa", "row_bcast:31 row_mask:0xc"):
        a(f"v_add_u32_dpp v92, v92, v92 {ctl} bank_mask:0xf"); a(f"v_add_u32_dpp v14, v14, v14 {ctl} bank_mask:0xf"); a("s_nop 0")
    a(f"v_readlane_b32 s{sTMP+5}, v92, 63")
    a("v_sub_u32 v14, v14, v8")
    a("s_waitcnt lgkmcnt(0)")
    a("v_or_b32 v73, v12, v15"); a("v_or_b32 v75, v13, v15")
    a(f"v_add_u32 v14, s{sTMP+5}, v14")
    a("v_mov_b32 v72, v14"); a("v_add_u32 v74, v14, v10")
    a("v_mov_b32 v64, v14"); a("v_mov_b32 v65, v12"); a("v_mov_b32 v66, v74"); a("v_mov_b32 v67, v13")
    a(f"ds_write_b128 v6, v[64:67] offset:{S_TBL}")
    a("s_waitcnt lgkmcnt(0)"); a("s_barrier")
    stamp(a, "s_b4")
    LK = 76
    def lookups(lo):
        for i in range(lo, lo + 4): a(f"ds_read_b64 {vr(LK+2*i,2)}, v{KA+i} offset:{S_TBL}")
    def place(lo, wait):
        for i in range(lo, lo + 4):
            a(f"s_waitcnt lgkmcnt({wait})")
            a(f"v_bfe_u32 v9, v{LK+2*i+1}, 0, v{SH+i}"); a(f"v_sad_u8 v9, v9, 0, v{LK+2*i}")
            a(f"v_add_lshl_u32 v9, v9, v{RK+i}, 2"); a(f"ds_write_b32 v9, v{RC+i} offset:{S_SRT}")
    lookups(0)
    a("s_cmp_ge_u32 s3, 5"); a("s_cbranch_scc1 S_2")
    a(f"s_mov_b64 exec, s[{sTMP+2}:{sTMP+3}]")
    lookups(4)
    a("s_mov_b64 exec, -1")
    place(0, 7)
    a(f"s_mov_b64 exec, s[{sTMP+2}:{sTMP+3}]")
    place(4, 7)
    a("s_branch S_3")
    a("S_2:")
    place(0, 3)
    a("S_3:")
    a("s_mov_b64 exec, -1")
    a(f"s_add_u32 s{sTMP}, s{sTMP}, {WS_REC:#x}"); a(f"s_add_u32 s{sTMP+1}, s{sTMP+1}, {WS_REC:#x}")
    a(f"s_lshl_b32 s{sTMP+4}, s{sID}, 13"); a(f"s_add_u32 s{sTMP+4}, s{sTMP+4}, {WS_OFF:#x}")
    if not OFFLATE:
        a("s_waitcnt vmcnt(0)")
        a(f"buffer_store_dwordx4 v[72:75], v6, {D(dWS)}, s{sTMP+4} offen sc1")
    a("s_waitcnt lgkmcnt(0)"); a("s_barrier")
    stamp(a, "s_b5")
    a(f"ds_read_b128 v[64:67], v6 offset:{S_SRT}"); a(f"ds_read_b128 v[68:71], v6 offset:{S_SRT+8192}")
    if OFFLATE:
        a("s_waitcnt vmcnt(0)")
        a(f"buffer_store_dwordx4 v[72:75], v6, {D(dWS)}, s{sTMP+4} offen sc1")
    a("s_waitcnt lgkmcnt(1)")
    a(f"buffer_store_dwordx4 v[64:67], v6, {D(dWS)}, s{sTMP} offen sc1")
    a("s_waitcnt lgkmcnt(0)")
    a(f"s_mov_b64 exec, s[{sTMP+2}:{sTMP+3}]"); a("s_cbranch_execz S_4")
    a(f"buffer_store_dwordx4 v[68:71], v6, {D(dWS)}, s{sTMP+1} offen sc1")
    a("S_4:")
    a("s_mov_b64 exec, -1")
    stamp(a, "p1st")
    a("s_branch ARRIVE")
    a("S_HELP:")
    if SPRIO: a("s_setprio 0")
    a("s_waitcnt lgkmcnt(0)")
    a(f"s_mov_b64 s[{dW0}:{dW0+1}], s[{sPA}:{sPA+1}]"); a(f"s_mov_b64 s[{dW1}:{dW1+1}], s[{sPU}:{sPU+1}]")
    late_args()
    a("s_barrier")
    a(f"s_lshl_b32 s{sTMP}, s{sID}, 4"); a(f"s_add_u32 s{sTMP}, s{sTMP}, s3")
    a(f"s_cmp_lg_u32 s{sTMP}, 8"); a("s_cbranch_scc1 S_H2")
    a("v_mov_b32 v5, 1")
    a("s_mov_b64 exec, 1")
    a("s_waitcnt vmcnt(0) lgkmcnt(0)")
    a(f"buffer_store_dword v5, v{vT0}, {D(dDBG)}, 0 offen sc1")
    a("s_mov_b64 exec, -1")
    a("S_H2:")
    a("s_waitcnt lgkmcnt(0)")
    page_touch(("S", 10))
    parts = [lambda: (a(f"s_lshl_b32 s{sTMP+3}, s{sCG}, 13"), w_group(a, sTMP + 3, L_WAU)),
             lambda: (a(f"s_add_u32 s{sTMP+3}, s{sTMP+3}, 4096"), w_group(a, sTMP + 3, L_WAU)),
             lambda: own_x(a)]
    for slot in range(3):
        for p, where in zip(parts, HPLAN):
            if int(where) == slot: p()
        if slot == 0: stamp(a, "s_keys")
        a("s_barrier")
    a("ARRIVE:")
    a("s_cmp_lt_u32 s3, 8"); a("s_cbranch_scc1 NODE")
    a("s_cmp_eq_u32 s3, 8"); a("s_cbranch_scc1 SIGNAL")
    a("s_waitcnt vmcnt(0)")
    a("s_barrier")
    a(f"s_cmp_ge_u32 s{sID}, {NS}"); a("s_cbranch_scc1 HELP")
    a("s_barrier")
    a("s_branch HELP")
    a("SIGNAL:")
    a(f"s_load_dword s{sOK}, s[{dDBG}:{dDBG+1}], 0")
    a(f"s_and_b32 s{sTMP}, s{sID}, 7"); a(f"s_lshl_b32 s{sTMP}, s{sTMP}, 7")
    a(f"s_bfe_u32 s{sTMP+1}, s{sID}, 0x40003"); a(f"s_lshl_b32 s{sTMP+1}, s{sTMP+1}, 2")
    a(f"s_add_u32 s{sTMP}, s{sTMP}, s{sTMP+1}")
    a(f"s_lshr_b32 s{sTMP+1}, s{sID}, 7"); a(f"s_lshl_b32 s{sTMP+1}, s{sTMP+1}, 10")
    a(f"s_add_u32 s{sTMP}, s{sTMP}, s{sTMP+1}"); a(f"s_add_u32 s{sTMP}, s{sTMP}, {WS_ARR:#x}")
    a(f"v_lshl_add_u32 v33, v{vL}, 11, s{sTMP}")
    a(f"s_and_b32 s{sTMP}, s{sID}, {NREP-1}"); a(f"s_lshl_b32 s{sTMP}, s{sTMP}, 11"); a(f"s_add_u32 s{sTMP}, s{sTMP}, {WS_ARR:#x}")
    a(f"v_lshrrev_b32 v32, 2, v{vL}"); a(f"v_and_b32 v34, 3, v{vL}"); a("v_lshlrev_b32 v34, 4, v34")
    a("v_lshl_add_u32 v32, v32, 7, v34"); a(f"v_add_u32 v32, s{sTMP}, v32")
    a("v_mov_b32 v35, 1")
    a("s_mov_b32 vcc_lo, 0x88800000"); a("s_mov_b32 vcc_hi, 0")
    a("v_cndmask_b32_e64 v36, 0, 1, vcc")
    a("s_mov_b64 exec, 1")
    need_clear("A")
    a(f"s_mov_b32 exec_lo, {(1 << min(NREP,32)) - 1:#x}"); a(f"s_mov_b32 exec_hi, {(1 << max(NREP-32,0)) - 1:#x}")
    a(f"s_mov_b32 s{sTMP+5}, 0")
    a("s_waitcnt vmcnt(0)")
    a("s_barrier")
    a(f"buffer_store_dword v35, v33, {D(dWS)}, 0 offen sc1")
    a("s_mov_b64 exec, -1")
    stamp(a, "arrive")
    a(f"s_cmp_ge_u32 s{sID}, {NS}"); a("s_cbranch_scc1 SIG2")
    a("s_barrier")
    a("SIG2:")
    wait_flags(1)
    a("s_branch HELP")
    a("NODE:")
    a(f"s_lshl_b32 s{sTMP+5}, s{sBETA}, 13"); a(f"s_add_u32 s{sTMP+5}, s{sTMP+5}, {L_X}")
    gemm_addr(sTMP + 5, L_WAU)
    a(f"s_lshl_b32 s{sTMP+2}, s{sCG}, 7")
    a(f"v_lshl_add_u32 v{LO+1}, v{LO}, 2, s{sTMP+2}"); a(f"v_cvt_f32_u32 v{LO+1}, v{LO+1}")
    a(f"v_mul_f32 v{LO+1}, 0x00800000, v{LO+1}"); a(f"v_lshrrev_b32 v{LO+1}, 16, v{LO+1}"); a(f"v_mov_b32 v{LO}, 0x08800500")
    a("s_mov_b32 exec_lo, 0"); a(f"v_mov_b64 {vr(LO,2)}, 0"); a("s_mov_b32 exec_lo, -1")
    a(f"s_mov_b32 s{sM0}, 0x0000ffff"); a(f"s_mov_b32 s{sM0+1}, 0x0000ffff")
    a(f"s_cmp_lt_u32 s{sID}, {NS}")
    a(f"s_cselect_b32 s{sSTAGE}, 2, 1")
    a(f"s_mov_b32 s{sTMP+6}, {NLOG2E:#x}")
    for j in range(8): a(f"v_lshlrev_b32 v{WCR+j}, 16, v{WCR+j}")
    for j in range(8): a(f"v_mul_f32 v{WCR+j}, s{sTMP+6}, v{WCR+j}")
    for j in range(4): a(f"v_cvt_pk_bf16_f32 v{WC+j}, v{WCR+2*j}, v{WCR+2*j+1}")
    a("ROUND:")
    for j in range(0, 8, 2): a(f"v_mov_b64 {vr(SA+j,2)}, 0")
    a(f"v_lshlrev_b32 v{LTMP+2}, 4, v0")
    for j in range(4): a(f"v_mov_b32 v{LTMP+4+j}, 0x43004300")
    a(f"ds_write_b128 v{LTMP+2}, {vr(LTMP+4,4)} offset:{L_IDX}")
    a(f"ds_write_b128 v{LTMP+2}, {vr(SA,4)} offset:{L_EOF}")
    a("s_cmp_lg_u32 s3, 0"); a("s_cbranch_scc1 R_Z")
    a(f"ds_write_b128 v{LTMP+2}, {vr(SA,4)}")
    a("R_Z:")
    a(f"v_mov_b32 v{LPAT}, 0x43004300")
    if "ptrick" in DBG:
        a("v_mov_b64 v[20:21], 0"); a("v_mov_b64 v[22:23], 0"); a("s_mov_b64 exec, 0x0101"); a("v_mov_b32 v20, 0x3000"); a("s_mov_b64 exec, -1")
    a(f"v_mov_b32 v{IA+1}, 0x3f80"); a(f"v_mov_b32 v{IA+3}, 0x3f80")
    a(f"v_bfe_u32 v{vT1}, v0, 5, 1")
    a(f"v_and_b32 v{vIDX}, 31, v0"); a(f"v_lshlrev_b32 v{vOT}, 4, v{vT1}"); a(f"v_lshl_add_u32 v{vOT}, v{vIDX}, 5, v{vOT}")
    a(f"v_lshlrev_b32 v{vIDX}, 2, v{vIDX}")
    a(f"v_bfe_u32 v{vSa}, v0, 2, 2"); a(f"v_lshl_add_u32 v{vSa}, v{vT1}, 3, v{vSa}"); a(f"v_lshlrev_b32 v{vSa}, 5, v{vSa}")
    a(f"v_and_b32 v{vS0}, 1, v0"); a(f"v_lshl_add_u32 v{vSa}, v{vS0}, 4, v{vSa}")
    a(f"v_bfe_u32 v{vS0}, v0, 1, 1"); a(f"v_lshl_add_u32 v{vSa}, v{vS0}, 3, v{vSa}")
    a(f"v_and_b32 v{LQ4}, 3, v0"); a(f"v_lshlrev_b32 v{LQ4}, 3, v{LQ4}")
    a(f"v_mov_b32 v{LONE}, 48")
    a(f"s_mov_b32 s{sT}, 0"); a(f"s_mov_b32 s{sRDY}, 0")
    a(f"s_mov_b32 s{sTMP+8}, 0x0c010c00"); a(f"s_mov_b32 s{sTMP+9}, 0x0c030c02"); a(f"s_mov_b32 s{sTMP+3}, 0x10001")
    a(f"s_cmp_lg_u32 s{sMODE}, 0"); a("s_cbranch_scc1 SLOWSRC")
    a(f"v_lshrrev_b32 v{LCHV}, 2, v0"); a(f"v_mov_b32 v{LKEY}, v{LQ4}")
    a(f"s_lshl_b32 s{sTMP}, s2, 5"); a(f"s_add_u32 s{sTMP}, s{sTMP}, {WS_OFF:#x}")
    a(f"v_lshl_add_u32 v{LTMP}, v{LCHV}, 13, v{LKEY}"); a(f"v_add_u32 v{LTMP}, s{sTMP}, v{LTMP}")
    a(f"v_mul_u32_u24 v{LRO}, {CH*4}, v{LCHV}"); a(f"v_lshlrev_b32 v{LCHV}, 3, v{LRO}"); a(f"v_add_u32 v{LRO}, {WS_REC:#x}, v{LRO}")
    a("s_waitcnt vmcnt(0) lgkmcnt(0)")
    a("s_barrier")
    stamp(a, "arrive")
    a("s_branch CORE")
    offload = f"buffer_load_dwordx2 {vr(LOFF,2)}, v{LTMP}, {D(dWS)}, 0 offen sc1"
    a("HOOK:")
    a("s_barrier")
    a(f"s_cmp_eq_u32 s{sSTAGE}, 2"); a("s_cbranch_scc1 HOOKED")
    a(offload)
    a("s_branch HOOKED")
    a("AU_DONE:")
    a(f"s_cmp_lg_u32 s{sSTAGE}, 2"); a("s_cbranch_scc1 AU_G")
    def au_pack():
        for j in range(8): a(f"v_cvt_pk_bf16_f32 v{UP+j}, v{AV+2*j}, v{AV+2*j+1}")
        for r in range(0, 16, 2): a(f"v_pk_mul_f32 {vr(AB+r,2)}, {vr(AB+r,2)}, s[{sTMP+6}:{sTMP+7}]")
        for j in range(8): a(f"v_cvt_pk_bf16_f32 v{AP+j}, v{AB+2*j}, v{AB+2*j+1}")
        for r in range(0, 32, 2): a(f"v_mov_b64 {vr(DEN+r,2)}, 0")
    a("s_barrier")
    a(offload)
    a("AU_G:")
    a("s_waitcnt vmcnt(0)")
    stamp(a, "off")
    a(f"v_lshl_add_u32 v{LRO}, v{LOFF}, 2, v{LRO}")
    a(f"v_sad_u8 v{LLEN}, v{LOFF+1}, 0, 0")
    for q in range(4):
        if q: a(f"v_cmpx_lt_u32 vcc, {4*q}, v{LLEN}"); a("s_cbranch_execz RECD")
        a(f"buffer_load_dwordx4 {vr(RECQ[q],4)}, v{LRO}, {D(dWS)}, 0 offen offset:{16*q} sc1")
    a("RECD:")
    a("s_mov_b64 exec, -1")
    a("ALLOC:")
    a(f"v_perm_b32 v{LC}, v{LOFF+1}, v{LOFF+1}, s{sTMP+8}"); a(f"v_perm_b32 v{LC+1}, v{LOFF+1}, v{LOFF+1}, s{sTMP+9}")
    a(f"ds_add_rtn_u64 {vr(LADJ,2)}, v{LKEY}, {vr(LC,2)} offset:{L_CNT}")
    a("s_mov_b64 exec, 1")
    a(f"ds_inc_u32 v{vT0}, v{LONE} offset:{L_AD}")
    a("s_mov_b64 exec, -1")
    a(f"v_sad_u8 v{LLEN}, v{LOFF+1}, 0, 0")
    wait_alloc("C", LTMP)
    stamp(a, "barA")
    a(f"ds_read_b64 {vr(LTMP,2)}, v{LQ4} offset:{L_CNT}"); a(f"ds_read_b64 {vr(LTOT,2)}, v{LKEY} offset:{L_CNT}")
    a(f"v_lshrrev_b32 v{LCB}, 4, v{LKEY}"); a(f"v_bfe_u32 v{LKEY}, v{LKEY}, 3, 1")
    a("s_waitcnt lgkmcnt(1)")
    totals(a, LTMP)
    a("s_cbranch_scc1 OVF")
    a("s_waitcnt lgkmcnt(0)")
    a(f"v_sub_u32 v{LTOT}, v{LTOT}, v{LC}"); a(f"v_sub_u32 v{LTOT+1}, v{LTOT+1}, v{LC+1}")
    a(f"v_lshl_add_u32 v{LADJ}, v{LTOT}, 16, v{LADJ}"); a(f"v_lshl_add_u32 v{LADJ+1}, v{LTOT+1}, 16, v{LADJ+1}")
    a(f"v_add_u32_sdwa v{LTOT}, v{LTOT}, v{LTOT} dst_sel:DWORD dst_unused:UNUSED_PAD src0_sel:WORD_0 src1_sel:WORD_1")
    a(f"v_mad_u32_u24 v{LCB}, v{LCB}, s{sC+4}, v{LKEY}")
    a(f"v_mad_u32_u24 v{LADJ+1}, v{LTOT}, s{sTMP+3}, v{LADJ+1}")
    a(f"v_lshlrev_b32 v{LCB}, 7, v{LCB}"); a(f"v_lshlrev_b64 {vr(LADJ,2)}, 2, {vr(LADJ,2)}")
    a(f"s_cmp_eq_u32 s{sBETA}, 0")
    a(f"s_cselect_b32 s{sF0}, 0, s{sC+4}"); a(f"s_cselect_b32 s{sL0}, s{sC}, s{sC+2}")
    a(f"s_cselect_b32 s{sL1}, s{sC+1}, s{sC+3}"); a(f"s_cselect_b32 s{sTEND}, s{sC+4}, s{sC+5}")
    a(f"s_sub_u32 s{sG0}, s{sL0}, 1"); a(f"s_sub_u32 s{sG1}, s{sL1}, 1")
    a(f"s_lshl_b32 s{sTMP}, s{sF0}, 7"); a(f"s_add_u32 s{sTMP}, s{sTMP}, {L_IDX}"); a(f"v_add_u32 v{vIDX}, s{sTMP}, v{vIDX}")
    a(f"s_lshl_b32 s{sTMP}, s{sF0}, 10"); a(f"s_add_u32 s{sTMP+1}, s{sTMP}, {L_O}")
    a(f"v_add_u32 v{vOT}, s{sTMP+1}, v{vOT}"); a(f"v_add_u32 v{vSa}, s{sTMP+1}, v{vSa}"); a(f"v_add_u32 v{vEA}, {L_EA-L_O}, v{vOT}")
    a(f"v_or_b32 v{vS1}, 24, v{vSa}"); a(f"v_add_u32 v{vS0}, 1024, v{vS1}")
    a(f"v_cndmask_b32_e64 v{vS0}, v{vS0}, v{vSa}, s[{sM0}:{sM0+1}]"); a(f"v_cndmask_b32_e64 v{vS1}, v{vSa}, v{vS1}, s[{sM0}:{sM0+1}]")
    a(f"v_mov_b32 v{vSX}, 0xdddd")
    a(f"s_mov_b32 s{sTMP}, 0x1ffff"); a(f"s_mov_b32 s{sTMP+1}, 0xff80"); a(f"s_mov_b32 s{sTMP+2}, 0x007f007f")
    a(f"s_mov_b32 s{sTMP+10}, {ETQ*128}")
    stamp(a, "adj")
    a("PLACE:")
    a("s_waitcnt vmcnt(0)")
    stamp(a, "rec")
    for s in range(16):
        rec = RECQ[s >> 2] + (s & 3); b = LTMP + 6 * (s & 1)
        a(f"v_cmpx_lt_u32 vcc, {s}, v{LLEN}"); a("s_cbranch_execz PLACED")
        a(f"v_and_b32_sdwa v{b+2}, v{rec}, v{LONE} dst_sel:DWORD dst_unused:UNUSED_PAD src0_sel:BYTE_3 src1_sel:DWORD")
        a(f"v_lshrrev_b32 v{b+3}, 18, v{rec}"); a(f"v_lshl_or_b32 v{b+3}, v{b+3}, 9, v{b+3}"); a(f"v_and_b32 v{b+4}, s{sTMP}, v{rec}")
        a(f"v_lshrrev_b64 {vr(b,2)}, v{b+2}, {vr(LADJ,2)}")
        a(f"v_and_or_b32 v{b+3}, v{b+3}, s{sTMP+2}, v{LPAT}"); a(f"v_add_u16 v{b}, {4*s}, v{b}")
        a(f"v_add_u32 v{b+4}, v{b+4}, v{LCHV}"); a(f"v_and_b32 v{b+1}, s{sTMP+1}, v{b}")
        if s < ETS:
            a(f"v_cmp_gt_u32 vcc, s{sTMP+10}, v{b}")
        a(f"v_add3_u32 v{b}, v{b}, v{b+1}, v{LCB}")
        a(f"ds_write2st64_b32 v{b}, v{b+3}, v{b+4} offset0:{L_IDX//256} offset1:{L_EOF//256}")
        if s < ETS:
            a(f"s_and_saveexec_b64 s[{sTMP+4}:{sTMP+5}], vcc")
            a(f"buffer_load_ubyte v163, v{b+4}, {D(dEA)}, 0 offen")
            a(f"s_mov_b64 exec, s[{sTMP+4}:{sTMP+5}]")
    a(f"v_cmpx_lt_u32 vcc, 16, v{LLEN}"); a("s_cbranch_execz PLACED")
    a(f"v_subrev_u32 v{LLEN}, 16, v{LLEN}"); a(f"v_add_u32 v{LRO}, 64, v{LRO}")
    a(f"v_add_u32 v{LADJ}, 0x00400040, v{LADJ}"); a(f"v_add_u32 v{LADJ+1}, 0x00400040, v{LADJ+1}")
    for q in range(4): a(f"buffer_load_dwordx4 {vr(RECQ[q],4)}, v{LRO}, {D(dWS)}, 0 offen offset:{16*q} sc1")
    a("s_branch PLACE")
    a("PLACED:")
    a("s_mov_b64 exec, -1")
    stamp(a, "placed")
    a("s_waitcnt lgkmcnt(0)"); a("s_barrier")
    stamp(a, "bar2")
    a(f"s_cmp_lt_i32 s{sTEND}, 1"); a("s_cbranch_scc1 NOTILE")
    idx_reads(a, 0); idx_reads(a, 1, IA + 2)
    a("s_waitcnt lgkmcnt(0)")
    a(addr_mm(RAW[0])); a(addr_mm(RAW[1], IA + 2))
    a("s_nop 15"); a("s_nop 3")
    gathers(a, RAW[0]); gathers(a, RAW[1])
    idx_reads(a, 2)
    stamp(a, "g01")
    a("NOTILE:")
    a(f"s_cmp_eq_u32 s{sSTAGE}, 0"); a("s_cbranch_scc1 NOPACK")
    a(f"s_mov_b32 s{sTMP+6}, {NLOG2E:#x}"); a(f"s_mov_b32 s{sTMP+7}, {NLOG2E:#x}")
    au_pack()
    t = IX
    a(f"v_bfe_u32 v{t}, v0, 5, 1"); a(f"v_bfe_u32 v{t+1}, v0, 3, 2")
    a(f"s_lshl_b32 s{sTMP+4}, s{sCG}, 2")
    a(f"v_lshl_or_b32 v{t+1}, v{t}, 2, v{t+1}"); a(f"v_xor_b32 v{t+1}, s{sTMP+4}, v{t+1}")
    a(f"v_and_b32 v{t+2}, 7, v0"); a(f"v_lshlrev_b32 v{t+2}, 1, v{t+2}"); a(f"v_lshl_or_b32 v{t+1}, v{t+1}, 4, v{t+2}")
    a(f"s_lshl_b32 s{sTMP+5}, s{sBETA}, 13"); a(f"s_add_u32 s{sTMP+5}, s{sTMP+5}, {L_X}")
    a(f"v_lshl_add_u32 v{t}, v{t}, 10, s{sTMP+5}"); a(f"v_add_u32 v{vEX}, v{t}, v{t+1}")
    a(f"v_bfe_u32 v{t}, v0, 2, 4"); a(f"v_and_b32 v{t+1}, 3, v0"); a(f"v_or_b32 v{t+2}, s{sTMP+4}, v{t+1}"); a(f"v_xor_b32 v{t+2}, v{t+2}, v{t}")
    a(f"v_lshlrev_b32 v{t+2}, 4, v{t+2}"); a(f"v_lshl_add_u32 v{t+2}, v{t}, 8, v{t+2}"); a(f"v_add_u32 v{vEX+1}, s{sTMP+5}, v{t+2}")
    a(f"v_bfe_u32 v{t+3}, v0, 2, 2"); a(f"v_bfe_u32 v{t}, v0, 4, 1"); a(f"v_lshl_or_b32 v{t+3}, v{t}, 3, v{t+3}")
    a(f"v_bfe_u32 v{t}, v0, 5, 1"); a(f"v_lshl_or_b32 v{t+3}, v{t}, 2, v{t+3}"); a(f"v_lshlrev_b32 v{t+1}, 4, v{t+1}"); a(f"v_lshl_or_b32 v{t+3}, v{t+3}, 18, v{t+1}")
    a(f"s_lshl_b32 s{sTMP+4}, s{sBETA}, 17"); a(f"s_lshl_b32 s{sTMP+5}, s2, 8"); a(f"s_add_u32 s{sTMP+4}, s{sTMP+4}, s{sTMP+5}")
    a(f"s_lshl_b32 s{sTMP+5}, s{sCG}, 6"); a(f"s_add_u32 s{sTMP+4}, s{sTMP+4}, s{sTMP+5}")
    a(f"v_add_u32 v{vEX+2}, s{sTMP+4}, v{t+3}"); a(f"v_add_u32 v{vEX+3}, 0x10000, v{vEX+2}")
    a(f"s_mov_b32 s{sSTAGE}, 0")
    a("NOPACK:")
    a(f"s_cmp_lt_i32 s{sTEND}, 1"); a("s_cbranch_scc1 RDONE")
    for r in range(0, 16, 2): a(f"v_mov_b64 {vr(G[1]+r,2)}, 0")
    poll(a, stubs, "P")
    stamp(a, "polled")
    a(f"ds_read_b128 {vr(IX,4)}, v{vEA}"); a(f"ds_read_b128 {vr(IX+4,4)}, v{vOT}")
    a(f"s_waitcnt vmcnt(16) lgkmcnt(0)")
    a(f"{MF} {vr(G[0],16)}, {vr(IX,4)}, {vr(WC,4)}, {vr(RAW[0],16)}")
    a(f"{MF} {vr(G[0],16)}, {vr(IX+4,4)}, {vr(AP,4)}, {vr(G[0],16)}")
    a("s_nop 11")
    stamp(a, "loop0")
    a(".p2align 6")
    a("LOOP:")
    for ph in range(6):
        R0, R1, R2 = RAW[ph % 3], RAW[(ph + 1) % 3], RAW[(ph + 2) % 3]
        Gc, Gn = G[ph % 2], G[(ph + 1) % 2]
        APn = AP + 4 * ((ph + 1) % 2); vS = (vS0, vS1)[ph % 2]
        ms = ms_list(Gn)
        a(f"s_cmp_ge_u32 s{sT}, s{(sL0, sL1)[ph % 2]}"); a(f"s_cbranch_scc1 SKIP_{ph}")
        a(f"s_add_u32 s{sT}, s{sT}, 1")
        prio(a, 0)
        if ITS: a("s_memtime s[4:5]"); a(f"s_add_u32 m0, s{sT}, 19")
        if ITS: a("s_waitcnt lgkmcnt(0)"); a("v_writelane_b32 v167, s4, m0")
        cnt = {k: 0 for k in "erasmDN"}
        rdy = ph % RDYP == RDYP - 2
        lg = []
        def need(tag):
            last = max(i for i, t in enumerate(lg) if t == tag)
            return len(lg) - 1 - last
        sseen = False
        for tk in SCHED:
            if tk in "er":
                for i in range(4*cnt[tk], 4*cnt[tk]+4): a(f"v_{'exp' if tk == 'e' else 'rcp'}_f32 v{Gc+i}, v{Gc+i}")
            elif tk == "a":
                for i in range(8*cnt[tk], 8*cnt[tk]+8, 2): a(f"v_pk_add_f32 {vr(Gc+i,2)}, {vr(Gc+i,2)}, 1.0 op_sel_hi:[1,0]")
            elif tk == "s" and "ptrick" in DBG:
                a(f"{SMF} {vr(Gn,16)}, {vr(20,4)}, {vr(R1+8*cnt[tk],8)}, v{vSX}")
            elif tk == "s":
                if SHL64:
                    for i in range(8*cnt[tk], 8*cnt[tk]+8, 2): a(f"v_lshlrev_b64 {vr(R0+i,2)}, 16, {vr(R0+i,2)}")
                else:
                    for i in range(8*cnt[tk], 8*cnt[tk]+8): a(f"v_lshlrev_b32 v{R0+i}, 16, v{R0+i}")
            elif tk == "m":
                for i in range(8*cnt[tk], 8*cnt[tk]+8, 2): a(f"v_pk_mul_f32 {vr(R0+i,2)}, {vr(R0+i,2)}, {vr(Gc+i,2)}")
            elif tk == "D":
                a(ms[cnt[tk]])
            elif tk == "N":
                if not sseen: a(f"s_waitcnt lgkmcnt({need('L')})"); sseen = True
                else: a("s_nop 0")
                if cnt[tk] == 1: a(f"s_cmp_ge_u32 s{sT}, s{sTEND}")
                elif a.l[-2].strip().startswith("v_pk_mul"): a("s_nop 0")
                a(smf(NUM, R0, cnt[tk]))
            elif tk == "G":
                a(f"s_waitcnt vmcnt(16) lgkmcnt({need('A')})")
                a(f"{MF} {vr(Gn,16)}, {vr(IX,4)}, {vr(WC,4)}, {vr(R1,16)}")
            elif tk == "H":
                a(f"{MF} {vr(Gn,16)}, {vr(IX+4,4)}, {vr(APn,4)}, {vr(Gn,16)}")
            elif tk == "L":
                for u in range(4): a(f"ds_read_b64_tr_b16 {vr(SA+2*u,2)}, v{vS} offset:{ph*1024+(u>>1)*512+(u&1)*128}")
                lg += ["L"] * 4
            elif tk == "A":
                a(addr_mm(R2)); apos = len(a.l)
            elif tk == "V":
                if ph % RDYP == RDYP - 1: a(f"v_readfirstlane_b32 s{sRDY}, v{vT1}")
                a(f"s_cmp_ge_u32 s{sT}, s{(sG0, sG1)[ph % 2]}"); a(f"s_cbranch_scc1 NOG_{ph}")
                assert len(a.l) - apos >= 14
                gathers(a, R2)
                a(f"NOGD_{ph}:")
                stubs(f"NOG_{ph}:"); stubs("s_waitcnt vmcnt(0)"); stubs(f"s_branch NOGD_{ph}")
                if ph % 2 == 1: publish(a)
                poll(a, stubs, ph)
                idx_reads(a, ph + 3)
                if rdy: a(f"ds_read_b32 v{vT1}, v{vT0} offset:{L_RDY}")
                a(f"ds_read_b128 {vr(IX,4)}, v{vEA} offset:{(ph+1)*1024}"); a(f"ds_read_b128 {vr(IX+4,4)}, v{vOT} offset:{(ph+1)*1024}")
                lg += ["A", "A"]
            else:
                prio(a, int(tk))
            if tk in cnt: cnt[tk] += 1
        assert cnt == dict(e=4, r=4, a=2, s=2, m=2, D=2, N=2) and SCHED.endswith("mN")
        a(f"s_cbranch_scc1 DRAIN_{ph%2}")
        a(f"NEXT_{ph}:")
        stubs(f"SKIP_{ph}:")
        stubs(f"s_add_u32 s{sT}, s{sT}, 1")
        st2 = A()
        if ph % 2 == 1: publish(stubs)
        poll(stubs, st2, f"S{ph}")
        idx_reads(stubs, ph + 3)
        stubs(f"ds_read_b128 {vr(IX,4)}, v{vEA} offset:{(ph+1)*1024}"); stubs(f"ds_read_b128 {vr(IX+4,4)}, v{vOT} offset:{(ph+1)*1024}")
        for m in ms: stubs(m)
        for r in range(0, 16, 2): stubs(f"v_mov_b64 {vr(Gc+r,2)}, 0")
        for j in range(0, 8, 2): stubs(f"v_mov_b64 {vr(SA+j,2)}, 0")
        stubs("s_waitcnt vmcnt(0) lgkmcnt(0)")
        stubs(f"{MF} {vr(Gn,16)}, {vr(IX,4)}, {vr(WC,4)}, {vr(R1,16)}")
        stubs(f"{MF} {vr(Gn,16)}, {vr(IX+4,4)}, {vr(APn,4)}, {vr(Gn,16)}")
        stubs("s_nop 9")
        stubs(f"s_branch NEXT_{ph}")
        stubs.l += st2.l
    a(f"v_add_u32 v{vIDX}, {6*128}, v{vIDX}"); a(f"v_add_u32 v{vEA}, {6*1024}, v{vEA}")
    a(f"v_add_u32 v{vOT}, {6*1024}, v{vOT}")
    a(f"v_add_u32 v{vS0}, {6*1024}, v{vS0}"); a(f"v_add_u32 v{vS1}, {6*1024}, v{vS1}")
    a("s_branch LOOP")
    for p in range(2):
        a(f"DRAIN_{p}:"); a("s_waitcnt lgkmcnt(0)")
        for m in ms_list(G[p]): a(m)
        if p == 0: a("s_branch RDONE")
    a("RDONE:")
    a(f"v_mov_b32 v{vT1}, 16"); a(f"ds_add_u32 v{vT0}, v{vT1} offset:{L_PROG}")
    a(f"s_cmp_lg_u32 s{sMODE}, 0"); a("s_cbranch_scc1 SLOWNEXT")
    a("EPI:")
    stamp(a, "loopend")
    XD = G[1]
    for r in range(0, 16, 2): a(f"v_mov_b64 {vr(XD+r,2)}, 0")
    xa = lambda r: vEX if (r & 7) == 0 else SA + (r & 7)
    for r in range(1, 8): a(f"v_xor_b32 v{SA+r}, {(8*(r>>2)+(r&3))*16}, v{vEX}")
    for r in range(16): a(f"ds_read_u16_d16_hi v{XD+r}, v{xa(r)} offset:{(8*(r>>2)+(r&3))*256}")
    a(f"s_mov_b32 s{sTMP+4}, 0x358637bd"); a(f"s_mov_b32 s{sTMP+5}, 0x358637bd")
    for r in range(0, 16, 2): a(f"v_pk_add_f32 {vr(DEN+r,2)}, {vr(DEN+r,2)}, s[{sTMP+4}:{sTMP+5}]")
    for r in range(16): a(f"v_rcp_f32 v{DEN+r}, v{DEN+r}")
    UD = G[0]
    for r in range(16):
        a(f"v_and_b32 v{UD+r}, 0xffff0000, v{UP+r//2}" if r & 1 else f"v_lshlrev_b32 v{UD+r}, 16, v{UP+r//2}")
    for r in range(0, 16, 2): a(f"v_pk_fma_f32 {vr(UD+r,2)}, {vr(NUM+r,2)}, {vr(DEN+r,2)}, {vr(UD+r,2)}")
    for r in range(16): a(f"v_max_f32 v{UD+r}, 0, v{UD+r}")
    a("s_waitcnt lgkmcnt(0)")
    for r in range(0, 16, 2): a(f"v_pk_add_f32 {vr(UD+r,2)}, {vr(UD+r,2)}, {vr(XD+r,2)}")
    for j in range(8): a(f"v_cvt_pk_bf16_f32 v{XD+j}, v{UD+2*j}, v{UD+2*j+1}")
    for r in range(16):
        a(f"{'ds_write_b16_d16_hi' if r & 1 else 'ds_write_b16'} v{xa(r)}, v{XD+r//2} offset:{(8*(r>>2)+(r&3))*256}")
    a(f"ds_read_b128 {vr(UD,4)}, v{vEX+1}"); a(f"ds_read_b128 {vr(UD+4,4)}, v{vEX+1} offset:4096")
    a("s_waitcnt lgkmcnt(1)"); a(f"buffer_store_dwordx4 {vr(UD,4)}, v{vEX+2}, {D(dOUT)}, 0 offen {OPOL}")
    a("s_waitcnt lgkmcnt(0)"); a(f"buffer_store_dwordx4 {vr(UD+4,4)}, v{vEX+3}, {D(dOUT)}, 0 offen {OPOL}")
    if STAMP:
        a("s_waitcnt vmcnt(0)"); a(f"s_add_u32 s6, s{sL0}, s{sL1}"); a("s_lshr_b32 s6, s6, 1")
    stamp(a, "end"); stamp_out(a, "s6")
    a("F_END:")
    a("s_endpgm")
    a.l += stubs.l
    a("SLOWNEXT:")
    a(f"s_cmp_eq_u32 s{sROUND}, 999"); a("s_cbranch_scc1 EPI")
    a(f"s_add_u32 s{sROUND}, s{sROUND}, 1")
    a("OVF:")
    a(f"s_mov_b32 s{sMODE}, 1")
    a("s_waitcnt vmcnt(0) lgkmcnt(0)"); a("s_barrier"); a("s_branch ROUND")
    a("SLOWSRC:")
    a(f"s_mul_i32 s{sTMP}, s{sROUND}, 1600"); a(f"v_lshlrev_b32 v{LRO}, 2, v0")
    a(f"buffer_load_dword v{LKEY}, v{LRO}, {D(dDST)}, s{sTMP} offen"); a(f"buffer_load_dword v{LOFF}, v{LRO}, {D(dSRC)}, s{sTMP} offen")
    a(f"s_mul_i32 s{sTMP+2}, s{sROUND}, {400*32}")
    a(f"v_lshl_add_u32 v{LTMP}, v0, 5, 1"); a(f"v_mov_b32 v{LCHV}, s{sTMP+2}")
    a("s_waitcnt vmcnt(0) lgkmcnt(0)"); a("s_barrier")
    a(f"v_lshl_or_b32 v{LTMP}, v{LOFF}, 18, v{LTMP}"); a(f"v_lshrrev_b32 v{LTMP+1}, 10, v{LKEY}")
    a(f"v_add_u32 v{RECQ[0]}, v{LTMP+1}, v{LTMP}")
    a(f"v_and_b32 v{LTMP+1}, 255, v{LKEY}"); a(f"v_cmp_eq_u32 vcc, s2, v{LTMP+1}")
    a(f"v_lshrrev_b32 v{LOFF}, 7, v{LOFF}"); a(f"v_and_b32 v{LOFF}, 24, v{LOFF}")
    a(f"v_cndmask_b32_e64 v{LOFF+1}, 0, 1, vcc"); a("v_cmp_gt_u32 vcc, 400, v0")
    a(f"v_bfe_u32 v{LKEY}, v{LKEY}, 8, 2"); a(f"v_lshlrev_b32 v{LOFF+1}, v{LOFF}, v{LOFF+1}"); a(f"v_lshlrev_b32 v{LKEY}, 3, v{LKEY}")
    a(f"v_cndmask_b32 v{LOFF+1}, 0, v{LOFF+1}, vcc")
    a("s_branch ALLOC")
    a("HELP:")
    a("PROUND:")
    a(f"v_and_b32 v15, 3, v{vL}"); a("v_lshlrev_b32 v15, 3, v15")
    a(f"v_lshrrev_b32 v2, 1, v{vL}"); a("v_lshlrev_b32 v2, 2, v2")
    a(f"v_and_b32 v3, 1, v{vL}"); a("v_lshlrev_b32 v3, 4, v3")
    a("v_mov_b32 v5, 1")
    a(f"v_and_b32 v10, 7, v{vL}"); a(f"v_bfe_u32 v11, v{vL}, 3, 1"); a("v_lshlrev_b32 v10, 1, v10")
    a(f"v_lshl_add_u32 v10, v11, {LUT_H}, v10"); a(f"v_lshl_add_u32 v10, v{vL}, 4, v10"); a("v_mov_b32 v11, 0x3f80")
    if RPF:
        a(f"v_lshrrev_b32 v12, 4, v{vL}"); a(f"v_mul_u32_u24 v12, {32*CH*4}, v12")
        a(f"v_and_b32 v13, 15, v{vL}"); a("v_lshl_add_u32 v12, v13, 7, v12")
        a(f"s_mul_i32 s{sTMP}, s{sU}, {CH*4}"); a(f"s_lshr_b32 s{sTMP+1}, s2, 5"); a(f"s_mul_i32 s{sTMP+1}, s{sTMP+1}, 1604")
        a(f"s_add_u32 s{sTMP}, s{sTMP}, s{sTMP+1}"); a(f"s_add_u32 s{sTMP}, s{sTMP}, {WS_REC - 192:#x}")
        a(f"v_add_u32 v12, s{sTMP}, v12"); a(f"v_min_u32 v12, {WS_REC + NS*CH*4 - 4:#x}, v12"); a(f"v_max_u32 v12, {WS_REC:#x}, v12")
    stamp(a, "pre")
    a("s_barrier")
    stamp(a, "go")
    if RPF:
        a("s_cmp_lg_u32 s3, 9"); a("s_cbranch_scc1 H_R")
        a(f"s_cmp_lg_u32 s{sMODE}, 0"); a("s_cbranch_scc1 H_R")
        a(f"buffer_load_dword v161, v12, {D(dWS)}, 0 offen sc1")
        a("H_R:")
    a("s_mov_b64 exec, 0x1fff"); a(f"ds_write_b16 v10, v11 offset:{L_LUT+16}"); a("s_mov_b64 exec, -1")
    a("s_cmp_lg_u32 s3, 8"); a("s_cbranch_scc1 H_G2")
    a(f"s_cmp_lg_u32 s{sMODE}, 0"); a("s_cbranch_scc1 H_G2")
    a(f"v_lshlrev_b32 v14, 7, v{vL}"); a(f"s_lshl_b32 s{sTMP}, s{sU}, 13"); a(f"v_add_u32 v14, s{sTMP}, v14")
    wait_flags(2)
    stamp(a, "go2")
    if PFW: wait_alloc("P", 8)
    for i in range(PF):
        a(f"s_mov_b32 s{sTMP}, {(i>>1)*2097152 + (i&1)*262144:#x}")
        a(f"buffer_load_dword v160, v14, {D(dTAB)}, s{sTMP} offen sc1")
    a("H_G2:")
    a("s_sleep 8")
    wait_alloc("H", 8)
    a(f"ds_read_b64 v[8:9], v15 offset:{L_CNT}")
    a("s_waitcnt lgkmcnt(0)")
    totals(a, 8)
    a("s_cbranch_scc1 POVF")
    a("s_cmp_lg_u32 s3, 8"); a("s_cbranch_scc1 EXP")
    a(f"s_max_u32 s{sTEND}, s{sC+4}, s{sC+5}")
    a(f"s_lshl_b32 s{sTMP+2}, s{sC+4}, 7"); a(f"v_add_u32 v6, s{sTMP+2}, v2")
    a(f"s_mov_b32 s{sT}, 0"); a(f"s_mov_b32 s{sTMP}, {L_EA}"); a(f"s_mov_b32 s{sTMP+3}, {-4*(PK+LEADX)}"); a(f"s_mov_b32 s{sRDY}, 0")
    a(f"s_lshl_b32 s{sTMP+1}, s{sC+4}, 10"); a(f"s_add_u32 s{sTMP+1}, s{sTMP+1}, {L_EA}")
    a(f"s_mov_b32 s{sTMP+6}, -32"); a(f"s_mov_b32 s{sTMP+7}, 0")
    if PPRIO: a(f"s_setprio {PPRIO}")
    a("s_barrier")
    stamp(a, "bar2")
    a(f"ds_read_b32 v10, v2 offset:{L_EOF}"); a(f"ds_read_b32 v11, v6 offset:{L_EOF}")
    a("PSTEP:")
    a(f"s_cmp_ge_u32 s{sT}, s{sTEND}"); a("s_cbranch_scc1 PDRAIN")
    if PACE: a(f"s_cmp_lt_i32 s{sRDY}, s{sTMP+3}"); a("s_cbranch_scc1 PW")
    a("PWD:")
    a(f"s_min_u32 m0, s{sTMP}, {L_EA + NT*1024}")
    a("s_waitcnt lgkmcnt(0)")
    for hb in range(2):
        a(f"v_mov_b32 v{12+hb}, v3" if NOEA else f"v_and_or_b32 v{12+hb}, v{10+hb}, s{sTMP+6}, v3")
    a("v_add_u32 v2, 128, v2"); a("v_add_u32 v6, 128, v6")
    a(f"buffer_load_dwordx4 v12, {D(dEA)}, 0 offen lds")
    a(f"s_min_u32 m0, s{sTMP+1}, {L_EA + NT*1024}")
    a(f"ds_read_b32 v10, v2 offset:{L_EOF}")
    if SPLIT:
        a(f"s_add_i32 s{sTMP+8}, s{sTMP+3}, 2")
        a(f"s_cmp_lt_i32 s{sRDY}, s{sTMP+8}"); a("s_cbranch_scc1 PW2")
        a("PWD2:")
    a(f"buffer_load_dwordx4 v13, {D(dEA)}, 0 offen lds")
    a(f"ds_read_b32 v11, v6 offset:{L_EOF}")
    a(f"s_add_u32 s{sTMP}, s{sTMP}, 1024"); a(f"s_add_u32 s{sTMP+1}, s{sTMP+1}, 1024")
    a(f"s_add_i32 s{sTMP+3}, s{sTMP+3}, 4"); a(f"s_add_u32 s{sT}, s{sT}, 1")
    if STAMP and ITS:
        a("s_memtime s[4:5]"); a(f"s_add_u32 m0, s{sT}, 19"); a("s_waitcnt lgkmcnt(0)"); a("v_writelane_b32 v167, s4, m0")
    a(f"s_cmp_le_u32 s{sT}, {PK}"); a("s_cbranch_scc1 PSTEP")
    a(f"s_cmp_lt_u32 s{sTMP+7}, s{sT}"); a("s_cbranch_scc1 PO")
    a("POD:")
    if PPRIO: a("s_setprio 0")
    a("s_mov_b64 exec, 1"); a(f"s_waitcnt vmcnt({2*PK})"); a(f"ds_add_u32 v{vT0}, v5 offset:{L_RDY}"); a("s_mov_b64 exec, -1")
    a("s_branch PSTEP")
    a("PW:")
    a(f"ds_read_b32 v8, v{vT0} offset:{L_PROG}"); a("s_waitcnt lgkmcnt(0)"); a(f"v_readfirstlane_b32 s{sRDY}, v8")
    a(f"s_cmp_ge_i32 s{sRDY}, s{sTMP+3}"); a("s_cbranch_scc1 PWD"); a("s_sleep 2"); a("s_branch PW")
    if SPLIT:
        a("PW2:")
        a(f"ds_read_b32 v8, v{vT0} offset:{L_PROG}"); a("s_waitcnt lgkmcnt(0)"); a(f"v_readfirstlane_b32 s{sRDY}, v8")
        a(f"s_cmp_ge_i32 s{sRDY}, s{sTMP+8}"); a("s_cbranch_scc1 PWD2"); a("s_sleep 2"); a("s_branch PW2")
    a("PO:")
    a(f"ds_read_b32 v8, v{vT0} offset:{L_OD}"); a("s_waitcnt lgkmcnt(0)"); a(f"v_readfirstlane_b32 s{sTMP+7}, v8")
    stamp(a, "p_od")
    a(f"s_and_b32 s{sTMP+4}, s{sTMP+7}, 3"); a(f"s_cmp_eq_u32 s{sTMP+4}, 3"); a(f"s_cselect_b32 s{sTMP+4}, {3+PK}, 0")
    a(f"s_cmp_eq_u32 s{sTMP+7}, 15"); a(f"s_cselect_b32 s{sTMP+7}, -1, s{sTMP+4}")
    a(f"s_cmp_ge_u32 s{sTMP+7}, s{sT}"); a("s_cbranch_scc1 POD"); a("s_sleep 1"); a("s_branch PO")
    a("EXP:")
    NE = NT // 3
    a(f"s_sub_u32 s{sT}, s3, 9")
    a(f"s_add_u32 s{sTMP+1}, s{sT}, s{sC+4}"); a(f"s_min_u32 s{sTMP+1}, s{sTMP+1}, {NT-1}")
    a(f"s_lshl_b32 s{sTMP}, s{sT}, 7"); a(f"v_add_u32 v10, s{sTMP}, v2")
    a(f"s_lshl_b32 s{sTMP}, s{sTMP+1}, 7"); a(f"v_add_u32 v11, s{sTMP}, v2")
    a(f"s_lshl_b32 s{sTMP}, s{sT}, 10"); a(f"v_lshl_add_u32 v12, v{vL}, 4, s{sTMP}")
    a(f"s_lshl_b32 s{sTMP}, s{sTMP+1}, 10"); a(f"v_lshl_add_u32 v13, v{vL}, 4, s{sTMP}")
    a("v_mov_b32 v14, 4")
    a(f"s_mul_i32 s{sTMP}, s{sT}, {NE*128}"); a(f"s_add_u32 s{sTMP}, s{sTMP}, {L_EOF}"); a(f"v_add_u32 v2, s{sTMP}, v2")
    a(f"s_mul_i32 s{sTMP}, s{sT}, {NE*1024}"); a(f"s_add_u32 s{sTMP}, s{sTMP}, {L_O}"); a(f"v_lshl_add_u32 v6, v{vL}, 4, s{sTMP}")
    a(f"v_lshlrev_b32 v3, {LUT_H-4}, v3")
    a(f"s_setprio {HPRIO}")
    a("s_barrier")
    EA_, ED_ = 16, 40
    for j in range(2): a(f"ds_read_b32 v{10+j}, v{10+j} offset:{L_EOF}")
    for j in range(2):
        a(f"s_waitcnt lgkmcnt(1)")
        a(f"v_and_b32 v{10+j}, 31, v{10+j}"); a(f"v_lshl_add_u32 v{10+j}, v{10+j}, 4, v3")
        a(f"ds_read_b128 {vr(128+4*j,4)}, v{10+j} offset:{L_LUT}")
    for j in range(2):
        a(f"s_waitcnt lgkmcnt(1)"); a(f"ds_write_b128 v{12+j}, {vr(128+4*j,4)} offset:{L_O}")
    a("s_mov_b64 exec, 1"); a(f"ds_add_u32 v{vT0}, v5 offset:{L_OD}"); a("s_mov_b64 exec, -1")
    a(f"s_setprio {HPRIO2}")
    for i in range(0, NE, 2):
        a(f"ds_read2_b32 {vr(EA_+i,2)}, v2 offset0:{(i%8)*32} offset1:{(i%8)*32+32}")
        if i % 8 == 6: a("v_add_u32 v2, 1024, v2")
    seq = [("E", i) for i in range(0, NE, 2)]
    def wait_for(op):
        a(f"s_waitcnt lgkmcnt({min(len(seq) - 1 - seq.index(op), 15)})")
    LA = 5
    def lut(i):
        if i % 2 == 0: wait_for(("E", i))
        a(f"v_and_b32 v{EA_+i}, 31, v{EA_+i}"); a(f"v_lshl_add_u32 v{EA_+i}, v{EA_+i}, 4, v3")
        a(f"ds_read_b128 {vr(ED_+4*i,4)}, v{EA_+i} offset:{L_LUT}"); seq.append(("L", i))
    for i in range(LA): lut(i)
    for i in range(NE):
        if i + LA < NE: lut(i + LA)
        wait_for(("L", i))
        a(f"ds_write_b128 v6, {vr(ED_+4*i,4)} offset:{1024*i}"); seq.append(("W", i))
    a("EDONE:")
    a("s_mov_b64 exec, 1"); a(f"ds_add_u32 v{vT0}, v14 offset:{L_OD}"); a("s_mov_b64 exec, -1")
    a("s_branch PFIN")
    a("PDRAIN:")
    a(f"ds_read_b32 v8, v{vT0} offset:{L_OD}"); a("s_waitcnt lgkmcnt(0)"); a(f"v_readfirstlane_b32 s{sTMP+7}, v8")
    a(f"s_cmp_lt_u32 s{sTMP+7}, 15"); a("s_cbranch_scc1 PDRAIN")
    a("s_mov_b64 exec, 1")
    for k in range(PK - 1, 0, -1):
        a(f"s_cmp_le_u32 s{sT}, {k}"); a(f"s_cbranch_scc1 PD_{k}")
        a(f"s_waitcnt vmcnt({2*k})"); a(f"ds_add_u32 v{vT0}, v5 offset:{L_RDY}"); a(f"PD_{k}:")
    a("v_mov_b32 v5, 0x7fffffff"); a("s_waitcnt vmcnt(0)"); a(f"ds_write_b32 v{vT0}, v5 offset:{L_RDY}")
    a("s_mov_b64 exec, -1")
    stamp(a, "loopend"); stamp_out(a, "0")
    a("PFIN:")
    a(f"s_cmp_eq_u32 s{sMODE}, 0"); a("s_cbranch_scc1 PEND")
    a(f"s_cmp_eq_u32 s{sROUND}, 999"); a("s_cbranch_scc1 PEND")
    a(f"s_add_u32 s{sROUND}, s{sROUND}, 1")
    a("POVF:")
    a(f"s_mov_b32 s{sMODE}, 1")
    a("s_waitcnt vmcnt(0) lgkmcnt(0)"); a("s_barrier"); a("s_branch PROUND")
    a("PEND:")
    a("s_endpgm")
    a("CODE_END:")

def main(out):
    K = "standalone__edge_featured_mpnn_gatedgcn__graph_kernel"
    head = []
    for line in open("standalone__edge_featured_mpnn_gatedgcn__graph.s.ref").read().split("\n"):
        if not line.startswith(";"): break
        if "@launch" in line or "Override launch" in line or "grid=ceil" in line: continue
        head.append(line)
    a = A(); gen(a, K)
    t = "\n".join(head) + "\n"
    t += (f"; @launch kernel={K} " if LIST else "; @launch ") + f"grid=(256,1,1) block=(768,1,1) lds={L_TOTAL}\n"
    t += '.amdgcn_target "amdgcn-amd-amdhsa--gfx950"\n.text\n'
    t += f".globl {K}\n.p2align 8\n.type {K},@function\n" + a.text()
    t += f'''.section .rodata,"a"
.p2align 6
.amdhsa_kernel {K}
  .amdhsa_next_free_vgpr 168
  .amdhsa_next_free_sgpr 102
  .amdhsa_accum_offset 168
  .amdhsa_group_segment_fixed_size 0
  .amdhsa_kernarg_size 96
  .amdhsa_user_sgpr_count 2
  .amdhsa_user_sgpr_kernarg_segment_ptr 1
  .amdhsa_system_sgpr_workgroup_id_x 1
.end_amdhsa_kernel
'''
    if STAMP: t = "; stamps " + ",".join(NAMES) + "\n" + t
    open(out, "w").write(t)

if __name__ == "__main__":
    main(sys.argv[1] if len(sys.argv) > 1 else "standalone__edge_featured_mpnn_gatedgcn__graph.s")
```

```python
import sys, os

N, E = 12500, 400000
NS, CH = 125, 3200
NG = 131
TABO = 0x0C010000
WS_TAB, WS_REC, WS_ARR, WS_OFF = 0, 0x620000, 0x7B0000, 0x7D0000
NLOG2E = 0xbfb8aa3b
env = lambda k, d: type(d)(os.environ.get(k, d))
STAMP = env("STAMP", 0); STAMPS = env("STAMPS", "all").split(","); ITS = env("ITS", 0)
PK = env("PK", 1); LEADX = env("LEADX", 4); PRIO = env("PRIO", "3210")
SHL64 = env("SHL64", 1); PF = env("PF", 1); PFW = env("PFW", 0); G1LATE = env("G1LATE", 0); NOEA = env("NOEA", 0)
SDPOL = env("SDPOL", "nt"); SIG = env("SIG", "byte"); SLP = env("SLP", 2); MSLP = env("MSLP", 1)
NCOL = env("NCOL", 8); CODEPF = env("CODEPF", 1); PDEL = env("PDEL", 0); NREP = env("NREP", 16); CDEPTH = env("CDEPTH", 1); HS2 = env("HS2", 0); TLB = env("TLB", 0); TLBSH = env("TLBSH", 18); EPF = env("EPF", 0); HPRIO = env("HPRIO", 3); HOOKK = env("HOOKK", 5); HPLAN = env("HPLAN", "001"); PPRIO = env("PPRIO", 0); HPRIO2 = env("HPRIO2", 3); ETS = env("ETS", 2); ETQ = env("ETQ", 1); PACE = env("PACE", 1); RDYP = env("RDYP", 2); OFFLATE = env("OFFLATE", 0); SPRIO = env("SPRIO", 0); WSB = env("WSB", 0); MSPOS = [int(x) for x in env("MSPOS", "2,8").split(",")]; SCHED = env("SCHED", "eAeDeDeV1Laass2rGrmH3rNrmN"); SPLIT = env("SPLIT", 0); PUBP = env("PUBP", 2); RPF = env("RPF", 0); OPOL = env("OPOL", ""); XPOL = env("XPOL", ""); PKORD = env("PKORD", 1); EPF2 = env("EPF2", 0); PINC = env("PINC", 4); LIST = env("LIST", 0); DBG = env("DBG", "")
SPIN = 0x100000
MF = "v_mfma_f32_32x32x16_bf16"

class A:
    def __init__(self): self.l = []
    def __call__(self, s):
        for line in s.strip("\n").split("\n"):
            line = line.strip()
            if line:
                self.l.append(line if line.endswith(":") else "    " + line)
    def text(self): return "\n".join(self.l) + "\n"
def vr(a, n): return f"v[{a}:{a+n-1}]"

NT = 63
L_CNT, L_RDY, L_PROG, L_AD, L_OD, L_LUT = 64, 96, 100, 104, 108, 256
LUT_H = 9
L_IDX = 1024
L_EOF = L_IDX + 8192
L_O = L_EOF + 8192
L_EA = L_O + NT * 1024
L_X = 148480
assert L_EA + (NT + 1) * 1024 <= L_X
L_TOTAL = L_X + 15360
S_CNT = 25600
S_TOT, S_BAD, S_TBL, S_SRT = S_CNT + 4096, S_CNT + 4128, S_CNT + 4352, S_CNT + 12544
L_X96 = L_TOTAL - 24576
L_WBV, L_WAU = 8192, 73728
assert L_WAU + 65536 == L_X96
vIDX, vEA, vOT, vSa, vS0, vS1, vT0 = 1, 2, 3, 4, 5, 6, 7
IX, SA, WC, AP, UP, DEN, NUM = 8, 24, 32, 36, 44, 52, 68
G = [84, 100]
RAW = [116, 132, 148]
LO, vT1 = 164, 166
RECQ = [116, 120, 124, 128]
LOFF, LCHV, LKEY, LRO, LLEN, LC, LADJ, LTOT, LCB, LONE, LQ4, LPAT, LTMP = 132, 134, 135, 136, 137, 138, 140, 142, 144, 145, 146, 147, 148
sW = 3
dX, dEA, dWS, dTAB, dOUT, dWC, dW0, dW1, dSRC, dDST = 8, 12, 16, 20, 24, 28, 32, 36, 40, 44
dDBG = 48
sCG, sBETA, sMODE, sROUND, sID, sU, sSTAGE = 52, 53, 54, 55, 56, 57, 58
sT, sTEND, sRDY, sF0, sL0, sL1, sG0, sG1 = 60, 61, 62, 63, 64, 65, 66, 67
sC = 68
sTMP = 76
sM0, sM1 = 88, 90
sPA, sPU = 92, 94
sOK = 96
sSO = 98

NAMES = []
def stamp(a, nm):
    if STAMP and (STAMPS == ["all"] or nm in STAMPS):
        if nm not in NAMES: NAMES.append(nm)
        a("s_memtime s[4:5]"); a("s_waitcnt lgkmcnt(0)")
        a(f"v_writelane_b32 v167, s4, {NAMES.index(nm)}")
        rt = {"loop0": 59, "loopend": 60, "arrive": 55, "go": 56, "go2": 57, "bar2": 58}
        if nm in rt:
            a("s_memrealtime s[4:5]"); a("s_waitcnt lgkmcnt(0)")
            a(f"v_writelane_b32 v167, s4, {rt[nm]}")
def stamp_out(a, tiles):
    if STAMP:
        a("s_memrealtime s[4:5]"); a("s_waitcnt lgkmcnt(0)"); a("s_mov_b64 exec, -1")
        a("v_writelane_b32 v167, s4, 62"); a(f"v_writelane_b32 v167, {tiles}, 63")
        a("v_and_b32 v3, 63, v0"); a("v_lshlrev_b32 v3, 2, v3")
        a(f"s_mul_i32 s{sTMP}, s{sID}, 9"); a(f"s_add_u32 s{sTMP}, s{sTMP}, s{sW}")
        a(f"s_lshl_b32 s{sTMP}, s{sTMP}, 8"); a(f"s_add_u32 s{sTMP}, s{sTMP}, 0x900000")
        a(f"s_mov_b32 s{dWS+2}, 0x1000000")
        a(f"buffer_store_dword v167, v3, s[{dWS}:{dWS+3}], s{sTMP} offen")
def D(d): return f"s[{d}:{d+3}]"

vEX = 20
IA = 16
def idx_reads(a, rel, dst=IA):
    a(f"ds_read_b32 v{dst}, v{vIDX} offset:{rel*128}")
def addr_mm(dst, src=IA):
    return f"v_mfma_f32_32x32x8_bf16 {vr(dst,16)}, {vr(src,2)}, {vr(LO,2)}, 0"
def gathers(a, dst):
    for k in range(16):
        a(f"buffer_load_dword v{dst+k}, v{dst+k}, {D(dTAB)}, 0 offen sc1")
SMF = "v_smfmac_f32_32x32x32_bf16"
vSX = vSa
def smf(acc, src, t):
    return f"{SMF} {vr(acc,16)}, {vr(SA+4*t,4)}, {vr(src+8*t,8)}, v{vSX}"
def ms_list(gx):
    return [smf(DEN, gx, 0), smf(DEN, gx, 1)]
def poll(a, stubs, tag):
    a(f"s_cmp_le_u32 s{sRDY}, s{sT}"); a(f"s_cbranch_scc1 POLL_{tag}"); a(f"POLLED_{tag}:")
    stubs(f"POLL_{tag}:")
    stubs(f"ds_read_b32 v{vT1}, v{vT0} offset:{L_RDY}"); stubs("s_waitcnt lgkmcnt(0)")
    stubs(f"v_readfirstlane_b32 s{sRDY}, v{vT1}")
    stubs(f"s_cmp_gt_u32 s{sRDY}, s{sT}"); stubs(f"s_cbranch_scc1 POLLED_{tag}")
    stubs("s_sleep 1"); stubs(f"s_branch POLL_{tag}")
def publish(a):
    if not PACE: return
    a("s_mov_b64 exec, 1"); a(f"ds_inc_u32 v{vT0}, v{vEA} offset:{L_PROG}"); a("s_mov_b64 exec, -1")
def prio(a, pos):
    if PRIO[pos] != "-": a(f"s_setprio {PRIO[pos]}")
def totals(a, t):
    a(f"v_add_u32 v{t}, v{t}, v{t+1}")
    a(f"v_add_u32_sdwa v{t}, v{t}, v{t} dst_sel:DWORD dst_unused:UNUSED_PAD src0_sel:WORD_0 src1_sel:WORD_1")
    a(f"v_add_u32 v{t}, 31, v{t}"); a(f"v_lshrrev_b32 v{t}, 4, v{t}"); a(f"v_and_b32 v{t}, -2, v{t}")
    a("s_nop 0")
    for k in range(4): a(f"v_readlane_b32 s{sC+k}, v{t}, {k}")
    a(f"s_sub_i32 s{sC+4}, s{sC}, 1"); a(f"s_sub_i32 s{sC+5}, s{sC+2}, 1")
    a(f"s_max_i32 s{sC+4}, s{sC+4}, s{sC+1}"); a(f"s_max_i32 s{sC+5}, s{sC+5}, s{sC+3}")
    a(f"s_add_u32 s{sC+6}, s{sC+4}, s{sC+5}"); a(f"s_cmp_gt_u32 s{sC+6}, {NT-1}")

vL, vWS, vTR, XAD, SET, AB, AV = 1, 2, 36, 8, [48, 60, 72], 84, 100

def own_x(a):
    a(f"v_lshrrev_b32 v4, 4, v{vL}"); a(f"v_and_b32 v5, 15, v{vL}")
    a("v_xor_b32 v5, v5, v4"); a("v_lshlrev_b32 v5, 4, v5"); a("v_lshl_add_u32 v16, v4, 18, v5")
    for j in range(1, 4): a(f"v_xor_b32 v{16+j}, {64*j}, v16")
    a(f"s_lshl_b32 s{sTMP}, s2, 8"); a(f"s_lshl_b32 s{sTMP+1}, s{sCG}, 16"); a(f"s_add_u32 s{sTMP}, s{sTMP}, s{sTMP+1}")
    a(f"s_lshl_b32 s{sTMP+2}, s{sCG}, 12"); a(f"s_add_u32 s{sTMP+2}, s{sTMP+2}, {L_X}")
    for j in range(4):
        c16 = 8 * (j & 1) + 4 * (j >> 1)
        a(f"s_add_u32 m0, s{sTMP+2}, {j*1024}"); a(f"s_add_u32 s{sTMP+1}, s{sTMP}, {c16*4*65536:#x}")
        a(f"buffer_load_dwordx4 v{16+j}, {D(dX)}, s{sTMP+1} offen lds")
def w_group(a, sreg, lds):
    for d, base in ((dW0, lds), (dW1, lds + 32768)):
        a(f"s_add_u32 m0, s{sreg}, {base}"); a("s_nop 0")
        for i in range(4):
            a(f"buffer_load_dwordx4 v{vWS}, {D(d)}, s{sreg} offen offset:{i*1024} lds")

def gen(a, name):
    stubs = A()
    a(f"{name}:")
    Dd, S, RK, RC, KA, SH = 16, 24, 32, 40, 48, 56
    a("s_cmpk_ge_u32 s2, 256"); a("s_cbranch_scc1 F_END")
    a(f"v_lshrrev_b32 v{vWS}, 6, v0")
    a(f"s_load_dwordx4 s[{sPA}:{sPA+3}], s[0:1], 16")
    a(f"v_readfirstlane_b32 s{sW}, v{vWS}")
    a(f"v_and_b32 v{vL}, 63, v0")
    a(f"s_cmpk_lt_u32 s2, {NS}"); a("s_cbranch_scc1 E_S")
    T = sTMP
    a(f"s_lshr_b32 s{T}, s3, 2"); a(f"s_mul_i32 s{T+1}, s{T}, 24"); a(f"s_add_u32 s{T+1}, s{T+1}, 16")
    a(f"s_and_b32 s{sCG}, s3, 3"); a(f"s_lshl_b32 s{T+2}, s{sCG}, 2"); a(f"s_lshl_b32 s{T+3}, s{sCG}, 10")
    a(f"s_lshl_b32 s{T+4}, s{T}, 15"); a(f"s_addk_i32 s{T+4}, {L_WBV - 32768}")
    a(f"s_sub_u32 s{T+9}, s2, {NS}"); a(f"s_mul_i32 s{T+5}, s{T+9}, {96*256}")
    a(f"s_mov_b32 s{dW0+2}, 0x8000")
    a(f"s_cmp_eq_u32 s{T}, 0")
    a(f"s_cselect_b32 s{T+1}, 0, s{T+1}")
    a(f"s_load_dwordx2 s[{dW0}:{dW0+1}], s[0:1], s{T+1}")
    a(f"s_cselect_b32 s{T+2}, s{T+2}, 0"); a(f"s_cselect_b32 s{T+6}, 0, 2"); a(f"s_cselect_b32 s{T+7}, 6, 8")
    a(f"s_cselect_b32 s{T+5}, s{T+5}, 0"); a(f"s_cselect_b32 s{T+4}, {L_X96}, s{T+4}"); a(f"s_cselect_b32 s{dW0+2}, {N*256:#x}, s{dW0+2}")
    a(f"s_mov_b32 s{dW0+3}, 0x20000")
    a(f"v_lshrrev_b32 v4, 4, v{vL}"); a(f"v_lshlrev_b32 v5, s{T+6}, v4"); a(f"v_xor_b32 v5, s{T+2}, v5")
    a(f"v_xor_b32 v5, v5, v{vL}"); a("v_lshlrev_b32 v5, 4, v5")
    a(f"s_add_u32 s{T+5}, s{T+5}, s{T+3}"); a(f"s_add_u32 m0, s{T+4}, s{T+3}")
    a("s_waitcnt lgkmcnt(0)")
    a("E_L:")
    a(f"buffer_load_dwordx4 v5, {D(dW0)}, s{T+5} offen lds")
    a(f"s_addk_i32 s{T+5}, 4096"); a("s_addk_i32 m0, 4096")
    a(f"s_sub_u32 s{T+7}, s{T+7}, 1"); a(f"s_cmp_lg_u32 s{T+7}, 0"); a("s_cbranch_scc1 E_L")
    a("s_branch E_1")
    a("E_S:")
    a("s_cmp_ge_u32 s3, 8"); a("s_cbranch_scc1 E_H")
    a(f"s_mul_i32 s{sSO}, s2, {CH*4}")
    a(f"v_lshl_add_u32 v14, v0, 4, s{sSO}"); a("v_add_u32 v15, 0x2000, v14")
    a(f"v_cmp_gt_u32 vcc, {(CH-2048)//4}, v0")
    a("s_waitcnt lgkmcnt(0)")
    a(f"global_load_dwordx4 {vr(Dd,4)}, v14, s[{sPA+2}:{sPA+3}] {SDPOL}")
    a(f"global_load_dwordx4 {vr(S,4)}, v14, s[{sPA}:{sPA+1}] {SDPOL}")
    a("s_mov_b64 exec, vcc"); a("s_cbranch_execz E_2")
    a(f"global_load_dwordx4 {vr(Dd+4,4)}, v15, s[{sPA+2}:{sPA+3}] {SDPOL}")
    a(f"global_load_dwordx4 {vr(S+4,4)}, v15, s[{sPA}:{sPA+1}] {SDPOL}")
    a("s_branch E_2")
    a("E_H:")
    if CODEPF:
        a("s_cmp_lg_u32 s3, 9"); a("s_cbranch_scc1 E_1")
        a(f"s_getpc_b64 s[{sTMP}:{sTMP+1}]")
        a("PCREF:")
        a(f"s_lshr_b32 s{sTMP+2}, s2, 3"); a(f"s_lshl_b32 s{sTMP+2}, s{sTMP+2}, 7")
        a(f"v_mul_u32_u24 v160, 1920, v{vL}"); a(f"v_add_u32 v160, s{sTMP+2}, v160")
        a("v_min_u32 v160, CODE_END-PCREF-4, v160")
        a("v_mov_b32 v161, 0")
        a(f"v_lshl_add_u64 v[160:161], v[160:161], 0, s[{sTMP}:{sTMP+1}]")
        a("s_mov_b64 exec, 0x3ff")
        a("global_load_dword v162, v[160:161], off")
    a("E_2:")
    a("s_mov_b64 exec, -1")
    a("E_1:")
    a("s_waitcnt lgkmcnt(0)")
    a(f"s_load_dwordx2 s[{dX}:{dX+1}], s[0:1], 0")
    a(f"s_load_dwordx2 s[{dWC}:{dWC+1}], s[0:1], 48")
    a(f"s_load_dwordx2 s[{dWS}:{dWS+1}], s[0:1], 88")
    a(f"s_mov_b64 s[{dSRC}:{dSRC+1}], s[{sPA}:{sPA+1}]"); a(f"s_mov_b64 s[{dDST}:{dDST+1}], s[{sPA+2}:{sPA+3}]")
    a(f"s_add_u32 s{sSO+1}, s{sSO}, 8192")
    a(f"s_and_b32 s{sCG}, s3, 3"); a(f"s_lshr_b32 s{sU}, s2, 3")
    a(f"s_mov_b32 s{sID}, s2")
    a("s_and_b32 s2, s2, 7"); a("s_lshl_b32 s2, s2, 5"); a(f"s_or_b32 s2, s2, s{sU}")
    for d, nb in ((dX, N*256), (dW0, 32768), (dW1, 32768), (dDST, E*4), (dSRC, E*4), (dWC, 4096), (dWS, WS_OFF + NS*8192)):
        a(f"s_mov_b32 s{d+2}, {nb:#x}"); a(f"s_mov_b32 s{d+3}, 0x20000")
    a(f"v_lshrrev_b32 v4, 4, v{vL}"); a("v_lshlrev_b32 v5, 2, v4"); a(f"v_xor_b32 v5, v5, v{vL}"); a(f"v_lshlrev_b32 v{vWS}, 4, v5")
    a("s_waitcnt lgkmcnt(0)")
    a(f"v_mov_b32 v{vT0}, 0")
    a("v_mov_b32 v32, 0")
    if STAMP:
        a("v_mov_b32 v167, 0"); a("s_memrealtime s[6:7]"); a("s_waitcnt lgkmcnt(0)"); a("v_writelane_b32 v167, s6, 61")
    stamp(a, "start")
    def late_args():
        a(f"s_mov_b64 s[{dTAB}:{dTAB+1}], s[{dWS}:{dWS+1}]")
        a(f"s_load_dwordx2 s[{sPA}:{sPA+1}], s[0:1], 32")
        a(f"s_load_dwordx2 s[{sPU}:{sPU+1}], s[0:1], 56")
        a(f"s_load_dwordx2 s[{dEA}:{dEA+1}], s[0:1], 8")
        a(f"s_load_dwordx2 s[{dOUT}:{dOUT+1}], s[0:1], 72")
        a(f"s_load_dwordx2 s[{dDBG}:{dDBG+1}], s[0:1], 80")
        for d, nb in ((dTAB, TABO + N*512), (dEA, E*32), (dOUT, N*256), (dDBG, 256)):
            a(f"s_mov_b32 s{d+2}, {nb:#x}"); a(f"s_mov_b32 s{d+3}, 0x20000")
        a(f"s_mov_b32 s{sMODE}, 0"); a(f"s_mov_b32 s{sROUND}, 0")
        a(f"s_bfe_u32 s{sBETA}, s{sW}, 0x10002")
    def see_clear(tag):
        a(f"s_mov_b32 s{sOK}, 0")
        a("s_cmp_lg_u32 s3, 8"); a(f"s_cbranch_scc1 SC_D{tag}")
        a(f"s_load_dword s{sOK}, s[{dDBG}:{dDBG+1}], 0")
        a(f"SC_D{tag}:")
    def need_clear(tag):
        a("s_waitcnt lgkmcnt(0)")
        a(f"v_mov_b32 v24, s{sOK}")
        a(f"s_mov_b32 s{sTMP+5}, 0")
        a(f"NC_L{tag}:")
        a("v_cmp_eq_u32 vcc, 0, v24"); a(f"s_cbranch_vccz NC_E{tag}")
        a(f"s_add_u32 s{sTMP+5}, s{sTMP+5}, 1"); a(f"s_cmp_gt_u32 s{sTMP+5}, {SPIN:#x}"); a(f"s_cbranch_scc1 NC_E{tag}")
        a(f"buffer_load_dword v24, v{vT0}, {D(dDBG)}, 0 offen sc1")
        a("s_waitcnt vmcnt(0)"); a(f"s_branch NC_L{tag}")
        a(f"NC_E{tag}:")
    def page_touch(tag):
        if not TLB: return
        a(f"s_cmp_lg_u32 s3, {tag[1]}"); a(f"s_cbranch_scc1 PT_{tag[0]}")
        a(f"v_lshlrev_b32 v163, 12, v{vL}")
        if tag[0] == "G":
            a(f"s_mul_i32 s{sTMP+11}, s{sTMP+9}, {96*512}")
            a("s_mov_b64 exec, 0xfff")
            a(f"buffer_load_dword v162, v163, {D(dWS)}, s{sTMP+11} offen sc1")
        else:
            a(f"s_mul_i32 s{sTMP+11}, s{sID}, {CH*4}"); a(f"s_add_u32 s{sTMP+11}, s{sTMP+11}, {WS_REC:#x}")
            a("s_mov_b64 exec, 0xf")
            a(f"buffer_load_dword v162, v163, {D(dWS)}, s{sTMP+11} offen sc1")
            a(f"s_lshl_b32 s{sTMP+11}, s{sID}, 13"); a(f"s_add_u32 s{sTMP+11}, s{sTMP+11}, {WS_OFF:#x}")
            a("s_mov_b64 exec, 0x3")
            a(f"buffer_load_dword v162, v163, {D(dWS)}, s{sTMP+11} offen sc1")
        a("s_mov_b64 exec, -1")
        if TLB > 1:
            a(f"v_lshlrev_b32 v163, 18, v{vL}")
            a("s_waitcnt lgkmcnt(0)")
            a(f"buffer_load_dword v162, v163, {D(dEA)}, 0 offen")
        a(f"PT_{tag[0]}:")
    def wait_flags(stage, tag=''):
        a(f"s_mov_b32 s{sTMP+5}, 0")
        if stage == 1:
            a("s_mov_b32 exec_hi, 0")
        for k in range(CDEPTH - 1):
            a(f"buffer_load_dwordx4 {vr(40+4*k,4)}, v32, {D(dWS)}, 0 offen sc1"); a(f"s_sleep {SLP}")
        a(f"WAITF{stage}{tag}:")
        for k in range(CDEPTH):
            b = 40 + 4 * k
            a(f"buffer_load_dwordx4 {vr(40+4*((k+CDEPTH-1)%CDEPTH),4)}, v32, {D(dWS)}, 0 offen sc1")
            a(f"s_waitcnt vmcnt({CDEPTH-1})")
            if stage == 1: a(f"v_or_b32 v{b+3}, v{b+3}, v36")
            a(f"v_and_b32 v{b}, v{b}, v{b+1}"); a(f"v_and_b32 v{b+2}, v{b+2}, v{b+3}"); a(f"v_and_b32 v{b}, v{b}, v{b+2}")
            a(f"v_cmpx_ne_u32 vcc, 1, v{b}"); a(f"s_cbranch_execz ALLIN{stage}{tag}")
            if SLP: a(f"s_sleep {SLP}")
        a(f"s_add_u32 s{sTMP+5}, s{sTMP+5}, 1"); a(f"s_cmp_lt_u32 s{sTMP+5}, {SPIN:#x}"); a(f"s_cbranch_scc1 WAITF{stage}{tag}")
        a(f"ALLIN{stage}{tag}:")
        a("s_mov_b64 exec, -1")
    def wait_alloc(tag, tmp, slp=0):
        a(f"WA_{tag}:")
        if slp: a(f"s_sleep {slp}")
        a(f"ds_read_b32 v{tmp}, v{vT0} offset:{L_AD}"); a("s_waitcnt lgkmcnt(0)")
        a(f"v_readfirstlane_b32 s{sTMP+4}, v{tmp}"); a(f"s_cmp_lt_u32 s{sTMP+4}, 8"); a(f"s_cbranch_scc1 WA_{tag}")
    WCR = 152
    def wc_loads():
        a(f"v_and_b32 v{LO}, 31, v0"); a(f"v_bfe_u32 v{LO+1}, v0, 5, 1")
        a(f"s_lshl_b32 s{sTMP+10}, s{sCG}, 6")
        a(f"v_lshl_add_u32 v{vT1}, v{LO}, 1, s{sTMP+10}"); a(f"v_lshl_add_u32 v{vT1}, v{LO+1}, 11, v{vT1}")
        for j in range(8): a(f"buffer_load_ushort v{WCR+j}, v{vT1}, {D(dWC)}, 0 offen offset:{j*256}")
    def gemm_addr(xbase_sreg, wbase):
        a(f"v_lshrrev_b32 v5, 5, v{vL}"); a(f"v_bfe_u32 v4, v{vL}, 2, 2")
        a(f"v_lshl_add_u32 v{vTR}, v5, 3, v4"); a(f"v_lshlrev_b32 v{vTR}, 8, v{vTR}")
        a(f"v_xor_b32 v4, s{sCG}, v4"); a(f"v_lshl_add_u32 v{vTR}, v4, 6, v{vTR}")
        a(f"v_bfe_u32 v4, v{vL}, 4, 1"); a(f"v_lshl_add_u32 v{vTR}, v4, 5, v{vTR}")
        a(f"v_and_b32 v4, 3, v{vL}"); a(f"v_lshl_add_u32 v{vTR}, v4, 3, v{vTR}")
        a(f"v_add_u32 v{vTR}, {wbase}, v{vTR}")
        a(f"v_and_b32 v4, 15, v{vL}"); a("v_xor_b32 v4, v4, v5"); a("v_lshlrev_b32 v4, 4, v4")
        a(f"v_and_b32 v6, 31, v{vL}"); a("v_lshl_add_u32 v4, v6, 8, v4")
        a(f"v_add_u32 v{XAD}, s{xbase_sreg}, v4")
        for kk in range(1, 8): a(f"v_xor_b32 v{XAD+kk}, {kk*32}, v{XAD}")
    a(f"s_cmp_lt_u32 s{sID}, {NS}"); a("s_cbranch_scc1 SORT")
    a("G_LDD:")
    late_args()
    page_touch(("G", 3))
    a("s_cmp_ge_u32 s3, 8"); a("s_cbranch_scc1 G_NWC")
    wc_loads()
    a("G_NWC:")
    a(f"s_lshr_b32 s{sTMP+4}, s3, 2")
    a(f"s_lshl_b32 s{sTMP+5}, s{sTMP+4}, 13"); a(f"s_add_u32 s{sTMP+5}, s{sTMP+5}, {L_X96}")
    gemm_addr(sTMP + 5, L_WBV)
    a(f"s_mul_i32 s{sTMP+5}, s{sTMP+9}, {96*512}"); a(f"s_lshl_b32 s{sTMP+6}, s{sTMP+4}, 14"); a(f"s_add_u32 s{sTMP+5}, s{sTMP+5}, s{sTMP+6}")
    a(f"s_lshl_b32 s{sTMP+6}, s{sCG}, 7"); a(f"s_add_u32 s{sTMP+5}, s{sTMP+5}, s{sTMP+6}")
    a(f"s_add_u32 s{sTMP+5}, s{sTMP+5}, {TABO:#x}")
    a("v_lshlrev_b32 v20, 2, v6"); a("v_lshl_add_u32 v20, v5, 11, v20"); a(f"v_add_u32 v20, s{sTMP+5}, v20")
    for q in range(1, 4): a(f"v_add_u32 v{20+q}, {4096*q}, v20")
    a(f"s_mov_b32 s{sSTAGE}, 0")
    a("s_waitcnt vmcnt(0) lgkmcnt(0)")
    stamp(a, "p1land")
    a(f"s_mov_b64 s[{dW0}:{dW0+1}], s[{sPA}:{sPA+1}]"); a(f"s_mov_b64 s[{dW1}:{dW1+1}], s[{sPU}:{sPU+1}]")
    a("s_barrier")
    a("s_cmp_lt_u32 s3, 8"); a("s_cbranch_scc1 CORE")
    a(f"s_lshl_b32 s{sTMP+3}, s{sCG}, 13")
    if "nowau" not in DBG:
        w_group(a, sTMP + 3, L_WAU)
        a(f"s_add_u32 s{sTMP+3}, s{sTMP+3}, 4096")
        w_group(a, sTMP + 3, L_WAU)
    if "notile3" in DBG: a("s_branch G_B2")
    a("CORE:")
    def reads(kk):
        b = SET[kk % 3]
        a(f"ds_read_b128 {vr(b,4)}, v{XAD+kk}")
        for u in range(2): a(f"ds_read_b64_tr_b16 {vr(b+4+2*u,2)}, v{vTR} offset:{kk*4096+u*1024}")
        for u in range(2): a(f"ds_read_b64_tr_b16 {vr(b+8+2*u,2)}, v{vTR} offset:{32768+kk*4096+u*1024}")
    for kk in range(3): reads(kk)
    for kk in range(8):
        b = SET[kk % 3]
        a(f"s_waitcnt lgkmcnt({5*min(7-kk,2)})")
        a(f"{MF} {vr(AV,16)}, {vr(b,4)}, {vr(b+8,4)}, {'0' if kk == 0 else vr(AV,16)}")
        a(f"{MF} {vr(AB,16)}, {vr(b,4)}, {vr(b+4,4)}, {'0' if kk == 0 else vr(AB,16)}")
        if kk + 3 < 8: reads(kk + 3)
        if kk == HOOKK:
            a(f"s_cmp_lg_u32 s{sSTAGE}, 0"); a("s_cbranch_scc1 HOOK"); a("HOOKED:")
    a(f"s_mov_b32 s{sTMP+6}, {NLOG2E:#x}")
    a(f"s_mov_b32 s{sTMP+7}, {NLOG2E:#x}")
    a(f"s_cmp_lg_u32 s{sSTAGE}, 0"); a("s_cbranch_scc1 AU_DONE")
    a(f"s_mov_b32 s{sTMP+5}, 0x7f7e0000")
    a("v_mov_b32 v4, 0x21800000")
    a("s_nop 2")
    stamp(a, "g_core")
    a("s_nop 2")
    VP, VN = 116, 124
    for i in range(8):
        a(f"v_cvt_pk_bf16_f32 v{VP+i}, v{AV+2*i}, v{AV+2*i+1}")
        a(f"v_xor_b32 v{VN+i}, 0x80008000, v{VP+i}")
    for q in range(4):
        R = range(4*q, 4*q+4)
        for r in R: a(f"v_fma_f32 v{AB+r}, v{AB+r}, s{sTMP+6}, v4")
        for r in R: a(f"v_med3_f32 v{AB+r}, v{AB+r}, -s{sTMP+5}, s{sTMP+5}")
        for r in R: a(f"v_sub_u32_sdwa v{AB+r}, v{AB+r}, sext(v{VN+r//2}) dst_sel:DWORD dst_unused:UNUSED_PAD src0_sel:DWORD src1_sel:WORD_{r&1}")
        for r in R: a(f"v_mov_b32_sdwa v{AB+r}, v{VP+r//2} dst_sel:WORD_0 dst_unused:UNUSED_PRESERVE src0_sel:WORD_{r&1}")
        a("s_nop 0")
        for r in R: a(f"buffer_store_dword v{AB+r}, v{20+q}, {D(dTAB)}, 0 offen offset:{(r&3)*512} sc1")
    stamp(a, "p1st")
    a("G_B2:")
    a("s_barrier")
    a("s_cmp_lt_u32 s3, 8"); a("s_cbranch_scc1 G_DRAIN")
    if "noownx" not in DBG: own_x(a)
    a("G_DRAIN:")
    a("s_branch ARRIVE")
    a("SORT:")
    a(f"s_lshl_b32 s{sTMP}, s{sID}, 4"); a(f"s_add_u32 s{sTMP}, s{sTMP}, s3")
    a(f"s_cmp_lg_u32 s{sTMP}, 8"); a("s_cbranch_scc1 NOCLR")
    a(f"v_lshrrev_b32 v12, 2, v{vL}"); a(f"v_and_b32 v13, 3, v{vL}"); a("v_lshlrev_b32 v13, 4, v13")
    a("v_lshl_add_u32 v12, v12, 7, v13"); a(f"v_add_u32 v12, {WS_ARR:#x}, v12")
    a("v_mov_b64 v[8:9], 0"); a("v_mov_b64 v[10:11], 0")
    a(f"s_mov_b32 s{sTMP}, {NREP//2}")
    a("s_waitcnt lgkmcnt(0)")
    a("CLR:")
    a(f"buffer_store_dwordx4 v[8:11], v12, {D(dWS)}, 0 offen sc1")
    a(f"buffer_store_dwordx4 v[8:11], v12, {D(dWS)}, 0 offen offset:2048 sc1")
    a("v_add_u32 v12, 4096, v12")
    a(f"s_sub_u32 s{sTMP}, s{sTMP}, 1"); a(f"s_cmp_lg_u32 s{sTMP}, 0"); a("s_cbranch_scc1 CLR")
    a("NOCLR:")
    if SPRIO: a("s_setprio 2")
    a("s_cmp_ge_u32 s3, 8"); a("s_cbranch_scc1 S_HELP")
    a("v_lshlrev_b32 v11, 3, v0"); a("v_mov_b64 v[12:13], 0")
    a(f"ds_write_b64 v11, v[12:13] offset:{S_CNT}"); a(f"ds_write_b32 v{vT0}, v12 offset:{S_BAD}")
    a("v_lshlrev_b32 v6, 4, v0")
    a(f"s_mov_b64 s[{sTMP}:{sTMP+1}], s[{sSO}:{sSO+1}]")
    a("s_waitcnt lgkmcnt(0)")
    a("S_0:")
    a("s_barrier")
    wc_loads()
    late_args()
    a("v_lshlrev_b32 v5, 7, v0"); a("v_mov_b32 v8, 0")
    a(f"v_cmp_gt_u32 vcc, {(CH-2048)//4}, v0"); a(f"s_mov_b64 s[{sTMP+2}:{sTMP+3}], vcc")
    def keys(lo):
        for i in range(lo, lo + 4):
            a(f"v_lshlrev_b32_sdwa v9, 4, v{Dd+i} dst_sel:DWORD dst_unused:UNUSED_PAD src0_sel:DWORD src1_sel:BYTE_0")
            a(f"v_bfe_u32 v10, v{Dd+i}, 8, 2")
            a(f"v_lshrrev_b32 v{SH+i}, 7, v{S+i}")
            a(f"v_lshl_or_b32 v{KA+i}, v10, 2, v9")
            a(f"v_and_b32 v{SH+i}, 24, v{SH+i}")
            a(f"v_lshlrev_b32_e64 v9, v{SH+i}, 1")
            a(f"ds_add_rtn_u32 v{RK+i}, v{KA+i}, v9 offset:{S_CNT}")
        for i in range(lo, lo + 4):
            a(f"v_lshrrev_b32 v9, 10, v{Dd+i}")
            a(f"v_add_u32 v10, {(((i&3) + (2048 if i >= 4 else 0)) << 5) + 1:#x}, v5")
            a(f"v_lshl_or_b32 v10, v{S+i}, 18, v10")
            a(f"v_add_u32 v{RC+i}, v9, v10")
            a(f"v_lshlrev_b32 v{KA+i}, 1, v{KA+i}")
        for i in range(lo, lo + 4):
            a(f"s_waitcnt lgkmcnt({3-(i-lo)})"); a(f"v_bfe_u32 v{RK+i}, v{RK+i}, v{SH+i}, 8")
        a(f"v_max3_u32 v8, v8, v{RK+lo}, v{RK+lo+1}"); a(f"v_max3_u32 v8, v8, v{RK+lo+2}, v{RK+lo+3}")
    a("s_waitcnt vmcnt(8) lgkmcnt(0)")
    stamp(a, "p1land")
    keys(0)
    a(f"s_mov_b64 exec, s[{sTMP+2}:{sTMP+3}]"); a("s_cbranch_execz S_1")
    keys(4)
    a("S_1:")
    a("s_mov_b64 exec, -1")
    a("v_cmp_lt_u32 vcc, 62, v8"); a("s_cbranch_vccz S_1B")
    a("v_mov_b32 v9, -1"); a(f"ds_write_b32 v{vT0}, v9 offset:{S_BAD}"); a("s_waitcnt lgkmcnt(0)")
    a("S_1B:")
    a(f"v_lshlrev_b32 v9, 4, v{vL}"); a("v_mov_b64 v[92:93], 0")
    stamp(a, "s_keys")
    a("s_barrier")
    stamp(a, "s_b2")
    a(f"ds_read_b64 v[12:13], v11 offset:{S_CNT}")
    for q in range(4): a(f"ds_read_b128 {vr(76+4*q,4)}, v9 offset:{S_CNT+1024*q}")
    a(f"ds_read_b32 v15, v{vT0} offset:{S_BAD}")
    a("s_waitcnt lgkmcnt(5)")
    a("v_sad_u8 v10, v12, 0, 0"); a("v_sad_u8 v8, v13, 0, v10"); a("v_mov_b32 v14, v8")
    for q in range(4):
        a(f"s_cmp_gt_u32 s3, {2*q}"); a("s_cselect_b32 exec_lo, -1, 0")
        a(f"s_cmp_gt_u32 s3, {2*q+1}"); a("s_cselect_b32 exec_hi, -1, 0")
        a(f"s_waitcnt lgkmcnt({4-q})")
        for i in range(4):
            a(f"v_sad_u8 v{92+(i&1)}, v{76+4*q+i}, 0, v{92+(i&1)}")
    a("s_mov_b64 exec, -1")
    a("v_add_u32 v92, v92, v93")
    a("s_nop 1")
    for ctl in ("row_shr:1 row_mask:0xf", "row_shr:2 row_mask:0xf", "row_shr:4 row_mask:0xf", "row_shr:8 row_mask:0xf",
                "row_bcast:15 row_mask:0xa", "row_bcast:31 row_mask:0xc"):
        a(f"v_add_u32_dpp v92, v92, v92 {ctl} bank_mask:0xf"); a(f"v_add_u32_dpp v14, v14, v14 {ctl} bank_mask:0xf"); a("s_nop 0")
    a(f"v_readlane_b32 s{sTMP+5}, v92, 63")
    a("v_sub_u32 v14, v14, v8")
    a("s_waitcnt lgkmcnt(0)")
    a("v_or_b32 v73, v12, v15"); a("v_or_b32 v75, v13, v15")
    a(f"v_add_u32 v14, s{sTMP+5}, v14")
    a("v_mov_b32 v72, v14"); a("v_add_u32 v74, v14, v10")
    a("v_mov_b32 v64, v14"); a("v_mov_b32 v65, v12"); a("v_mov_b32 v66, v74"); a("v_mov_b32 v67, v13")
    a(f"ds_write_b128 v6, v[64:67] offset:{S_TBL}")
    a("s_waitcnt lgkmcnt(0)"); a("s_barrier")
    stamp(a, "s_b4")
    LK = 76
    def lookups(lo):
        for i in range(lo, lo + 4): a(f"ds_read_b64 {vr(LK+2*i,2)}, v{KA+i} offset:{S_TBL}")
    def place(lo, wait):
        for i in range(lo, lo + 4):
            a(f"s_waitcnt lgkmcnt({wait})")
            a(f"v_bfe_u32 v9, v{LK+2*i+1}, 0, v{SH+i}"); a(f"v_sad_u8 v9, v9, 0, v{LK+2*i}")
            a(f"v_add_lshl_u32 v9, v9, v{RK+i}, 2"); a(f"ds_write_b32 v9, v{RC+i} offset:{S_SRT}")
    lookups(0)
    a("s_cmp_ge_u32 s3, 5"); a("s_cbranch_scc1 S_2")
    a(f"s_mov_b64 exec, s[{sTMP+2}:{sTMP+3}]")
    lookups(4)
    a("s_mov_b64 exec, -1")
    place(0, 7)
    a(f"s_mov_b64 exec, s[{sTMP+2}:{sTMP+3}]")
    place(4, 7)
    a("s_branch S_3")
    a("S_2:")
    place(0, 3)
    a("S_3:")
    a("s_mov_b64 exec, -1")
    a(f"s_add_u32 s{sTMP}, s{sTMP}, {WS_REC:#x}"); a(f"s_add_u32 s{sTMP+1}, s{sTMP+1}, {WS_REC:#x}")
    a(f"s_lshl_b32 s{sTMP+4}, s{sID}, 13"); a(f"s_add_u32 s{sTMP+4}, s{sTMP+4}, {WS_OFF:#x}")
    if not OFFLATE:
        a("s_waitcnt vmcnt(0)")
        a(f"buffer_store_dwordx4 v[72:75], v6, {D(dWS)}, s{sTMP+4} offen sc1")
    a("s_waitcnt lgkmcnt(0)"); a("s_barrier")
    stamp(a, "s_b5")
    a(f"ds_read_b128 v[64:67], v6 offset:{S_SRT}"); a(f"ds_read_b128 v[68:71], v6 offset:{S_SRT+8192}")
    if OFFLATE:
        a("s_waitcnt vmcnt(0)")
        a(f"buffer_store_dwordx4 v[72:75], v6, {D(dWS)}, s{sTMP+4} offen sc1")
    a("s_waitcnt lgkmcnt(1)")
    a(f"buffer_store_dwordx4 v[64:67], v6, {D(dWS)}, s{sTMP} offen sc1")
    a("s_waitcnt lgkmcnt(0)")
    a(f"s_mov_b64 exec, s[{sTMP+2}:{sTMP+3}]"); a("s_cbranch_execz S_4")
    a(f"buffer_store_dwordx4 v[68:71], v6, {D(dWS)}, s{sTMP+1} offen sc1")
    a("S_4:")
    a("s_mov_b64 exec, -1")
    stamp(a, "p1st")
    a("s_branch ARRIVE")
    a("S_HELP:")
    if SPRIO: a("s_setprio 0")
    a("s_waitcnt lgkmcnt(0)")
    late_args()
    a("s_barrier")
    a(f"s_lshl_b32 s{sTMP}, s{sID}, 4"); a(f"s_add_u32 s{sTMP}, s{sTMP}, s3")
    a(f"s_cmp_lg_u32 s{sTMP}, 8"); a("s_cbranch_scc1 S_H2")
    a("v_mov_b32 v5, 1")
    a("s_mov_b64 exec, 1")
    a("s_waitcnt vmcnt(0) lgkmcnt(0)")
    a(f"buffer_store_dword v5, v{vT0}, {D(dDBG)}, 0 offen sc1")
    a("s_mov_b64 exec, -1")
    a("S_H2:")
    a("s_waitcnt lgkmcnt(0)")
    a(f"s_mov_b64 s[{dW0}:{dW0+1}], s[{sPA}:{sPA+1}]"); a(f"s_mov_b64 s[{dW1}:{dW1+1}], s[{sPU}:{sPU+1}]")
    page_touch(("S", 10))
    parts = [lambda: (a(f"s_lshl_b32 s{sTMP+3}, s{sCG}, 13"), w_group(a, sTMP + 3, L_WAU)),
             lambda: (a(f"s_add_u32 s{sTMP+3}, s{sTMP+3}, 4096"), w_group(a, sTMP + 3, L_WAU)),
             lambda: own_x(a)]
    for slot in range(3):
        for p, where in zip(parts, HPLAN):
            if int(where) == slot: p()
        if slot == 0: stamp(a, "s_keys")
        a("s_barrier")
    a("ARRIVE:")
    a("s_cmp_lt_u32 s3, 8"); a("s_cbranch_scc1 NODE")
    a("s_cmp_eq_u32 s3, 8"); a("s_cbranch_scc1 SIGNAL")
    a("s_waitcnt vmcnt(0)")
    a("s_barrier")
    a(f"s_cmp_ge_u32 s{sID}, {NS}"); a("s_cbranch_scc1 HELP")
    if EPF2:
        a(f"s_mul_i32 s{sTMP+4}, s{sID}, {CH*32}"); a(f"s_sub_u32 s{sTMP+6}, s3, 9"); a(f"s_lshl_b32 s{sTMP+6}, s{sTMP+6}, 13"); a(f"s_add_u32 s{sTMP+4}, s{sTMP+4}, s{sTMP+6}")
        a(f"v_lshl_add_u32 v163, v{vL}, 7, s{sTMP+4}")
        for i in range(EPF2):
            a(f"buffer_load_dword v162, v163, {D(dEA)}, 0 offen"); a(f"v_add_u32 v163, {3*8192}, v163")
    a("s_barrier")
    a("s_branch HELP")
    a("SIGNAL:")
    a(f"s_load_dword s{sOK}, s[{dDBG}:{dDBG+1}], 0")
    a(f"s_and_b32 s{sTMP}, s{sID}, 7"); a(f"s_lshl_b32 s{sTMP}, s{sTMP}, 7")
    a(f"s_bfe_u32 s{sTMP+1}, s{sID}, 0x40003"); a(f"s_lshl_b32 s{sTMP+1}, s{sTMP+1}, 2")
    a(f"s_add_u32 s{sTMP}, s{sTMP}, s{sTMP+1}")
    a(f"s_lshr_b32 s{sTMP+1}, s{sID}, 7"); a(f"s_lshl_b32 s{sTMP+1}, s{sTMP+1}, 10")
    a(f"s_add_u32 s{sTMP}, s{sTMP}, s{sTMP+1}"); a(f"s_add_u32 s{sTMP}, s{sTMP}, {WS_ARR:#x}")
    a(f"v_lshl_add_u32 v33, v{vL}, 11, s{sTMP}")
    a(f"s_and_b32 s{sTMP}, s{sID}, {NREP-1}"); a(f"s_lshl_b32 s{sTMP}, s{sTMP}, 11"); a(f"s_add_u32 s{sTMP}, s{sTMP}, {WS_ARR:#x}")
    a(f"v_lshrrev_b32 v32, 2, v{vL}"); a(f"v_and_b32 v34, 3, v{vL}"); a("v_lshlrev_b32 v34, 4, v34")
    a("v_lshl_add_u32 v32, v32, 7, v34"); a(f"v_add_u32 v32, s{sTMP}, v32")
    a("v_mov_b32 v35, 1")
    a("s_mov_b32 vcc_lo, 0x88800000"); a("s_mov_b32 vcc_hi, 0")
    a("v_cndmask_b32_e64 v36, 0, 1, vcc")
    a("s_mov_b64 exec, 1")
    need_clear("A")
    a(f"s_cmp_lt_u32 s{sID}, {NS}"); a("s_cbranch_scc1 SIG1")
    a("s_mov_b64 exec, -1")
    wait_flags(1, "G")
    a("SIG1:")
    a(f"s_mov_b32 exec_lo, {(1 << min(NREP,32)) - 1:#x}"); a(f"s_mov_b32 exec_hi, {(1 << max(NREP-32,0)) - 1:#x}")
    a(f"s_mov_b32 s{sTMP+5}, 0")
    a("s_waitcnt vmcnt(0)")
    a("s_barrier")
    a(f"buffer_store_dword v35, v33, {D(dWS)}, 0 offen sc1")
    a("s_mov_b64 exec, -1")
    stamp(a, "arrive")
    a(f"s_cmp_ge_u32 s{sID}, {NS}"); a("s_cbranch_scc1 HELP")
    a("s_barrier")
    a("SIG2:")
    wait_flags(1)
    a("s_branch HELP")
    a("NODE:")
    a(f"s_lshl_b32 s{sTMP+5}, s{sBETA}, 13"); a(f"s_add_u32 s{sTMP+5}, s{sTMP+5}, {L_X}")
    gemm_addr(sTMP + 5, L_WAU)
    a(f"s_lshl_b32 s{sTMP+2}, s{sCG}, 7")
    a(f"v_lshl_add_u32 v{LO+1}, v{LO}, 2, s{sTMP+2}"); a(f"v_cvt_f32_u32 v{LO+1}, v{LO+1}")
    a(f"v_mul_f32 v{LO+1}, 0x00800000, v{LO+1}"); a(f"v_lshrrev_b32 v{LO+1}, 16, v{LO+1}"); a(f"v_mov_b32 v{LO}, 0x08800500")
    a("s_mov_b32 exec_lo, 0"); a(f"v_mov_b64 {vr(LO,2)}, 0"); a("s_mov_b32 exec_lo, -1")
    a(f"s_mov_b32 s{sM0}, 0x0000ffff"); a(f"s_mov_b32 s{sM0+1}, 0x0000ffff")
    a(f"s_cmp_lt_u32 s{sID}, {NS}")
    a(f"s_cselect_b32 s{sSTAGE}, 2, 1")
    a(f"s_mov_b32 s{sTMP+6}, {NLOG2E:#x}")
    for j in range(8): a(f"v_lshlrev_b32 v{WCR+j}, 16, v{WCR+j}")
    for j in range(8): a(f"v_mul_f32 v{WCR+j}, s{sTMP+6}, v{WCR+j}")
    for j in range(4): a(f"v_cvt_pk_bf16_f32 v{WC+j}, v{WCR+2*j}, v{WCR+2*j+1}")
    a("ROUND:")
    for j in range(0, 8, 2): a(f"v_mov_b64 {vr(SA+j,2)}, 0")
    a(f"v_lshlrev_b32 v{LTMP+2}, 4, v0")
    for j in range(4): a(f"v_mov_b32 v{LTMP+4+j}, 0x43004300")
    a(f"ds_write_b128 v{LTMP+2}, {vr(LTMP+4,4)} offset:{L_IDX}")
    a(f"ds_write_b128 v{LTMP+2}, {vr(SA,4)} offset:{L_EOF}")
    a("s_cmp_lg_u32 s3, 0"); a("s_cbranch_scc1 R_Z")
    a(f"ds_write_b128 v{LTMP+2}, {vr(SA,4)}")
    a("R_Z:")
    a(f"v_mov_b32 v{LPAT}, 0x43004300")
    if "ptrick" in DBG:
        a("v_mov_b64 v[20:21], 0"); a("v_mov_b64 v[22:23], 0"); a("s_mov_b64 exec, 0x0101"); a("v_mov_b32 v20, 0x3000"); a("s_mov_b64 exec, -1")
    a(f"v_mov_b32 v{IA+1}, 0x3f80"); a(f"v_mov_b32 v{IA+3}, 0x3f80")
    a(f"v_bfe_u32 v{vT1}, v0, 5, 1")
    a(f"v_and_b32 v{vIDX}, 31, v0"); a(f"v_lshlrev_b32 v{vOT}, 4, v{vT1}"); a(f"v_lshl_add_u32 v{vOT}, v{vIDX}, 5, v{vOT}")
    a(f"v_lshlrev_b32 v{vIDX}, 2, v{vIDX}")
    a(f"v_bfe_u32 v{vSa}, v0, 2, 2"); a(f"v_lshl_add_u32 v{vSa}, v{vT1}, 3, v{vSa}"); a(f"v_lshlrev_b32 v{vSa}, 5, v{vSa}")
    a(f"v_and_b32 v{vS0}, 1, v0"); a(f"v_lshl_add_u32 v{vSa}, v{vS0}, 4, v{vSa}")
    a(f"v_bfe_u32 v{vS0}, v0, 1, 1"); a(f"v_lshl_add_u32 v{vSa}, v{vS0}, 3, v{vSa}")
    a(f"v_and_b32 v{LQ4}, 3, v0"); a(f"v_lshlrev_b32 v{LQ4}, 3, v{LQ4}")
    a(f"v_mov_b32 v{LONE}, 48")
    a(f"s_mov_b32 s{sT}, 0"); a(f"s_mov_b32 s{sRDY}, 0")
    a(f"s_mov_b32 s{sTMP+8}, 0x0c010c00"); a(f"s_mov_b32 s{sTMP+9}, 0x0c030c02"); a(f"s_mov_b32 s{sTMP+3}, 0x10001")
    a(f"s_cmp_lg_u32 s{sMODE}, 0"); a("s_cbranch_scc1 SLOWSRC")
    a(f"v_lshrrev_b32 v{LCHV}, 2, v0"); a(f"v_mov_b32 v{LKEY}, v{LQ4}")
    a(f"s_lshl_b32 s{sTMP}, s2, 5"); a(f"s_add_u32 s{sTMP}, s{sTMP}, {WS_OFF:#x}")
    a(f"v_lshl_add_u32 v{LTMP}, v{LCHV}, 13, v{LKEY}"); a(f"v_add_u32 v{LTMP}, s{sTMP}, v{LTMP}")
    a(f"v_mul_u32_u24 v{LRO}, {CH*4}, v{LCHV}"); a(f"v_lshlrev_b32 v{LCHV}, 3, v{LRO}"); a(f"v_add_u32 v{LRO}, {WS_REC:#x}, v{LRO}")
    a("s_waitcnt vmcnt(0) lgkmcnt(0)")
    a("s_barrier")
    stamp(a, "arrive")
    offload = f"buffer_load_dwordx2 {vr(LOFF,2)}, v{LTMP}, {D(dWS)}, 0 offen sc1"
    a(f"s_cmp_eq_u32 s{sSTAGE}, 2"); a("s_cbranch_scc1 CORE")
    a(offload)
    a("s_branch CORE")
    a("HOOK:")
    a(f"s_cmp_lg_u32 s{sSTAGE}, 2"); a("s_cbranch_scc1 AU_G")
    a("s_barrier")
    a("s_branch HOOKED")
    a("AU_DONE:")
    a(f"s_cmp_lg_u32 s{sSTAGE}, 2"); a("s_cbranch_scc1 ALLOCD")
    def au_pack():
        for j in range(8): a(f"v_cvt_pk_bf16_f32 v{UP+j}, v{AV+2*j}, v{AV+2*j+1}")
        for r in range(0, 16, 2): a(f"v_pk_mul_f32 {vr(AB+r,2)}, {vr(AB+r,2)}, s[{sTMP+6}:{sTMP+7}]")
        for j in range(8): a(f"v_cvt_pk_bf16_f32 v{AP+j}, v{AB+2*j}, v{AB+2*j+1}")
        for r in range(0, 32, 2): a(f"v_mov_b64 {vr(DEN+r,2)}, 0")
    a("s_barrier")
    a(offload)
    a("AU_G:")
    a("s_waitcnt vmcnt(0)")
    stamp(a, "off")
    a(f"v_lshl_add_u32 v{LRO}, v{LOFF}, 2, v{LRO}")
    a(f"v_sad_u8 v{LLEN}, v{LOFF+1}, 0, 0")
    for q in range(4):
        if q: a(f"v_cmpx_lt_u32 vcc, {4*q}, v{LLEN}"); a("s_cbranch_execz RECD")
        a(f"buffer_load_dwordx4 {vr(RECQ[q],4)}, v{LRO}, {D(dWS)}, 0 offen offset:{16*q} sc1")
    a("RECD:")
    a("s_mov_b64 exec, -1")
    a("ALLOC:")
    a(f"v_perm_b32 v{LC}, v{LOFF+1}, v{LOFF+1}, s{sTMP+8}"); a(f"v_perm_b32 v{LC+1}, v{LOFF+1}, v{LOFF+1}, s{sTMP+9}")
    a(f"ds_add_rtn_u64 {vr(LADJ,2)}, v{LKEY}, {vr(LC,2)} offset:{L_CNT}")
    a("s_mov_b64 exec, 1")
    a(f"ds_inc_u32 v{vT0}, v{LONE} offset:{L_AD}")
    a("s_mov_b64 exec, -1")
    a(f"v_sad_u8 v{LLEN}, v{LOFF+1}, 0, 0")
    a(f"s_cmp_lg_u32 s{sSTAGE}, 1"); a("s_cbranch_scc1 ALLOCD")
    a(f"s_mov_b32 s{sSTAGE}, 3")
    a("s_branch HOOKED")
    a("ALLOCD:")
    wait_alloc("C", LTMP)
    stamp(a, "barA")
    a(f"ds_read_b64 {vr(LTMP,2)}, v{LQ4} offset:{L_CNT}"); a(f"ds_read_b64 {vr(LTOT,2)}, v{LKEY} offset:{L_CNT}")
    a(f"v_lshrrev_b32 v{LCB}, 4, v{LKEY}"); a(f"v_bfe_u32 v{LKEY}, v{LKEY}, 3, 1")
    a("s_waitcnt lgkmcnt(1)")
    totals(a, LTMP)
    a("s_cbranch_scc1 OVF")
    a("s_waitcnt lgkmcnt(0)")
    a(f"v_sub_u32 v{LTOT}, v{LTOT}, v{LC}"); a(f"v_sub_u32 v{LTOT+1}, v{LTOT+1}, v{LC+1}")
    a(f"v_lshl_add_u32 v{LADJ}, v{LTOT}, 16, v{LADJ}"); a(f"v_lshl_add_u32 v{LADJ+1}, v{LTOT+1}, 16, v{LADJ+1}")
    a(f"v_add_u32_sdwa v{LTOT}, v{LTOT}, v{LTOT} dst_sel:DWORD dst_unused:UNUSED_PAD src0_sel:WORD_0 src1_sel:WORD_1")
    a(f"v_mad_u32_u24 v{LCB}, v{LCB}, s{sC+4}, v{LKEY}")
    a(f"v_mad_u32_u24 v{LADJ+1}, v{LTOT}, s{sTMP+3}, v{LADJ+1}")
    a(f"v_lshlrev_b32 v{LCB}, 7, v{LCB}"); a(f"v_lshlrev_b64 {vr(LADJ,2)}, 2, {vr(LADJ,2)}")
    a(f"s_cmp_eq_u32 s{sBETA}, 0")
    a(f"s_cselect_b32 s{sF0}, 0, s{sC+4}"); a(f"s_cselect_b32 s{sL0}, s{sC}, s{sC+2}")
    a(f"s_cselect_b32 s{sL1}, s{sC+1}, s{sC+3}"); a(f"s_cselect_b32 s{sTEND}, s{sC+4}, s{sC+5}")
    a(f"s_sub_u32 s{sG0}, s{sL0}, 1"); a(f"s_sub_u32 s{sG1}, s{sL1}, 1")
    a(f"s_lshl_b32 s{sTMP}, s{sF0}, 7"); a(f"s_add_u32 s{sTMP}, s{sTMP}, {L_IDX}"); a(f"v_add_u32 v{vIDX}, s{sTMP}, v{vIDX}")
    a(f"s_lshl_b32 s{sTMP}, s{sF0}, 10"); a(f"s_add_u32 s{sTMP+1}, s{sTMP}, {L_O}")
    a(f"v_add_u32 v{vOT}, s{sTMP+1}, v{vOT}"); a(f"v_add_u32 v{vSa}, s{sTMP+1}, v{vSa}"); a(f"v_add_u32 v{vEA}, {L_EA-L_O}, v{vOT}")
    a(f"v_or_b32 v{vS1}, 24, v{vSa}"); a(f"v_add_u32 v{vS0}, 1024, v{vS1}")
    a(f"v_cndmask_b32_e64 v{vS0}, v{vS0}, v{vSa}, s[{sM0}:{sM0+1}]"); a(f"v_cndmask_b32_e64 v{vS1}, v{vSa}, v{vS1}, s[{sM0}:{sM0+1}]")
    a(f"v_mov_b32 v{vSX}, 0xdddd")
    a(f"s_mov_b32 s{sTMP}, 0x1ffff"); a(f"s_mov_b32 s{sTMP+1}, 0xff80"); a(f"s_mov_b32 s{sTMP+2}, 0x007f007f")
    a(f"s_mov_b32 s{sTMP+10}, {ETQ*128}")
    stamp(a, "adj")
    a("PLACE:")
    a("s_waitcnt vmcnt(0)")
    stamp(a, "rec")
    for s in range(16):
        rec = RECQ[s >> 2] + (s & 3); b = LTMP + 6 * (s & 1)
        a(f"v_cmpx_lt_u32 vcc, {s}, v{LLEN}"); a("s_cbranch_execz PLACED")
        a(f"v_and_b32_sdwa v{b+2}, v{rec}, v{LONE} dst_sel:DWORD dst_unused:UNUSED_PAD src0_sel:BYTE_3 src1_sel:DWORD")
        a(f"v_lshrrev_b32 v{b+3}, 18, v{rec}"); a(f"v_lshl_or_b32 v{b+3}, v{b+3}, 9, v{b+3}"); a(f"v_and_b32 v{b+4}, s{sTMP}, v{rec}")
        a(f"v_lshrrev_b64 {vr(b,2)}, v{b+2}, {vr(LADJ,2)}")
        a(f"v_and_or_b32 v{b+3}, v{b+3}, s{sTMP+2}, v{LPAT}"); a(f"v_add_u16 v{b}, {4*s}, v{b}")
        a(f"v_add_u32 v{b+4}, v{b+4}, v{LCHV}"); a(f"v_and_b32 v{b+1}, s{sTMP+1}, v{b}")
        if s < ETS:
            a(f"v_cmp_gt_u32 vcc, s{sTMP+10}, v{b}")
        a(f"v_add3_u32 v{b}, v{b}, v{b+1}, v{LCB}")
        a(f"ds_write2st64_b32 v{b}, v{b+3}, v{b+4} offset0:{L_IDX//256} offset1:{L_EOF//256}")
        if s < ETS:
            a(f"s_and_saveexec_b64 s[{sTMP+4}:{sTMP+5}], vcc")
            a(f"buffer_load_ubyte v163, v{b+4}, {D(dEA)}, 0 offen")
            a(f"s_mov_b64 exec, s[{sTMP+4}:{sTMP+5}]")
    a(f"v_cmpx_lt_u32 vcc, 16, v{LLEN}"); a("s_cbranch_execz PLACED")
    a(f"v_subrev_u32 v{LLEN}, 16, v{LLEN}"); a(f"v_add_u32 v{LRO}, 64, v{LRO}")
    a(f"v_add_u32 v{LADJ}, 0x00400040, v{LADJ}"); a(f"v_add_u32 v{LADJ+1}, 0x00400040, v{LADJ+1}")
    for q in range(4): a(f"buffer_load_dwordx4 {vr(RECQ[q],4)}, v{LRO}, {D(dWS)}, 0 offen offset:{16*q} sc1")
    a("s_branch PLACE")
    a("PLACED:")
    a("s_mov_b64 exec, -1")
    stamp(a, "placed")
    a("s_waitcnt lgkmcnt(0)"); a("s_barrier")
    stamp(a, "bar2")
    idx_reads(a, 0); idx_reads(a, 1, IA + 2)
    a("s_waitcnt lgkmcnt(0)")
    a(addr_mm(RAW[0])); a(addr_mm(RAW[1], IA + 2))
    a(f"s_cmp_lt_i32 s{sTEND}, 1"); a("s_cbranch_scc1 NOTILE")
    a(f"s_cmp_ge_u32 s{sBETA}, {PKORD}"); a("s_cbranch_scc1 NOTILE")
    a("s_nop 15")
    gathers(a, RAW[0]); gathers(a, RAW[1])
    stamp(a, "g01")
    a("NOTILE:")
    a(f"s_cmp_eq_u32 s{sSTAGE}, 0"); a("s_cbranch_scc1 NOPACK")
    a(f"s_mov_b32 s{sTMP+6}, {NLOG2E:#x}"); a(f"s_mov_b32 s{sTMP+7}, {NLOG2E:#x}")
    au_pack()
    t = IX
    a(f"v_bfe_u32 v{t}, v0, 5, 1"); a(f"v_bfe_u32 v{t+1}, v0, 3, 2")
    a(f"s_lshl_b32 s{sTMP+4}, s{sCG}, 2")
    a(f"v_lshl_or_b32 v{t+1}, v{t}, 2, v{t+1}"); a(f"v_xor_b32 v{t+1}, s{sTMP+4}, v{t+1}")
    a(f"v_and_b32 v{t+2}, 7, v0"); a(f"v_lshlrev_b32 v{t+2}, 1, v{t+2}"); a(f"v_lshl_or_b32 v{t+1}, v{t+1}, 4, v{t+2}")
    a(f"s_lshl_b32 s{sTMP+5}, s{sBETA}, 13"); a(f"s_add_u32 s{sTMP+5}, s{sTMP+5}, {L_X}")
    a(f"v_lshl_add_u32 v{t}, v{t}, 10, s{sTMP+5}"); a(f"v_add_u32 v{vEX}, v{t}, v{t+1}")
    a(f"v_bfe_u32 v{t}, v0, 2, 4"); a(f"v_and_b32 v{t+1}, 3, v0"); a(f"v_or_b32 v{t+2}, s{sTMP+4}, v{t+1}"); a(f"v_xor_b32 v{t+2}, v{t+2}, v{t}")
    a(f"v_lshlrev_b32 v{t+2}, 4, v{t+2}"); a(f"v_lshl_add_u32 v{t+2}, v{t}, 8, v{t+2}"); a(f"v_add_u32 v{vEX+1}, s{sTMP+5}, v{t+2}")
    a(f"v_bfe_u32 v{t+3}, v0, 2, 2"); a(f"v_bfe_u32 v{t}, v0, 4, 1"); a(f"v_lshl_or_b32 v{t+3}, v{t}, 3, v{t+3}")
    a(f"v_bfe_u32 v{t}, v0, 5, 1"); a(f"v_lshl_or_b32 v{t+3}, v{t}, 2, v{t+3}"); a(f"v_lshlrev_b32 v{t+1}, 4, v{t+1}"); a(f"v_lshl_or_b32 v{t+3}, v{t+3}, 18, v{t+1}")
    a(f"s_lshl_b32 s{sTMP+4}, s{sBETA}, 17"); a(f"s_lshl_b32 s{sTMP+5}, s2, 8"); a(f"s_add_u32 s{sTMP+4}, s{sTMP+4}, s{sTMP+5}")
    a(f"s_lshl_b32 s{sTMP+5}, s{sCG}, 6"); a(f"s_add_u32 s{sTMP+4}, s{sTMP+4}, s{sTMP+5}")
    a(f"v_add_u32 v{vEX+2}, s{sTMP+4}, v{t+3}"); a(f"v_add_u32 v{vEX+3}, 0x10000, v{vEX+2}")
    a(f"s_mov_b32 s{sSTAGE}, 0")
    a("NOPACK:")
    a(f"s_cmp_lt_i32 s{sTEND}, 1"); a("s_cbranch_scc1 RDONE")
    for r in range(0, 16, 2): a(f"v_mov_b64 {vr(G[1]+r,2)}, 0")
    idx_reads(a, 2)
    a(f"s_cmp_lt_u32 s{sBETA}, {PKORD}"); a("s_cbranch_scc1 GDONE")
    a("s_nop 3")
    gathers(a, RAW[0]); gathers(a, RAW[1])
    a("GDONE:")
    poll(a, stubs, "P")
    stamp(a, "polled")
    a(f"ds_read_b128 {vr(IX,4)}, v{vEA}"); a(f"ds_read_b128 {vr(IX+4,4)}, v{vOT}")
    a(f"s_waitcnt vmcnt(16) lgkmcnt(0)")
    a(f"{MF} {vr(G[0],16)}, {vr(IX,4)}, {vr(WC,4)}, {vr(RAW[0],16)}")
    a(f"{MF} {vr(G[0],16)}, {vr(IX+4,4)}, {vr(AP,4)}, {vr(G[0],16)}")
    a("s_nop 11")
    stamp(a, "loop0")
    a(".p2align 6")
    a("LOOP:")
    for ph in range(6):
        R0, R1, R2 = RAW[ph % 3], RAW[(ph + 1) % 3], RAW[(ph + 2) % 3]
        Gc, Gn = G[ph % 2], G[(ph + 1) % 2]
        APn = AP + 4 * ((ph + 1) % 2); vS = (vS0, vS1)[ph % 2]
        ms = ms_list(Gn)
        a(f"s_cmp_ge_u32 s{sT}, s{(sL0, sL1)[ph % 2]}"); a(f"s_cbranch_scc1 SKIP_{ph}")
        a(f"s_add_u32 s{sT}, s{sT}, 1")
        prio(a, 0)
        if ITS: a("s_memtime s[4:5]"); a(f"s_add_u32 m0, s{sT}, 19")
        if ITS: a("s_waitcnt lgkmcnt(0)"); a("v_writelane_b32 v167, s4, m0")
        cnt = {k: 0 for k in "erasmDN"}
        rdy = ph % RDYP == RDYP - 2
        lg = []
        def need(tag):
            last = max(i for i, t in enumerate(lg) if t == tag)
            return len(lg) - 1 - last
        sseen = False
        for tk in SCHED:
            if tk in "er":
                for i in range(4*cnt[tk], 4*cnt[tk]+4): a(f"v_{'exp' if tk == 'e' else 'rcp'}_f32 v{Gc+i}, v{Gc+i}")
            elif tk == "a":
                for i in range(8*cnt[tk], 8*cnt[tk]+8, 2): a(f"v_pk_add_f32 {vr(Gc+i,2)}, {vr(Gc+i,2)}, 1.0 op_sel_hi:[1,0]")
            elif tk == "s" and "ptrick" in DBG:
                a(f"{SMF} {vr(Gn,16)}, {vr(20,4)}, {vr(R1+8*cnt[tk],8)}, v{vSX}")
            elif tk == "s":
                if SHL64:
                    for i in range(8*cnt[tk], 8*cnt[tk]+8, 2): a(f"v_lshlrev_b64 {vr(R0+i,2)}, 16, {vr(R0+i,2)}")
                else:
                    for i in range(8*cnt[tk], 8*cnt[tk]+8): a(f"v_lshlrev_b32 v{R0+i}, 16, v{R0+i}")
            elif tk == "m":
                for i in range(8*cnt[tk], 8*cnt[tk]+8, 2): a(f"v_pk_mul_f32 {vr(R0+i,2)}, {vr(R0+i,2)}, {vr(Gc+i,2)}")
            elif tk == "D":
                a(ms[cnt[tk]])
            elif tk == "N":
                if not sseen: a(f"s_waitcnt lgkmcnt({need('L')})"); sseen = True
                else: a("s_nop 0")
                if cnt[tk] == 1: a(f"s_cmp_ge_u32 s{sT}, s{sTEND}")
                elif a.l[-2].strip().startswith("v_pk_mul"): a("s_nop 0")
                a(smf(NUM, R0, cnt[tk]))
            elif tk == "G":
                a(f"s_waitcnt vmcnt(16) lgkmcnt({need('A')})")
                a(f"{MF} {vr(Gn,16)}, {vr(IX,4)}, {vr(WC,4)}, {vr(R1,16)}")
            elif tk == "H":
                a(f"{MF} {vr(Gn,16)}, {vr(IX+4,4)}, {vr(APn,4)}, {vr(Gn,16)}")
            elif tk == "L":
                for u in range(4): a(f"ds_read_b64_tr_b16 {vr(SA+2*u,2)}, v{vS} offset:{ph*1024+(u>>1)*512+(u&1)*128}")
                lg += ["L"] * 4
            elif tk == "A":
                a(addr_mm(R2)); apos = len(a.l)
            elif tk == "V":
                if ph % RDYP == RDYP - 1: a(f"v_readfirstlane_b32 s{sRDY}, v{vT1}")
                a(f"s_cmp_ge_u32 s{sT}, s{(sG0, sG1)[ph % 2]}"); a(f"s_cbranch_scc1 NOG_{ph}")
                assert len(a.l) - apos >= 14
                gathers(a, R2)
                a(f"NOGD_{ph}:")
                stubs(f"NOG_{ph}:"); stubs("s_waitcnt vmcnt(0)"); stubs(f"s_branch NOGD_{ph}")
                if ph % 2 == 1: publish(a)
                poll(a, stubs, ph)
                idx_reads(a, ph + 3)
                if rdy: a(f"ds_read_b32 v{vT1}, v{vT0} offset:{L_RDY}")
                a(f"ds_read_b128 {vr(IX,4)}, v{vEA} offset:{(ph+1)*1024}"); a(f"ds_read_b128 {vr(IX+4,4)}, v{vOT} offset:{(ph+1)*1024}")
                lg += ["A", "A"]
            else:
                prio(a, int(tk))
            if tk in cnt: cnt[tk] += 1
        assert cnt == dict(e=4, r=4, a=2, s=2, m=2, D=2, N=2) and SCHED.endswith("mN")
        a(f"s_cbranch_scc1 DRAIN_{ph%2}")
        a(f"NEXT_{ph}:")
        stubs(f"SKIP_{ph}:")
        stubs(f"s_add_u32 s{sT}, s{sT}, 1")
        st2 = A()
        if ph % 2 == 1: publish(stubs)
        poll(stubs, st2, f"S{ph}")
        idx_reads(stubs, ph + 3)
        stubs(f"ds_read_b128 {vr(IX,4)}, v{vEA} offset:{(ph+1)*1024}"); stubs(f"ds_read_b128 {vr(IX+4,4)}, v{vOT} offset:{(ph+1)*1024}")
        for m in ms: stubs(m)
        for r in range(0, 16, 2): stubs(f"v_mov_b64 {vr(Gc+r,2)}, 0")
        for j in range(0, 8, 2): stubs(f"v_mov_b64 {vr(SA+j,2)}, 0")
        stubs("s_waitcnt vmcnt(0) lgkmcnt(0)")
        stubs(f"{MF} {vr(Gn,16)}, {vr(IX,4)}, {vr(WC,4)}, {vr(R1,16)}")
        stubs(f"{MF} {vr(Gn,16)}, {vr(IX+4,4)}, {vr(APn,4)}, {vr(Gn,16)}")
        stubs("s_nop 9")
        stubs(f"s_branch NEXT_{ph}")
        stubs.l += st2.l
    a(f"v_add_u32 v{vIDX}, {6*128}, v{vIDX}"); a(f"v_add_u32 v{vEA}, {6*1024}, v{vEA}")
    a(f"v_add_u32 v{vOT}, {6*1024}, v{vOT}")
    a(f"v_add_u32 v{vS0}, {6*1024}, v{vS0}"); a(f"v_add_u32 v{vS1}, {6*1024}, v{vS1}")
    a("s_branch LOOP")
    for p in range(2):
        a(f"DRAIN_{p}:"); a("s_waitcnt lgkmcnt(0)")
        for m in ms_list(G[p]): a(m)
        if p == 0: a("s_branch RDONE")
    a("RDONE:")
    a(f"v_mov_b32 v{vT1}, 16"); a(f"ds_add_u32 v{vT0}, v{vT1} offset:{L_PROG}")
    a(f"s_cmp_lg_u32 s{sMODE}, 0"); a("s_cbranch_scc1 SLOWNEXT")
    a("EPI:")
    stamp(a, "loopend")
    XD = G[1]
    for r in range(0, 16, 2): a(f"v_mov_b64 {vr(XD+r,2)}, 0")
    xa = lambda r: vEX if (r & 7) == 0 else SA + (r & 7)
    for r in range(1, 8): a(f"v_xor_b32 v{SA+r}, {(8*(r>>2)+(r&3))*16}, v{vEX}")
    for r in range(16): a(f"ds_read_u16_d16_hi v{XD+r}, v{xa(r)} offset:{(8*(r>>2)+(r&3))*256}")
    a(f"s_mov_b32 s{sTMP+4}, 0x358637bd"); a(f"s_mov_b32 s{sTMP+5}, 0x358637bd")
    for r in range(0, 16, 2): a(f"v_pk_add_f32 {vr(DEN+r,2)}, {vr(DEN+r,2)}, s[{sTMP+4}:{sTMP+5}]")
    for r in range(16): a(f"v_rcp_f32 v{DEN+r}, v{DEN+r}")
    UD = G[0]
    for r in range(16):
        a(f"v_and_b32 v{UD+r}, 0xffff0000, v{UP+r//2}" if r & 1 else f"v_lshlrev_b32 v{UD+r}, 16, v{UP+r//2}")
    for r in range(0, 16, 2): a(f"v_pk_fma_f32 {vr(UD+r,2)}, {vr(NUM+r,2)}, {vr(DEN+r,2)}, {vr(UD+r,2)}")
    for r in range(16): a(f"v_max_f32 v{UD+r}, 0, v{UD+r}")
    a("s_waitcnt lgkmcnt(0)")
    for r in range(0, 16, 2): a(f"v_pk_add_f32 {vr(UD+r,2)}, {vr(UD+r,2)}, {vr(XD+r,2)}")
    for j in range(8): a(f"v_cvt_pk_bf16_f32 v{XD+j}, v{UD+2*j}, v{UD+2*j+1}")
    for r in range(16):
        a(f"{'ds_write_b16_d16_hi' if r & 1 else 'ds_write_b16'} v{xa(r)}, v{XD+r//2} offset:{(8*(r>>2)+(r&3))*256}")
    a(f"ds_read_b128 {vr(UD,4)}, v{vEX+1}"); a(f"ds_read_b128 {vr(UD+4,4)}, v{vEX+1} offset:4096")
    a("s_waitcnt lgkmcnt(1)"); a(f"buffer_store_dwordx4 {vr(UD,4)}, v{vEX+2}, {D(dOUT)}, 0 offen {OPOL}")
    a("s_waitcnt lgkmcnt(0)"); a(f"buffer_store_dwordx4 {vr(UD+4,4)}, v{vEX+3}, {D(dOUT)}, 0 offen {OPOL}")
    if STAMP:
        a("s_waitcnt vmcnt(0)"); a(f"s_add_u32 s6, s{sL0}, s{sL1}"); a("s_lshr_b32 s6, s6, 1")
    stamp(a, "end"); stamp_out(a, "s6")
    a("F_END:")
    a("s_endpgm")
    a.l += stubs.l
    a("SLOWNEXT:")
    a(f"s_cmp_eq_u32 s{sROUND}, 999"); a("s_cbranch_scc1 EPI")
    a(f"s_add_u32 s{sROUND}, s{sROUND}, 1")
    a("OVF:")
    a(f"s_mov_b32 s{sMODE}, 1")
    a("s_waitcnt vmcnt(0) lgkmcnt(0)"); a("s_barrier"); a("s_branch ROUND")
    a("SLOWSRC:")
    a(f"s_mul_i32 s{sTMP}, s{sROUND}, 1600"); a(f"v_lshlrev_b32 v{LRO}, 2, v0")
    a(f"buffer_load_dword v{LKEY}, v{LRO}, {D(dDST)}, s{sTMP} offen"); a(f"buffer_load_dword v{LOFF}, v{LRO}, {D(dSRC)}, s{sTMP} offen")
    a(f"s_mul_i32 s{sTMP+2}, s{sROUND}, {400*32}")
    a(f"v_lshl_add_u32 v{LTMP}, v0, 5, 1"); a(f"v_mov_b32 v{LCHV}, s{sTMP+2}")
    a("s_waitcnt vmcnt(0) lgkmcnt(0)"); a("s_barrier")
    a(f"v_lshl_or_b32 v{LTMP}, v{LOFF}, 18, v{LTMP}"); a(f"v_lshrrev_b32 v{LTMP+1}, 10, v{LKEY}")
    a(f"v_add_u32 v{RECQ[0]}, v{LTMP+1}, v{LTMP}")
    a(f"v_and_b32 v{LTMP+1}, 255, v{LKEY}"); a(f"v_cmp_eq_u32 vcc, s2, v{LTMP+1}")
    a(f"v_lshrrev_b32 v{LOFF}, 7, v{LOFF}"); a(f"v_and_b32 v{LOFF}, 24, v{LOFF}")
    a(f"v_cndmask_b32_e64 v{LOFF+1}, 0, 1, vcc"); a("v_cmp_gt_u32 vcc, 400, v0")
    a(f"v_bfe_u32 v{LKEY}, v{LKEY}, 8, 2"); a(f"v_lshlrev_b32 v{LOFF+1}, v{LOFF}, v{LOFF+1}"); a(f"v_lshlrev_b32 v{LKEY}, 3, v{LKEY}")
    a(f"v_cndmask_b32 v{LOFF+1}, 0, v{LOFF+1}, vcc")
    a("s_branch ALLOC")
    a("HELP:")
    a("PROUND:")
    a(f"v_and_b32 v15, 3, v{vL}"); a("v_lshlrev_b32 v15, 3, v15")
    a(f"v_lshrrev_b32 v2, 1, v{vL}"); a("v_lshlrev_b32 v2, 2, v2")
    a(f"v_and_b32 v3, 1, v{vL}"); a("v_lshlrev_b32 v3, 4, v3")
    a("v_mov_b32 v5, 1")
    a(f"v_and_b32 v10, 7, v{vL}"); a(f"v_bfe_u32 v11, v{vL}, 3, 1"); a("v_lshlrev_b32 v10, 1, v10")
    a(f"v_lshl_add_u32 v10, v11, {LUT_H}, v10"); a(f"v_lshl_add_u32 v10, v{vL}, 4, v10"); a("v_mov_b32 v11, 0x3f80")
    if RPF:
        a(f"v_lshrrev_b32 v12, 4, v{vL}"); a(f"v_mul_u32_u24 v12, {32*CH*4}, v12")
        a(f"v_and_b32 v13, 15, v{vL}"); a("v_lshl_add_u32 v12, v13, 7, v12")
        a(f"s_mul_i32 s{sTMP}, s{sU}, {CH*4}"); a(f"s_lshr_b32 s{sTMP+1}, s2, 5"); a(f"s_mul_i32 s{sTMP+1}, s{sTMP+1}, 1604")
        a(f"s_add_u32 s{sTMP}, s{sTMP}, s{sTMP+1}"); a(f"s_add_u32 s{sTMP}, s{sTMP}, {WS_REC - 192:#x}")
        a(f"v_add_u32 v12, s{sTMP}, v12"); a(f"v_min_u32 v12, {WS_REC + NS*CH*4 - 4:#x}, v12"); a(f"v_max_u32 v12, {WS_REC:#x}, v12")
    stamp(a, "pre")
    a(f"s_cmp_lg_u32 s{sMODE}, 0"); a("s_cbranch_scc1 H_BAR")
    a(f"s_cmp_ge_u32 s{sID}, {NS}"); a("s_cbranch_scc1 H_NB")
    a("H_BAR:")
    a("s_barrier")
    a("H_NB:")
    stamp(a, "go")
    if RPF:
        a("s_cmp_lg_u32 s3, 9"); a("s_cbranch_scc1 H_R")
        a(f"s_cmp_lg_u32 s{sMODE}, 0"); a("s_cbranch_scc1 H_R")
        a(f"buffer_load_dword v161, v12, {D(dWS)}, 0 offen sc1")
        a("H_R:")
    a("s_mov_b64 exec, 0x1fff"); a(f"ds_write_b16 v10, v11 offset:{L_LUT+16}"); a("s_mov_b64 exec, -1")
    a("s_cmp_lg_u32 s3, 8"); a("s_cbranch_scc1 H_G2")
    a(f"s_cmp_lg_u32 s{sMODE}, 0"); a("s_cbranch_scc1 H_G2")
    a(f"v_lshlrev_b32 v14, 7, v{vL}"); a(f"s_lshl_b32 s{sTMP}, s{sU}, 13"); a(f"v_add_u32 v14, s{sTMP}, v14")
    wait_alloc("T", 8, 2)
    wait_flags(2)
    stamp(a, "go2")
    if PFW: wait_alloc("P", 8)
    for i in range(PF):
        a(f"s_mov_b32 s{sTMP}, {TABO + (i>>1)*2097152 + (i&1)*262144:#x}")
        a(f"buffer_load_dword v160, v14, {D(dTAB)}, s{sTMP} offen sc1")
    a("H_G2:")
    wait_alloc("H", 8, 2)
    a(f"ds_read_b64 v[8:9], v15 offset:{L_CNT}")
    a("s_waitcnt lgkmcnt(0)")
    totals(a, 8)
    a("s_cbranch_scc1 POVF")
    a("s_cmp_lg_u32 s3, 8"); a("s_cbranch_scc1 EXP")
    a(f"s_max_u32 s{sTEND}, s{sC+4}, s{sC+5}")
    a(f"s_lshl_b32 s{sTMP+2}, s{sC+4}, 7"); a(f"v_add_u32 v6, s{sTMP+2}, v2")
    a(f"s_mov_b32 s{sT}, 0"); a(f"s_mov_b32 s{sTMP}, {L_EA}"); a(f"s_mov_b32 s{sTMP+3}, {-PINC*(PK+LEADX)}"); a(f"s_mov_b32 s{sRDY}, 0")
    a(f"s_lshl_b32 s{sTMP+1}, s{sC+4}, 10"); a(f"s_add_u32 s{sTMP+1}, s{sTMP+1}, {L_EA}")
    a(f"s_mov_b32 s{sTMP+6}, -32"); a(f"s_mov_b32 s{sTMP+7}, 0")
    if PPRIO: a(f"s_setprio {PPRIO}")
    a("s_barrier")
    stamp(a, "bar2")
    a(f"ds_read_b32 v10, v2 offset:{L_EOF}"); a(f"ds_read_b32 v11, v6 offset:{L_EOF}")
    a("PSTEP:")
    a(f"s_cmp_ge_u32 s{sT}, s{sTEND}"); a("s_cbranch_scc1 PDRAIN")
    if PACE: a(f"s_cmp_lt_i32 s{sRDY}, s{sTMP+3}"); a("s_cbranch_scc1 PW")
    a("PWD:")
    a(f"s_min_u32 m0, s{sTMP}, {L_EA + NT*1024}")
    a("s_waitcnt lgkmcnt(0)")
    for hb in range(2):
        a(f"v_mov_b32 v{12+hb}, v3" if NOEA else f"v_and_or_b32 v{12+hb}, v{10+hb}, s{sTMP+6}, v3")
    a("v_add_u32 v2, 128, v2"); a("v_add_u32 v6, 128, v6")
    a(f"buffer_load_dwordx4 v12, {D(dEA)}, 0 offen lds")
    a(f"s_min_u32 m0, s{sTMP+1}, {L_EA + NT*1024}")
    a(f"ds_read_b32 v10, v2 offset:{L_EOF}")
    if SPLIT:
        a(f"s_add_i32 s{sTMP+8}, s{sTMP+3}, 2")
        a(f"s_cmp_lt_i32 s{sRDY}, s{sTMP+8}"); a("s_cbranch_scc1 PW2")
        a("PWD2:")
    a(f"buffer_load_dwordx4 v13, {D(dEA)}, 0 offen lds")
    a(f"ds_read_b32 v11, v6 offset:{L_EOF}")
    a(f"s_add_u32 s{sTMP}, s{sTMP}, 1024"); a(f"s_add_u32 s{sTMP+1}, s{sTMP+1}, 1024")
    a(f"s_add_i32 s{sTMP+3}, s{sTMP+3}, {PINC}"); a(f"s_add_u32 s{sT}, s{sT}, 1")
    if STAMP and ITS:
        a("s_memtime s[4:5]"); a(f"s_add_u32 m0, s{sT}, 19"); a("s_waitcnt lgkmcnt(0)"); a("v_writelane_b32 v167, s4, m0")
    a(f"s_cmp_le_u32 s{sT}, {PK}"); a("s_cbranch_scc1 PSTEP")
    a(f"s_cmp_lt_u32 s{sTMP+7}, s{sT}"); a("s_cbranch_scc1 PO")
    a("POD:")
    if PPRIO: a("s_setprio 0")
    a("s_mov_b64 exec, 1"); a(f"s_waitcnt vmcnt({2*PK})"); a(f"ds_add_u32 v{vT0}, v5 offset:{L_RDY}"); a("s_mov_b64 exec, -1")
    a("s_branch PSTEP")
    a("PW:")
    a(f"ds_read_b32 v8, v{vT0} offset:{L_PROG}"); a("s_waitcnt lgkmcnt(0)"); a(f"v_readfirstlane_b32 s{sRDY}, v8")
    a(f"s_cmp_ge_i32 s{sRDY}, s{sTMP+3}"); a("s_cbranch_scc1 PWD"); a("s_sleep 2"); a("s_branch PW")
    if SPLIT:
        a("PW2:")
        a(f"ds_read_b32 v8, v{vT0} offset:{L_PROG}"); a("s_waitcnt lgkmcnt(0)"); a(f"v_readfirstlane_b32 s{sRDY}, v8")
        a(f"s_cmp_ge_i32 s{sRDY}, s{sTMP+8}"); a("s_cbranch_scc1 PWD2"); a("s_sleep 2"); a("s_branch PW2")
    a("PO:")
    a(f"ds_read_b32 v8, v{vT0} offset:{L_OD}"); a("s_waitcnt lgkmcnt(0)"); a(f"v_readfirstlane_b32 s{sTMP+7}, v8")
    stamp(a, "p_od")
    a(f"s_and_b32 s{sTMP+4}, s{sTMP+7}, 3"); a(f"s_cmp_eq_u32 s{sTMP+4}, 3"); a(f"s_cselect_b32 s{sTMP+4}, {3+PK}, 0")
    a(f"s_cmp_eq_u32 s{sTMP+7}, 15"); a(f"s_cselect_b32 s{sTMP+7}, -1, s{sTMP+4}")
    a(f"s_cmp_ge_u32 s{sTMP+7}, s{sT}"); a("s_cbranch_scc1 POD"); a("s_sleep 1"); a("s_branch PO")
    a("EXP:")
    NE = NT // 3
    a(f"s_sub_u32 s{sT}, s3, 9")
    a(f"s_add_u32 s{sTMP+1}, s{sT}, s{sC+4}"); a(f"s_min_u32 s{sTMP+1}, s{sTMP+1}, {NT-1}")
    a(f"s_lshl_b32 s{sTMP}, s{sT}, 7"); a(f"v_add_u32 v10, s{sTMP}, v2")
    a(f"s_lshl_b32 s{sTMP}, s{sTMP+1}, 7"); a(f"v_add_u32 v11, s{sTMP}, v2")
    a(f"s_lshl_b32 s{sTMP}, s{sT}, 10"); a(f"v_lshl_add_u32 v12, v{vL}, 4, s{sTMP}")
    a(f"s_lshl_b32 s{sTMP}, s{sTMP+1}, 10"); a(f"v_lshl_add_u32 v13, v{vL}, 4, s{sTMP}")
    a("v_mov_b32 v14, 4")
    a(f"s_mul_i32 s{sTMP}, s{sT}, {NE*128}"); a(f"s_add_u32 s{sTMP}, s{sTMP}, {L_EOF}"); a(f"v_add_u32 v2, s{sTMP}, v2")
    a(f"s_mul_i32 s{sTMP}, s{sT}, {NE*1024}"); a(f"s_add_u32 s{sTMP}, s{sTMP}, {L_O}"); a(f"v_lshl_add_u32 v6, v{vL}, 4, s{sTMP}")
    a(f"v_lshlrev_b32 v3, {LUT_H-4}, v3")
    a(f"s_setprio {HPRIO}")
    a("s_barrier")
    EA_, ED_ = 16, 40
    for j in range(2): a(f"ds_read_b32 v{10+j}, v{10+j} offset:{L_EOF}")
    for j in range(2):
        a(f"s_waitcnt lgkmcnt(1)")
        a(f"v_and_b32 v{10+j}, 31, v{10+j}"); a(f"v_lshl_add_u32 v{10+j}, v{10+j}, 4, v3")
        a(f"ds_read_b128 {vr(128+4*j,4)}, v{10+j} offset:{L_LUT}")
    for j in range(2):
        a(f"s_waitcnt lgkmcnt(1)"); a(f"ds_write_b128 v{12+j}, {vr(128+4*j,4)} offset:{L_O}")
    a("s_mov_b64 exec, 1"); a(f"ds_add_u32 v{vT0}, v5 offset:{L_OD}"); a("s_mov_b64 exec, -1")
    a(f"s_setprio {HPRIO2}")
    for i in range(0, NE, 2):
        a(f"ds_read2_b32 {vr(EA_+i,2)}, v2 offset0:{(i%8)*32} offset1:{(i%8)*32+32}")
        if i % 8 == 6: a("v_add_u32 v2, 1024, v2")
    seq = [("E", i) for i in range(0, NE, 2)]
    def wait_for(op):
        a(f"s_waitcnt lgkmcnt({min(len(seq) - 1 - seq.index(op), 15)})")
    LA = 5
    def lut(i):
        if i % 2 == 0: wait_for(("E", i))
        a(f"v_and_b32 v{EA_+i}, 31, v{EA_+i}"); a(f"v_lshl_add_u32 v{EA_+i}, v{EA_+i}, 4, v3")
        a(f"ds_read_b128 {vr(ED_+4*i,4)}, v{EA_+i} offset:{L_LUT}"); seq.append(("L", i))
    for i in range(LA): lut(i)
    for i in range(NE):
        if i + LA < NE: lut(i + LA)
        wait_for(("L", i))
        a(f"ds_write_b128 v6, {vr(ED_+4*i,4)} offset:{1024*i}"); seq.append(("W", i))
    a("EDONE:")
    a("s_mov_b64 exec, 1"); a(f"ds_add_u32 v{vT0}, v14 offset:{L_OD}"); a("s_mov_b64 exec, -1")
    a("s_branch PFIN")
    a("PDRAIN:")
    a(f"ds_read_b32 v8, v{vT0} offset:{L_OD}"); a("s_waitcnt lgkmcnt(0)"); a(f"v_readfirstlane_b32 s{sTMP+7}, v8")
    a(f"s_cmp_lt_u32 s{sTMP+7}, 15"); a("s_cbranch_scc1 PDRAIN")
    a("s_mov_b64 exec, 1")
    for k in range(PK - 1, 0, -1):
        a(f"s_cmp_le_u32 s{sT}, {k}"); a(f"s_cbranch_scc1 PD_{k}")
        a(f"s_waitcnt vmcnt({2*k})"); a(f"ds_add_u32 v{vT0}, v5 offset:{L_RDY}"); a(f"PD_{k}:")
    a("v_mov_b32 v5, 0x7fffffff"); a("s_waitcnt vmcnt(0)"); a(f"ds_write_b32 v{vT0}, v5 offset:{L_RDY}")
    a("s_mov_b64 exec, -1")
    stamp(a, "loopend"); stamp_out(a, "0")
    a("PFIN:")
    a(f"s_cmp_eq_u32 s{sMODE}, 0"); a("s_cbranch_scc1 PEND")
    a(f"s_cmp_eq_u32 s{sROUND}, 999"); a("s_cbranch_scc1 PEND")
    a(f"s_add_u32 s{sROUND}, s{sROUND}, 1")
    a("POVF:")
    a(f"s_mov_b32 s{sMODE}, 1")
    a("s_waitcnt vmcnt(0) lgkmcnt(0)"); a("s_barrier"); a("s_branch PROUND")
    a("PEND:")
    a("s_endpgm")
    a("CODE_END:")

def main(out):
    K = "standalone__edge_featured_mpnn_gatedgcn__graph_kernel"
    head = []
    for line in open("standalone__edge_featured_mpnn_gatedgcn__graph.s.ref").read().split("\n"):
        if not line.startswith(";"): break
        if "@launch" in line or "Override launch" in line or "grid=ceil" in line: continue
        head.append(line)
    a = A(); gen(a, K)
    t = "\n".join(head) + "\n"
    t += (f"; @launch kernel={K} " if LIST else "; @launch ") + f"grid=(256,1,1) block=(768,1,1) lds={L_TOTAL}\n"
    t += '.amdgcn_target "amdgcn-amd-amdhsa--gfx950"\n.text\n'
    t += f".globl {K}\n.p2align 8\n.type {K},@function\n" + a.text()
    t += f'''.section .rodata,"a"
.p2align 6
.amdhsa_kernel {K}
  .amdhsa_next_free_vgpr 168
  .amdhsa_next_free_sgpr 102
  .amdhsa_accum_offset 168
  .amdhsa_group_segment_fixed_size 0
  .amdhsa_kernarg_size 96
  .amdhsa_user_sgpr_count 2
  .amdhsa_user_sgpr_kernarg_segment_ptr 1
  .amdhsa_system_sgpr_workgroup_id_x 1
.end_amdhsa_kernel
'''
    if STAMP: t = "; stamps " + ",".join(NAMES) + "\n" + t
    open(out, "w").write(t)

if __name__ == "__main__":
    main(sys.argv[1] if len(sys.argv) > 1 else "standalone__edge_featured_mpnn_gatedgcn__graph.s")
```
